```python
import torch

def _softmax(x, axis=-1):
    return torch.softmax(x, dim=axis)
def _gelu(x):
    return torch.nn.functional.gelu(x, approximate="tanh")
def _silu(x):
    return torch.nn.functional.silu(x)
def _sigmoid(x):
    return torch.sigmoid(x)
def _layernorm(x, axis=-1, eps=1e-5):
    m = x.mean(dim=axis, keepdim=True)
    v = x.var(dim=axis, keepdim=True, unbiased=False)
    return (x - m) / torch.sqrt(v + eps)
def _scatter_add(tgt, idx, src, axis=0):
    return tgt.clone().index_add_(axis, idx, src)
def _segment_sum(src, seg, n):
    out = torch.zeros((n,) + src.shape[1:], dtype=src.dtype)
    return out.index_add_(0, seg, src)
def _pad(x, pw):
    flat = tuple(v for pair in reversed(pw) for v in pair)
    return torch.nn.functional.pad(x, flat)

kernel_name = 'gated_mix__spectral_gfnet__swiglu_ffn__prompt'

def setup_inputs():

    _w = (lambda a: (lambda t: t.to(torch.bfloat16) if t.is_floating_point() else t)(torch.as_tensor(a)))
    def _A_setup():
        B, S, D = 1, 2048, 448
        Df = D // 2 + 1
        return {
            "x": _w((lambda *s: torch.randn(*s, dtype=torch.bfloat16) * 0.05)(B, S, D)),
            "w_r": _w((lambda *s: torch.randn(*s, dtype=torch.bfloat16) * 0.8)(S, Df) * 0.02),
            "w_i": _w((lambda *s: torch.randn(*s, dtype=torch.bfloat16) * 0.8)(S, Df) * 0.02),
        }
    _A_in = _A_setup()

    def _B_setup():
        B, S, D, F = 1, 2048, 448, 1792
        return {
            "x": _w((lambda *s: torch.randn(*s, dtype=torch.bfloat16) * 0.05)(B, S, D)),
            "w_gate": _w((lambda *s: torch.randn(*s, dtype=torch.bfloat16) * 0.05)(D, F)),
            "w_up": _w((lambda *s: torch.randn(*s, dtype=torch.bfloat16) * 0.05)(D, F)),
            "w_down": _w((lambda *s: torch.randn(*s, dtype=torch.bfloat16) * 0.05)(F, D)),
        }
    _B_in = _B_setup()

    return {
        "A_x": _A_in["x"],
        "A_w_r": _A_in["w_r"],
        "A_w_i": _A_in["w_i"],
        "B_x": _B_in["x"],
        "B_w_gate": _B_in["w_gate"],
        "B_w_up": _B_in["w_up"],
        "B_w_down": _B_in["w_down"],
        "gate_w": _w((lambda *s: torch.randn(*s, dtype=torch.bfloat16) * 0.05)(448) * 16.0),
    }

def reference(A_x, A_w_r, A_w_i, B_x, B_w_gate, B_w_up, B_w_down, gate_w):
    def _A_ref(x, w_r, w_i):
        B, S, D = x.shape
        X = (lambda x, axes=(-2,-1): torch.fft.rfft2(x.float(), dim=axes))(x, axes=(-2, -1))
        W = w_r + 1j * w_i
        X = X * W
        y = (lambda x, s, axes=(-2,-1): torch.fft.irfft2(x, s=s, dim=axes).to(torch.bfloat16))(X, (S, D), axes=(-2, -1))
        return y

    def _B_ref(x, w_gate, w_up, w_down):
        g = _silu(x @ w_gate)
        u = x @ w_up
        return (g * u) @ w_down

    x = A_x
    g = _sigmoid((x * gate_w).sum(-1, keepdims=True))
    a = _A_ref(x, A_w_r, A_w_i)
    b = _B_ref(x, B_w_gate, B_w_up, B_w_down)
    return g * a + (1 - g) * b
```

```python
import re


class I:
    __slots__ = ("t", "tag", "vm", "ds")

    def __init__(self, t, tag=None, vm=None, ds=None):
        self.t = t
        self.tag = tag
        self.vm = vm
        self.ds = ds


def W(vm=None, ds=None):
    return I("", vm=vm, ds=ds)


def kind(t):
    op = t.split()[0] if t else "s_waitcnt"
    if op.startswith("v_mfma"):
        return "M"
    if op.startswith("ds_"):
        return "D"
    if op.startswith("buffer_") or op.startswith("global_"):
        return "G"
    if op.startswith("v_"):
        return "V"
    return "S"


TRANS = ("v_exp_f32", "v_rcp_f32", "v_cos_f32", "v_sin_f32", "v_log_f32", "v_rsq_f32", "v_sqrt_f32")


def cost(t):
    op = t.split()[0] if t else ""
    return 2 if op in TRANS else 1


class Prog:
    def __init__(self):
        self.out = []
        self.reset()

    def reset(self):
        self.vm_n = 0
        self.vm_done = 0
        self.vm_tag = {}
        self.ds_n = 0
        self.ds_done = 0
        self.ds_tag = {}

    def snapshot(self):
        return (self.vm_n, self.vm_done, dict(self.vm_tag), self.ds_n, self.ds_done, dict(self.ds_tag))

    def restore(self, s):
        self.vm_n, self.vm_done, vt, self.ds_n, self.ds_done, dt = s
        self.vm_tag = dict(vt)
        self.ds_tag = dict(dt)

    def raw(self, t):
        self.out.append(t)

    def _idx(self, tags, table, n):
        if tags is None:
            return 0
        if tags == "all":
            return n
        if not isinstance(tags, (list, tuple)):
            tags = [tags]
        return max([table[t] for t in tags], default=0)

    def wait(self, vm=None, ds=None):
        a = self._idx(vm, self.vm_tag, self.vm_n)
        b = self._idx(ds, self.ds_tag, self.ds_n)
        s = ""
        if a > self.vm_done:
            n = min(self.vm_n - a, 63)
            s += f" vmcnt({n})"
            self.vm_done = self.vm_n - n
        if b > self.ds_done:
            n = min(self.ds_n - b, 15)
            s += f" lgkmcnt({n})"
            self.ds_done = self.ds_n - n
        if s:
            self.out.append("s_waitcnt" + s)
        return bool(s)

    def e(self, it, tag=None, vm=None, ds=None):
        if isinstance(it, (list, tuple)):
            for x in it:
                self.e(x)
            return
        if callable(it):
            it(self)
            return
        if isinstance(it, str):
            if "\n" in it:
                for l in it.split("\n"):
                    if l.strip():
                        self.e(l.strip())
                return
            it = I(it, tag, vm, ds)
        self.wait(it.vm, it.ds)
        if not it.t:
            return
        k = kind(it.t)
        if k == "G":
            self.vm_n += 1
            assert self.vm_n - self.vm_done <= 63, "too many vmem outstanding"
            if it.tag:
                self.vm_tag[it.tag] = self.vm_n
        elif k == "D":
            if self.ds_n - self.ds_done >= 15:
                self.out.append("s_waitcnt lgkmcnt(14)")
                self.ds_done = self.ds_n - 14
                self.n_sat = getattr(self, "n_sat", 0) + 1
            self.ds_n += 1
            if it.tag:
                self.ds_tag[it.tag] = self.ds_n
        self.out.append(it.t)


class Gaps:
    def __init__(self, mf, budget=6):
        self.mf = mf
        self.n = len(mf)
        self.s = [[] for _ in mf]
        self.m = [[] for _ in mf]
        self.v = [[] for _ in mf]
        self.post = [[] for _ in mf]
        self.budget = budget

    def used(self, g):
        def c(x):
            if isinstance(x, I):
                return cost(x.t) + (1 if (x.t and (x.vm or x.ds)) else 0)
            if isinstance(x, str):
                return cost(x)
            return 1
        return (max(0, sum(map(c, self.s[g])) - 1) + sum(map(c, self.m[g])) + sum(map(c, self.v[g]))
                + sum(map(c, self.post[g])))

    def pour(self, seq, g0, g1=None, budget=None):
        budget = budget or self.budget
        g1 = self.n if g1 is None else g1
        g = g0
        seq = list(seq)
        while seq and g < g1:
            x = seq[0]
            t = x.t if isinstance(x, I) else x
            if kind(t) in "DG":
                if self.v[g] and getattr(self, "_poured", -1) == g:
                    g += 1
                    if g >= g1:
                        break
                self.m[g].append(x)
                seq.pop(0)
                continue
            if self.used(g) + cost(t) <= budget:
                self.v[g].append(x)
                self._poured = g
                seq.pop(0)
            else:
                g += 1
        return g, seq

    def emit(self, p, g0=0, g1=None):
        for g in range(g0, self.n if g1 is None else g1):
            p.e(self.mf[g])
            p.e(self.s[g])
            p.e(self.m[g])
            p.e(self.v[g])
            p.e(self.post[g])


_REG = re.compile(r"(?<![\w.])([vas])(\d+)(?!\w)|(?<![\w.])([vas])\[(\d+):(\d+)\]")


def regs(op):
    r = set()
    for m in _REG.finditer(op):
        if m.group(1):
            r.add((m.group(1), int(m.group(2))))
        else:
            for i in range(int(m.group(4)), int(m.group(5)) + 1):
                r.add((m.group(3), i))
    if re.search(r"\bvcc\b", op):
        r.add(("s", "vcc"))
    if re.search(r"\bm0\b", op):
        r.add(("s", "m0"))
    if re.search(r"\bexec\b", op):
        r.add(("s", "exec"))
    return r


def parse(t):
    t = t.split(";")[0].strip()
    sp = t.split(None, 1)
    op = sp[0]
    ops = [o.strip() for o in sp[1].split(",")] if len(sp) > 1 else []
    k = kind(t)
    w, r = set(), set()
    allr = [regs(o) for o in ops]
    U = lambda l: set().union(*l) if l else set()
    if k == "M":
        w = allr[0]
        r = U(allr[1:])
    elif k == "D":
        if op.startswith("ds_read") or op.startswith("ds_bpermute"):
            w = allr[0]
            r = U(allr[1:])
        else:
            r = U(allr)
    elif k == "G":
        if " lds" in t:
            r = U(allr) | {("s", "m0")}
        elif "_load" in op:
            w = allr[0]
            r = U(allr[1:])
        else:
            r = U(allr)
    elif k == "V":
        w = allr[0]
        r = U(allr[1:])
        if op.startswith("v_fmac") or op.startswith("v_dot2c") or "permlane" in op or op.startswith("v_writelane"):
            r |= w
        if "permlane" in op and "swap" in op:
            w = w | allr[1]
        if op.startswith("v_cmpx"):
            w = w | {("s", "exec")}
    else:
        if op.startswith("s_cmp") or op.startswith("s_cbranch") or op.startswith("s_bitcmp") or op in (
                "s_waitcnt", "s_nop", "s_barrier", "s_branch", "s_sleep", "s_endpgm", "s_setprio"):
            r = U(allr)
        elif allr:
            w = allr[0]
            r = U(allr[1:])
            if "saveexec" in op:
                w = w | {("s", "exec")}
    return op, k, w, r, allr


def check_hazards(lines, fix=True):
    out = []
    hist = []
    nfix = 0
    for t in lines:
        s = t.strip()
        if not s or s.startswith(";") or s.startswith(".") or s.endswith(":"):
            out.append(t)
            continue
        op, k, w, r, allr = parse(s)
        need = 0
        dist = 0
        for (pop, pk, pw, pr, pall, pst) in reversed(hist):
            req = 0
            vw = {x for x in pw if x[0] in "va"}
            sw = {x for x in pw if x[0] == "s"}
            if pk == "M":
                passes = 8 if "32x32x16" in pop else 4
                big = 12 if passes == 8 else 8
                if k == "M":
                    if pw & (allr[1] | allr[2]):
                        req = big
                    elif pw & allr[3] and not (pw == allr[3] and pop == op):
                        req = 10 if passes == 8 else 6
                    elif pw & w and not (pw == allr[3]):
                        req = big
                elif pw & (r | w):
                    req = big
                if k == "V" and (pall[3] & w):
                    req = max(req, 7 if passes == 8 else 3)
            elif pk == "V":
                if k == "M" and vw & r:
                    req = 2
                if k == "M" and ("s", "exec") in pw:
                    req = 4
                if pop in TRANS and k != "S" and op not in TRANS and vw & r:
                    req = max(req, 1)
                if pop.startswith("v_dot") and vw & (r | w) and not (op == pop and not (vw & (allr[1] | allr[2]))):
                    req = max(req, 3)
                if (op.startswith("v_readlane") or op.startswith("v_readfirstlane")) and vw & r:
                    req = max(req, 1)
                if ("permlane" in op or "dpp" in s) and vw & r:
                    req = max(req, 2)
                if k == "G" and sw & r:
                    req = max(req, 5)
                if k == "V" and sw & r:
                    req = max(req, 2)
                if k == "S" and sw & r and not op.startswith("s_cbranch"):
                    req = max(req, 1)
            elif pk == "G":
                if "store" in pop and ("x4" in pop or "x3" in pop) and (pall[0] & w):
                    req = 2
            elif pk == "S":
                if ("s", "m0") in pw and k == "G" and " lds" in s:
                    req = 1
                if ("s", "exec") in pw and "dpp" in s:
                    req = 5
            if req > dist:
                need = max(need, req - dist)
            dist += pst
            if dist > 20:
                break
        if need:
            nfix += 1
            if not fix:
                raise SystemExit(f"hazard before: {s} need {need}")
            out.append(f"s_nop {need-1}")
            hist.append(("s_nop", "S", set(), set(), [], need))
        st = 1
        if op == "s_nop":
            st = int(s.split()[1]) + 1
        hist.append((op, k, w, r, allr, st))
        hist = hist[-24:]
        out.append(t)
    return out, nfix
```

```python
import sys, struct
from asmlib import *

NAME = "gated_mix__spectral_gfnet__swiglu_ffn__prompt_kernel"

FX1 = 0
FAUX = FX1 + 14 * 256
FH = 4096
FZ = FH + 8192
FEND = FZ + 4096
GOFF = 16384
STAMP = 32768
X1T = 1 << 20
ZT = X1T + 448 * 4096
WT = ZT + 448 * 4096
HH = WT + 225 * 8192
WSEND = HH + 64 * 114688
OOB = 0x40000000

WSLOT = 16640
NWS = 5
XS = NWS * WSLOT
SCR = XS + 65536
IMG = 0
EXC = 8192
ZS = 16384
RED = XS
LDS_BYTES = 163840

sX, sG, sU, sD, sWS, sO, sDBG = 4, 8, 12, 16, 20, 24, 28
sWv, sRg, sC, sRt, sCt, sKd = 32, 33, 34, 35, 36, 37
sWm, sXm = 38, 39
sT0, sT1, sT2, sT3 = 40, 41, 42, 43
sK = 44
s7f = 46
sCnt = 47
sXo, sWo, sDo = 48, 55, 62
sHo = sXo
sHst, sRot2 = 69, 70
sSc = 71
sST = 72

vL16 = 1
vXd, vXr, vWd, vTr, vDd, vDr = 2, 6, 10, 12, 14, 18
vX1w, vX1r, vX1g, vL4, vP = 19, 20, 21, 22, 23
vWF = 24
vT1c, vT1s, vT2c, vT2s = 48, 56, 64, 72
vAX, vAA, vAB, vT = 80, 96, 160, 224
aX, aC64, aS64, aN64, aC32, aS32, aN32 = 0, 112, 120, 128, 136, 144, 152
STEP448 = 9586981


def srd(s):
    return f"s[{s}:{s+3}]"


def vr(b, n, c="v"):
    return f"{c}[{b}:{b+n-1}]"


def fbits(x):
    return "0x%08x" % struct.unpack("<I", struct.pack("<f", x))[0]


DEF = dict(rot1="0", rot2="1", LA=2, npre=12, wd_start=120, wd_delay=34, stop=None, stamps=False,
           go_ld=60, x1flag=196, hAflag=244, poll1=232, dma_gap=2, hring=12,
           hB_flag_at="tw2", pollA_at="s1", pollA_chk="tw2", pollB_ld=16, pollB_chk=30,
           pollZ_ld=56, pollZ_chk=72, zflag=24, spin=200000, pf=1, epi_budget=7)


class Gen:
    def __init__(self, **kw):
        self.o = dict(DEF)
        self.o.update(kw)
        self.p = Prog()
        self.slow = []
        self.nst = 0
        self.stamp_names = []

    def stamp(self, name):
        if not self.o["stamps"]:
            return []
        i = self.nst
        self.nst += 1
        assert sST + 2 * i + 1 <= 101
        self.stamp_names.append(name)
        return [f"s_memtime s[{sST+2*i}:{sST+2*i+1}]"]

    def poll_check(self, name, tags, loads, combine, reg):
        def f(p):
            p.wait(vm=tags)
            p.e(combine)
            p.e(f"v_cmp_ne_u32 vcc, 1, v{reg}")
            p.e(f"s_cbranch_vccnz L_slow_{name}")
            p.raw(f"L_back_{name}:")
        s = [f"L_slow_{name}:", f"s_mov_b32 s{sCnt}, 0", f"L_spin_{name}:", "s_sleep 1"]
        s += loads + ["s_waitcnt vmcnt(0)"] + list(combine)
        s += [f"v_cmp_ne_u32 vcc, 1, v{reg}", f"s_cbranch_vccz L_back_{name}",
              f"s_add_u32 s{sCnt}, s{sCnt}, 1", f"s_cmp_lt_u32 s{sCnt}, {self.o['spin']}",
              f"s_cbranch_scc1 L_spin_{name}", "s_endpgm"]
        self.slow += s
        return f

    def flag_store(self, soff, tags, width=1, one=vP):
        def f(p):
            p.wait(vm=tags)
            p.e("s_mov_b64 exec, 1")
            op = {1: "buffer_store_dword", 2: "buffer_store_dwordx2", 4: "buffer_store_dwordx4"}[width]
            d = f"v{one}" if width == 1 else vr(one, width)
            p.e(f"{op} {d}, off, {srd(sWS)}, s{soff} sc1")
            p.e("s_mov_b64 exec, -1")
        return f

    def trig(self, dst, phase, tmp, fn="cos"):
        return [f"v_alignbit_b32 v{tmp}, s{s7f}, v{phase}, 9", f"v_{fn}_f32 v{dst}, v{tmp}"]

    def fft_consts(self):
        t = vAA
        vn, vq, vcol, vidx, va, vb = t, t + 1, t + 2, t + 3, t + 4, t + 5
        c0, s0 = t + 8, t + 16
        pk = t + 24
        q = []
        q += [f"v_lshrrev_b32 v{vn}, 4, v{vL16}", f"v_lshrrev_b32 v{vq}, 4, v{vn}", f"v_and_b32 v{vn}, 15, v{vn}",
              f"v_lshl_add_u32 v{vcol}, s{sWv}, 4, v{vn}",
              f"v_lshrrev_b32 v{va}, 2, v{vn}", f"v_and_b32 v{vb}, 3, v{vn}", f"v_lshl_add_u32 v{vidx}, v{va}, 3, v{vb}",
              f"v_cvt_f32_u32 v{vcol}, v{vcol}", f"v_cvt_f32_u32 v{vidx}, v{vidx}", f"v_cvt_f32_u32 v{vq}, v{vq}"]

        def frag(mul, base, ks_of_j, ac, as_, an):
            r = []
            for j in range(8):
                r.append(f"v_fma_f32 v{s0+j}, v{mul}, s{sT0}, v{base}" if False else None)
            r = []
            for j in range(8):
                k = ks_of_j(j)
                if k == 0:
                    r.append(f"v_mov_b32 v{s0+j}, v{base}")
                else:
                    r.append(f"v_fmamk_f32 v{s0+j}, v{mul}, {fbits(float(k))}, v{base}")
            for j in range(8):
                r.append(f"v_cos_f32 v{c0+j}, v{s0+j}")
                r.append(f"v_sin_f32 v{s0+j}, v{s0+j}")
            for j in range(4):
                r.append(f"v_cvt_pk_bf16_f32 v{pk+j}, v{c0+2*j}, v{c0+2*j+1}")
                r.append(f"v_cvt_pk_bf16_f32 v{pk+4+j}, v{s0+2*j}, v{s0+2*j+1}")
            for j in range(4):
                r.append(f"v_accvgpr_write_b32 a{ac+j}, v{pk+j}")
                r.append(f"v_accvgpr_write_b32 a{as_+j}, v{pk+4+j}")
                r.append(f"v_xor_b32 v{pk+4+j}, 0x80008000, v{pk+4+j}")
            for j in range(4):
                r.append(f"v_accvgpr_write_b32 a{an+j}, v{pk+4+j}")
            return r
        q += [f"v_mul_f32 v{va}, {fbits(1/64)}, v{vcol}", f"v_mul_f32 v{vb}, 4.0, v{vq}", f"v_mul_f32 v{vb}, v{vb}, v{va}"]
        for ks in range(2):
            q += frag(va, vb, lambda j: 32 * ks + 16 * (j >> 2) + (j & 3), aC64 + 4 * ks, aS64 + 4 * ks, aN64 + 4 * ks)
        q += [f"v_mul_f32 v{va}, {fbits(1/2048)}, v{vcol}", f"v_mul_f32 v{vb}, {fbits(8.0)}, v{vq}", f"v_mul_f32 v{vb}, v{vb}, v{va}"]
        for j in range(8):
            q.append(f"v_fmamk_f32 v{vT1s+j}, v{va}, {fbits(float(j))}, v{vb}")
        for j in range(8):
            q += [f"v_cos_f32 v{vT1c+j}, v{vT1s+j}", f"v_sin_f32 v{vT1s+j}, v{vT1s+j}"]
        vk = t + 6
        q += [f"v_cvt_f32_u32 v{vk}, s{sWv}", f"v_mul_f32 v{vk}, 4.0, v{vk}", f"v_add_f32 v{vk}, v{vk}, v{vq}", f"v_mul_f32 v{vk}, 4.0, v{vk}"]
        for tt in range(2):
            if tt:
                q.append(f"v_add_f32 v{vidx}, 4.0, v{vidx}")
            q += [f"v_mul_f32 v{va}, {fbits(1/32)}, v{vidx}", f"v_mul_f32 v{vb}, {fbits(8.0)}, v{vq}", f"v_mul_f32 v{vb}, v{vb}, v{va}"]
            q += frag(va, vb, lambda j: j, aC32 + 4 * tt, aS32 + 4 * tt, aN32 + 4 * tt)
            q += [f"v_mul_f32 v{va}, {fbits(1/2048)}, v{vidx}", f"v_mul_f32 v{vb}, v{vk}, v{va}"]
            for i in range(4):
                q.append(f"v_fmamk_f32 v{vT2s+4*tt+i}, v{va}, {fbits(float(i))}, v{vb}")
            for i in range(4):
                q += [f"v_cos_f32 v{vT2c+4*tt+i}, v{vT2s+4*tt+i}", f"v_sin_f32 v{vT2s+4*tt+i}, v{vT2s+4*tt+i}"]
        for i in range(8):
            q += [f"v_mul_f32 v{vT2c+i}, s{sSc}, v{vT2c+i}", f"v_mul_f32 v{vT2s+i}, s{sSc}, v{vT2s+i}"]
        return q

    def fft_setup_regs(self):
        a0, a1, vim = vT + 24, vT + 25, vT + 26
        t0, t1 = vT + 27, vT + 28
        q = [f"v_lshrrev_b32 v{t0}, 4, v{vL16}",
             f"v_and_b32 v{t1}, 3, v{t0}",
             f"v_lshlrev_b32 v{a0}, 8, v{t1}",
             f"v_and_b32 v{a1}, 2, v{t1}", f"v_add_u32 v{t1}, v{t1}, v{a1}",
             f"v_lshrrev_b32 v{a1}, 4, v{t0}", f"v_lshlrev_b32 v{a1}, 1, v{a1}",
             f"v_xor_b32 v{t1}, v{t1}, v{a1}",
             f"v_lshl_add_u32 v{a0}, v{t1}, 5, v{a0}",
             f"v_bfe_u32 v{t0}, v{t0}, 2, 2",
             f"v_lshl_add_u32 v{a0}, v{t0}, 3, v{a0}",
             f"v_xor_b32 v{a1}, 32, v{a0}",
             f"v_add_u32 v{vim}, s{sT3}, v{vL16}"]
        return q

    def fft_scalars(self):
        return [f"s_lshl_b32 s{sT1}, s{sKd}, 13", f"s_lshl_b32 s{sT0}, s{sWv}, 10",
                f"s_add_u32 s{sT2}, s{sT1}, s{sT0}",
                f"s_cmp_eq_u32 s{sKd}, 224", f"s_cselect_b32 s{sT1}, 4096, s{sT1}",
                f"s_cselect_b32 s{sT3}, 0, s{sKd}",
                f"s_add_u32 s{sT1}, s{sT1}, s{sT0}",
                f"s_cmp_eq_u32 s{sT3}, 0", f"s_movk_i32 s{sT3}, 4096", f"s_cselect_b32 s{sT3}, {OOB}, s{sT3}",
                f"s_add_u32 s{sT1}, s{sT1}, {X1T}", f"s_add_u32 s{sT2}, s{sT2}, {WT}"]

    def fft_loads(self):
        vim = vT + 26
        wr = vT + 8
        return [f"s_add_u32 m0, s{sT0}, {IMG}", "s_nop 0",
                I(f"buffer_load_dwordx4 v{vL16}, {srd(sWS)}, s{sT1} offen sc1 lds", tag="x1re"),
                f"s_add_u32 m0, s{sT0}, {IMG+4096}", "s_nop 0",
                I(f"buffer_load_dwordx4 v{vim}, {srd(sWS)}, s{sT1} offen sc1 lds", tag="x1im"),
                I(f"buffer_load_dwordx4 {vr(wr,4)}, v{vL16}, {srd(sWS)}, s{sT2} offen sc1", tag="wtre"),
                f"s_add_u32 s{sT2}, s{sT2}, 4096",
                I(f"buffer_load_dwordx4 {vr(wr+4,4)}, v{vL16}, {srd(sWS)}, s{sT2} offen sc1", tag="wtim"),
                f"s_add_u32 s{sT1}, s{sT1}, {ZT-X1T}"]

    def fft_body(self, hook):
        p = self.p
        A = vAA
        Dr, Di = vAA + 32, vAA + 40
        tm = vAA + 48
        Br, Bi = vT, vT + 4
        wr = vT + 8
        Wr, Wi = vWF, vWF + 8
        a0, a1, vim = vT + 24, vT + 25, vT + 26

        def af(part, t, ks):
            return A + 4 * (4 * part + 2 * t + ks)

        def mf(d, a, b, first):
            return f"v_mfma_f32_16x16x32_bf16 {vr(d,4)}, {a}, {b}, {'0' if first else vr(d,4)}"

        def cmul(c, s, sign):
            q = []
            n1 = " neg_lo:[0,0,1] neg_hi:[0,0,1]"
            for j in range(0, 8, 2):
                q += [f"v_pk_mul_f32 {vr(tm+j,2)}, {vr(Di+j,2)}, {vr(s+j,2)}",
                      f"v_pk_mul_f32 {vr(tm+8+j,2)}, {vr(Dr+j,2)}, {vr(s+j,2)}"]
            for j in range(0, 8, 2):
                q += [f"v_pk_fma_f32 {vr(tm+j,2)}, {vr(Dr+j,2)}, {vr(c+j,2)}, {vr(tm+j,2)}" + (n1 if sign > 0 else ""),
                      f"v_pk_fma_f32 {vr(tm+8+j,2)}, {vr(Di+j,2)}, {vr(c+j,2)}, {vr(tm+8+j,2)}" + ("" if sign > 0 else n1)]
            for j in range(4):
                q += [f"v_cvt_pk_bf16_f32 v{Br+j}, v{tm+2*j}, v{tm+2*j+1}",
                      f"v_cvt_pk_bf16_f32 v{Bi+j}, v{tm+8+2*j}, v{tm+8+2*j+1}"]
            return q

        def big(sgn, pre):
            Sre, Sim = (aS64, aN64) if sgn < 0 else (aN64, aS64)
            n = 0
            for ks in range(2):
                for part in range(2):
                    for t in range(2):
                        a = vr(af(part, t, ks), 4)
                        first = ks == 0 and part == 0
                        bre = (aC64 if part == 0 else Sre) + 4 * ks
                        bim = (Sim if part == 0 else aC64) + 4 * ks
                        p.e(I(mf(Dr + 4 * t, a, vr(bre, 4, "a"), first), ds=f"{pre}{part}{t}{ks}"))
                        p.e(mf(Di + 4 * t, a, vr(bim, 4, "a"), first))
                        n += 1
                        if n in (2, 4, 6):
                            hook(f"{pre}m{n}", 64)

        p.e(W(vm=["x1re", "x1im"]))
        p.e("s_barrier")
        for ks in range(2):
            for part in range(2):
                for t in range(2):
                    for h in range(2):
                        p.e(I(f"ds_read_b64_tr_b16 {vr(af(part,t,ks)+2*h,2)}, v{a0 if t == 0 else a1} "
                              f"offset:{IMG + part*4096 + 1024*(2*ks+h)}", tag=f"a{part}{t}{ks}"))
                if ks == 1 and part == 0:
                    p.e(W(ds="a000"))
        hook("s1", 100)
        big(-1, "a")
        p.e(W(vm=["wtre", "wtim"]))
        for j in range(4):
            p.e([f"v_lshlrev_b32 v{Wr+2*j}, 16, v{wr+j}", f"v_and_b32 v{Wr+2*j+1}, 0xffff0000, v{wr+j}"])
        p.e(cmul(vT1c, vT1s, -1))
        hook("tw1", 200)
        for t in range(2):
            p.e(mf(Dr + 4 * t, vr(aC32 + 4 * t, 4, "a"), vr(Br, 4), True))
            p.e(mf(Di + 4 * t, vr(aC32 + 4 * t, 4, "a"), vr(Bi, 4), True))
        for t in range(2):
            p.e(mf(Dr + 4 * t, vr(aS32 + 4 * t, 4, "a"), vr(Bi, 4), False))
            p.e(mf(Di + 4 * t, vr(aN32 + 4 * t, 4, "a"), vr(Br, 4), False))
        hook("s3", 128)
        for j in range(4):
            p.e([f"v_lshlrev_b32 v{Wi+2*j}, 16, v{wr+4+j}", f"v_and_b32 v{Wi+2*j+1}, 0xffff0000, v{wr+4+j}"])
        p.e(cmul(Wr, Wi, +1))
        hook("wm", 140)
        for t in range(2):
            p.e(mf(Dr + 4 * t, vr(Br, 4), vr(aC32 + 4 * t, 4, "a"), True))
            p.e(mf(Di + 4 * t, vr(Bi, 4), vr(aC32 + 4 * t, 4, "a"), True))
        for t in range(2):
            p.e(mf(Dr + 4 * t, vr(Bi, 4), vr(aN32 + 4 * t, 4, "a"), False))
            p.e(mf(Di + 4 * t, vr(Br, 4), vr(aS32 + 4 * t, 4, "a"), False))
        hook("s3i", 128)
        p.e([f"s_lshr_b32 s{sT0}, s{sWv}, 1", f"s_lshl_b32 s{sT0}, s{sT0}, 10", f"s_and_b32 s{sT2}, s{sWv}, 1",
             f"s_lshl_b32 s{sT2}, s{sT2}, 3", f"s_add_u32 s{sT0}, s{sT0}, s{sT2}", f"v_add_u32 v{a0}, s{sT0}, v{vL16}"])
        p.e(cmul(vT2c, vT2s, +1))
        for part in range(2):
            for t in range(2):
                p.e(I(f"ds_write_b64 v{a0}, {vr((Br if part == 0 else Bi)+2*t,2)} offset:{EXC + (4*part+2*t)*1024}", tag="exw"))
        hook("tw2", 160)
        p.e(W(ds="exw"))
        p.e("s_barrier")
        for ks in range(2):
            for part in range(2):
                for t in range(2):
                    p.e(I(f"ds_read_b128 {vr(af(part,t,ks),4)}, v{vL16} offset:{EXC + (4*part+2*t+ks)*1024}", tag=f"b{part}{t}{ks}"))
        hook("ex", 150)
        big(+1, "b")
        hook("s1i", 64)
        for j in range(4):
            p.e(f"v_cvt_pk_bf16_f32 v{Br+j}, v{Dr+2*j}, v{Dr+2*j+1}")
        p.e(I(f"buffer_store_dwordx4 {vr(Br,4)}, v{vL16}, {srd(sWS)}, s{sT1} offen sc1", tag="zre"))
        for j in range(4):
            p.e(f"v_cvt_pk_bf16_f32 v{Bi+j}, v{Di+2*j}, v{Di+2*j+1}")
        p.e(I(f"buffer_store_dwordx4 {vr(Bi,4)}, v{vim}, {srd(sWS)}, s{sT1} offen sc1", tag="zim"))

    def poll1_loads(self, r0):
        return [f"buffer_load_dword v{r0}, v{vL4}, {srd(sWS)}, s{sT0} offen sc1",
                f"buffer_load_dword v{r0+1}, v{vL4}, {srd(sWS)}, 0 offen offset:{FAUX} sc1"]

    def epi(self, acc, tmp):
        q = []
        for k in range(4):
            g0, g1, u0, u1 = acc + 2 * k, acc + 2 * k + 1, acc + 8 + 2 * k, acc + 9 + 2 * k
            t0, t1 = tmp, tmp + 1
            q += [f"v_mul_f32 v{t0}, s{sK}, v{g0}", f"v_mul_f32 v{t1}, s{sK}, v{g1}",
                  f"v_exp_f32 v{t0}, v{t0}", f"v_exp_f32 v{t1}, v{t1}",
                  f"v_mul_f32 v{u0}, v{g0}, v{u0}", f"v_mul_f32 v{u1}, v{g1}, v{u1}",
                  f"v_add_f32 v{t0}, 1.0, v{t0}", f"v_add_f32 v{t1}, 1.0, v{t1}",
                  f"v_rcp_f32 v{t0}, v{t0}", f"v_rcp_f32 v{t1}, v{t1}",
                  f"v_mul_f32 v{u0}, v{u0}, v{t0}", f"v_mul_f32 v{u1}, v{u1}, v{t1}",
                  f"v_cvt_pk_bf16_f32 v{acc+k}, v{u0}, v{u1}"]
        return q

    def epi_pk(self, acc, tmp):
        q = []
        for k in range(4):
            q.append(f"v_pk_mul_f32 {vr(tmp+2*k,2)}, {vr(acc+2*k,2)}, s[{sK}:{sK+1}]")
        for j in range(8):
            q.append(f"v_exp_f32 v{tmp+j}, v{tmp+j}")
        for k in range(4):
            q.append(f"v_pk_mul_f32 {vr(acc+8+2*k,2)}, {vr(acc+2*k,2)}, {vr(acc+8+2*k,2)}")
        for k in range(4):
            q.append(f"v_pk_add_f32 {vr(tmp+2*k,2)}, {vr(tmp+2*k,2)}, 1.0 op_sel_hi:[1,0]")
        for j in range(8):
            q.append(f"v_rcp_f32 v{tmp+j}, v{tmp+j}")
        for k in range(4):
            q.append(f"v_pk_mul_f32 {vr(acc+8+2*k,2)}, {vr(acc+8+2*k,2)}, {vr(tmp+2*k,2)}")
        for k in range(4):
            q.append(f"v_cvt_pk_bf16_f32 v{acc+k}, v{acc+8+2*k}, v{acc+9+2*k}")
        return q

    def hstore(self, acc, t, tag):
        return I(f"buffer_store_dwordx4 {vr(acc,4)}, v{vL16}, {srd(sWS)}, s{sHst} offen offset:{t*1024} sc1", tag=tag)

    def rec_step(self, st, ks, dst):
        P = st + 8 * (ks & 1)
        Q = st + 8 * ((ks + 1) & 1)
        q = [f"v_fma_f32 v{P+j}, v{st+16}, v{Q+j}, -v{P+j}" for j in range(8)]
        return q + self.rec_pack(st, ks, dst)

    def rec_pack(self, st, ks, dst):
        P = st + 8 * (ks & 1)
        return [f"v_cvt_pk_bf16_f32 v{dst+j}, v{P+2*j}, v{P+2*j+1}" for j in range(4)]

    def wd_reg(self, wi):
        if wi < 24:
            return "a", 160 + 4 * wi
        if wi < 28:
            return "v", vAX + 4 * (wi - 24)
        return "a", 4 * (wi - 28)

    def build(self):
        o, p = self.o, self.p
        e = p.e
        e(self.stamp("start"))
        e([x.replace("s_memtime", "s_memrealtime") for x in self.stamp("rt0")])
        for s, off in ((sX, 0), (sG, 32), (sU, 40), (sD, 48), (sO, 64), (sDBG, 72), (sWS, 80)):
            e(f"s_load_dwordx2 s[{s}:{s+1}], s[0:1], {off}")
        e("s_cmp_ge_u32 s2, 256")
        e("s_cbranch_scc1 L_end")
        if o["pf"]:
            e([f"s_getpc_b64 s[{sT0}:{sT1}]", f"v_lshlrev_b32 v{vP}, 7, v0", f"v_min_u32 v{vP}, L_codeend-{NAME}-128, v{vP}"])
            e(f"global_load_dword v{vT+30}, v{vP}, s[{sT0}:{sT1}]")
            if o["pf"] > 1:
                e([f"v_add_u32 v{vP}, 0x8000, v{vP}", f"v_min_u32 v{vP}, L_codeend-{NAME}-128, v{vP}",
                   f"global_load_dword v{vT+31}, v{vP}, s[{sT0}:{sT1}]"])
        e([f"v_lshrrev_b32 v2, 6, v0", f"v_and_b32 v0, 63, v0", f"v_readfirstlane_b32 s{sWv}, v2",
           f"v_lshlrev_b32 v{vL16}, 4, v0", f"v_lshlrev_b32 v{vL4}, 2, v0"])
        for s, n in ((sX, 2048 * 896), (sG, 448 * 3584), (sU, 448 * 3584), (sD, 1792 * 896), (sO, 2048 * 896),
                     (sDBG, 256), (sWS, WSEND)):
            e([f"s_mov_b32 s{s+2}, {n}", f"s_mov_b32 s{s+3}, 0x20000"])
        e([f"s_mov_b32 s{sK}, 0xbfb8aa3b", f"s_mov_b32 s{sK+1}, 0xbfb8aa3b", f"s_movk_i32 s{s7f}, 0x7f"])
        sj, sidx, sr = sXo, sXo + 1, sXo + 2
        e([f"s_and_b32 s{sj}, s2, 7", f"s_lshr_b32 s{sidx}, s2, 3",
           f"s_cmp_ge_u32 s{sidx}, 28", "s_cbranch_scc1 L_aux",
           f"s_mul_i32 s{sr}, s{sidx}, 37", f"s_lshr_b32 s{sr}, s{sr}, 8",
           f"s_mul_i32 s{sCt}, s{sr}, 7", f"s_sub_u32 s{sCt}, s{sidx}, s{sCt}",
           f"s_lshr_b32 s{sRg}, s{sj}, 1", f"s_lshl_b32 s{sRg}, s{sRg}, 2", f"s_add_u32 s{sRg}, s{sRg}, s{sr}",
           f"s_and_b32 s{sC}, s{sj}, 1", f"s_mul_i32 s{sC}, s{sC}, 7", f"s_add_u32 s{sC}, s{sC}, s{sCt}",
           f"s_lshl_b32 s{sRt}, s{sj}, 2", f"s_add_u32 s{sRt}, s{sRt}, s{sr}",
           f"s_mul_i32 s{sKd}, s{sj}, 28", f"s_add_u32 s{sKd}, s{sKd}, s{sidx}"])
        snap_aux = p.snapshot()

        def mod7(s, t):
            return [f"s_mul_i32 s{t}, s{s}, 37", f"s_lshr_b32 s{t}, s{t}, 8", f"s_mul_i32 s{t}, s{t}, 7", f"s_sub_u32 s{s}, s{s}, s{t}"]
        sRot1 = sHst
        full = [f"s_lshl_b32 s{sRot2}, s{sr}, 1", f"s_add_u32 s{sRot2}, s{sRot2}, s{sCt}"]
        e(full + mod7(sRot2, sCnt))
        if o["rot1"] == "0":
            e(f"s_mov_b32 s{sRot1}, 0")
        elif o["rot1"] == "full":
            e(f"s_mov_b32 s{sRot1}, s{sRot2}")
        elif o["rot1"] == "half":
            e([f"s_add_u32 s{sRot1}, s{sr}, s{sCt}", f"s_and_b32 s{sRot1}, s{sRot1}, 1", f"s_mul_i32 s{sRot1}, s{sRot1}, 3"])
        elif o["rot1"] == "xcd":
            e([f"s_mov_b32 s{sRot1}, s{sj}"] + mod7(sRot1, sCnt))
        if o["rot2"] == "0":
            e(f"s_mov_b32 s{sRot2}, 0")
        t0, t1, t2, t3 = vAB, vAB + 1, vAB + 2, vAB + 3
        e([f"s_lshr_b32 s{sWo}, s{sRg}, 2", f"s_lshl_b32 s{sWo}, s{sWo}, 9", f"s_and_b32 s{sWo+1}, s{sRg}, 3",
           f"s_lshl_b32 s{sWo+2}, s{sWo+1}, 3", f"s_add_u32 s{sWo}, s{sWo}, s{sWo+2}",
           f"s_lshl_b32 s{sWo+2}, s{sWv}, 7", f"s_add_u32 s{sWo}, s{sWo}, s{sWo+2}",
           f"v_lshrrev_b32 v{t0}, 3, v0", f"v_add_u32 v{t0}, s{sWo}, v{t0}", f"v_mul_u32_u24 v{t0}, 896, v{t0}",
           f"v_and_b32 v{t1}, 7, v0", f"v_lshrrev_b32 v{t2}, 4, v0", f"v_xor_b32 v{t1}, v{t1}, v{t2}",
           f"v_lshl_add_u32 v{vXd}, v{t1}, 4, v{t0}",
           f"v_xor_b32 v{t1}, 4, v{t1}", f"v_lshl_add_u32 v{vXd+1}, v{t1}, 4, v{t0}",
           f"v_add_u32 v{vXd+2}, {2*(28672-1024)}, v{vXd}", f"v_add_u32 v{vXd+3}, {3*(28672-1024)}, v{vXd+1}",
           f"v_add_u32 v{vXd+1}, {28672-1024}, v{vXd+1}"])
        e([f"v_lshrrev_b32 v{t2}, 5, v0", f"v_and_b32 v{t1}, 3, v0", f"v_lshl_add_u32 v{t2}, v{t2}, 2, v{t1}",
           f"v_lshlrev_b32 v{t2}, 4, v{t2}", f"v_bfe_u32 v{t3}, v0, 2, 3",
           f"v_lshl_add_u32 v{t0}, s{sWv}, 4, v{t3}", f"v_mul_u32_u24 v{t0}, 3584, v{t0}",
           f"s_lshl_b32 s{sWo+2}, s{sC}, 8", f"v_add3_u32 v{vWd}, v{t0}, v{t2}, s{sWo+2}",
           f"v_add_u32 v{vWd+1}, {8*3584-1024}, v{vWd}"])
        e([f"s_mul_i32 s{sWm}, s{sWv}, 4160", f"s_lshl_b32 s{sXm}, s{sWv}, 14", f"s_add_u32 s{sXm}, s{sXm}, {XS}"])
        e([f"s_and_b32 s{sCnt}, s{sWo+1}, 2", f"s_add_u32 s{sSc}, s{sWo+1}, s{sCnt}"])
        for i in range(7):
            src = sRot1 if i == 0 else sCnt
            if i == 0:
                e(f"s_mov_b32 s{sCnt}, s{sRot1}")
            else:
                e([f"s_add_u32 s{sCnt}, s{sCnt}, 1", f"s_cmp_eq_u32 s{sCnt}, 7", f"s_cselect_b32 s{sCnt}, 0, s{sCnt}"])
            e([f"s_lshl_b32 s{sXo+i}, s{sCnt}, 7", f"s_mul_i32 s{sWo+i}, s{sCnt}, {64*3584}"])
        p.raw("s_waitcnt lgkmcnt(0)")
        e(self.stamp("kargs"))

        self.m0 = None

        def xdma(j):
            return [dict(t=f"buffer_load_dwordx4 v{vXd+i}, {srd(sX)}, s{sXo+j} offen offset:{1024*i} lds", tag=f"x{j}",
                         m0=(sXm, 4096 * (j % 4)), ds=(f"xr{4*(j-4)+3}" if j >= 4 else None)) for i in range(4)]

        def wdma(i):
            r = []
            for mat in range(2):
                for hh in range(2):
                    r.append(dict(t=f"buffer_load_dwordx4 v{vWd+hh}, {srd(sG if mat == 0 else sU)}, s{sWo+i%7} offen offset:{1024*hh} lds",
                                  tag=f"w{i}", m0=(sWm, WSLOT * (i % NWS) + 2080 * mat), ds=None))
            if i == 7:
                r[0]["pre"] = [f"v_add_u32 v{vWd}, 128, v{vWd}", f"v_add_u32 v{vWd+1}, 128, v{vWd+1}"]
            return r

        def ddma(gi):
            dep = f"xr{4*(gi+3)+3}" if gi < 4 else f"dr{gi-4}"
            r = [dict(t=f"buffer_load_dwordx4 v{vDd+i}, {srd(sD)}, s{sDo+gi%7} offen offset:{1024*i} lds", tag=f"d{gi}",
                      m0=(sXm, 4096 * ((gi + 3) % 4)), ds=dep) for i in range(4)]
            if gi == 7:
                r[0]["pre"] = [f"v_add_u32 v{vDd+i}, 57344, v{vDd+i}" for i in range(4)]
            return r

        def dma_items(d):
            s = []
            if self.m0 != d["m0"]:
                self.m0 = d["m0"]
                s.append(f"s_add_u32 m0, s{d['m0'][0]}, {d['m0'][1]}")
            return s, list(d.get("pre", [])) + [I(d["t"], tag=d["tag"], ds=d["ds"])]

        L, NB = 5, 6
        U = [5 * (f // 4) + f % 4 for f in range(112)] + [140 + f for f in range(112)]
        bar_gap = {j: U[16 * j - L] for j in range(1, 14)}
        q1 = []
        for i in range(14):
            ear = -1 if i <= o["LA"] - 1 else (0 if i == o["LA"] else bar_gap[i - o["LA"]])
            for d in (xdma(i) if i < 7 else []) + wdma(i):
                d["ear"] = ear
                q1.append(d)
        npre = o["npre"]
        for _ in range(npre):
            assert q1[0]["ear"] < 0
            s, m = dma_items(q1.pop(0))
            e(s)
            e(m)
        e([f"v_and_b32 v{t0}, 31, v0", f"v_lshrrev_b32 v{t1}, 5, v0", f"v_bfe_u32 v{vXr+1}, v0, 1, 3",
           f"v_xor_b32 v{vXr+1}, v{vXr+1}, v{t1}", f"v_lshlrev_b32 v{vXr+1}, 4, v{vXr+1}",
           f"v_lshl_add_u32 v{vXr+1}, v{t0}, 7, v{vXr+1}",
           f"v_add_u32 v{vXr}, s{sXm}, v{vXr+1}"])
        for kk in (3, 2, 1):
            e([f"v_xor_b32 v{vXr+kk}, {32*kk}, v{vXr+1}", f"v_add_u32 v{vXr+kk}, s{sXm}, v{vXr+kk}"])
        e([f"s_mul_i32 s{sT0}, s{sWv}, 2560", f"s_add_u32 s{sT0}, s{sT0}, {SCR}",
           f"v_mul_u32_u24 v{vX1w}, 80, v{t0}", f"v_lshl_add_u32 v{vX1w}, v{t1}, 5, v{vX1w}", f"v_add_u32 v{vX1w}, s{sT0}, v{vX1w}",
           f"v_lshrrev_b32 v{vX1g}, 2, v0", f"v_mul_u32_u24 v{vX1r}, 80, v{vX1g}", f"v_and_b32 v{vP}, 48, v{vL16}",
           f"v_add3_u32 v{vX1r}, v{vX1r}, v{vP}, s{sT0}",
           f"s_lshl_b32 s{sT0}, s{sWv}, 1", f"s_xor_b32 s{sT0}, s{sT0}, s{sSc}", f"s_lshl_b32 s{sT0}, s{sT0}, 5",
           f"v_xor_b32 v{vP}, s{sT0}, v{vP}", f"v_lshl_add_u32 v{vX1g}, v{vX1g}, 12, v{vP}",
           f"s_lshl_b32 s{sT0}, s{sC}, 17", f"s_lshl_b32 s{sT1}, s{sRg}, 8", f"s_add_u32 s{sT0}, s{sT0}, s{sT1}",
           f"s_add_u32 s{sT0}, s{sT0}, {X1T}", f"v_add_u32 v{vX1g}, s{sT0}, v{vX1g}"])
        t4, t5, t6 = vAB + 4, vAB + 5, vAB + 6
        e([f"v_bfe_u32 v{t4}, v0, 4, 1", f"v_bfe_u32 v{t5}, v0, 2, 2", f"v_and_b32 v{t6}, 3, v0",
           f"v_mul_u32_u24 v{vTr}, 2080, v{t4}", f"v_lshl_add_u32 v{vTr}, v{t1}, 10, v{vTr}",
           f"v_lshl_add_u32 v{vTr}, v{t5}, 6, v{vTr}", f"v_lshl_add_u32 v{vTr}, v{t6}, 3, v{vTr}",
           f"v_add_u32 v{vTr+1}, {4*WSLOT}, v{vTr}"])
        e([f"v_mul_u32_u24 v{vDd}, 896, v{t3}", f"s_lshl_b32 s{sT0}, s{sCt}, 7", f"v_add3_u32 v{vDd}, v{vDd}, v{t2}, s{sT0}"])
        for i in range(1, 4):
            e(f"v_add_u32 v{vDd+i}, {i*(8*896-1024)}, v{vDd}")
        e([f"v_lshl_add_u32 v{vDr}, v{t1}, 2, v{t5}", f"v_lshlrev_b32 v{vDr}, 6, v{vDr}",
           f"v_lshl_add_u32 v{vDr}, v{t4}, 4, v{vDr}",
           f"v_and_b32 v{t5}, 1, v0", f"v_lshl_add_u32 v{vDr}, v{t5}, 5, v{vDr}",
           f"v_bfe_u32 v{t5}, v0, 1, 1", f"v_lshl_add_u32 v{vDr}, v{t5}, 3, v{vDr}", f"v_add_u32 v{vDr}, s{sXm}, v{vDr}"])
        e([f"s_mul_i32 s{sT1}, s{sWv}, 7", f"s_mov_b32 s{sCnt}, s{sRot2}"])
        for i in range(7):
            if i:
                e([f"s_add_u32 s{sCnt}, s{sCnt}, 1", f"s_cmp_eq_u32 s{sCnt}, 7", f"s_cselect_b32 s{sCnt}, 0, s{sCnt}"])
            e([f"s_add_u32 s{sT0}, s{sT1}, s{sCnt}", f"s_and_b32 s{sDo+i}, s{sT0}, 30", f"s_add_u32 s{sT0}, s{sT0}, s{sDo+i}",
               f"s_mul_i32 s{sDo+i}, s{sT0}, {2*16*896}"])
        st, fbuf = vT, [vT + 20, vT + 24]
        ph, stp, tq = vAB + 8, vAB + 9, vAB + 10
        e([f"v_lshl_add_u32 v{t4}, s{sC}, 5, v{t0}",
           f"v_lshrrev_b32 v{t5}, 1, v{t4}", f"v_and_b32 v{t6}, 1, v{t4}",
           f"v_cmp_eq_u32 vcc, 1, v{t4}", f"v_mov_b32 v{tq}, 224", f"s_mov_b32 s{sT0}, {STEP448}",
           f"v_cndmask_b32 v{t5}, v{t5}, v{tq}, vcc", f"v_cndmask_b32 v{t6}, v{t6}, 0, vcc",
           f"v_mul_lo_u32 v{stp}, v{t5}, s{sT0}",
           f"s_lshl_b32 s{sT1}, s{sRot1}, 6", f"v_lshl_add_u32 v{t5}, v{t1}, 3, s{sT1}",
           f"v_mul_lo_u32 v{ph}, v{t5}, v{stp}", f"v_lshl_add_u32 v{ph}, v{t6}, 30, v{ph}",
           f"v_lshlrev_b32 v{t5}, 4, v{stp}"])
        e(self.trig(st + 16, t5, tq))
        for ks in range(2):
            for j in range(8):
                e(self.trig(st + 8 * ks + j, ph, tq + (j & 1)))
                e(f"v_add_u32 v{ph}, v{ph}, v{stp}")
            if ks == 0:
                e([f"v_lshl_add_u32 v{ph}, v{stp}, 3, v{ph}", f"v_add_f32 v{st+16}, v{st+16}, v{st+16}"])
        e(self.rec_pack(st, 0, fbuf[0]))
        e(self.rec_pack(st, 1, fbuf[1]))
        while q1 and q1[0]["ear"] < 0:
            s, m = dma_items(q1.pop(0))
            e(s)
            e(m)
        e([f"s_cmp_eq_u32 s{sKd}, 0", f"s_mov_b32 s{sSc}, {fbits(2.0/(2048*448))}",
           f"s_cselect_b32 s{sSc}, {fbits(1.0/(2048*448))}, s{sSc}",
           f"s_lshl_b32 s{sT0}, s{sRg}, 2", f"s_add_u32 s{sT0}, s{sT0}, s{sWv}", f"s_mul_i32 s{sHst}, s{sT0}, 114688",
           f"s_lshl_b32 s{sT0}, s{sC}, 12", f"s_add_u32 s{sHst}, s{sHst}, s{sT0}", f"s_add_u32 s{sHst}, s{sHst}, {HH}"])
        e(self.fft_consts())
        e(self.stamp("pro"))

        def wread(f):
            i, kk, t = f // 16, (f // 4) % 4, f % 4
            slot = i % NWS
            base, off = (vTr, slot * WSLOT) if slot < 4 else (vTr + 1, 0)
            off += kk * 4160 + (t >> 1) * 512 + (t & 1) * 32
            b = vWF + 4 * (f % NB)
            return [I(f"ds_read_b64_tr_b16 {vr(b+2*h,2)}, v{base} offset:{off+256*h}", tag=f"wf{f}") for h in range(2)]

        def xread(ks):
            return I(f"ds_read_b128 {vr(aX+4*ks,4,'a')}, v{vXr+ks%4} offset:{4096*((ks//4)%4)}", tag=f"xr{ks}")

        mf = []
        for ks in range(28):
            for t in range(4):
                d = vr(vAA + 16 * t, 16)
                mf.append(f"v_mfma_f32_32x32x16_bf16 {d}, {vr(vWF+4*((4*ks+t)%NB),4)}, {vr(aX+4*ks,4,'a')}, {d if ks else 0}")
            d = vr(vAX, 16)
            mf.append(f"v_mfma_f32_32x32x16_bf16 {d}, {vr(aX+4*ks,4,'a')}, {vr(fbuf[ks&1],4)}, {d if ks else 0}")
        for ks in range(28):
            for t in range(4):
                d = vr(vAB + 16 * t, 16)
                mf.append(f"v_mfma_f32_32x32x16_bf16 {d}, {vr(vWF+4*((112+4*ks+t)%NB),4)}, {vr(aX+4*ks,4,'a')}, {d if ks else 0}")
        G = Gaps(mf)
        for j, g in bar_gap.items():
            G.s[g] += [W(vm=f"w{j}"), "s_barrier"]
        for f in range(L, 224):
            G.m[U[f - L]] += wread(f)
        for ks in range(2, 28):
            G.m[5 * (ks - 2) + 4].append(xread(ks))
        for f in range(1, 223, 2):
            tags = [f"wf{min(f+2,223)}"]
            if f < 111 and (f + 1) % 4 == 0:
                tags.append(f"xr{(f+1)//4}")
            G.s[U[f]].insert(0, W(ds=tags))

        class BG:
            pass
        bg = BG()
        bg.q2 = [d for gi in range(14) for d in ddma(gi)]
        bg.nd = 0
        bg.ntr = 0
        bg.t_issue = {}
        bg.t_read = {}
        bg.last = -1000
        T_B = 140 * 32

        def dtr(n):
            gi, step, u = n // 4, n // 2, n % 2
            c, b = self.wd_reg(n)
            off = 4096 * ((gi + 3) % 4) + 2048 * (step & 1) + 512 * u
            return [I(f"ds_read_b64_tr_b16 {vr(b+2*h,2,c)}, v{vDr} offset:{off+1024*h}", tag=f"dr{gi}",
                      vm=(f"d{gi}" if h == 0 and n % 4 == 0 else None)) for h in range(2)]

        def bg_step(t, ndma=1, ntr=1, force=False):
            s, m = [], []
            for _ in range(ntr):
                n = bg.ntr
                gi = n // 4
                if n >= 56 or gi not in bg.t_issue:
                    break
                if not force and t < bg.t_issue[gi] + 32 * o["wd_delay"]:
                    break
                if n >= 28 and t < T_B + 128 * (n - 28 + 1):
                    break
                if 24 <= n < 28 and t < T_B + 32 * 16:
                    break
                m += dtr(n)
                bg.ntr += 1
                if n % 4 == 3:
                    bg.t_read[gi] = t
            for _ in range(ndma):
                if t - bg.last < 32 * o["dma_gap"] and ndma == 1:
                    break
                d = None
                if q1 and t >= 32 * q1[0]["ear"]:
                    d = q1.pop(0)
                elif bg.q2 and t >= 32 * o["wd_start"]:
                    gi = bg.nd // 4
                    ok = (t >= 32 * (5 * (4 * (gi + 3) + 1) + 4 + 4)) if gi < 4 else (gi - 4 in bg.t_read and t >= bg.t_read[gi - 4] + 96)
                    if ok:
                        d = bg.q2.pop(0)
                        bg.nd += 1
                        if bg.nd % 4 == 0:
                            bg.t_issue[gi] = t
                if d is None:
                    break
                a, b = dma_items(d)
                if m and any(kind(x.t if isinstance(x, I) else x) == "G" for x in m):
                    m += a + ["s_nop 0"] * len(a)
                else:
                    s += a
                m += b
                bg.last = t
            return s, m
        for g in range(G.n):
            s, m = bg_step(32 * g)
            G.s[g] += s
            G.m[g] += m
        assert not q1
        for ks in range(2, 28):
            g, left = G.pour(self.rec_step(st, ks, fbuf[ks & 1]), 5 * (ks - 2) + 4, 5 * (ks - 1) + 4 + 3)
            assert not left
        gol = f"buffer_load_dword v{vP}, off, {srd(sDBG)}, 0 sc1"
        G.m[o["go_ld"]].append(I(gol, tag="go"))
        G.post[138].append(self.poll_check("go", "go", [gol], [], vP))
        G.s[139] += self.stamp("A")
        xq = [f"v_cvt_pk_bf16_f32 v{vAX+j}, v{vAX+2*j}, v{vAX+2*j+1}" for j in range(8)]
        xq += [I(f"ds_write_b128 v{vX1w}, {vr(vAX,4)}", tag="x1w"), I(f"ds_write_b128 v{vX1w}, {vr(vAX+4,4)} offset:16", tag="x1w")]
        g, left = G.pour(xq, 142)
        G.m[g + 1] += [I(f"ds_read_b128 {vr(vT+8,4)}, v{vX1r}", tag="x1r"),
                       I(f"ds_read_b128 {vr(vT+12,4)}, v{vX1r} offset:1280", tag="x1r")]
        G.s[g + 3].append(f"s_mov_b32 s{sT0}, 65536")
        G.m[g + 4].append(I(f"buffer_store_dwordx4 {vr(vT+8,4)}, v{vX1g}, {srd(sWS)}, 0 offen sc1", tag="x1s", ds="x1r"))
        G.m[g + 6].append(I(f"buffer_store_dwordx4 {vr(vT+12,4)}, v{vX1g}, {srd(sWS)}, s{sT0} offen sc1", tag="x1s"))
        assert g + 1 < 140 + 15
        eq = []
        for t in range(4):
            eq += self.epi(vAA + 16 * t, vT + 2 * (t & 1)) + [self.hstore(vAA + 16 * t, t, "hA")]
        gx = o["x1flag"]
        G.s[gx - 2] += [f"s_lshl_b32 s{sT0}, s{sC}, 4", f"s_add_u32 s{sT0}, s{sT0}, s{sRg}"]
        G.s[gx - 1] += [f"s_lshl_b32 s{sT0}, s{sT0}, 2", f"s_add_u32 s{sT0}, s{sT0}, s{sWv}"]
        G.s[gx] += [f"s_lshl_b32 s{sT0}, s{sT0}, 2"]
        G.m[gx].append(self.flag_store(sT0, "x1s"))
        g1 = o["poll1"]
        G.s[g1 - 1] += [f"s_lshr_b32 s{sT0}, s{sKd}, 4", f"s_lshl_b32 s{sT0}, s{sT0}, 8"]
        pl = self.poll1_loads(vT + 4)
        G.m[g1].append(I(pl[0], tag="p1"))
        G.m[g1 + 1].append(I(pl[1], tag="p1"))
        gend, left = G.pour(eq, g + 1, budget=o['epi_budget'])
        assert not left, len(left)
        print(f"; group A epilogue ends at gap {gend}; wd dmas {bg.nd} trs {bg.ntr}", file=sys.stderr)
        hq = [f"s_mul_i32 s{sT1}, s{sWv}, 7*2048", f"s_mul_i32 s{sT2}, s{sRt}, {2*114688}", f"s_add_u32 s{sT1}, s{sT1}, s{sT2}",
              f"s_add_u32 s{sT1}, s{sT1}, {HH}"]
        for i in range(7):
            if i:
                hq += [[f"s_add_u32 s{sRot2}, s{sRot2}, 1"], [f"s_cmp_eq_u32 s{sRot2}, 7", f"s_cselect_b32 s{sRot2}, 0, s{sRot2}"]]
            hq += [f"s_lshl_b32 s{sT2}, s{sRot2}, 11", f"s_add_u32 s{sHo+i}, s{sT1}, s{sT2}"]
        gg = 150
        for x in hq:
            while G.s[gg]:
                gg += 1
            G.s[gg] += x if isinstance(x, list) else [x]
        assert gg < 250

        e(W(vm="w0"))
        e("s_barrier")
        e(xread(0))
        for f in range(L):
            e(wread(f))
            if f == 1:
                e(xread(1))
        e(self.stamp("data0"))
        e(W(ds=["wf1"]))
        G.emit(p)
        e(self.stamp("B"))
        if o["stop"] == "B":
            pass
        now = [252 * 32]

        def bgs(dt, ndma=2, ntr=2):
            now[0] += dt
            s, m = bg_step(now[0], ndma, ntr)
            e(s)
            if s and m and kind(m[0].t if isinstance(m[0], I) else m[0]) == "G":
                e("s_nop 0")
            e(m)
        sFh = sWo
        e([f"s_lshr_b32 s{sT1}, s{sWv}, 1", f"s_lshl_b32 s{sFh}, s{sRg}, 1", f"s_add_u32 s{sFh}, s{sFh}, s{sT1}",
           f"s_lshl_b32 s{sFh}, s{sFh}, 4", f"s_add_u32 s{sFh}, s{sFh}, s{sC}", f"s_lshl_b32 s{sFh}, s{sFh}, 1",
           f"s_and_b32 s{sT1}, s{sWv}, 1", f"s_add_u32 s{sFh}, s{sFh}, s{sT1}", f"s_lshl_b32 s{sFh}, s{sFh}, 2",
           f"s_add_u32 s{sFh}, s{sFh}, {FH}", f"s_add_u32 s{sHst}, s{sHst}, 57344"])
        stop1 = o["stop"] == "gemm1"
        if not stop1:
            e(self.poll_check("p1", "p1", pl, [f"v_and_b32 v{vT+4}, v{vT+4}, v{vT+5}"], vT + 4))
        e(self.fft_scalars())
        e(self.fft_setup_regs())
        e(self.fft_loads())
        self.m0 = None
        for t in range(4):
            e(self.epi_pk(vAB + 16 * t, vT + 16))
            if t == 0:
                e(self.flag_store(sFh, "hA"))
                e(f"s_add_u32 s{sFh}, s{sFh}, 4096")
            e(self.hstore(vAB + 16 * t, t, "hB"))
            bgs(210, 3, 4)
        e(self.stamp("epi"))
        if stop1:
            e("s_branch L_fin")
        vH = vXd
        vPo = vXd + 2
        hring = o["hring"]
        sFp = sWo + 1
        pollA = f"buffer_load_dword v{vXr}, v{vPo}, {srd(sWS)}, s{sFp} offen sc1"
        hl = []
        for step in range(28):
            g2, i7, k2 = step // 14, (step % 14) // 2, step & 1
            for i in range(2):
                n = 2 * step + i
                hl.append(I(f"buffer_load_dwordx4 {vr(vAB+4*(n%hring),4)}, v{vH+i}, {srd(sWS)}, s{sHo+i7} offen offset:{1024*k2} sc1", tag=f"h{n}"))
        st_ = dict(nh=0, okA=False)

        def hook(name, dt):
            if name == o["pollA_at"]:
                e([f"v_min_u32 v{vPo}, {27*4}, v{vL4}", f"v_mov_b32 v{vH}, v{vL16}", f"v_add_u32 v{vH+1}, 114688, v{vL16}",
                   f"s_lshl_b32 s{sFp}, s{sRt}, 7", f"s_add_u32 s{sFp}, s{sFp}, {FH}"])
                e(I(pollA, tag="pA"))
            if name == o["hB_flag_at"]:
                e(self.flag_store(sFh, "hB"))
            if name == o["pollA_chk"]:
                e(self.poll_check("pA", "pA", [pollA], [], vXr))
                st_["okA"] = True
            if st_["okA"]:
                for _ in range(3):
                    if st_["nh"] < hring:
                        e(hl[st_["nh"]])
                        st_["nh"] += 1
                bgs(dt, 0, 3)
            else:
                bgs(dt, max(1, dt // 64) + 1, 3)
        self.fft_body(hook)
        e(self.stamp("fft"))
        print(f"; after fft: wd dmas {bg.nd} trs {bg.ntr} hloads {st_['nh']}", file=sys.stderr)
        if o["stop"] == "fft":
            e("s_branch L_fin")

        accb, acca = vAA, vAB + 48
        vZF = vWF
        vZd, vZr, vGv, vOo = vXr + 1, vXr + 2, vXr + 3, vWd

        def fi_reg(ks):
            if ks < 8:
                return "v", vT1c + 4 * ks
            return "a", 112 + 4 * (ks - 8)
        mf = []
        for step in range(28):
            for i in range(2):
                for u in range(2):
                    c, b = self.wd_reg(2 * step + u)
                    d = vr(accb + 16 * (2 * i + u), 16)
                    mf.append(f"v_mfma_f32_32x32x16_bf16 {d}, {vr(b,4,c)}, {vr(vAB+4*((2*step+i)%hring),4)}, {d if step else 0}")
        for ks in range(28):
            c, b = fi_reg(ks)
            d = vr(acca, 16)
            mf.append(f"v_mfma_f32_32x32x16_bf16 {d}, {vr(b,4,c)}, {vr(vZF+4*(ks%NB),4)}, {d if ks else 0}")
        G = Gaps(mf)
        T0 = now[0] + 100
        nh = st_["nh"]
        pollB = f"buffer_load_dword v{vXr}, v{vPo}, {srd(sWS)}, s{sFp} offen sc1"
        G.s[o["pollB_ld"] - 1].append(f"s_add_u32 s{sFp}, s{sFp}, 4096")
        G.m[o["pollB_ld"]].append(I(pollB, tag="pB"))
        G.post[o["pollB_chk"]].append(self.poll_check("pB", "pB", [pollB], [], vXr))
        G.post[o["pollB_chk"]] += []
        hgap = {}
        lastg = -2
        for n in range(nh, 56):
            g = max(2 * (n - hring) + 1, lastg + (2 if n >= hring else 1), 0)
            if n == 28:
                g = max(g, o["pollB_chk"] + 1)
                G.v[g - 1] += [f"v_add_u32 v{vH}, 57344, v{vH}", f"v_add_u32 v{vH+1}, 57344, v{vH+1}"]
                assert lastg <= g - 1
            G.m[g].append(hl[n])
            hgap[n] = g
            lastg = g
            assert g < 2 * n - 1, (n, g)
        for n in range(1, 56):
            G.s[2 * n - 1].insert(0, W(vm=f"h{n}"))
        for g in range(112):
            if bg.ntr >= 56:
                break
            need = bg.ntr // 2 * 4 - 8 <= g
            s, m = bg_step(T0 + 32 * g, 1 if g % 2 == 0 else 0, 1, force=need)
            G.s[g] += s
            G.m[g] += m
            for x in m:
                if isinstance(x, I) and x.tag and x.tag.startswith("dr"):
                    assert g < 8 * int(x.tag[2:]) - 2, ("w_down late", g, x.tag)
        assert bg.ntr == 56
        for gi in range(1, 14):
            G.s[8 * gi - 1].insert(0, W(ds=f"dr{gi}"))
        gz = o["zflag"]
        sFz = sWo + 2
        G.s[gz - 2] += [f"s_lshl_b32 s{sFz}, s{sWv}, 8", f"s_add_u32 s{sFz}, s{sFz}, s{sKd}"]
        G.s[gz - 1] += [f"s_lshl_b32 s{sFz}, s{sFz}, 2", f"s_add_u32 s{sFz}, s{sFz}, {FZ}"]
        G.m[gz].append(self.flag_store(sFz, ["zre", "zim"]))
        pz = vT + 28
        pollZ = f"buffer_load_dwordx4 {vr(pz,4)}, v{vPo+1}, {srd(sWS)}, s{sFz} offen sc1"
        gl = o["pollZ_ld"]
        G.s[gl - 2] += [f"s_lshr_b32 s{sFz}, s{sRt}, 3", f"s_lshl_b32 s{sFz}, s{sFz}, 10"]
        G.s[gl - 1] += [f"s_add_u32 s{sFz}, s{sFz}, {FZ}"]
        G.v[gl - 2] += [f"v_min_u32 v{vPo+1}, {56*16}, v{vL16}"]
        G.m[gl].append(I(pollZ, tag="pZ"))
        gc = o["pollZ_chk"]
        G.post[gc].append(self.poll_check("pZ", "pZ", [pollZ], [f"v_and_b32 v{pz}, v{pz}, v{pz+1}", f"v_and_b32 v{pz+2}, v{pz+2}, v{pz+3}",
                                                              f"v_and_b32 v{pz}, v{pz}, v{pz+2}"], pz))
        sZo, sZm = sWo + 3, sWo + 4
        G.s[gc - 4] += [f"s_mul_i32 s{sZo}, s{sWv}, {14*32768}", f"s_add_u32 s{sZo}, s{sZo}, {ZT}"]
        G.s[gc - 2] += [f"s_mul_i32 s{sZm}, s{sWv}, {14*1024}"]
        g = gc + 1
        busy = set(hgap.values())
        for i in range(14):
            while g in busy:
                g += 1
            G.s[g] += [f"s_add_u32 m0, s{sZm}, {ZS + 1024*i}"]
            G.m[g] += [f"s_add_u32 s{sZo}, s{sZo}, 32768" if i else "s_nop 0",
                       I(f"buffer_load_dwordx4 v{vZd}, {srd(sWS)}, s{sZo} offen sc1 lds", tag="z")]
            g += 2 if g > max(busy) else 1
        print(f"; last z dma at gap {g}", file=sys.stderr)
        gb = 112 - L
        assert g <= gb
        G.s[gb] += [W(vm="z"), "s_barrier"]
        for ks in range(28):
            b = vZF + 4 * (ks % NB)
            G.m[112 + ks - L] += [I(f"ds_read_b64_tr_b16 {vr(b+2*h,2)}, v{vZr} offset:{(2*ks+h)*1024}", tag=f"zf{ks}") for h in range(2)]
        for ks in range(-1, 27, 2):
            G.s[112 + ks].insert(0, W(ds=f"zf{min(ks+2,27)}"))
        st = vT
        x0, x1, x2, x3, ph, stp = vT + 17, vT + 18, vT + 19, vT + 24, vT + 25, vT + 26
        pkb = vT + 20
        sU_, sI_ = sWo + 5, sWo + 6
        pre = [f"s_and_b32 s{sU_}, s{sWv}, 1", f"s_lshr_b32 s{sI_}, s{sWv}, 1"]
        vq = []
        pre += [f"s_lshl_b32 s{sT0}, s{sCt}, 1", f"s_add_u32 s{sT0}, s{sT0}, s{sU_}", f"s_lshl_b32 s{sT0}, s{sT0}, 5",
                f"s_mov_b32 s{sT2}, {STEP448}"]
        vq += [f"v_and_b32 v{x0}, 3, v0", f"v_bfe_u32 v{x1}, v0, 2, 1", f"v_lshl_add_u32 v{x0}, v{x1}, 4, v{x0}",
               f"v_bfe_u32 v{x1}, v0, 3, 2", f"v_lshl_add_u32 v{x0}, v{x1}, 2, v{x0}",
               f"v_add_u32 v{x0}, s{sT0}, v{x0}", f"v_mul_lo_u32 v{stp}, v{x0}, s{sT2}",
               f"v_lshrrev_b32 v{x1}, 5, v0", f"v_lshlrev_b32 v{x2}, 1, v{x1}", f"v_mul_lo_u32 v{ph}, v{x2}, v{stp}",
               f"v_lshlrev_b32 v{x2}, 3, v{stp}"]
        vq += self.trig(st + 16, x2, x3)
        for ks in range(2):
            for jj in range(4):
                vq += [f"v_alignbit_b32 v{x3}, s{s7f}, v{ph}, 9", f"v_cos_f32 v{st+8*ks+2*jj}, v{x3}",
                       f"v_sin_f32 v{st+8*ks+2*jj+1}, -v{x3}"]
                if jj & 1:
                    vq += [f"v_lshl_add_u32 v{ph}, v{stp}, 1, v{ph}"]
                vq += [f"v_add_u32 v{ph}, v{ph}, v{stp}"]
        vq += [f"v_add_f32 v{st+16}, v{st+16}, v{st+16}"]
        vq += self.rec_pack(st, 0, fi_reg(0)[1]) + self.rec_pack(st, 1, fi_reg(1)[1])
        f0 = fi_reg(0)[1]
        vq += [f"v_lshlrev_b32 v{x2}, 31, v{x0}", f"v_or_b32 v{x2}, 0x3f803f80, v{x2}", f"v_add_u32 v{x3}, -1, v{x1}",
               f"v_bfi_b32 v{f0}, v{x3}, v{x2}, v{f0}",
               f"v_and_b32 v{x3}, 31, v0", f"v_lshrrev_b32 v{x0}, 3, v{x3}"]
        pre += [f"s_lshr_b32 s{sT3}, s{sRt}, 3", f"s_lshl_b32 s{sT3}, s{sT3}, 1", f"s_and_b32 s{sCnt}, s{sRt}, 1",
                f"s_add_u32 s{sT3}, s{sT3}, s{sCnt}", f"s_lshl_b32 s{sT3}, s{sT3}, 1", f"s_add_u32 s{sT3}, s{sT3}, s{sI_}",
                f"s_lshl_b32 s{sT3}, s{sT3}, 4", f"s_bfe_u32 s{sCnt}, s{sRt}, 0x20001", f"s_add_u32 s{sT3}, s{sT3}, s{sCnt}",
                f"s_lshl_b32 s{sT3}, s{sT3}, 3"]
        vq += [f"v_and_b32 v{x2}, 7, v0", f"v_lshl_add_u32 v{x2}, v{x0}, 5, v{x2}", f"v_add_u32 v{x2}, s{sT3}, v{x2}",
               f"v_mul_u32_u24 v{vOo}, 896, v{x2}", f"v_lshl_add_u32 v{x2}, v{x1}, 4, s{sT0}", f"v_lshl_add_u32 v{vOo}, v{x2}, 1, v{vOo}"]
        sGo = sHst
        pre += [f"s_lshl_b32 s{sGo}, s{sRt}, 1", f"s_add_u32 s{sGo}, s{sGo}, s{sI_}", f"s_lshl_b32 s{sGo}, s{sGo}, 7",
                f"s_add_u32 s{sGo}, s{sGo}, {GOFF}"]
        vq += [f"v_lshlrev_b32 v{vGv}, 2, v{x3}",
               I(f"buffer_load_dword v{vGv}, v{vGv}, {srd(sWS)}, s{sGo} offen sc1", tag="g")]
        pre += [f"s_lshl_b32 s{sRot2}, s{sRt}, 7", f"s_lshl_b32 s{sSc}, s{sI_}, 9", f"s_add_u32 s{sSc}, s{sSc}, {ZS}"]
        vq += [f"v_bfe_u32 v{x2}, v0, 2, 3", f"v_and_b32 v{x0}, 3, v0", f"v_lshl_add_u32 v{vZd}, v{x1}, 2, v{x0}",
               f"v_lshlrev_b32 v{vZd}, 4, v{vZd}", f"v_lshl_add_u32 v{vZd}, v{x2}, 12, v{vZd}", f"v_add_u32 v{vZd}, s{sRot2}, v{vZd}",
               f"v_and_b32 v{x2}, 3, v{x2}", f"v_lshl_add_u32 v{x2}, v{x1}, 2, v{x2}", f"v_lshlrev_b32 v{vZr}, 6, v{x2}",
               f"v_bfe_u32 v{x2}, v0, 4, 1", f"v_lshl_add_u32 v{vZr}, v{x2}, 5, v{vZr}", f"v_lshl_add_u32 v{vZr}, v{x0}, 3, v{vZr}",
               f"v_add_u32 v{vZr}, s{sSc}, v{vZr}"]
        g, left = G.pour(vq, 0)
        assert g < gc
        for ks in range(2, 28):
            c, b = fi_reg(ks)
            if c == "v":
                qq = self.rec_step(st, ks, b)
            else:
                qq = self.rec_step(st, ks, pkb) + [f"v_accvgpr_write_b32 a{b+j}, v{pkb+j}" for j in range(4)]
            g, left = G.pour(qq, max(g, 17 if ks >= 20 else 0), 112 + ks - 1)
            assert not left, ks
        print(f"; finv done at gap {g}", file=sys.stderr)
        vRw, vRr = vWd + 1, vTr
        G.v[max(g, 100)] += [f"v_add_u32 v{vRr}, s{sXm}, v{vL16}"]
        G.s[100] += [f"s_lshl_b32 s{sT0}, s{sWv}, 12", f"s_add_u32 s{sT0}, s{sT0}, {RED}"]
        G.v[max(g, 101)] += [f"v_add_u32 v{vRw}, s{sT0}, v{vL16}"]
        g = 114
        for tl in range(4):
            for k in range(4):
                G.m[g].append(I(f"ds_write_b128 v{vRw}, {vr(accb+16*tl+4*k,4)} offset:{16384*tl+1024*k}", tag="rw"))
                g += 1
        G.s[g + 2] += [W(ds="rw"), "s_barrier"]
        g += 2
        rd = []
        for sw in range(4):
            for k in range(4):
                rd.append(I(f"ds_read_b128 {vr(accb+16*sw+4*k,4)}, v{vRr} offset:{4096*sw+1024*k}", tag=f"rr{sw}"))
        while rd and g < 139:
            G.m[g] += rd[:2]
            rd = rd[2:]
            g += 1
        G.m[139] += rd
        G.s[111] += self.stamp("g2h")

        e(pre)
        while st_["nh"] < 1:
            raise SystemExit("no h loads")
        e(W(vm="h0", ds="dr0"))
        G.emit(p)
        e(self.stamp("g2"))
        og = vT
        e(W(vm="g"))
        e([f"v_mov_b32 v{og}, v{vGv}", f"v_sub_f32 v{og+2}, 1.0, v{vGv}"])
        e(W(ds="rr1"))
        for k in range(8):
            e(f"v_pk_add_f32 {vr(accb+2*k,2)}, {vr(accb+2*k,2)}, {vr(accb+16+2*k,2)}")
        e(W(ds="rr3"))
        for k in range(8):
            e(f"v_pk_add_f32 {vr(accb+32+2*k,2)}, {vr(accb+32+2*k,2)}, {vr(accb+48+2*k,2)}")
        for k in range(8):
            e(f"v_pk_mul_f32 {vr(acca+2*k,2)}, {vr(acca+2*k,2)}, {vr(og,2)} op_sel_hi:[1,0]")
        for half in range(2):
            for k in range(4 * half, 4 * half + 4):
                e(f"v_pk_add_f32 {vr(accb+2*k,2)}, {vr(accb+2*k,2)}, {vr(accb+32+2*k,2)}")
            for k in range(4 * half, 4 * half + 4):
                e(f"v_pk_fma_f32 {vr(acca+2*k,2)}, {vr(accb+2*k,2)}, {vr(og+2,2)}, {vr(acca+2*k,2)} op_sel_hi:[1,0,1]")
            for k in range(4 * half, 4 * half + 4):
                e(f"v_cvt_pk_bf16_f32 v{og+4+k}, v{acca+2*k}, v{acca+2*k+1}")
            e(f"buffer_store_dwordx4 {vr(og+4+4*half,4)}, v{vOo}, {srd(sO)}, 0 offen offset:{16*half}")
        p.raw("L_fin:")
        self.dump_stamps()
        p.raw("L_end:")
        p.raw("s_endpgm")

        p.restore(snap_aux)
        self.aux(sj, sidx)
        for l in self.slow:
            p.raw(l)
        p.raw("L_codeend:")
        return self.finish()

    def dump_stamps(self):
        if not self.o["stamps"]:
            return
        p = self.p
        i = self.nst
        p.raw("s_waitcnt vmcnt(0)")
        p.e(self.stamp("end"))
        p.raw("s_waitcnt lgkmcnt(0)")
        p.e([f"s_lshl_b32 s{sT0}, s2, 2", f"s_add_u32 s{sT0}, s{sT0}, s{sWv}", f"s_lshl_b32 s{sT0}, s{sT0}, 6",
             f"s_add_u32 s{sT0}, s{sT0}, {STAMP}", "s_mov_b64 exec, 1"])
        for k in range(self.nst):
            p.e([f"v_mov_b32 v2, s{sST+2*k}", f"buffer_store_dword v2, off, {srd(sWS)}, s{sT0} offset:{4*k}"])
        p.e([f"s_memrealtime s[{sST}:{sST+1}]"])
        p.raw("s_waitcnt lgkmcnt(0)")
        p.e([f"v_mov_b32 v2, s{sST}", f"buffer_store_dword v2, off, {srd(sWS)}, s{sT0} offset:60"])

    def aux(self, sj, sidx):
        p, o = self.p, self.o
        e = p.e
        p.raw("L_aux:")
        sA = sRt
        main_stamps = (self.nst, list(self.stamp_names))
        e([f"s_lshl_b32 s{sA}, s{sj}, 2", f"s_add_u32 s{sA}, s{sA}, s{sidx}", f"s_sub_u32 s{sA}, s{sA}, 28"])
        p.raw("s_waitcnt lgkmcnt(0)")
        for s, off in ((sG, 8), (sU, 16), (sD, 56)):
            e(f"s_load_dwordx2 s[{s}:{s+1}], s[0:1], {off}")
        e([f"s_mov_b32 s{sG+2}, {2048*450}", f"s_mov_b32 s{sU+2}, {2048*450}", f"s_mov_b32 s{sD+2}, 896"])
        vt16 = 2
        e([f"s_lshl_b32 s{sT0}, s{sWv}, 10", f"v_add_u32 v{vt16}, s{sT0}, v{vL16}"])
        for k in range(4):
            e(f"v_mov_b32 v{4+k}, 0")
        e([f"s_cmp_lg_u32 s{sA}, 0", "s_cbranch_scc1 L_aux1"])
        for k in range(4):
            p.raw(f"s_movk_i32 s{sT1}, {4096*k}")
            p.raw(f"buffer_store_dwordx4 v[4:7], v{vt16}, {srd(sWS)}, s{sT1} offen sc1")
        p.raw("s_waitcnt vmcnt(0)")
        p.raw("s_barrier")
        p.raw(f"v_mov_b32 v8, 1")
        p.raw(f"s_cmp_lg_u32 s{sWv}, 0")
        p.raw("s_cbranch_scc1 L_aux1")
        p.raw("s_mov_b64 exec, 1")
        p.raw(f"buffer_store_dword v8, off, {srd(sDBG)}, 0 sc1")
        p.raw("s_mov_b64 exec, -1")
        p.raw("L_aux1:")
        p.raw("s_waitcnt lgkmcnt(0)")
        RS = 4128
        sq, skg = sRg, sC
        e([f"s_lshr_b32 s{sq}, s{sA}, 3", f"s_and_b32 s{skg}, s{sA}, 7",
           f"s_lshl_b32 s{sT1}, s{sq}, 6", f"s_add_u32 s{sT1}, s{sT1}, s{skg}", f"s_mul_i32 s{sT1}, s{sT1}, 3600"])
        for j in range(8):
            for part in range(2):
                e([f"s_add_u32 m0, s{sT0}, {(8*part+j)*RS}", "s_nop 0",
                   I(f"buffer_load_dwordx4 v{vt16}, {srd(sG if part == 0 else sU)}, s{sT1} offen lds", tag="wl")])
            e(f"s_add_u32 s{sT1}, s{sT1}, {64*450}")
        vo, vg = 3, 8
        xb, gb = 32, 96
        e([f"s_lshr_b32 s{sT1}, s{sA}, 3", f"s_lshl_b32 s{sT1}, s{sT1}, 1", f"s_and_b32 s{sT2}, s{sA}, 1",
           f"s_add_u32 s{sT1}, s{sT1}, s{sT2}", f"s_lshl_b32 s{sT1}, s{sT1}, 2", f"s_add_u32 s{sT1}, s{sT1}, s{sWv}",
           f"s_lshl_b32 s{sT1}, s{sT1}, 3", f"s_bfe_u32 s{sT2}, s{sA}, 0x20001", f"s_add_u32 s{sT1}, s{sT1}, s{sT2}",
           f"s_lshl_b32 s{sT1}, s{sT1}, 3",
           f"v_lshrrev_b32 v4, 5, v0", f"v_bfe_u32 v5, v0, 2, 3", f"v_lshl_add_u32 v4, v4, 5, v5", f"v_add_u32 v4, s{sT1}, v4",
           f"v_and_b32 v{vg}, 48, v{vL16}", f"v_mul_u32_u24 v4, 896, v4", f"v_add_u32 v{vo}, v4, v{vg}"])
        for k in range(14):
            e(I(f"buffer_load_dwordx4 {vr(xb+4*k,4)}, v{vo}, {srd(sX)}, 0 offen offset:{64*k}", tag="gx"))
            e(I(f"buffer_load_dwordx4 {vr(gb+4*k,4)}, v{vg}, {srd(sD)}, 0 offen offset:{64*k}", tag="gx"))
        gol = f"buffer_load_dword v{vP}, off, {srd(sDBG)}, 0 sc1"
        vra, vwa = 9, 10
        e([f"v_and_b32 v4, 7, v0", f"v_lshrrev_b32 v5, 7, v{vt16}", f"v_mul_u32_u24 v{vra}, 450, v4",
           f"v_lshl_add_u32 v{vra}, v5, 1, v{vra}",
           f"v_lshlrev_b32 v{vwa}, 13, v5", f"v_lshl_add_u32 v{vwa}, v4, 4, v{vwa}",
           f"s_lshr_b32 s{sT1}, s{skg}, 1", f"s_lshl_b32 s{sT1}, s{sT1}, 2", f"s_add_u32 s{sT1}, s{sT1}, s{sq}",
           f"s_lshl_b32 s{sT1}, s{sT1}, 1", f"s_and_b32 s{sT2}, s{skg}, 1", f"s_add_u32 s{sT1}, s{sT1}, s{sT2}",
           f"s_lshl_b32 s{sT1}, s{sT1}, 7", f"s_add_u32 s{sT1}, s{sT1}, {WT}", f"s_add_u32 s{sT2}, s{sT1}, 4096"])
        e(W(vm="wl"))
        e("s_barrier")
        e(f"s_mov_b32 s{sCnt}, 0")
        p.raw("L_wt:")
        p.raw(f"v_cmp_gt_u32 vcc, {225*8192}, v{vwa}")
        for n in range(14):
            p.raw(f"ds_read_u16 v{160+n}, v{vra} offset:{n*RS}")
        p.raw(f"v_cndmask_b32 v11, 2.0, v{vwa}, vcc")
        for part in range(2):
            p.raw(f"s_waitcnt lgkmcnt({6*(1-part)})")
            if part == 0:
                for n in (14, 15):
                    p.raw(f"ds_read_u16 v{160+n}, v{vra} offset:{n*RS}")
            for j in range(4):
                p.raw(f"v_lshl_or_b32 v{176+4*part+j}, v{160+8*part+2*j+1}, 16, v{160+8*part+2*j}")
            p.raw(f"buffer_store_dwordx4 {vr(176+4*part,4)}, v11, {srd(sWS)}, s{sT1+part} offen sc1")
        p.raw(f"v_add_u32 v{vra}, 64, v{vra}")
        p.raw(f"v_add_u32 v{vwa}, {32*8192}, v{vwa}")
        p.raw(f"s_add_u32 s{sCnt}, s{sCnt}, 1")
        p.raw(f"s_cmp_lt_u32 s{sCnt}, 8")
        p.raw("s_cbranch_scc1 L_wt")
        p.raw(gol)
        p.raw("s_waitcnt vmcnt(17)")
        p.reset()
        for k in range(4):
            e(f"v_mov_b32 v{4+k}, 0")
        for k in range(56):
            e(f"v_dot2_f32_bf16 v{4+k%4}, v{xb+k}, v{gb+k}, v{4+k%4}")
        e([f"v_add_f32 v4, v4, v5", f"v_add_f32 v6, v6, v7", f"v_add_f32 v4, v4, v6",
           f"v_add_f32_dpp v4, v4, v4 quad_perm:[1,0,3,2] row_mask:0xf bank_mask:0xf",
           f"v_add_f32_dpp v4, v4, v4 quad_perm:[2,3,0,1] row_mask:0xf bank_mask:0xf",
           f"v_mul_f32 v4, s{sK}, v4", f"v_exp_f32 v4, v4", f"v_add_f32 v4, 1.0, v4", f"v_rcp_f32 v4, v4",
           f"v_and_b32 v5, 60, v0",
           f"s_lshl_b32 s{sT1}, s{sA}, 2", f"s_add_u32 s{sT1}, s{sT1}, s{sWv}", f"s_lshl_b32 s{sT1}, s{sT1}, 6",
           f"s_add_u32 s{sT1}, s{sT1}, {GOFF}",
           f"buffer_store_dword v4, v5, {srd(sWS)}, s{sT1} offen sc1"])
        p.raw("s_waitcnt vmcnt(0)")
        p.reset()
        e(self.poll_check("goa", None, [gol], [], vP))
        e("s_barrier")
        for k in range(4):
            e(f"v_mov_b32 v{4+k}, 1")
        e([f"s_lshl_b32 s{sT1}, s{sA}, 3", f"s_add_u32 s{sT1}, s{sT1}, {FAUX}",
           f"s_cmp_lg_u32 s{sWv}, 0", "s_cbranch_scc1 L_aux2"])
        e(self.flag_store(sT1, None, 2, 4))
        p.raw("L_aux2:")
        p.reset()
        e([f"s_cmp_lg_u32 s{sA}, 1", "s_cbranch_scc1 L_end"])
        if o["stop"] == "gemm1":
            e("s_branch L_end")
        e([f"s_movk_i32 s{sKd}, 224", f"s_mov_b32 s{sSc}, {fbits(1.0/(2048*448))}", f"s_mov_b32 s{sT0}, 0"])
        e(self.fft_consts())
        pl = self.poll1_loads(vT + 4)
        e([I(x, tag="p1") for x in pl])
        e(self.poll_check("p1a", "p1", pl, [f"v_and_b32 v{vT+4}, v{vT+4}, v{vT+5}"], vT + 4))
        e(self.fft_scalars())
        e(self.fft_setup_regs())
        e(self.fft_loads())
        self.fft_body(lambda n, dt: None)
        e([f"s_lshl_b32 s{sT0}, s{sWv}, 10", f"s_add_u32 s{sT0}, s{sT0}, {FZ+224*4}"])
        e(self.flag_store(sT0, ["zre", "zim"], 4, 4))
        p.raw("s_endpgm")

    def finish(self):
        lines, nfix = check_hazards(self.p.out)
        print(f"; {len(lines)} lines, {nfix} hazard nops inserted, {getattr(self.p,'n_sat',0)} lgkm saturation waits", file=sys.stderr)
        ref = open("gated_mix__spectral_gfnet__swiglu_ffn__prompt.s.ref").read().split("\n")
        head = [l for l in ref if l.startswith(";") and "@launch" not in l and "Override" not in l and "grid=ceil" not in l]
        s = "\n".join(head) + "\n"
        s += f"; @launch grid=(256,1,1) block=(256,1,1) lds={LDS_BYTES}\n"
        s += '.amdgcn_target "amdgcn-amd-amdhsa--gfx950"\n.text\n'
        s += f".globl {NAME}\n.p2align 8\n.type {NAME},@function\n{NAME}:\n"
        s += "\n".join(lines) + "\n"
        s += f"""s_endpgm
.section .rodata,"a"
.p2align 6
.amdhsa_kernel {NAME}
  .amdhsa_next_free_vgpr 512
  .amdhsa_next_free_sgpr 102
  .amdhsa_accum_offset 256
  .amdhsa_group_segment_fixed_size 0
  .amdhsa_kernarg_size 88
  .amdhsa_user_sgpr_count 2
  .amdhsa_user_sgpr_kernarg_segment_ptr 1
  .amdhsa_system_sgpr_workgroup_id_x 1
  .amdhsa_float_denorm_mode_32 3
.end_amdhsa_kernel
"""
        return s


def parse_opts(args):
    kw = {}
    for a in args:
        k, v = a.split("=")
        assert k in DEF, k
        if isinstance(DEF[k], bool):
            v = v not in ("0", "False")
        elif isinstance(DEF[k], int):
            v = int(v)
        kw[k] = v
    return kw


if __name__ == "__main__":
    out = sys.argv[1]
    g = Gen(**parse_opts(sys.argv[2:]))
    s = g.build()
    open(out, "w").write(s)
    print("; stamps:", g.stamp_names, file=sys.stderr)
```

```python
import sys, gen
N = gen.NAME
def make(what, opts):
    g = gen.Gen(stamps=True, **opts); s = g.build()
    nm = g.stamp_names
    b = f"""
.text
.globl probe_kernel
.p2align 8
.type probe_kernel,@function
probe_kernel:
s_cmp_ge_u32 s2, 1
s_cbranch_scc1 L_pend
s_load_dwordx2 s[4:5], s[0:1], 80
s_mov_b32 s6, 0x1000000
s_mov_b32 s7, 0x20000
v_lshlrev_b32 v1, 6, v0
v_mov_b32 v4, -1
v_mov_b32 v5, 0
v_mov_b32 v6, 0
s_waitcnt lgkmcnt(0)
"""
    kind, a, bb = what
    ia = 15 if a == "rt1" else nm.index(a); ib = 15 if bb == "rt1" else nm.index(bb)
    for i in range(14):
        b += f"s_mov_b32 s8, {gen.STAMP + i*4096}\n"
        b += f"buffer_load_dword v2, v1, s[4:7], s8 offen offset:{4*ia}\nbuffer_load_dword v3, v1, s[4:7], s8 offen offset:{4*ib}\ns_waitcnt vmcnt(0)\n"
        b += "v_min_u32 v4, v4, v2\nv_max_u32 v5, v5, v3\nv_sub_u32 v3, v3, v2\nv_add_u32 v6, v6, v3\n"
    b += "s_mov_b32 s10, -1\ns_mov_b32 s11, 0\ns_mov_b32 s12, 0\ns_nop 1\n"
    for l in range(64):
        b += f"v_readlane_b32 s8, v4, {l}\nv_readlane_b32 s9, v5, {l}\nv_readlane_b32 s13, v6, {l}\ns_nop 1\ns_min_u32 s10, s10, s8\ns_max_u32 s11, s11, s9\ns_add_u32 s12, s12, s13\n"
    if kind == "span":
        b += "s_sub_u32 s14, s11, s10\ns_lshl_b32 s14, s14, 4\n"
    elif kind == "meanrt":
        b += "s_lshr_b32 s14, s12, 6\n"
    elif kind == "mean":
        b += "s_lshr_b32 s14, s12, 10\n"
    elif kind == "zero":
        b += "s_mov_b32 s14, 0\n"
    b += """s_min_u32 s14, s14, 200000
s_memrealtime s[16:17]
s_waitcnt lgkmcnt(0)
L_pspin:
s_memrealtime s[18:19]
s_waitcnt lgkmcnt(0)
s_sub_u32 s18, s18, s16
s_cmp_lt_u32 s18, s14
s_cbranch_scc1 L_pspin
L_pend:
s_endpgm
.section .rodata,"a"
.p2align 6
.amdhsa_kernel probe_kernel
  .amdhsa_next_free_vgpr 16
  .amdhsa_next_free_sgpr 32
  .amdhsa_accum_offset 16
  .amdhsa_group_segment_fixed_size 0
  .amdhsa_kernarg_size 88
  .amdhsa_user_sgpr_count 2
  .amdhsa_user_sgpr_kernarg_segment_ptr 1
  .amdhsa_system_sgpr_workgroup_id_x 1
.end_amdhsa_kernel
"""
    l = [x for x in s.split("\n") if "@launch" in x][0] + "\n"
    m = l.replace("@launch ", f"@launch kernel={N} ")
    n = "; @launch kernel=probe_kernel grid=(1,1,1) block=(64,1,1) lds=0\n"
    return s.replace(l, m + n) + b
if __name__ == "__main__":
    opts = gen.parse_opts([a for a in sys.argv[1:] if "=" in a])
    for i, w in enumerate(a for a in sys.argv[1:] if "=" not in a):
        open(f"v/p{i}.s", "w").write(make(w.split(":"), opts))
```

```python
import sys, struct
from asmlib import *

NAME = "gated_mix__spectral_gfnet__swiglu_ffn__prompt_kernel"

FX1 = 0
FAUX = FX1 + 14 * 256
FH = 4096
FZ = FH + 8192
FEND = FZ + 4096
GOFF = 16384
STAMP = 32768
X1T = 1 << 20
ZT = X1T + 448 * 4096
WT = ZT + 448 * 4096
HH = WT + 225 * 8192
WSEND = HH + 64 * 114688
OOB = 0x40000000

WSLOT = 16640
NWS = 5
XS = NWS * WSLOT
SCR = XS + 65536
IMG = 0
EXC = 8192
ZS = 16384
RED = XS
LDS_BYTES = 163840

sX, sG, sU, sD, sWS, sO, sDBG = 4, 8, 12, 16, 20, 24, 28
sWv, sRg, sC, sRt, sCt, sKd = 32, 33, 34, 35, 36, 37
sWm, sXm = 38, 39
sT0, sT1, sT2, sT3 = 40, 41, 42, 43
sK = 44
s7f = 46
sCnt = 47
sXo, sWo, sDo = 48, 55, 62
sHo = sXo
sHst, sRot2 = 69, 70
sSc = 71
sST = 72

vL16 = 1
vXd, vXr, vWd, vTr, vDd, vDr = 2, 6, 10, 12, 14, 18
vX1w, vX1r, vX1g, vL4, vP = 19, 20, 21, 22, 23
vWF = 24
vT1c, vT1s, vT2c, vT2s = 48, 56, 64, 72
vAX, vAA, vAB, vT = 80, 96, 160, 224
aX, aC64, aS64, aN64, aC32, aS32, aN32 = 0, 112, 120, 128, 136, 144, 152
STEP448 = 9586981


def srd(s):
    return f"s[{s}:{s+3}]"


def vr(b, n, c="v"):
    return f"{c}[{b}:{b+n-1}]"


def fbits(x):
    return "0x%08x" % struct.unpack("<I", struct.pack("<f", x))[0]


DEF = dict(rot1="0", rot2="1", LA=2, npre=12, wd_start=120, wd_delay=34, stop=None, stamps=False,
           go_ld=60, x1flag=196, hAflag=244, poll1=232, dma_gap=2, hring=12,
           hB_flag_at="tw2", pollA_at="s1", pollA_chk="tw2", pollB_ld=16, pollB_chk=30,
           pollZ_ld=56, pollZ_chk=72, zflag=24, spin=200000, pf=1, epi_budget=7,
           rt=False, st1='', st2='', only='', diag='')


class Gen:
    def __init__(self, **kw):
        self.o = dict(DEF)
        self.o.update(kw)
        self.p = Prog()
        self.slow = []
        self.nst = 0
        self.stamp_names = []

    def stamp(self, name):
        if not self.o["stamps"]:
            return []
        if self.o["only"] and name not in ("start", "rt0", "end") and name not in self.o["only"].split(",") and name[0] != "@":
            return []
        i = self.nst
        self.nst += 1
        assert sST + 2 * i + 1 <= 101
        self.stamp_names.append(name)
        return [f"{'s_memrealtime' if self.o['rt'] else 's_memtime'} s[{sST+2*i}:{sST+2*i+1}]"]

    def poll_check(self, name, tags, loads, combine, reg):
        def f(p):
            p.wait(vm=tags)
            p.e(combine)
            p.e(f"v_cmp_ne_u32 vcc, 1, v{reg}")
            p.e(f"s_cbranch_vccnz L_slow_{name}")
            p.raw(f"L_back_{name}:")
        s = [f"L_slow_{name}:", f"s_mov_b32 s{sCnt}, 0", f"L_spin_{name}:", "s_sleep 1"]
        s += loads + ["s_waitcnt vmcnt(0)"] + list(combine)
        s += [f"v_cmp_ne_u32 vcc, 1, v{reg}", f"s_cbranch_vccz L_back_{name}",
              f"s_add_u32 s{sCnt}, s{sCnt}, 1", f"s_cmp_lt_u32 s{sCnt}, {self.o['spin']}",
              f"s_cbranch_scc1 L_spin_{name}", "s_endpgm"]
        self.slow += s
        return f

    def flag_store(self, soff, tags, width=1, one=vP):
        def f(p):
            p.wait(vm=tags)
            p.e("s_mov_b64 exec, 1")
            op = {1: "buffer_store_dword", 2: "buffer_store_dwordx2", 4: "buffer_store_dwordx4"}[width]
            d = f"v{one}" if width == 1 else vr(one, width)
            p.e(f"{op} {d}, off, {srd(sWS)}, s{soff} sc1")
            p.e("s_mov_b64 exec, -1")
        return f

    def trig(self, dst, phase, tmp, fn="cos"):
        return [f"v_alignbit_b32 v{tmp}, s{s7f}, v{phase}, 9", f"v_{fn}_f32 v{dst}, v{tmp}"]

    def fft_consts(self):
        t = vAA
        vn, vq, vcol, vidx, va, vb = t, t + 1, t + 2, t + 3, t + 4, t + 5
        c0, s0 = t + 8, t + 16
        pk = t + 24
        q = []
        q += [f"v_lshrrev_b32 v{vn}, 4, v{vL16}", f"v_lshrrev_b32 v{vq}, 4, v{vn}", f"v_and_b32 v{vn}, 15, v{vn}",
              f"v_lshl_add_u32 v{vcol}, s{sWv}, 4, v{vn}",
              f"v_lshrrev_b32 v{va}, 2, v{vn}", f"v_and_b32 v{vb}, 3, v{vn}", f"v_lshl_add_u32 v{vidx}, v{va}, 3, v{vb}",
              f"v_cvt_f32_u32 v{vcol}, v{vcol}", f"v_cvt_f32_u32 v{vidx}, v{vidx}", f"v_cvt_f32_u32 v{vq}, v{vq}"]

        def frag(mul, base, ks_of_j, ac, as_, an):
            r = []
            for j in range(8):
                r.append(f"v_fma_f32 v{s0+j}, v{mul}, s{sT0}, v{base}" if False else None)
            r = []
            for j in range(8):
                k = ks_of_j(j)
                if k == 0:
                    r.append(f"v_mov_b32 v{s0+j}, v{base}")
                else:
                    r.append(f"v_fmamk_f32 v{s0+j}, v{mul}, {fbits(float(k))}, v{base}")
            for j in range(8):
                r.append(f"v_cos_f32 v{c0+j}, v{s0+j}")
                r.append(f"v_sin_f32 v{s0+j}, v{s0+j}")
            for j in range(4):
                r.append(f"v_cvt_pk_bf16_f32 v{pk+j}, v{c0+2*j}, v{c0+2*j+1}")
                r.append(f"v_cvt_pk_bf16_f32 v{pk+4+j}, v{s0+2*j}, v{s0+2*j+1}")
            for j in range(4):
                r.append(f"v_accvgpr_write_b32 a{ac+j}, v{pk+j}")
                r.append(f"v_accvgpr_write_b32 a{as_+j}, v{pk+4+j}")
                r.append(f"v_xor_b32 v{pk+4+j}, 0x80008000, v{pk+4+j}")
            for j in range(4):
                r.append(f"v_accvgpr_write_b32 a{an+j}, v{pk+4+j}")
            return r
        q += [f"v_mul_f32 v{va}, {fbits(1/64)}, v{vcol}", f"v_mul_f32 v{vb}, 4.0, v{vq}", f"v_mul_f32 v{vb}, v{vb}, v{va}"]
        for ks in range(2):
            q += frag(va, vb, lambda j: 32 * ks + 16 * (j >> 2) + (j & 3), aC64 + 4 * ks, aS64 + 4 * ks, aN64 + 4 * ks)
        q += [f"v_mul_f32 v{va}, {fbits(1/2048)}, v{vcol}", f"v_mul_f32 v{vb}, {fbits(8.0)}, v{vq}", f"v_mul_f32 v{vb}, v{vb}, v{va}"]
        for j in range(8):
            q.append(f"v_fmamk_f32 v{vT1s+j}, v{va}, {fbits(float(j))}, v{vb}")
        for j in range(8):
            q += [f"v_cos_f32 v{vT1c+j}, v{vT1s+j}", f"v_sin_f32 v{vT1s+j}, v{vT1s+j}"]
        vk = t + 6
        q += [f"v_cvt_f32_u32 v{vk}, s{sWv}", f"v_mul_f32 v{vk}, 4.0, v{vk}", f"v_add_f32 v{vk}, v{vk}, v{vq}", f"v_mul_f32 v{vk}, 4.0, v{vk}"]
        for tt in range(2):
            if tt:
                q.append(f"v_add_f32 v{vidx}, 4.0, v{vidx}")
            q += [f"v_mul_f32 v{va}, {fbits(1/32)}, v{vidx}", f"v_mul_f32 v{vb}, {fbits(8.0)}, v{vq}", f"v_mul_f32 v{vb}, v{vb}, v{va}"]
            q += frag(va, vb, lambda j: j, aC32 + 4 * tt, aS32 + 4 * tt, aN32 + 4 * tt)
            q += [f"v_mul_f32 v{va}, {fbits(1/2048)}, v{vidx}", f"v_mul_f32 v{vb}, v{vk}, v{va}"]
            for i in range(4):
                q.append(f"v_fmamk_f32 v{vT2s+4*tt+i}, v{va}, {fbits(float(i))}, v{vb}")
            for i in range(4):
                q += [f"v_cos_f32 v{vT2c+4*tt+i}, v{vT2s+4*tt+i}", f"v_sin_f32 v{vT2s+4*tt+i}, v{vT2s+4*tt+i}"]
        for i in range(8):
            q += [f"v_mul_f32 v{vT2c+i}, s{sSc}, v{vT2c+i}", f"v_mul_f32 v{vT2s+i}, s{sSc}, v{vT2s+i}"]
        return q

    def fft_setup_regs(self):
        a0, a1, vim = vT + 24, vT + 25, vT + 26
        t0, t1 = vT + 27, vT + 28
        q = [f"v_lshrrev_b32 v{t0}, 4, v{vL16}",
             f"v_and_b32 v{t1}, 3, v{t0}",
             f"v_lshlrev_b32 v{a0}, 8, v{t1}",
             f"v_and_b32 v{a1}, 2, v{t1}", f"v_add_u32 v{t1}, v{t1}, v{a1}",
             f"v_lshrrev_b32 v{a1}, 4, v{t0}", f"v_lshlrev_b32 v{a1}, 1, v{a1}",
             f"v_xor_b32 v{t1}, v{t1}, v{a1}",
             f"v_lshl_add_u32 v{a0}, v{t1}, 5, v{a0}",
             f"v_bfe_u32 v{t0}, v{t0}, 2, 2",
             f"v_lshl_add_u32 v{a0}, v{t0}, 3, v{a0}",
             f"v_xor_b32 v{a1}, 32, v{a0}",
             f"v_add_u32 v{vim}, s{sT3}, v{vL16}"]
        return q

    def fft_scalars(self):
        return [f"s_lshl_b32 s{sT1}, s{sKd}, 13", f"s_lshl_b32 s{sT0}, s{sWv}, 10",
                f"s_add_u32 s{sT2}, s{sT1}, s{sT0}",
                f"s_cmp_eq_u32 s{sKd}, 224", f"s_cselect_b32 s{sT1}, 4096, s{sT1}",
                f"s_cselect_b32 s{sT3}, 0, s{sKd}",
                f"s_add_u32 s{sT1}, s{sT1}, s{sT0}",
                f"s_cmp_eq_u32 s{sT3}, 0", f"s_movk_i32 s{sT3}, 4096", f"s_cselect_b32 s{sT3}, {OOB}, s{sT3}",
                f"s_add_u32 s{sT1}, s{sT1}, {X1T}", f"s_add_u32 s{sT2}, s{sT2}, {WT}"]

    def fft_loads(self):
        vim = vT + 26
        wr = vT + 8
        return [f"s_add_u32 m0, s{sT0}, {IMG}", "s_nop 0",
                I(f"buffer_load_dwordx4 v{vL16}, {srd(sWS)}, s{sT1} offen sc1 lds", tag="x1re"),
                f"s_add_u32 m0, s{sT0}, {IMG+4096}", "s_nop 0",
                I(f"buffer_load_dwordx4 v{vim}, {srd(sWS)}, s{sT1} offen sc1 lds", tag="x1im"),
                I(f"buffer_load_dwordx4 {vr(wr,4)}, v{vL16}, {srd(sWS)}, s{sT2} offen sc1", tag="wtre"),
                f"s_add_u32 s{sT2}, s{sT2}, 4096",
                I(f"buffer_load_dwordx4 {vr(wr+4,4)}, v{vL16}, {srd(sWS)}, s{sT2} offen sc1", tag="wtim"),
                f"s_add_u32 s{sT1}, s{sT1}, {ZT-X1T}"]

    def fft_body(self, hook):
        p = self.p
        A = vAA
        Dr, Di = vAA + 32, vAA + 40
        tm = vAA + 48
        Br, Bi = vT, vT + 4
        wr = vT + 8
        Wr, Wi = vWF, vWF + 8
        a0, a1, vim = vT + 24, vT + 25, vT + 26

        def af(part, t, ks):
            return A + 4 * (4 * part + 2 * t + ks)

        def mf(d, a, b, first):
            return f"v_mfma_f32_16x16x32_bf16 {vr(d,4)}, {a}, {b}, {'0' if first else vr(d,4)}"

        def cmul(c, s, sign):
            q = []
            n1 = " neg_lo:[0,0,1] neg_hi:[0,0,1]"
            for j in range(0, 8, 2):
                q += [f"v_pk_mul_f32 {vr(tm+j,2)}, {vr(Di+j,2)}, {vr(s+j,2)}",
                      f"v_pk_mul_f32 {vr(tm+8+j,2)}, {vr(Dr+j,2)}, {vr(s+j,2)}"]
            for j in range(0, 8, 2):
                q += [f"v_pk_fma_f32 {vr(tm+j,2)}, {vr(Dr+j,2)}, {vr(c+j,2)}, {vr(tm+j,2)}" + (n1 if sign > 0 else ""),
                      f"v_pk_fma_f32 {vr(tm+8+j,2)}, {vr(Di+j,2)}, {vr(c+j,2)}, {vr(tm+8+j,2)}" + ("" if sign > 0 else n1)]
            for j in range(4):
                q += [f"v_cvt_pk_bf16_f32 v{Br+j}, v{tm+2*j}, v{tm+2*j+1}",
                      f"v_cvt_pk_bf16_f32 v{Bi+j}, v{tm+8+2*j}, v{tm+8+2*j+1}"]
            return q

        def big(sgn, pre):
            Sre, Sim = (aS64, aN64) if sgn < 0 else (aN64, aS64)
            n = 0
            for ks in range(2):
                for part in range(2):
                    for t in range(2):
                        a = vr(af(part, t, ks), 4)
                        first = ks == 0 and part == 0
                        bre = (aC64 if part == 0 else Sre) + 4 * ks
                        bim = (Sim if part == 0 else aC64) + 4 * ks
                        p.e(I(mf(Dr + 4 * t, a, vr(bre, 4, "a"), first), ds=f"{pre}{part}{t}{ks}"))
                        p.e(mf(Di + 4 * t, a, vr(bim, 4, "a"), first))
                        n += 1
                        if n in (2, 4, 6):
                            hook(f"{pre}m{n}", 64)

        p.e(W(vm=["x1re", "x1im"]))
        p.e("s_barrier")
        for ks in range(2):
            for part in range(2):
                for t in range(2):
                    for h in range(2):
                        p.e(I(f"ds_read_b64_tr_b16 {vr(af(part,t,ks)+2*h,2)}, v{a0 if t == 0 else a1} "
                              f"offset:{IMG + part*4096 + 1024*(2*ks+h)}", tag=f"a{part}{t}{ks}"))
                if ks == 1 and part == 0:
                    p.e(W(ds="a000"))
        hook("s1", 100)
        big(-1, "a")
        p.e(W(vm=["wtre", "wtim"]))
        for j in range(4):
            p.e([f"v_lshlrev_b32 v{Wr+2*j}, 16, v{wr+j}", f"v_and_b32 v{Wr+2*j+1}, 0xffff0000, v{wr+j}"])
        p.e(cmul(vT1c, vT1s, -1))
        hook("tw1", 200)
        for t in range(2):
            p.e(mf(Dr + 4 * t, vr(aC32 + 4 * t, 4, "a"), vr(Br, 4), True))
            p.e(mf(Di + 4 * t, vr(aC32 + 4 * t, 4, "a"), vr(Bi, 4), True))
        for t in range(2):
            p.e(mf(Dr + 4 * t, vr(aS32 + 4 * t, 4, "a"), vr(Bi, 4), False))
            p.e(mf(Di + 4 * t, vr(aN32 + 4 * t, 4, "a"), vr(Br, 4), False))
        hook("s3", 128)
        for j in range(4):
            p.e([f"v_lshlrev_b32 v{Wi+2*j}, 16, v{wr+4+j}", f"v_and_b32 v{Wi+2*j+1}, 0xffff0000, v{wr+4+j}"])
        p.e(cmul(Wr, Wi, +1))
        hook("wm", 140)
        for t in range(2):
            p.e(mf(Dr + 4 * t, vr(Br, 4), vr(aC32 + 4 * t, 4, "a"), True))
            p.e(mf(Di + 4 * t, vr(Bi, 4), vr(aC32 + 4 * t, 4, "a"), True))
        for t in range(2):
            p.e(mf(Dr + 4 * t, vr(Bi, 4), vr(aN32 + 4 * t, 4, "a"), False))
            p.e(mf(Di + 4 * t, vr(Br, 4), vr(aS32 + 4 * t, 4, "a"), False))
        hook("s3i", 128)
        p.e([f"s_lshr_b32 s{sT0}, s{sWv}, 1", f"s_lshl_b32 s{sT0}, s{sT0}, 10", f"s_and_b32 s{sT2}, s{sWv}, 1",
             f"s_lshl_b32 s{sT2}, s{sT2}, 3", f"s_add_u32 s{sT0}, s{sT0}, s{sT2}", f"v_add_u32 v{a0}, s{sT0}, v{vL16}"])
        p.e(cmul(vT2c, vT2s, +1))
        for part in range(2):
            for t in range(2):
                p.e(I(f"ds_write_b64 v{a0}, {vr((Br if part == 0 else Bi)+2*t,2)} offset:{EXC + (4*part+2*t)*1024}", tag="exw"))
        hook("tw2", 160)
        p.e(W(ds="exw"))
        p.e("s_barrier")
        for ks in range(2):
            for part in range(2):
                for t in range(2):
                    p.e(I(f"ds_read_b128 {vr(af(part,t,ks),4)}, v{vL16} offset:{EXC + (4*part+2*t+ks)*1024}", tag=f"b{part}{t}{ks}"))
        hook("ex", 150)
        big(+1, "b")
        hook("s1i", 64)
        for j in range(4):
            p.e(f"v_cvt_pk_bf16_f32 v{Br+j}, v{Dr+2*j}, v{Dr+2*j+1}")
        p.e(I(f"buffer_store_dwordx4 {vr(Br,4)}, v{vL16}, {srd(sWS)}, s{sT1} offen sc1", tag="zre"))
        for j in range(4):
            p.e(f"v_cvt_pk_bf16_f32 v{Bi+j}, v{Di+2*j}, v{Di+2*j+1}")
        p.e(I(f"buffer_store_dwordx4 {vr(Bi,4)}, v{vim}, {srd(sWS)}, s{sT1} offen sc1", tag="zim"))

    def poll1_loads(self, r0):
        return [f"buffer_load_dword v{r0}, v{vL4}, {srd(sWS)}, s{sT0} offen sc1",
                f"buffer_load_dword v{r0+1}, v{vL4}, {srd(sWS)}, 0 offen offset:{FAUX} sc1"]

    def epi(self, acc, tmp):
        q = []
        for k in range(4):
            g0, g1, u0, u1 = acc + 2 * k, acc + 2 * k + 1, acc + 8 + 2 * k, acc + 9 + 2 * k
            t0, t1 = tmp, tmp + 1
            q += [f"v_mul_f32 v{t0}, s{sK}, v{g0}", f"v_mul_f32 v{t1}, s{sK}, v{g1}",
                  f"v_exp_f32 v{t0}, v{t0}", f"v_exp_f32 v{t1}, v{t1}",
                  f"v_mul_f32 v{u0}, v{g0}, v{u0}", f"v_mul_f32 v{u1}, v{g1}, v{u1}",
                  f"v_add_f32 v{t0}, 1.0, v{t0}", f"v_add_f32 v{t1}, 1.0, v{t1}",
                  f"v_rcp_f32 v{t0}, v{t0}", f"v_rcp_f32 v{t1}, v{t1}",
                  f"v_mul_f32 v{u0}, v{u0}, v{t0}", f"v_mul_f32 v{u1}, v{u1}, v{t1}",
                  f"v_cvt_pk_bf16_f32 v{acc+k}, v{u0}, v{u1}"]
        return q

    def epi_pk(self, acc, tmp):
        q = []
        for k in range(4):
            q.append(f"v_pk_mul_f32 {vr(tmp+2*k,2)}, {vr(acc+2*k,2)}, s[{sK}:{sK+1}]")
        for j in range(8):
            q.append(f"v_exp_f32 v{tmp+j}, v{tmp+j}")
        for k in range(4):
            q.append(f"v_pk_mul_f32 {vr(acc+8+2*k,2)}, {vr(acc+2*k,2)}, {vr(acc+8+2*k,2)}")
        for k in range(4):
            q.append(f"v_pk_add_f32 {vr(tmp+2*k,2)}, {vr(tmp+2*k,2)}, 1.0 op_sel_hi:[1,0]")
        for j in range(8):
            q.append(f"v_rcp_f32 v{tmp+j}, v{tmp+j}")
        for k in range(4):
            q.append(f"v_pk_mul_f32 {vr(acc+8+2*k,2)}, {vr(acc+8+2*k,2)}, {vr(tmp+2*k,2)}")
        for k in range(4):
            q.append(f"v_cvt_pk_bf16_f32 v{acc+k}, v{acc+8+2*k}, v{acc+9+2*k}")
        return q

    def hstore(self, acc, t, tag):
        return I(f"buffer_store_dwordx4 {vr(acc,4)}, v{vL16}, {srd(sWS)}, s{sHst} offen offset:{t*1024} sc1", tag=tag)

    def rec_step(self, st, ks, dst):
        P = st + 8 * (ks & 1)
        Q = st + 8 * ((ks + 1) & 1)
        q = [f"v_fma_f32 v{P+j}, v{st+16}, v{Q+j}, -v{P+j}" for j in range(8)]
        return q + self.rec_pack(st, ks, dst)

    def rec_pack(self, st, ks, dst):
        P = st + 8 * (ks & 1)
        return [f"v_cvt_pk_bf16_f32 v{dst+j}, v{P+2*j}, v{P+2*j+1}" for j in range(4)]

    def wd_reg(self, wi):
        if wi < 24:
            return "a", 160 + 4 * wi
        if wi < 28:
            return "v", vAX + 4 * (wi - 24)
        return "a", 4 * (wi - 28)

    def build(self):
        o, p = self.o, self.p
        e = p.e
        e(self.stamp("start"))
        e([x.replace("s_memtime", "s_memrealtime") for x in self.stamp("rt0")])
        for s, off in ((sX, 0), (sG, 32), (sU, 40), (sD, 48), (sO, 64), (sDBG, 72), (sWS, 80)):
            e(f"s_load_dwordx2 s[{s}:{s+1}], s[0:1], {off}")
        e("s_cmp_ge_u32 s2, 256")
        e("s_cbranch_scc1 L_end")
        if o["pf"]:
            e([f"s_getpc_b64 s[{sT0}:{sT1}]", f"v_lshlrev_b32 v{vP}, 7, v0", f"v_min_u32 v{vP}, L_codeend-{NAME}-128, v{vP}"])
            e(f"global_load_dword v{vT+30}, v{vP}, s[{sT0}:{sT1}]")
            if o["pf"] > 1:
                e([f"v_add_u32 v{vP}, 0x8000, v{vP}", f"v_min_u32 v{vP}, L_codeend-{NAME}-128, v{vP}",
                   f"global_load_dword v{vT+31}, v{vP}, s[{sT0}:{sT1}]"])
        e([f"v_lshrrev_b32 v2, 6, v0", f"v_and_b32 v0, 63, v0", f"v_readfirstlane_b32 s{sWv}, v2",
           f"v_lshlrev_b32 v{vL16}, 4, v0", f"v_lshlrev_b32 v{vL4}, 2, v0"])
        for s, n in ((sX, 2048 * 896), (sG, 448 * 3584), (sU, 448 * 3584), (sD, 1792 * 896), (sO, 2048 * 896),
                     (sDBG, 256), (sWS, WSEND)):
            e([f"s_mov_b32 s{s+2}, {n}", f"s_mov_b32 s{s+3}, 0x20000"])
        e([f"s_mov_b32 s{sK}, 0xbfb8aa3b", f"s_mov_b32 s{sK+1}, 0xbfb8aa3b", f"s_movk_i32 s{s7f}, 0x7f"])
        sj, sidx, sr = sXo, sXo + 1, sXo + 2
        e([f"s_and_b32 s{sj}, s2, 7", f"s_lshr_b32 s{sidx}, s2, 3",
           f"s_cmp_ge_u32 s{sidx}, 28", "s_cbranch_scc1 L_aux",
           f"s_mul_i32 s{sr}, s{sidx}, 37", f"s_lshr_b32 s{sr}, s{sr}, 8",
           f"s_mul_i32 s{sCt}, s{sr}, 7", f"s_sub_u32 s{sCt}, s{sidx}, s{sCt}",
           f"s_lshr_b32 s{sRg}, s{sj}, 1", f"s_lshl_b32 s{sRg}, s{sRg}, 2", f"s_add_u32 s{sRg}, s{sRg}, s{sr}",
           f"s_and_b32 s{sC}, s{sj}, 1", f"s_mul_i32 s{sC}, s{sC}, 7", f"s_add_u32 s{sC}, s{sC}, s{sCt}",
           f"s_lshl_b32 s{sRt}, s{sj}, 2", f"s_add_u32 s{sRt}, s{sRt}, s{sr}",
           f"s_mul_i32 s{sKd}, s{sj}, 28", f"s_add_u32 s{sKd}, s{sKd}, s{sidx}"])
        snap_aux = p.snapshot()

        def mod7(s, t):
            return [f"s_mul_i32 s{t}, s{s}, 37", f"s_lshr_b32 s{t}, s{t}, 8", f"s_mul_i32 s{t}, s{t}, 7", f"s_sub_u32 s{s}, s{s}, s{t}"]
        sRot1 = sHst
        full = [f"s_lshl_b32 s{sRot2}, s{sr}, 1", f"s_add_u32 s{sRot2}, s{sRot2}, s{sCt}"]
        e(full + mod7(sRot2, sCnt))
        if o["rot1"] == "0":
            e(f"s_mov_b32 s{sRot1}, 0")
        elif o["rot1"] == "full":
            e(f"s_mov_b32 s{sRot1}, s{sRot2}")
        elif o["rot1"] == "half":
            e([f"s_add_u32 s{sRot1}, s{sr}, s{sCt}", f"s_and_b32 s{sRot1}, s{sRot1}, 1", f"s_mul_i32 s{sRot1}, s{sRot1}, 3"])
        elif o["rot1"] == "xcd":
            e([f"s_mov_b32 s{sRot1}, s{sj}"] + mod7(sRot1, sCnt))
        if o["rot2"] == "0":
            e(f"s_mov_b32 s{sRot2}, 0")
        t0, t1, t2, t3 = vAB, vAB + 1, vAB + 2, vAB + 3
        e([f"s_lshr_b32 s{sWo}, s{sRg}, 2", f"s_lshl_b32 s{sWo}, s{sWo}, 9", f"s_and_b32 s{sWo+1}, s{sRg}, 3",
           f"s_lshl_b32 s{sWo+2}, s{sWo+1}, 3", f"s_add_u32 s{sWo}, s{sWo}, s{sWo+2}",
           f"s_lshl_b32 s{sWo+2}, s{sWv}, 7", f"s_add_u32 s{sWo}, s{sWo}, s{sWo+2}",
           f"v_lshrrev_b32 v{t0}, 3, v0", f"v_add_u32 v{t0}, s{sWo}, v{t0}", f"v_mul_u32_u24 v{t0}, 896, v{t0}",
           f"v_and_b32 v{t1}, 7, v0", f"v_lshrrev_b32 v{t2}, 4, v0", f"v_xor_b32 v{t1}, v{t1}, v{t2}",
           f"v_lshl_add_u32 v{vXd}, v{t1}, 4, v{t0}",
           f"v_xor_b32 v{t1}, 4, v{t1}", f"v_lshl_add_u32 v{vXd+1}, v{t1}, 4, v{t0}",
           f"v_add_u32 v{vXd+2}, {2*(28672-1024)}, v{vXd}", f"v_add_u32 v{vXd+3}, {3*(28672-1024)}, v{vXd+1}",
           f"v_add_u32 v{vXd+1}, {28672-1024}, v{vXd+1}"])
        e([f"v_lshrrev_b32 v{t2}, 5, v0", f"v_and_b32 v{t1}, 3, v0", f"v_lshl_add_u32 v{t2}, v{t2}, 2, v{t1}",
           f"v_lshlrev_b32 v{t2}, 4, v{t2}", f"v_bfe_u32 v{t3}, v0, 2, 3",
           f"v_lshl_add_u32 v{t0}, s{sWv}, 4, v{t3}", f"v_mul_u32_u24 v{t0}, 3584, v{t0}",
           f"s_lshl_b32 s{sWo+2}, s{sC}, 8", f"v_add3_u32 v{vWd}, v{t0}, v{t2}, s{sWo+2}",
           f"v_add_u32 v{vWd+1}, {8*3584-1024}, v{vWd}"])
        e([f"s_mul_i32 s{sWm}, s{sWv}, 4160", f"s_lshl_b32 s{sXm}, s{sWv}, 14", f"s_add_u32 s{sXm}, s{sXm}, {XS}"])
        e([f"s_and_b32 s{sCnt}, s{sWo+1}, 2", f"s_add_u32 s{sSc}, s{sWo+1}, s{sCnt}"])
        for i in range(7):
            src = sRot1 if i == 0 else sCnt
            if i == 0:
                e(f"s_mov_b32 s{sCnt}, s{sRot1}")
            else:
                e([f"s_add_u32 s{sCnt}, s{sCnt}, 1", f"s_cmp_eq_u32 s{sCnt}, 7", f"s_cselect_b32 s{sCnt}, 0, s{sCnt}"])
            e([f"s_lshl_b32 s{sXo+i}, s{sCnt}, 7", f"s_mul_i32 s{sWo+i}, s{sCnt}, {64*3584}"])
        p.raw("s_waitcnt lgkmcnt(0)")
        e(self.stamp("kargs"))

        self.m0 = None

        def xdma(j):
            return [dict(t=f"buffer_load_dwordx4 v{vXd+i}, {srd(sX)}, s{sXo+j} offen offset:{1024*i} lds", tag=f"x{j}",
                         m0=(sXm, 4096 * (j % 4)), ds=(f"xr{4*(j-4)+3}" if j >= 4 else None)) for i in range(4)]

        def wdma(i):
            r = []
            for mat in range(2):
                for hh in range(2):
                    r.append(dict(t=f"buffer_load_dwordx4 v{vWd+hh}, {srd(sG if mat == 0 else sU)}, s{sWo+i%7} offen offset:{1024*hh} lds",
                                  tag=f"w{i}", m0=(sWm, WSLOT * (i % NWS) + 2080 * mat), ds=None))
            if i == 7:
                r[0]["pre"] = [f"v_add_u32 v{vWd}, 128, v{vWd}", f"v_add_u32 v{vWd+1}, 128, v{vWd+1}"]
            return r

        def ddma(gi):
            dep = f"xr{4*(gi+3)+3}" if gi < 4 else f"dr{gi-4}"
            r = [dict(t=f"buffer_load_dwordx4 v{vDd+i}, {srd(sD)}, s{sDo+gi%7} offen offset:{1024*i} lds", tag=f"d{gi}",
                      m0=(sXm, 4096 * ((gi + 3) % 4)), ds=dep) for i in range(4)]
            if gi == 7:
                r[0]["pre"] = [f"v_add_u32 v{vDd+i}, 57344, v{vDd+i}" for i in range(4)]
            return r

        def dma_items(d):
            s = []
            if self.m0 != d["m0"]:
                self.m0 = d["m0"]
                s.append(f"s_add_u32 m0, s{d['m0'][0]}, {d['m0'][1]}")
            return s, list(d.get("pre", [])) + [I(d["t"], tag=d["tag"], ds=d["ds"])]

        L, NB = 5, 6
        U = [5 * (f // 4) + f % 4 for f in range(112)] + [140 + f for f in range(112)]
        bar_gap = {j: U[16 * j - L] for j in range(1, 14)}
        q1 = []
        for i in range(14):
            ear = -1 if i <= o["LA"] - 1 else (0 if i == o["LA"] else bar_gap[i - o["LA"]])
            for d in (xdma(i) if i < 7 else []) + wdma(i):
                d["ear"] = ear
                q1.append(d)
        npre = o["npre"]
        for _ in range(npre):
            assert q1[0]["ear"] < 0
            s, m = dma_items(q1.pop(0))
            e(s)
            e(m)
        e([f"v_and_b32 v{t0}, 31, v0", f"v_lshrrev_b32 v{t1}, 5, v0", f"v_bfe_u32 v{vXr+1}, v0, 1, 3",
           f"v_xor_b32 v{vXr+1}, v{vXr+1}, v{t1}", f"v_lshlrev_b32 v{vXr+1}, 4, v{vXr+1}",
           f"v_lshl_add_u32 v{vXr+1}, v{t0}, 7, v{vXr+1}",
           f"v_add_u32 v{vXr}, s{sXm}, v{vXr+1}"])
        for kk in (3, 2, 1):
            e([f"v_xor_b32 v{vXr+kk}, {32*kk}, v{vXr+1}", f"v_add_u32 v{vXr+kk}, s{sXm}, v{vXr+kk}"])
        e([f"s_mul_i32 s{sT0}, s{sWv}, 2560", f"s_add_u32 s{sT0}, s{sT0}, {SCR}",
           f"v_mul_u32_u24 v{vX1w}, 80, v{t0}", f"v_lshl_add_u32 v{vX1w}, v{t1}, 5, v{vX1w}", f"v_add_u32 v{vX1w}, s{sT0}, v{vX1w}",
           f"v_lshrrev_b32 v{vX1g}, 2, v0", f"v_mul_u32_u24 v{vX1r}, 80, v{vX1g}", f"v_and_b32 v{vP}, 48, v{vL16}",
           f"v_add3_u32 v{vX1r}, v{vX1r}, v{vP}, s{sT0}",
           f"s_lshl_b32 s{sT0}, s{sWv}, 1", f"s_xor_b32 s{sT0}, s{sT0}, s{sSc}", f"s_lshl_b32 s{sT0}, s{sT0}, 5",
           f"v_xor_b32 v{vP}, s{sT0}, v{vP}", f"v_lshl_add_u32 v{vX1g}, v{vX1g}, 12, v{vP}",
           f"s_lshl_b32 s{sT0}, s{sC}, 17", f"s_lshl_b32 s{sT1}, s{sRg}, 8", f"s_add_u32 s{sT0}, s{sT0}, s{sT1}",
           f"s_add_u32 s{sT0}, s{sT0}, {X1T}", f"v_add_u32 v{vX1g}, s{sT0}, v{vX1g}"])
        t4, t5, t6 = vAB + 4, vAB + 5, vAB + 6
        e([f"v_bfe_u32 v{t4}, v0, 4, 1", f"v_bfe_u32 v{t5}, v0, 2, 2", f"v_and_b32 v{t6}, 3, v0",
           f"v_mul_u32_u24 v{vTr}, 2080, v{t4}", f"v_lshl_add_u32 v{vTr}, v{t1}, 10, v{vTr}",
           f"v_lshl_add_u32 v{vTr}, v{t5}, 6, v{vTr}", f"v_lshl_add_u32 v{vTr}, v{t6}, 3, v{vTr}",
           f"v_add_u32 v{vTr+1}, {4*WSLOT}, v{vTr}"])
        e([f"v_mul_u32_u24 v{vDd}, 896, v{t3}", f"s_lshl_b32 s{sT0}, s{sCt}, 7", f"v_add3_u32 v{vDd}, v{vDd}, v{t2}, s{sT0}"])
        for i in range(1, 4):
            e(f"v_add_u32 v{vDd+i}, {i*(8*896-1024)}, v{vDd}")
        e([f"v_lshl_add_u32 v{vDr}, v{t1}, 2, v{t5}", f"v_lshlrev_b32 v{vDr}, 6, v{vDr}",
           f"v_lshl_add_u32 v{vDr}, v{t4}, 4, v{vDr}",
           f"v_and_b32 v{t5}, 1, v0", f"v_lshl_add_u32 v{vDr}, v{t5}, 5, v{vDr}",
           f"v_bfe_u32 v{t5}, v0, 1, 1", f"v_lshl_add_u32 v{vDr}, v{t5}, 3, v{vDr}", f"v_add_u32 v{vDr}, s{sXm}, v{vDr}"])
        e([f"s_mul_i32 s{sT1}, s{sWv}, 7", f"s_mov_b32 s{sCnt}, s{sRot2}"])
        for i in range(7):
            if i:
                e([f"s_add_u32 s{sCnt}, s{sCnt}, 1", f"s_cmp_eq_u32 s{sCnt}, 7", f"s_cselect_b32 s{sCnt}, 0, s{sCnt}"])
            e([f"s_add_u32 s{sT0}, s{sT1}, s{sCnt}", f"s_and_b32 s{sDo+i}, s{sT0}, 30", f"s_add_u32 s{sT0}, s{sT0}, s{sDo+i}",
               f"s_mul_i32 s{sDo+i}, s{sT0}, {2*16*896}"])
        st, fbuf = vT, [vT + 20, vT + 24]
        ph, stp, tq = vAB + 8, vAB + 9, vAB + 10
        e([f"v_lshl_add_u32 v{t4}, s{sC}, 5, v{t0}",
           f"v_lshrrev_b32 v{t5}, 1, v{t4}", f"v_and_b32 v{t6}, 1, v{t4}",
           f"v_cmp_eq_u32 vcc, 1, v{t4}", f"v_mov_b32 v{tq}, 224", f"s_mov_b32 s{sT0}, {STEP448}",
           f"v_cndmask_b32 v{t5}, v{t5}, v{tq}, vcc", f"v_cndmask_b32 v{t6}, v{t6}, 0, vcc",
           f"v_mul_lo_u32 v{stp}, v{t5}, s{sT0}",
           f"s_lshl_b32 s{sT1}, s{sRot1}, 6", f"v_lshl_add_u32 v{t5}, v{t1}, 3, s{sT1}",
           f"v_mul_lo_u32 v{ph}, v{t5}, v{stp}", f"v_lshl_add_u32 v{ph}, v{t6}, 30, v{ph}",
           f"v_lshlrev_b32 v{t5}, 4, v{stp}"])
        e(self.trig(st + 16, t5, tq))
        for ks in range(2):
            for j in range(8):
                e(self.trig(st + 8 * ks + j, ph, tq + (j & 1)))
                e(f"v_add_u32 v{ph}, v{ph}, v{stp}")
            if ks == 0:
                e([f"v_lshl_add_u32 v{ph}, v{stp}, 3, v{ph}", f"v_add_f32 v{st+16}, v{st+16}, v{st+16}"])
        e(self.rec_pack(st, 0, fbuf[0]))
        e(self.rec_pack(st, 1, fbuf[1]))
        while q1 and q1[0]["ear"] < 0:
            s, m = dma_items(q1.pop(0))
            e(s)
            e(m)
        e([f"s_cmp_eq_u32 s{sKd}, 0", f"s_mov_b32 s{sSc}, {fbits(2.0/(2048*448))}",
           f"s_cselect_b32 s{sSc}, {fbits(1.0/(2048*448))}, s{sSc}",
           f"s_lshl_b32 s{sT0}, s{sRg}, 2", f"s_add_u32 s{sT0}, s{sT0}, s{sWv}", f"s_mul_i32 s{sHst}, s{sT0}, 114688",
           f"s_lshl_b32 s{sT0}, s{sC}, 12", f"s_add_u32 s{sHst}, s{sHst}, s{sT0}", f"s_add_u32 s{sHst}, s{sHst}, {HH}"])
        e(self.fft_consts())
        e(self.stamp("pro"))

        def wread(f):
            i, kk, t = f // 16, (f // 4) % 4, f % 4
            slot = i % NWS
            base, off = (vTr, slot * WSLOT) if slot < 4 else (vTr + 1, 0)
            off += kk * 4160 + (t >> 1) * 512 + (t & 1) * 32
            b = vWF + 4 * (f % NB)
            return [I(f"ds_read_b64_tr_b16 {vr(b+2*h,2)}, v{base} offset:{off+256*h}", tag=f"wf{f}") for h in range(2)]

        def xread(ks):
            return I(f"ds_read_b128 {vr(aX+4*ks,4,'a')}, v{vXr+ks%4} offset:{4096*((ks//4)%4)}", tag=f"xr{ks}")

        mf = []
        for ks in range(28):
            for t in range(4):
                d = vr(vAA + 16 * t, 16)
                mf.append(f"v_mfma_f32_32x32x16_bf16 {d}, {vr(vWF+4*((4*ks+t)%NB),4)}, {vr(aX+4*ks,4,'a')}, {d if ks else 0}")
            d = vr(vAX, 16)
            mf.append(f"v_mfma_f32_32x32x16_bf16 {d}, {vr(aX+4*ks,4,'a')}, {vr(fbuf[ks&1],4)}, {d if ks else 0}")
        for ks in range(28):
            for t in range(4):
                d = vr(vAB + 16 * t, 16)
                mf.append(f"v_mfma_f32_32x32x16_bf16 {d}, {vr(vWF+4*((112+4*ks+t)%NB),4)}, {vr(aX+4*ks,4,'a')}, {d if ks else 0}")
        G = Gaps(mf)
        for j, g in bar_gap.items():
            G.s[g] += [W(vm=f"w{j}"), "s_barrier"]
        for f in range(L, 224):
            G.m[U[f - L]] += wread(f)
        for ks in range(2, 28):
            G.m[5 * (ks - 2) + 4].append(xread(ks))
        for f in range(1, 223, 2):
            tags = [f"wf{min(f+2,223)}"]
            if f < 111 and (f + 1) % 4 == 0:
                tags.append(f"xr{(f+1)//4}")
            G.s[U[f]].insert(0, W(ds=tags))

        class BG:
            pass
        bg = BG()
        bg.q2 = [d for gi in range(14) for d in ddma(gi)]
        bg.nd = 0
        bg.ntr = 0
        bg.t_issue = {}
        bg.t_read = {}
        bg.last = -1000
        T_B = 140 * 32

        def dtr(n):
            gi, step, u = n // 4, n // 2, n % 2
            c, b = self.wd_reg(n)
            off = 4096 * ((gi + 3) % 4) + 2048 * (step & 1) + 512 * u
            return [I(f"ds_read_b64_tr_b16 {vr(b+2*h,2,c)}, v{vDr} offset:{off+1024*h}", tag=f"dr{gi}",
                      vm=(f"d{gi}" if h == 0 and n % 4 == 0 else None)) for h in range(2)]

        def bg_step(t, ndma=1, ntr=1, force=False):
            s, m = [], []
            for _ in range(ntr):
                n = bg.ntr
                gi = n // 4
                if n >= 56 or gi not in bg.t_issue:
                    break
                if not force and t < bg.t_issue[gi] + 32 * o["wd_delay"]:
                    break
                if n >= 28 and t < T_B + 128 * (n - 28 + 1):
                    break
                if 24 <= n < 28 and t < T_B + 32 * 16:
                    break
                m += dtr(n)
                bg.ntr += 1
                if n % 4 == 3:
                    bg.t_read[gi] = t
            for _ in range(ndma):
                if t - bg.last < 32 * o["dma_gap"] and ndma == 1:
                    break
                d = None
                if q1 and t >= 32 * q1[0]["ear"]:
                    d = q1.pop(0)
                elif bg.q2 and t >= 32 * o["wd_start"]:
                    gi = bg.nd // 4
                    ok = (t >= 32 * (5 * (4 * (gi + 3) + 1) + 4 + 4)) if gi < 4 else (gi - 4 in bg.t_read and t >= bg.t_read[gi - 4] + 96)
                    if ok:
                        d = bg.q2.pop(0)
                        bg.nd += 1
                        if bg.nd % 4 == 0:
                            bg.t_issue[gi] = t
                if d is None:
                    break
                a, b = dma_items(d)
                if m and any(kind(x.t if isinstance(x, I) else x) == "G" for x in m):
                    m += a + ["s_nop 0"] * len(a)
                else:
                    s += a
                m += b
                bg.last = t
            return s, m
        for g in range(G.n):
            s, m = bg_step(32 * g)
            G.s[g] += s
            G.m[g] += m
        assert not q1
        for ks in range(2, 28):
            g, left = G.pour(self.rec_step(st, ks, fbuf[ks & 1]), 5 * (ks - 2) + 4, 5 * (ks - 1) + 4 + 3)
            assert not left
        gol = f"buffer_load_dword v{vP}, off, {srd(sDBG)}, 0 sc1"
        G.m[o["go_ld"]].append(I(gol, tag="go"))
        G.post[138].append(self.poll_check("go", "go", [gol], [], vP))
        G.s[139] += self.stamp("A")
        xq = [f"v_cvt_pk_bf16_f32 v{vAX+j}, v{vAX+2*j}, v{vAX+2*j+1}" for j in range(8)]
        xq += [I(f"ds_write_b128 v{vX1w}, {vr(vAX,4)}", tag="x1w"), I(f"ds_write_b128 v{vX1w}, {vr(vAX+4,4)} offset:16", tag="x1w")]
        g, left = G.pour(xq, 142)
        G.m[g + 1] += [I(f"ds_read_b128 {vr(vT+8,4)}, v{vX1r}", tag="x1r"),
                       I(f"ds_read_b128 {vr(vT+12,4)}, v{vX1r} offset:1280", tag="x1r")]
        G.s[g + 3].append(f"s_mov_b32 s{sT0}, 65536")
        G.m[g + 4].append(I(f"buffer_store_dwordx4 {vr(vT+8,4)}, v{vX1g}, {srd(sWS)}, 0 offen sc1", tag="x1s", ds="x1r"))
        G.m[g + 6].append(I(f"buffer_store_dwordx4 {vr(vT+12,4)}, v{vX1g}, {srd(sWS)}, s{sT0} offen sc1", tag="x1s"))
        assert g + 1 < 140 + 15
        eq = []
        for t in range(4):
            eq += self.epi(vAA + 16 * t, vT + 2 * (t & 1)) + [self.hstore(vAA + 16 * t, t, "hA")]
        gx = o["x1flag"]
        G.s[gx - 2] += [f"s_lshl_b32 s{sT0}, s{sC}, 4", f"s_add_u32 s{sT0}, s{sT0}, s{sRg}"]
        G.s[gx - 1] += [f"s_lshl_b32 s{sT0}, s{sT0}, 2", f"s_add_u32 s{sT0}, s{sT0}, s{sWv}"]
        G.s[gx] += [f"s_lshl_b32 s{sT0}, s{sT0}, 2"]
        G.m[gx].append(self.flag_store(sT0, "x1s"))
        g1 = o["poll1"]
        G.s[g1 - 1] += [f"s_lshr_b32 s{sT0}, s{sKd}, 4", f"s_lshl_b32 s{sT0}, s{sT0}, 8"]
        pl = self.poll1_loads(vT + 4)
        G.m[g1].append(I(pl[0], tag="p1"))
        G.m[g1 + 1].append(I(pl[1], tag="p1"))
        gend, left = G.pour(eq, g + 1, budget=o['epi_budget'])
        assert not left, len(left)
        print(f"; group A epilogue ends at gap {gend}; wd dmas {bg.nd} trs {bg.ntr}", file=sys.stderr)
        hq = [f"s_mul_i32 s{sT1}, s{sWv}, 7*2048", f"s_mul_i32 s{sT2}, s{sRt}, {2*114688}", f"s_add_u32 s{sT1}, s{sT1}, s{sT2}",
              f"s_add_u32 s{sT1}, s{sT1}, {HH}"]
        for i in range(7):
            if i:
                hq += [[f"s_add_u32 s{sRot2}, s{sRot2}, 1"], [f"s_cmp_eq_u32 s{sRot2}, 7", f"s_cselect_b32 s{sRot2}, 0, s{sRot2}"]]
            hq += [f"s_lshl_b32 s{sT2}, s{sRot2}, 11", f"s_add_u32 s{sHo+i}, s{sT1}, s{sT2}"]
        gg = 150
        for x in hq:
            while G.s[gg]:
                gg += 1
            G.s[gg] += x if isinstance(x, list) else [x]
        assert gg < 250

        for x in filter(None, o["st1"].split(",")):
            G.s[int(x)] += self.stamp("@" + x)
        e(W(vm="w0"))
        e("s_barrier")
        e(xread(0))
        for f in range(L):
            e(wread(f))
            if f == 1:
                e(xread(1))
        e(self.stamp("data0"))
        e(W(ds=["wf1"]))
        G.emit(p)
        e(self.stamp("B"))
        if o["stop"] == "B":
            pass
        now = [252 * 32]

        def bgs(dt, ndma=2, ntr=2):
            now[0] += dt
            s, m = bg_step(now[0], ndma, ntr)
            e(s)
            if s and m and kind(m[0].t if isinstance(m[0], I) else m[0]) == "G":
                e("s_nop 0")
            e(m)
        sFh = sWo
        e([f"s_lshr_b32 s{sT1}, s{sWv}, 1", f"s_lshl_b32 s{sFh}, s{sRg}, 1", f"s_add_u32 s{sFh}, s{sFh}, s{sT1}",
           f"s_lshl_b32 s{sFh}, s{sFh}, 4", f"s_add_u32 s{sFh}, s{sFh}, s{sC}", f"s_lshl_b32 s{sFh}, s{sFh}, 1",
           f"s_and_b32 s{sT1}, s{sWv}, 1", f"s_add_u32 s{sFh}, s{sFh}, s{sT1}", f"s_lshl_b32 s{sFh}, s{sFh}, 2",
           f"s_add_u32 s{sFh}, s{sFh}, {FH}", f"s_add_u32 s{sHst}, s{sHst}, 57344"])
        stop1 = o["stop"] == "gemm1"
        if not stop1:
            e(self.poll_check("p1", "p1", pl, [f"v_and_b32 v{vT+4}, v{vT+4}, v{vT+5}"], vT + 4))
        e(self.fft_scalars())
        e(self.fft_setup_regs())
        e(self.fft_loads())
        self.m0 = None
        for t in range(4):
            e(self.epi_pk(vAB + 16 * t, vT + 16))
            if t == 0:
                e(self.flag_store(sFh, "hA"))
                e(f"s_add_u32 s{sFh}, s{sFh}, 4096")
            e(self.hstore(vAB + 16 * t, t, "hB"))
            bgs(210, 3, 4)
        e(self.stamp("epi"))
        if stop1:
            e("s_branch L_fin")
        vH = vXd
        vPo = vXd + 2
        hring = o["hring"]
        sFp = sWo + 1
        pollA = f"buffer_load_dword v{vXr}, v{vPo}, {srd(sWS)}, s{sFp} offen sc1"
        hl = []
        for step in range(28):
            g2, i7, k2 = step // 14, (step % 14) // 2, step & 1
            for i in range(2):
                n = 2 * step + i
                hl.append(I(f"buffer_load_dwordx4 {vr(vAB+4*(n%hring),4)}, v{vH+i}, {srd(sWS)}, s{sHo+i7} offen offset:{1024*k2} sc1", tag=f"h{n}"))
        st_ = dict(nh=0, okA=False)

        def hook(name, dt):
            if name == o["pollA_at"]:
                e([f"v_min_u32 v{vPo}, {27*4}, v{vL4}", f"v_mov_b32 v{vH}, v{vL16}", f"v_add_u32 v{vH+1}, 114688, v{vL16}",
                   f"s_lshl_b32 s{sFp}, s{sRt}, 7", f"s_add_u32 s{sFp}, s{sFp}, {FH}"])
                e(I(pollA, tag="pA"))
            if name == o["hB_flag_at"]:
                e(self.flag_store(sFh, "hB"))
            if name == o["pollA_chk"]:
                e(self.poll_check("pA", "pA", [pollA], [], vXr))
                st_["okA"] = True
            if st_["okA"]:
                for _ in range(3):
                    if st_["nh"] < hring:
                        e(hl[st_["nh"]])
                        st_["nh"] += 1
                bgs(dt, 0, 3)
            else:
                bgs(dt, max(1, dt // 64) + 1, 3)
        self.fft_body(hook)
        e(self.stamp("fft"))
        print(f"; after fft: wd dmas {bg.nd} trs {bg.ntr} hloads {st_['nh']}", file=sys.stderr)
        if o["stop"] == "fft":
            e("s_branch L_fin")

        accb, acca = vAA, vAB + 48
        vZF = vWF
        vZd, vZr, vGv, vOo = vXr + 1, vXr + 2, vXr + 3, vWd

        def fi_reg(ks):
            if ks < 8:
                return "v", vT1c + 4 * ks
            return "a", 112 + 4 * (ks - 8)
        mf = []
        for step in range(28):
            for i in range(2):
                for u in range(2):
                    c, b = self.wd_reg(2 * step + u)
                    d = vr(accb + 16 * (2 * i + u), 16)
                    mf.append(f"v_mfma_f32_32x32x16_bf16 {d}, {vr(b,4,c)}, {vr(vAB+4*((2*step+i)%hring),4)}, {d if step else 0}")
        for ks in range(28):
            c, b = fi_reg(ks)
            d = vr(acca, 16)
            mf.append(f"v_mfma_f32_32x32x16_bf16 {d}, {vr(b,4,c)}, {vr(vZF+4*(ks%NB),4)}, {d if ks else 0}")
        G = Gaps(mf)
        T0 = now[0] + 100
        nh = st_["nh"]
        pollB = f"buffer_load_dword v{vXr}, v{vPo}, {srd(sWS)}, s{sFp} offen sc1"
        G.s[o["pollB_ld"] - 1].append(f"s_add_u32 s{sFp}, s{sFp}, 4096")
        G.m[o["pollB_ld"]].append(I(pollB, tag="pB"))
        G.post[o["pollB_chk"]].append(self.poll_check("pB", "pB", [pollB], [], vXr))
        G.post[o["pollB_chk"]] += []
        hgap = {}
        lastg = -2
        for n in range(nh, 56):
            g = max(2 * (n - hring) + 1, lastg + (2 if n >= hring else 1), 0)
            if n == 28:
                g = max(g, o["pollB_chk"] + 1)
                G.v[g - 1] += [f"v_add_u32 v{vH}, 57344, v{vH}", f"v_add_u32 v{vH+1}, 57344, v{vH+1}"]
                assert lastg <= g - 1
            G.m[g].append(hl[n])
            hgap[n] = g
            lastg = g
            assert g < 2 * n - 1, (n, g)
        for n in range(1, 56):
            G.s[2 * n - 1].insert(0, W(vm=f"h{n}"))
        for g in range(112):
            if bg.ntr >= 56:
                break
            need = bg.ntr // 2 * 4 - 8 <= g
            s, m = bg_step(T0 + 32 * g, 1 if g % 2 == 0 else 0, 1, force=need)
            G.s[g] += s
            G.m[g] += m
            for x in m:
                if isinstance(x, I) and x.tag and x.tag.startswith("dr"):
                    assert g < 8 * int(x.tag[2:]) - 2, ("w_down late", g, x.tag)
        assert bg.ntr == 56
        for gi in range(1, 14):
            G.s[8 * gi - 1].insert(0, W(ds=f"dr{gi}"))
        gz = o["zflag"]
        sFz = sWo + 2
        G.s[gz - 2] += [f"s_lshl_b32 s{sFz}, s{sWv}, 8", f"s_add_u32 s{sFz}, s{sFz}, s{sKd}"]
        G.s[gz - 1] += [f"s_lshl_b32 s{sFz}, s{sFz}, 2", f"s_add_u32 s{sFz}, s{sFz}, {FZ}"]
        G.m[gz].append(self.flag_store(sFz, ["zre", "zim"]))
        pz = vT + 28
        pollZ = f"buffer_load_dwordx4 {vr(pz,4)}, v{vPo+1}, {srd(sWS)}, s{sFz} offen sc1"
        gl = o["pollZ_ld"]
        G.s[gl - 2] += [f"s_lshr_b32 s{sFz}, s{sRt}, 3", f"s_lshl_b32 s{sFz}, s{sFz}, 10"]
        G.s[gl - 1] += [f"s_add_u32 s{sFz}, s{sFz}, {FZ}"]
        G.v[gl - 2] += [f"v_min_u32 v{vPo+1}, {56*16}, v{vL16}"]
        G.m[gl].append(I(pollZ, tag="pZ"))
        gc = o["pollZ_chk"]
        G.post[gc].append(self.poll_check("pZ", "pZ", [pollZ], [f"v_and_b32 v{pz}, v{pz}, v{pz+1}", f"v_and_b32 v{pz+2}, v{pz+2}, v{pz+3}",
                                                              f"v_and_b32 v{pz}, v{pz}, v{pz+2}"], pz))
        sZo, sZm = sWo + 3, sWo + 4
        G.s[gc - 4] += [f"s_mul_i32 s{sZo}, s{sWv}, {14*32768}", f"s_add_u32 s{sZo}, s{sZo}, {ZT}"]
        G.s[gc - 2] += [f"s_mul_i32 s{sZm}, s{sWv}, {14*1024}"]
        g = gc + 1
        busy = set(hgap.values())
        for i in range(14):
            while g in busy:
                g += 1
            G.s[g] += [f"s_add_u32 m0, s{sZm}, {ZS + 1024*i}"]
            G.m[g] += [f"s_add_u32 s{sZo}, s{sZo}, 32768" if i else "s_nop 0",
                       I(f"buffer_load_dwordx4 v{vZd}, {srd(sWS)}, s{sZo} offen sc1 lds", tag="z")]
            g += 2 if g > max(busy) else 1
        print(f"; last z dma at gap {g}", file=sys.stderr)
        gb = 112 - L
        assert g <= gb
        G.s[gb] += [W(vm="z"), "s_barrier"]
        for ks in range(28):
            b = vZF + 4 * (ks % NB)
            G.m[112 + ks - L] += [I(f"ds_read_b64_tr_b16 {vr(b+2*h,2)}, v{vZr} offset:{(2*ks+h)*1024}", tag=f"zf{ks}") for h in range(2)]
        for ks in range(-1, 27, 2):
            G.s[112 + ks].insert(0, W(ds=f"zf{min(ks+2,27)}"))
        st = vT
        x0, x1, x2, x3, ph, stp = vT + 17, vT + 18, vT + 19, vT + 24, vT + 25, vT + 26
        pkb = vT + 20
        sU_, sI_ = sWo + 5, sWo + 6
        pre = [f"s_and_b32 s{sU_}, s{sWv}, 1", f"s_lshr_b32 s{sI_}, s{sWv}, 1"]
        vq = []
        pre += [f"s_lshl_b32 s{sT0}, s{sCt}, 1", f"s_add_u32 s{sT0}, s{sT0}, s{sU_}", f"s_lshl_b32 s{sT0}, s{sT0}, 5",
                f"s_mov_b32 s{sT2}, {STEP448}"]
        vq += [f"v_and_b32 v{x0}, 3, v0", f"v_bfe_u32 v{x1}, v0, 2, 1", f"v_lshl_add_u32 v{x0}, v{x1}, 4, v{x0}",
               f"v_bfe_u32 v{x1}, v0, 3, 2", f"v_lshl_add_u32 v{x0}, v{x1}, 2, v{x0}",
               f"v_add_u32 v{x0}, s{sT0}, v{x0}", f"v_mul_lo_u32 v{stp}, v{x0}, s{sT2}",
               f"v_lshrrev_b32 v{x1}, 5, v0", f"v_lshlrev_b32 v{x2}, 1, v{x1}", f"v_mul_lo_u32 v{ph}, v{x2}, v{stp}",
               f"v_lshlrev_b32 v{x2}, 3, v{stp}"]
        vq += self.trig(st + 16, x2, x3)
        for ks in range(2):
            for jj in range(4):
                vq += [f"v_alignbit_b32 v{x3}, s{s7f}, v{ph}, 9", f"v_cos_f32 v{st+8*ks+2*jj}, v{x3}",
                       f"v_sin_f32 v{st+8*ks+2*jj+1}, -v{x3}"]
                if jj & 1:
                    vq += [f"v_lshl_add_u32 v{ph}, v{stp}, 1, v{ph}"]
                vq += [f"v_add_u32 v{ph}, v{ph}, v{stp}"]
        vq += [f"v_add_f32 v{st+16}, v{st+16}, v{st+16}"]
        vq += self.rec_pack(st, 0, fi_reg(0)[1]) + self.rec_pack(st, 1, fi_reg(1)[1])
        f0 = fi_reg(0)[1]
        vq += [f"v_lshlrev_b32 v{x2}, 31, v{x0}", f"v_or_b32 v{x2}, 0x3f803f80, v{x2}", f"v_add_u32 v{x3}, -1, v{x1}",
               f"v_bfi_b32 v{f0}, v{x3}, v{x2}, v{f0}",
               f"v_and_b32 v{x3}, 31, v0", f"v_lshrrev_b32 v{x0}, 3, v{x3}"]
        pre += [f"s_lshr_b32 s{sT3}, s{sRt}, 3", f"s_lshl_b32 s{sT3}, s{sT3}, 1", f"s_and_b32 s{sCnt}, s{sRt}, 1",
                f"s_add_u32 s{sT3}, s{sT3}, s{sCnt}", f"s_lshl_b32 s{sT3}, s{sT3}, 1", f"s_add_u32 s{sT3}, s{sT3}, s{sI_}",
                f"s_lshl_b32 s{sT3}, s{sT3}, 4", f"s_bfe_u32 s{sCnt}, s{sRt}, 0x20001", f"s_add_u32 s{sT3}, s{sT3}, s{sCnt}",
                f"s_lshl_b32 s{sT3}, s{sT3}, 3"]
        vq += [f"v_and_b32 v{x2}, 7, v0", f"v_lshl_add_u32 v{x2}, v{x0}, 5, v{x2}", f"v_add_u32 v{x2}, s{sT3}, v{x2}",
               f"v_mul_u32_u24 v{vOo}, 896, v{x2}", f"v_lshl_add_u32 v{x2}, v{x1}, 4, s{sT0}", f"v_lshl_add_u32 v{vOo}, v{x2}, 1, v{vOo}"]
        sGo = sHst
        pre += [f"s_lshl_b32 s{sGo}, s{sRt}, 1", f"s_add_u32 s{sGo}, s{sGo}, s{sI_}", f"s_lshl_b32 s{sGo}, s{sGo}, 7",
                f"s_add_u32 s{sGo}, s{sGo}, {GOFF}"]
        vq += [f"v_lshlrev_b32 v{vGv}, 2, v{x3}",
               I(f"buffer_load_dword v{vGv}, v{vGv}, {srd(sWS)}, s{sGo} offen sc1", tag="g")]
        pre += [f"s_lshl_b32 s{sRot2}, s{sRt}, 7", f"s_lshl_b32 s{sSc}, s{sI_}, 9", f"s_add_u32 s{sSc}, s{sSc}, {ZS}"]
        vq += [f"v_bfe_u32 v{x2}, v0, 2, 3", f"v_and_b32 v{x0}, 3, v0", f"v_lshl_add_u32 v{vZd}, v{x1}, 2, v{x0}",
               f"v_lshlrev_b32 v{vZd}, 4, v{vZd}", f"v_lshl_add_u32 v{vZd}, v{x2}, 12, v{vZd}", f"v_add_u32 v{vZd}, s{sRot2}, v{vZd}",
               f"v_and_b32 v{x2}, 3, v{x2}", f"v_lshl_add_u32 v{x2}, v{x1}, 2, v{x2}", f"v_lshlrev_b32 v{vZr}, 6, v{x2}",
               f"v_bfe_u32 v{x2}, v0, 4, 1", f"v_lshl_add_u32 v{vZr}, v{x2}, 5, v{vZr}", f"v_lshl_add_u32 v{vZr}, v{x0}, 3, v{vZr}",
               f"v_add_u32 v{vZr}, s{sSc}, v{vZr}"]
        g, left = G.pour(vq, 0)
        assert g < gc
        for ks in range(2, 28):
            c, b = fi_reg(ks)
            if c == "v":
                qq = self.rec_step(st, ks, b)
            else:
                qq = self.rec_step(st, ks, pkb) + [f"v_accvgpr_write_b32 a{b+j}, v{pkb+j}" for j in range(4)]
            g, left = G.pour(qq, max(g, 17 if ks >= 20 else 0), 112 + ks - 1)
            assert not left, ks
        print(f"; finv done at gap {g}", file=sys.stderr)
        vRw, vRr = vWd + 1, vTr
        G.v[max(g, 100)] += [f"v_add_u32 v{vRr}, s{sXm}, v{vL16}"]
        G.s[100] += [f"s_lshl_b32 s{sT0}, s{sWv}, 12", f"s_add_u32 s{sT0}, s{sT0}, {RED}"]
        G.v[max(g, 101)] += [f"v_add_u32 v{vRw}, s{sT0}, v{vL16}"]
        g = 114
        for tl in range(4):
            for k in range(4):
                G.m[g].append(I(f"ds_write_b128 v{vRw}, {vr(accb+16*tl+4*k,4)} offset:{16384*tl+1024*k}", tag="rw"))
                g += 1
        G.s[g + 2] += [W(ds="rw"), "s_barrier"]
        g += 2
        rd = []
        for sw in range(4):
            for k in range(4):
                rd.append(I(f"ds_read_b128 {vr(accb+16*sw+4*k,4)}, v{vRr} offset:{4096*sw+1024*k}", tag=f"rr{sw}"))
        while rd and g < 139:
            G.m[g] += rd[:2]
            rd = rd[2:]
            g += 1
        G.m[139] += rd
        for x in filter(None, o["st2"].split(",")):
            G.s[int(x)] += self.stamp("@" + x)
        G.s[111] += self.stamp("g2h")

        e(pre)
        while st_["nh"] < 1:
            raise SystemExit("no h loads")
        e(W(vm="h0", ds="dr0"))
        G.emit(p)
        e(self.stamp("g2"))
        og = vT
        e(W(vm="g"))
        e([f"v_mov_b32 v{og}, v{vGv}", f"v_sub_f32 v{og+2}, 1.0, v{vGv}"])
        e(W(ds="rr1"))
        for k in range(8):
            e(f"v_pk_add_f32 {vr(accb+2*k,2)}, {vr(accb+2*k,2)}, {vr(accb+16+2*k,2)}")
        e(W(ds="rr3"))
        for k in range(8):
            e(f"v_pk_add_f32 {vr(accb+32+2*k,2)}, {vr(accb+32+2*k,2)}, {vr(accb+48+2*k,2)}")
        for k in range(8):
            e(f"v_pk_mul_f32 {vr(acca+2*k,2)}, {vr(acca+2*k,2)}, {vr(og,2)} op_sel_hi:[1,0]")
        for half in range(2):
            for k in range(4 * half, 4 * half + 4):
                e(f"v_pk_add_f32 {vr(accb+2*k,2)}, {vr(accb+2*k,2)}, {vr(accb+32+2*k,2)}")
            for k in range(4 * half, 4 * half + 4):
                e(f"v_pk_fma_f32 {vr(acca+2*k,2)}, {vr(accb+2*k,2)}, {vr(og+2,2)}, {vr(acca+2*k,2)} op_sel_hi:[1,0,1]")
            for k in range(4 * half, 4 * half + 4):
                e(f"v_cvt_pk_bf16_f32 v{og+4+k}, v{acca+2*k}, v{acca+2*k+1}")
            e(f"buffer_store_dwordx4 {vr(og+4+4*half,4)}, v{vOo}, {srd(sO)}, 0 offen offset:{16*half}")
        p.raw("L_fin:")
        self.dump_stamps()
        p.raw("L_end:")
        p.raw("s_endpgm")

        p.restore(snap_aux)
        self.aux(sj, sidx)
        for l in self.slow:
            p.raw(l)
        p.raw("L_codeend:")
        return self.finish()

    def dump_stamps(self):
        if not self.o["stamps"]:
            return
        p = self.p
        i = self.nst
        p.raw("s_waitcnt vmcnt(0)")
        p.e(self.stamp("end"))
        p.raw("s_waitcnt lgkmcnt(0)")
        p.e([f"s_lshl_b32 s{sT0}, s2, 2", f"s_add_u32 s{sT0}, s{sT0}, s{sWv}", f"s_lshl_b32 s{sT0}, s{sT0}, 6",
             f"s_add_u32 s{sT0}, s{sT0}, {STAMP}", "s_mov_b64 exec, 1"])
        for k in range(self.nst):
            p.e([f"v_mov_b32 v2, s{sST+2*k}", f"buffer_store_dword v2, off, {srd(sWS)}, s{sT0} offset:{4*k}"])
        p.e([f"s_memrealtime s[{sST}:{sST+1}]"])
        p.raw("s_waitcnt lgkmcnt(0)")
        p.e([f"v_mov_b32 v2, s{sST}", f"buffer_store_dword v2, off, {srd(sWS)}, s{sT0} offset:60"])

    def aux(self, sj, sidx):
        p, o = self.p, self.o
        e = p.e
        p.raw("L_aux:")
        sA = sRt
        main_stamps = (self.nst, list(self.stamp_names))
        e([f"s_lshl_b32 s{sA}, s{sj}, 2", f"s_add_u32 s{sA}, s{sA}, s{sidx}", f"s_sub_u32 s{sA}, s{sA}, 28"])
        p.raw("s_waitcnt lgkmcnt(0)")
        for s, off in ((sG, 8), (sU, 16), (sD, 56)):
            e(f"s_load_dwordx2 s[{s}:{s+1}], s[0:1], {off}")
        e([f"s_mov_b32 s{sG+2}, {2048*450}", f"s_mov_b32 s{sU+2}, {2048*450}", f"s_mov_b32 s{sD+2}, 896"])
        vt16 = 2
        e([f"s_lshl_b32 s{sT0}, s{sWv}, 10", f"v_add_u32 v{vt16}, s{sT0}, v{vL16}"])
        for k in range(4):
            e(f"v_mov_b32 v{4+k}, 0")
        e([f"s_cmp_lg_u32 s{sA}, 0", "s_cbranch_scc1 L_aux1"])
        for k in range(4):
            p.raw(f"s_movk_i32 s{sT1}, {4096*k}")
            p.raw(f"buffer_store_dwordx4 v[4:7], v{vt16}, {srd(sWS)}, s{sT1} offen sc1")
        p.raw("s_waitcnt vmcnt(0)")
        p.raw("s_barrier")
        p.raw(f"v_mov_b32 v8, 1")
        p.raw(f"s_cmp_lg_u32 s{sWv}, 0")
        p.raw("s_cbranch_scc1 L_aux1")
        p.raw("s_mov_b64 exec, 1")
        p.raw(f"buffer_store_dword v8, off, {srd(sDBG)}, 0 sc1")
        p.raw("s_mov_b64 exec, -1")
        p.raw("L_aux1:")
        p.raw("s_waitcnt lgkmcnt(0)")
        RS = 4128
        sq, skg = sRg, sC
        e([f"s_lshr_b32 s{sq}, s{sA}, 3", f"s_and_b32 s{skg}, s{sA}, 7",
           f"s_lshl_b32 s{sT1}, s{sq}, 6", f"s_add_u32 s{sT1}, s{sT1}, s{skg}", f"s_mul_i32 s{sT1}, s{sT1}, 3600"])
        for j in range(8):
            for part in range(2):
                e([f"s_add_u32 m0, s{sT0}, {(8*part+j)*RS}", "s_nop 0",
                   I(f"buffer_load_dwordx4 v{vt16}, {srd(sG if part == 0 else sU)}, s{sT1} offen lds", tag="wl")])
            e(f"s_add_u32 s{sT1}, s{sT1}, {64*450}")
        vo, vg = 3, 8
        xb, gb = 32, 96
        e([f"s_lshr_b32 s{sT1}, s{sA}, 3", f"s_lshl_b32 s{sT1}, s{sT1}, 1", f"s_and_b32 s{sT2}, s{sA}, 1",
           f"s_add_u32 s{sT1}, s{sT1}, s{sT2}", f"s_lshl_b32 s{sT1}, s{sT1}, 2", f"s_add_u32 s{sT1}, s{sT1}, s{sWv}",
           f"s_lshl_b32 s{sT1}, s{sT1}, 3", f"s_bfe_u32 s{sT2}, s{sA}, 0x20001", f"s_add_u32 s{sT1}, s{sT1}, s{sT2}",
           f"s_lshl_b32 s{sT1}, s{sT1}, 3",
           f"v_lshrrev_b32 v4, 5, v0", f"v_bfe_u32 v5, v0, 2, 3", f"v_lshl_add_u32 v4, v4, 5, v5", f"v_add_u32 v4, s{sT1}, v4",
           f"v_and_b32 v{vg}, 48, v{vL16}", f"v_mul_u32_u24 v4, 896, v4", f"v_add_u32 v{vo}, v4, v{vg}"])
        for k in range(14):
            e(I(f"buffer_load_dwordx4 {vr(xb+4*k,4)}, v{vo}, {srd(sX)}, 0 offen offset:{64*k}", tag="gx"))
            e(I(f"buffer_load_dwordx4 {vr(gb+4*k,4)}, v{vg}, {srd(sD)}, 0 offen offset:{64*k}", tag="gx"))
        gol = f"buffer_load_dword v{vP}, off, {srd(sDBG)}, 0 sc1"
        vra, vwa = 9, 10
        e([f"v_and_b32 v4, 7, v0", f"v_lshrrev_b32 v5, 7, v{vt16}", f"v_mul_u32_u24 v{vra}, 450, v4",
           f"v_lshl_add_u32 v{vra}, v5, 1, v{vra}",
           f"v_lshlrev_b32 v{vwa}, 13, v5", f"v_lshl_add_u32 v{vwa}, v4, 4, v{vwa}",
           f"s_lshr_b32 s{sT1}, s{skg}, 1", f"s_lshl_b32 s{sT1}, s{sT1}, 2", f"s_add_u32 s{sT1}, s{sT1}, s{sq}",
           f"s_lshl_b32 s{sT1}, s{sT1}, 1", f"s_and_b32 s{sT2}, s{skg}, 1", f"s_add_u32 s{sT1}, s{sT1}, s{sT2}",
           f"s_lshl_b32 s{sT1}, s{sT1}, 7", f"s_add_u32 s{sT1}, s{sT1}, {WT}", f"s_add_u32 s{sT2}, s{sT1}, 4096"])
        e(W(vm="wl"))
        e("s_barrier")
        e(f"s_mov_b32 s{sCnt}, 0")
        p.raw("L_wt:")
        p.raw(f"v_cmp_gt_u32 vcc, {225*8192}, v{vwa}")
        for n in range(14):
            p.raw(f"ds_read_u16 v{160+n}, v{vra} offset:{n*RS}")
        p.raw(f"v_cndmask_b32 v11, 2.0, v{vwa}, vcc")
        for part in range(2):
            p.raw(f"s_waitcnt lgkmcnt({6*(1-part)})")
            if part == 0:
                for n in (14, 15):
                    p.raw(f"ds_read_u16 v{160+n}, v{vra} offset:{n*RS}")
            for j in range(4):
                p.raw(f"v_lshl_or_b32 v{176+4*part+j}, v{160+8*part+2*j+1}, 16, v{160+8*part+2*j}")
            p.raw(f"buffer_store_dwordx4 {vr(176+4*part,4)}, v11, {srd(sWS)}, s{sT1+part} offen sc1")
        p.raw(f"v_add_u32 v{vra}, 64, v{vra}")
        p.raw(f"v_add_u32 v{vwa}, {32*8192}, v{vwa}")
        p.raw(f"s_add_u32 s{sCnt}, s{sCnt}, 1")
        p.raw(f"s_cmp_lt_u32 s{sCnt}, 8")
        p.raw("s_cbranch_scc1 L_wt")
        p.raw(gol)
        p.raw("s_waitcnt vmcnt(17)")
        p.reset()
        for k in range(4):
            e(f"v_mov_b32 v{4+k}, 0")
        for k in range(56):
            e(f"v_dot2_f32_bf16 v{4+k%4}, v{xb+k}, v{gb+k}, v{4+k%4}")
        e([f"v_add_f32 v4, v4, v5", f"v_add_f32 v6, v6, v7", f"v_add_f32 v4, v4, v6",
           f"v_add_f32_dpp v4, v4, v4 quad_perm:[1,0,3,2] row_mask:0xf bank_mask:0xf",
           f"v_add_f32_dpp v4, v4, v4 quad_perm:[2,3,0,1] row_mask:0xf bank_mask:0xf",
           f"v_mul_f32 v4, s{sK}, v4", f"v_exp_f32 v4, v4", f"v_add_f32 v4, 1.0, v4", f"v_rcp_f32 v4, v4",
           f"v_and_b32 v5, 60, v0",
           f"s_lshl_b32 s{sT1}, s{sA}, 2", f"s_add_u32 s{sT1}, s{sT1}, s{sWv}", f"s_lshl_b32 s{sT1}, s{sT1}, 6",
           f"s_add_u32 s{sT1}, s{sT1}, {GOFF}",
           f"buffer_store_dword v4, v5, {srd(sWS)}, s{sT1} offen sc1"])
        p.raw("s_waitcnt vmcnt(0)")
        p.reset()
        e(self.poll_check("goa", None, [gol], [], vP))
        e("s_barrier")
        for k in range(4):
            e(f"v_mov_b32 v{4+k}, 1")
        e([f"s_lshl_b32 s{sT1}, s{sA}, 3", f"s_add_u32 s{sT1}, s{sT1}, {FAUX}",
           f"s_cmp_lg_u32 s{sWv}, 0", "s_cbranch_scc1 L_aux2"])
        e(self.flag_store(sT1, None, 2, 4))
        p.raw("L_aux2:")
        p.reset()
        e([f"s_cmp_lg_u32 s{sA}, 1", "s_cbranch_scc1 L_end"])
        if o["stop"] == "gemm1":
            e("s_branch L_end")
        e([f"s_movk_i32 s{sKd}, 224", f"s_mov_b32 s{sSc}, {fbits(1.0/(2048*448))}", f"s_mov_b32 s{sT0}, 0"])
        e(self.fft_consts())
        pl = self.poll1_loads(vT + 4)
        e([I(x, tag="p1") for x in pl])
        e(self.poll_check("p1a", "p1", pl, [f"v_and_b32 v{vT+4}, v{vT+4}, v{vT+5}"], vT + 4))
        e(self.fft_scalars())
        e(self.fft_setup_regs())
        e(self.fft_loads())
        self.fft_body(lambda n, dt: None)
        e([f"s_lshl_b32 s{sT0}, s{sWv}, 10", f"s_add_u32 s{sT0}, s{sT0}, {FZ+224*4}"])
        e(self.flag_store(sT0, ["zre", "zim"], 4, 4))
        p.raw("s_endpgm")

    def finish(self):
        out = self.p.out
        d = self.o["diag"].split(",")
        if "plainst" in d:
            out = [l.replace(" sc1", "") if l.startswith("buffer_store_dwordx4") else l for l in out]
        if "plainld" in d:
            out = [l.replace(" sc1", "") if l.startswith("buffer_load_dwordx4") else l for l in out]
        if "nopoll" in d:
            out = ["s_nop 0" if l.startswith("s_cbranch_vccnz L_slow") else l for l in out]
        if "nobar" in d:
            out = ["s_nop 0" if l.startswith("s_barrier") else l for l in out]
        if "novm" in d:
            import re
            out = [(re.sub(r" vmcnt\(\d+\)", " vmcnt(63)", l) if l.startswith("s_waitcnt") and "vmcnt(0)" not in l else l) for l in out]
        lines, nfix = check_hazards(out)
        print(f"; {len(lines)} lines, {nfix} hazard nops inserted, {getattr(self.p,'n_sat',0)} lgkm saturation waits", file=sys.stderr)
        ref = open("gated_mix__spectral_gfnet__swiglu_ffn__prompt.s.ref").read().split("\n")
        head = [l for l in ref if l.startswith(";") and "@launch" not in l and "Override" not in l and "grid=ceil" not in l]
        s = "\n".join(head) + "\n"
        s += f"; @launch grid=(256,1,1) block=(256,1,1) lds={LDS_BYTES}\n"
        s += '.amdgcn_target "amdgcn-amd-amdhsa--gfx950"\n.text\n'
        s += f".globl {NAME}\n.p2align 8\n.type {NAME},@function\n{NAME}:\n"
        s += "\n".join(lines) + "\n"
        s += f"""s_endpgm
.section .rodata,"a"
.p2align 6
.amdhsa_kernel {NAME}
  .amdhsa_next_free_vgpr 512
  .amdhsa_next_free_sgpr 102
  .amdhsa_accum_offset 256
  .amdhsa_group_segment_fixed_size 0
  .amdhsa_kernarg_size 88
  .amdhsa_user_sgpr_count 2
  .amdhsa_user_sgpr_kernarg_segment_ptr 1
  .amdhsa_system_sgpr_workgroup_id_x 1
  .amdhsa_float_denorm_mode_32 3
.end_amdhsa_kernel
"""
        return s


def parse_opts(args):
    kw = {}
    for a in args:
        k, v = a.split("=")
        assert k in DEF, k
        if isinstance(DEF[k], bool):
            v = v not in ("0", "False")
        elif isinstance(DEF[k], int):
            v = int(v)
        kw[k] = v
    return kw


if __name__ == "__main__":
    out = sys.argv[1]
    g = Gen(**parse_opts(sys.argv[2:]))
    s = g.build()
    open(out, "w").write(s)
    print("; stamps:", g.stamp_names, file=sys.stderr)
```

```python
import re


class I:
    __slots__ = ("t", "tag", "vm", "ds")

    def __init__(self, t, tag=None, vm=None, ds=None):
        self.t = t
        self.tag = tag
        self.vm = vm
        self.ds = ds


def W(vm=None, ds=None):
    return I("", vm=vm, ds=ds)


def kind(t):
    op = t.split()[0] if t else "s_waitcnt"
    if op.startswith("v_mfma"):
        return "M"
    if op.startswith("ds_"):
        return "D"
    if op.startswith("buffer_") or op.startswith("global_"):
        return "G"
    if op.startswith("v_"):
        return "V"
    return "S"


TRANS = ("v_exp_f32", "v_rcp_f32", "v_cos_f32", "v_sin_f32", "v_log_f32", "v_rsq_f32", "v_sqrt_f32")


def cost(t):
    op = t.split()[0] if t else ""
    return 2 if op in TRANS else 1


class Prog:
    def __init__(self):
        self.out = []
        self.reset()

    def reset(self):
        self.vm_n = 0
        self.vm_done = 0
        self.vm_tag = {}
        self.ds_n = 0
        self.ds_done = 0
        self.ds_tag = {}

    def snapshot(self):
        return (self.vm_n, self.vm_done, dict(self.vm_tag), self.ds_n, self.ds_done, dict(self.ds_tag))

    def restore(self, s):
        self.vm_n, self.vm_done, vt, self.ds_n, self.ds_done, dt = s
        self.vm_tag = dict(vt)
        self.ds_tag = dict(dt)

    def raw(self, t):
        self.out.append(t)

    def _idx(self, tags, table, n):
        if tags is None:
            return 0
        if tags == "all":
            return n
        if not isinstance(tags, (list, tuple)):
            tags = [tags]
        return max([table[t] for t in tags], default=0)

    def wait(self, vm=None, ds=None):
        a = self._idx(vm, self.vm_tag, self.vm_n)
        b = self._idx(ds, self.ds_tag, self.ds_n)
        s = ""
        if a > self.vm_done:
            n = min(self.vm_n - a, 63)
            s += f" vmcnt({n})"
            self.vm_done = self.vm_n - n
        if b > self.ds_done:
            n = min(self.ds_n - b, 15)
            s += f" lgkmcnt({n})"
            self.ds_done = self.ds_n - n
        if s:
            self.out.append("s_waitcnt" + s)
        return bool(s)

    def e(self, it, tag=None, vm=None, ds=None):
        if isinstance(it, (list, tuple)):
            for x in it:
                self.e(x)
            return
        if callable(it):
            it(self)
            return
        if isinstance(it, str):
            if "\n" in it:
                for l in it.split("\n"):
                    if l.strip():
                        self.e(l.strip())
                return
            it = I(it, tag, vm, ds)
        self.wait(it.vm, it.ds)
        if not it.t:
            return
        k = kind(it.t)
        if k == "G":
            self.vm_n += 1
            assert self.vm_n - self.vm_done <= 63, "too many vmem outstanding"
            if it.tag:
                self.vm_tag[it.tag] = self.vm_n
        elif k == "D":
            if self.ds_n - self.ds_done >= 15:
                self.out.append("s_waitcnt lgkmcnt(10)")
                self.ds_done = self.ds_n - 10
                self.n_sat = getattr(self, "n_sat", 0) + 1
            self.ds_n += 1
            if it.tag:
                self.ds_tag[it.tag] = self.ds_n
        self.out.append(it.t)


class Mark:
    def __init__(self, name):
        self.name = name


class Rec:
    def __init__(self):
        self.items = []

    def e(self, it):
        if isinstance(it, (list, tuple)):
            for x in it:
                self.e(x)
        else:
            self.items.append(it)

    def mark(self, name):
        self.items.append(Mark(name))


class Gaps:
    def __init__(self, mf, budget=6):
        self.mf = mf
        self.n = len(mf)
        self.s = [[] for _ in mf]
        self.m = [[] for _ in mf]
        self.v = [[] for _ in mf]
        self.post = [[] for _ in mf]
        self.budget = budget
        self.light = set()

    def used(self, g):
        def c(x):
            if isinstance(x, I):
                return cost(x.t) + (1 if (x.t and (x.vm or x.ds)) else 0)
            if isinstance(x, str):
                return cost(x)
            if isinstance(x, list):
                return sum(map(c, x))
            return 4
        return (max(0, sum(map(c, self.s[g])) - 1) + sum(map(c, self.m[g])) + sum(map(c, self.v[g]))
                + sum(map(c, self.post[g])))

    def pour(self, seq, g0, g1=None, budget=None, window=14):
        budget = budget or self.budget
        g1 = self.n if g1 is None else g1
        g = g0
        items = []
        for x in seq:
            if isinstance(x, list):
                ps = [parse(y) for y in x]
                items.append((x, len(x), "grp", "S", set().union(*[q[2] for q in ps]), set().union(*[q[3] for q in ps])))
                continue
            t = x.t if isinstance(x, I) else x
            op, k, w, r, _ = parse(t)
            items.append((x, cost(t), op, k, w, r))
        last = g0
        wrote = {}
        prevw = getattr(self, "_wrote", {})
        wrote.update(prevw)
        while items and g < g1:
            if g in self.light:
                g += 1
                continue
            placed = False
            lastv = self.v[g][-1] if self.v[g] else None
            lw = set()
            if lastv is not None and not isinstance(lastv, list):
                lt = lastv.t if isinstance(lastv, I) else lastv
                lop, _, lw_, _, _ = parse(lt)
                if lop in TRANS:
                    lw = lw_
            sw, sr = set(), set()
            for j, (x, t, op, k, w, r) in enumerate(items[:window]):
                dep = (w & sw) or (w & sr) or (r & sw)
                if not dep:
                    if k in "DG":
                        if not any(wrote.get(z, -1) >= g for z in (r | w)) and self.used(g) + 1 <= budget + 1 \
                                and not any(kk in "DG" for (_, _, _, kk, _, _) in items[:j]):
                            self.m[g].append(x)
                            placed = True
                    elif self.used(g) + t <= budget and not (lw & r and op not in TRANS):
                        self.v[g].append(x)
                        for z in w:
                            wrote[z] = g
                        placed = True
                if placed:
                    items.pop(j)
                    last = g
                    break
                sw |= w
                sr |= r
            if not placed:
                g += 1
        self._wrote = wrote
        return last, [it[0] for it in items]

    def emit(self, p, g0=0, g1=None):
        for g in range(g0, self.n if g1 is None else g1):
            p.e(self.mf[g])
            p.e(self.s[g])
            p.e(self.m[g])
            p.e(self.v[g])
            p.e(self.post[g])


_REG = re.compile(r"(?<![\w.])([vas])(\d+)(?!\w)|(?<![\w.])([vas])\[(\d+):(\d+)\]")


def regs(op):
    r = set()
    for m in _REG.finditer(op):
        if m.group(1):
            r.add((m.group(1), int(m.group(2))))
        else:
            for i in range(int(m.group(4)), int(m.group(5)) + 1):
                r.add((m.group(3), i))
    if re.search(r"\bvcc(_lo|_hi)?\b", op):
        r.add(("s", "vcc"))
    if re.search(r"\bm0\b", op):
        r.add(("s", "m0"))
    if re.search(r"\bexec(_lo|_hi)?\b", op):
        r.add(("s", "exec"))
    return r


def parse(t):
    t = t.split(";")[0].strip()
    sp = t.split(None, 1)
    op = sp[0]
    ops = [o.strip() for o in sp[1].split(",")] if len(sp) > 1 else []
    k = kind(t)
    w, r = set(), set()
    allr = [regs(o) for o in ops]
    U = lambda l: set().union(*l) if l else set()
    if k == "M":
        w = allr[0]
        r = U(allr[1:])
    elif k == "D":
        if op.startswith("ds_read") or op.startswith("ds_bpermute"):
            w = allr[0]
            r = U(allr[1:])
        else:
            r = U(allr)
    elif k == "G":
        if " lds" in t:
            r = U(allr) | {("s", "m0")}
        elif "_load" in op:
            w = allr[0]
            r = U(allr[1:])
        else:
            r = U(allr)
    elif k == "V":
        w = allr[0]
        r = U(allr[1:])
        if op.startswith("v_fmac") or op.startswith("v_dot2c") or "permlane" in op or op.startswith("v_writelane"):
            r |= w
        if "permlane" in op and "swap" in op:
            w = w | allr[1]
        if op.startswith("v_cmpx"):
            w = w | {("s", "exec")}
    else:
        if op.startswith("s_cmp") or op.startswith("s_cbranch") or op.startswith("s_bitcmp") or op in (
                "s_waitcnt", "s_nop", "s_barrier", "s_branch", "s_sleep", "s_endpgm", "s_setprio"):
            r = U(allr)
        elif allr:
            w = allr[0]
            r = U(allr[1:])
            if "saveexec" in op:
                w = w | {("s", "exec")}
            if op in ("s_addk_i32", "s_mulk_i32", "s_bitset1_b32", "s_bitset0_b32"):
                r = r | w
    return op, k, w, r, allr


def check_hazards(lines, fix=True):
    out = []
    hist = []
    nfix = 0
    for t in lines:
        s = t.strip()
        if not s or s.startswith(";") or s.startswith(".") or s.endswith(":"):
            out.append(t)
            continue
        op, k, w, r, allr = parse(s)
        need = 0
        dist = 0
        for (pop, pk, pw, pr, pall, pst) in reversed(hist):
            req = 0
            vw = {x for x in pw if x[0] in "va"}
            sw = {x for x in pw if x[0] == "s"}
            if pk == "M":
                passes = 8 if "32x32x16" in pop else 4
                big = 12 if passes == 8 else 8
                if k == "M":
                    if pw & (allr[1] | allr[2]):
                        req = big
                    elif pw & allr[3] and not (pw == allr[3] and pop == op):
                        req = 10 if passes == 8 else 6
                    elif pw & w and not (pw == allr[3]):
                        req = big
                elif pw & (r | w):
                    req = big
                if k == "V" and (pall[3] & w):
                    req = max(req, 7 if passes == 8 else 3)
            elif pk == "V":
                if k == "M" and vw & r:
                    req = 2
                if k == "M" and ("s", "exec") in pw:
                    req = 4
                if pop in TRANS and k != "S" and op not in TRANS and vw & r:
                    req = max(req, 1)
                if pop.startswith("v_dot") and vw & (r | w) and not (op == pop and not (vw & (allr[1] | allr[2]))):
                    req = max(req, 3)
                if (op.startswith("v_readlane") or op.startswith("v_readfirstlane")) and vw & r:
                    req = max(req, 1)
                if ("permlane" in op or "dpp" in s) and vw & r:
                    req = max(req, 2)
                if k == "G" and sw & r:
                    req = max(req, 5)
                if k == "V" and sw & r:
                    req = max(req, 2)
                if k == "S" and sw & r and not op.startswith("s_cbranch"):
                    req = max(req, 1)
            elif pk == "G":
                if "store" in pop and ("x4" in pop or "x3" in pop) and (pall[0] & w):
                    req = 2
            elif pk == "S":
                if ("s", "m0") in pw and k == "G" and " lds" in s:
                    req = 1
                if ("s", "exec") in pw and "dpp" in s:
                    req = 5
            if req > dist:
                need = max(need, req - dist)
            dist += pst
            if dist > 20:
                break
        if need:
            nfix += 1
            if not fix:
                raise SystemExit(f"hazard before: {s} need {need}")
            out.append(f"s_nop {need-1}")
            hist.append(("s_nop", "S", set(), set(), [], need))
        st = 1
        if op == "s_nop":
            st = int(s.split()[1]) + 1
        hist.append((op, k, w, r, allr, st))
        hist = hist[-24:]
        out.append(t)
    return out, nfix
```

```python
import sys, struct, re
from asmlib import *

NAME = "gated_mix__spectral_gfnet__swiglu_ffn__prompt_kernel"

FX1 = 0
FAUX = FX1 + 896 * 128
FG = FAUX + 32 * 128
FH = 1024 * 128
FZ = 3072 * 128
FEND = 4096 * 128
GOFF = FEND
STAMP = FEND + 65536
X1T = 1 << 20
ZT = X1T + 448 * 4096
WT = ZT + 448 * 4096
HH = WT + 225 * 8192
WSEND = HH + 64 * 114688
OOB = 0x40000000

WSLOT = 16640
NWS = 5
XS = NWS * WSLOT
FS = XS + 65536
IMG = 0
EXC = 8192
ZS = 16384
RED = XS
LDS_BYTES = 163840

sFx, s8k, sHst1 = 0, 1, 3
sX, sG, sU, sD, sWS, sO, sDBG = 4, 8, 12, 16, 20, 24, 28
sWv, sRg, sC, sRt, sCt, sKd = 32, 33, 34, 35, 36, 37
sWm, sXm = 38, 39
sT0, sT1, sT2, sT3 = 40, 41, 42, 43
sK = 44
s7f = 46
sCnt = 47
sXo, sWo, sDo, sHo = 48, 55, 62, 72
sHst, sRot2 = 69, 70
sSc = 71
sFh = 79
sWr, sWi, sGw = 48, 52, 56
RS = 4480
sZs, sSw = 48, 49
sST = 80

vL16 = 1
vXd, vXr, vWd, vTr, vDd, vDr = 2, 6, 14, 16, 18, 22
vFr, vSg, vX1g, vPa, vP, vPr, vPg = 24, 25, 26, 27, 28, 29, 30
vWF = 32
vT1c, vT1s, vT2c, vT2s = 48, 56, 64, 72
vAX, vAA, vAB, vS32, vT = 80, 96, 160, 224, 232
aX, aC64, aS64, aN64, aC32 = 0, 224, 232, 240, 248
STEP448 = 9586981
fA = vAA
fDr, fDi, fTm = vAA + 32, vAA + 40, vAA + 48
fBr, fBi, fBn = vAX, vAX + 4, vAX + 8
fWraw = vT
fWr, fWi = vWF, vWF + 8
fa0, fim, fx = vT + 8, vT + 12, vT + 13
vE = vT + 16


def srd(s):
    return f"s[{s}:{s+3}]"


def vr(b, n, c="v"):
    return f"{c}[{b}:{b+n-1}]"


def fbits(x):
    return "0x%08x" % struct.unpack("<I", struct.pack("<f", x))[0]


def txt(x):
    return x.t if isinstance(x, I) else (x if isinstance(x, str) else "s_nop 0")


DEF = dict(rot1="0", rot2="0", LA=3, npre=12, npro=16, wd_start=100, wd_delay=34, stop=None, stamps=False,
           go_ld=120, x1flag=186, hAflag=252, poll1=216, perA=64, perB=80, hring=16, cpro=12,
           chk1=238, pollA=252, t_hAflag=150, t_pollA=900, t_chkA=1500, t_hBflag=2100, hfirst=4, perE=88, perS=120, trprio=144, hramp=1, zsp=2,
           pollB_ld=4, pollB_chk=22, touchB=0,
           pollZ_ld=46, pollZ_chk=62, zflag=30, zrot=0, spin=200000, sleep=4, pf=1, epi_budget=6, outfl="",
           apf='x13,w13,x46,w46,clr,WT,go', rt=False, st1='', st2='', only='', diag='')


class Gen:
    def __init__(self, **kw):
        self.o = dict(DEF)
        self.o.update(kw)
        self.p = Prog()
        self.slow = []
        self.nst = 0
        self.stamp_names = []
        self.anames = ['start', 'rt0']

    def log(self, s):
        print("; " + s, file=sys.stderr)

    def stamp(self, name):
        if not self.o["stamps"]:
            return []
        if self.o["only"] and name not in ("start", "rt0", "end") and name not in self.o["only"].split(",") and name[0] != "@":
            return []
        i = self.nst
        self.nst += 1
        r = sX if name == "end" else sST + 2 * i
        assert r + 1 <= 101
        self.stamp_names.append(name)
        return [f"{'s_memrealtime' if self.o['rt'] else 's_memtime'} s[{r}:{r+1}]"]

    def astamp(self, name):
        if not self.o["stamps"]:
            return []
        self.anames.append(name)
        r = sST + 2 * (len(self.anames) - 1)
        assert r <= 100
        return [f"{'s_memrealtime' if self.o['rt'] else 's_memtime'} s[{r}:{r+1}]"]

    def poll_check(self, name, tags, load, reg):
        def f(p):
            p.wait(vm=tags)
            p.e(f"v_cmp_ne_u32 vcc, 1, v{reg}")
            p.e(f"s_cbranch_vccnz L_slow_{name}")
            p.raw(f"L_back_{name}:")
        s = [f"L_slow_{name}:", f"s_mov_b32 s{sCnt}, 0", f"L_spin_{name}:", load, "s_waitcnt vmcnt(0)",
             f"v_cmp_ne_u32 vcc, 1, v{reg}", f"s_cbranch_vccz L_back_{name}", f"s_sleep {self.o['sleep']}",
             f"s_add_u32 s{sCnt}, s{sCnt}, 1", f"s_cmp_lt_u32 s{sCnt}, {self.o['spin']}",
             f"s_cbranch_scc1 L_spin_{name}", "s_endpgm"]
        self.slow += s
        return f

    def flag_store(self, soff, tags):
        def f(p):
            p.wait(vm=tags)
            p.e("s_mov_b64 exec, 1")
            p.e(f"buffer_store_dword v{vP}, off, {srd(sWS)}, s{soff} sc1")
            p.e("s_mov_b64 exec, -1")
        return f

    def trig(self, dst, phase, tmp, fn="cos"):
        return [f"v_alignbit_b32 v{tmp}, s{s7f}, v{phase}, 9", f"v_{fn}_f32 v{dst}, v{tmp}"]

    def fft_consts(self, t):
        vn, vq, vcol, vidx, va, vb, vk, vsg = range(t, t + 8)
        c0, s0 = t + 8, t + 16
        pk = t + 24
        q = [f"v_lshrrev_b32 v{vq}, 4, v0", f"v_and_b32 v{vn}, 15, v0",
             f"v_lshl_add_u32 v{vcol}, s{sWv}, 4, v{vn}",
             f"v_lshrrev_b32 v{va}, 2, v{vn}", f"v_and_b32 v{vb}, 3, v{vn}", f"v_lshl_add_u32 v{vidx}, v{va}, 3, v{vb}",
             f"v_bfe_i32 v{vsg}, v0, 0, 1", f"v_and_b32 v{vsg}, 0x80008000, v{vsg}",
             f"v_cvt_f32_u32 v{vcol}, v{vcol}", f"v_cvt_f32_u32 v{vidx}, v{vidx}", f"v_cvt_f32_u32 v{vq}, v{vq}"]

        def angles(dst, mul, base, ks):
            return [f"v_mov_b32 v{dst+j}, v{base}" if k == 0 else f"v_fmamk_f32 v{dst+j}, v{mul}, {fbits(float(k))}, v{base}"
                    for j, k in enumerate(ks)]

        def cs(c, s, n):
            r = []
            for j in range(n):
                r += [f"v_cos_f32 v{c+j}, v{s+j}", f"v_sin_f32 v{s+j}, v{s+j}"]
            return r

        def pack(dst, src):
            return [f"v_cvt_pk_bf16_f32 v{dst+j}, v{src+2*j}, v{src+2*j+1}" for j in range(4)]

        def acc(dst, src):
            return [f"v_accvgpr_write_b32 a{dst+j}, v{src+j}" for j in range(4)]

        def xr(dst, m):
            return [f"v_xor_b32 v{dst+j}, {m}, v{dst+j}" for j in range(4)]
        q += [f"v_mul_f32 v{va}, {fbits(1/64)}, v{vcol}", f"v_mul_f32 v{vb}, 4.0, v{vq}", f"v_mul_f32 v{vb}, v{vb}, v{va}"]
        q += angles(s0, va, vb, [16 * (j >> 2) + (j & 3) for j in range(8)]) + cs(c0, s0, 8)
        q += pack(pk, c0) + pack(pk + 4, s0)
        q += acc(aC64, pk) + acc(aS64, pk + 4) + xr(pk, f"v{vsg}") + xr(pk + 4, f"v{vsg}")
        q += acc(aC64 + 4, pk) + acc(aS64 + 4, pk + 4) + xr(pk + 4, "0x80008000") + acc(aN64 + 4, pk + 4)
        q += xr(pk + 4, f"v{vsg}") + acc(aN64, pk + 4)
        q += [f"v_mul_f32 v{va}, {fbits(1/32)}, v{va}", f"v_mul_f32 v{vb}, {fbits(1/16)}, v{vb}"]
        q += angles(vT1s, va, vb, range(8)) + cs(vT1c, vT1s, 8)
        q += [f"v_cvt_f32_u32 v{vk}, s{sWv}", f"v_fma_f32 v{vk}, v{vk}, 4.0, v{vq}", f"v_mul_f32 v{vk}, 4.0, v{vk}",
              f"v_mul_f32 v{vq}, {fbits(8.0)}, v{vq}"]
        for tt in range(2):
            if tt:
                q.append(f"v_add_f32 v{vidx}, 4.0, v{vidx}")
            q += [f"v_mul_f32 v{va}, {fbits(1/32)}, v{vidx}", f"v_mul_f32 v{vb}, v{vq}, v{va}"]
            q += angles(s0, va, vb, range(8)) + cs(c0, s0, 8)
            q += pack(pk, c0) + pack(vS32 + 4 * tt, s0) + acc(aC32 + 4 * tt, pk)
            q += [f"v_mul_f32 v{va}, {fbits(1/64)}, v{va}", f"v_mul_f32 v{vb}, v{vk}, v{va}"]
            q += angles(vT2s + 4 * tt, va, vb, range(4)) + cs(vT2c + 4 * tt, vT2s + 4 * tt, 4)
        for i in range(8):
            q += [f"v_mul_f32 v{vT2c+i}, s{sSc}, v{vT2c+i}", f"v_mul_f32 v{vT2s+i}, s{sSc}, v{vT2s+i}"]
        return q

    def fft_setup_regs(self):
        t0, t1 = vT + 14, vT + 15
        return [f"v_and_b32 v{t1}, 3, v0", f"v_lshrrev_b32 v{t0}, 4, v0",
                f"v_lshl_add_u32 v{fa0}, v{t1}, 2, v{t0}",
                f"v_lshlrev_b32 v{fa0}, 3, v{fa0}",
                f"v_and_b32 v{t0}, 2, v{t1}", f"v_add3_u32 v{fa0}, v{fa0}, v{t1}, v{t0}",
                f"v_bfe_u32 v{t0}, v0, 3, 1", f"v_lshl_add_u32 v{fa0}, v{t0}, 1, v{fa0}",
                f"v_bfe_u32 v{t0}, v0, 2, 1", f"v_lshl_add_u32 v{fa0}, v{fa0}, 1, v{t0}",
                f"v_lshlrev_b32 v{fa0}, 3, v{fa0}",
                f"v_xor_b32 v{fa0+1}, 16, v{fa0}", f"v_xor_b32 v{fa0+2}, 64, v{fa0}", f"v_xor_b32 v{fa0+3}, 0x50, v{fa0}",
                f"v_lshrrev_b32 v{t0}, 5, v0", f"v_xor_b32 v{t0}, v{t0}, v0", f"v_bfe_i32 v{fx}, v{t0}, 0, 1"]

    def fft_scalars(self):
        return [[f"s_lshl_b32 s{sT1}, s{sKd}, 13"], [f"s_lshl_b32 s{sT0}, s{sWv}, 10"],
                [f"s_add_u32 s{sT2}, s{sT1}, s{sT0}"],
                [f"s_cmp_eq_u32 s{sKd}, 224", f"s_cselect_b32 s{sZs}, 4096, s{sT1}", f"s_cselect_b32 s{sT1}, 0, s{sT1}",
                 f"s_cselect_b32 s{sSw}, 16, 0"],
                [f"s_cmp_eq_u32 s{sT1}, 0", f"s_cselect_b32 s{sT3}, {OOB}, 0"],
                [f"s_add_u32 s{sZs}, s{sZs}, s{sT0}"], [f"s_lshl_b32 s{sT0}, s{sT0}, 1"], [f"s_add_u32 s{sT1}, s{sT1}, s{sT0}"],
                [f"s_add_u32 s{sT1}, s{sT1}, {X1T}"], [f"s_add_u32 s{sT2}, s{sT2}, {WT}"], [f"s_add_u32 s{sZs}, s{sZs}, {ZT}"]]

    def fft_addr2(self):
        return [f"v_xor_b32 v{fim}, s{sSw}, v{vL16}", f"v_and_or_b32 v{fx}, v{fx}, s{sT3}, v{fim}",
                f"v_or_b32 v{fim}, s{sT3}, v{vL16}", f"v_add_u32 v{fim}, 0x1000, v{fim}"]

    def poll1_addr(self, t0, t1, sa, sb):
        sc = [[f"s_lshr_b32 s{sa}, s{sKd}, 4", f"s_cmp_eq_u32 s{sa}, 14", f"s_cselect_b32 s{sa}, 0, s{sa}"],
              [f"s_lshl2_add_u32 s{sa}, s{sa}, s{sWv}"], [f"s_lshl_b32 s{sa}, s{sa}, 4"],
              [f"s_lshl_b32 s{sb}, s{sWv}, 1"]]
        v = [f"v_add_u32 v{vPa}, s{sa}, v0",
             f"v_bfe_u32 v{t0}, v0, 1, 2", f"v_and_b32 v{t1}, 1, v0", f"v_lshl_add_u32 v{t0}, v{t0}, 3, v{t1}",
             f"v_add_u32 v{t0}, s{sb}, v{t0}",
             f"v_add_u32 v{t0}, {FAUX//128}, v{t0}",
             f"v_subrev_u32 v{t1}, 16, v0", f"v_ashrrev_i32 v{t1}, 31, v{t1}",
             f"v_bfi_b32 v{vPa}, v{t1}, v{vPa}, v{t0}", f"v_lshlrev_b32 v{vPa}, 7, v{vPa}"]
        return sc, v

    def fft_loads(self):
        return [f"s_add_u32 m0, s{sT0}, {IMG}",
                I(f"buffer_load_dwordx4 v{fx}, {srd(sWS)}, s{sT1} offen sc1 lds", tag="x1"),
                I(f"buffer_load_dwordx4 v{fx}, {srd(sWS)}, s{sT1} offen offset:1024 sc1 lds", tag="x1"),
                I(f"buffer_load_dwordx4 {vr(fWraw,4)}, v{vL16}, {srd(sWS)}, s{sT2} offen sc1", tag="wtre"),
                f"s_add_u32 s{sT2}, s{sT2}, 4096",
                I(f"buffer_load_dwordx4 {vr(fWraw+4,4)}, v{vL16}, {srd(sWS)}, s{sT2} offen sc1", tag="wtim")]

    def fft_body(self, hook):
        p = self.p
        Dr, Di, tm, Br, Bi, Bn = fDr, fDi, fTm, fBr, fBi, fBn

        def af(part, t, ks):
            return fA + 4 * (4 * part + 2 * t + ks)

        def mf(d, a, b, first):
            return f"v_mfma_f32_16x16x32_bf16 {vr(d,4)}, {a}, {b}, {'0' if first else vr(d,4)}"

        def cmul(c, s, sign, neg=None):
            q = []
            n1 = " neg_lo:[0,0,1] neg_hi:[0,0,1]"
            for j in range(0, 8, 2):
                q += [f"v_pk_mul_f32 {vr(tm+8+j,2)}, {vr(Dr+j,2)}, {vr(s+j,2)}",
                      f"v_pk_mul_f32 {vr(tm+j,2)}, {vr(Di+j,2)}, {vr(s+j,2)}"]
            for j in range(0, 8, 2):
                q += [f"v_pk_fma_f32 {vr(tm+j,2)}, {vr(Dr+j,2)}, {vr(c+j,2)}, {vr(tm+j,2)}" + (n1 if sign > 0 else ""),
                      f"v_pk_fma_f32 {vr(tm+8+j,2)}, {vr(Di+j,2)}, {vr(c+j,2)}, {vr(tm+8+j,2)}" + ("" if sign > 0 else n1)]
            for j in range(4):
                q += [f"v_cvt_pk_bf16_f32 v{Br+j}, v{tm+2*j}, v{tm+2*j+1}"]
            for j in range(4):
                q += [f"v_cvt_pk_bf16_f32 v{Bi+j}, v{tm+8+2*j}, v{tm+8+2*j+1}"]
            return q

        def negs(src):
            return [f"v_xor_b32 v{Bn+j}, 0x80008000, v{src+j}" for j in range(4)]

        def big(sgn, pre):
            Sre, Sim = (aS64, aN64) if sgn < 0 else (aN64, aS64)
            n = 0
            for ks in range(2):
                for part in range(2):
                    for t in range(2):
                        a = vr(af(part, t, ks), 4)
                        first = ks == 0 and part == 0
                        bre = (aC64 if part == 0 else Sre) + 4 * ks
                        bim = (Sim if part == 0 else aC64) + 4 * ks
                        p.e(I(mf(Dr + 4 * t, a, vr(bre, 4, "a"), first), ds=f"{pre}{part}{t}{ks}"))
                        p.e(mf(Di + 4 * t, a, vr(bim, 4, "a"), first))
                        n += 1
                        if n in (2, 4, 6):
                            hook(f"{pre}m{n}", 64)

        p.e(W(vm="x1"))
        p.e("s_barrier")
        for ks in range(2):
            for part in range(2):
                for t in range(2):
                    for h in range(2):
                        p.e(I(f"ds_read_b64_tr_b16 {vr(af(part,t,ks)+2*h,2)}, v{fa0+2*t+part} "
                              f"offset:{IMG + 2048*(2*ks+h)}", tag=f"a{part}{t}{ks}"))
        hook("s1", 100)
        big(-1, "a")
        p.e(W(vm=["wtre", "wtim"]))
        for j in range(4):
            p.e([f"v_lshlrev_b32 v{fWr+2*j}, 16, v{fWraw+j}", f"v_and_b32 v{fWr+2*j+1}, 0xffff0000, v{fWraw+j}"])
        p.e(cmul(vT1c, vT1s, -1))
        hook("tw1", 200)
        ng = negs(Br)
        for t in range(2):
            p.e(mf(Dr + 4 * t, vr(aC32 + 4 * t, 4, "a"), vr(Br, 4), True))
            p.e(ng[2 * t:2 * t + 2])
        for t in range(2):
            p.e(mf(Di + 4 * t, vr(aC32 + 4 * t, 4, "a"), vr(Bi, 4), True))
        for t in range(2):
            p.e(mf(Dr + 4 * t, vr(vS32 + 4 * t, 4), vr(Bi, 4), False))
        for t in range(2):
            p.e(mf(Di + 4 * t, vr(vS32 + 4 * t, 4), vr(Bn, 4), False))
        hook("s3", 128)
        for j in range(4):
            p.e([f"v_lshlrev_b32 v{fWi+2*j}, 16, v{fWraw+4+j}", f"v_and_b32 v{fWi+2*j+1}, 0xffff0000, v{fWraw+4+j}"])
        p.e(cmul(fWr, fWi, +1))
        hook("wm", 140)
        ng = negs(Bi)
        for t in range(2):
            p.e(mf(Dr + 4 * t, vr(Br, 4), vr(aC32 + 4 * t, 4, "a"), True))
            p.e(ng[2 * t:2 * t + 2])
        for t in range(2):
            p.e(mf(Di + 4 * t, vr(Br, 4), vr(vS32 + 4 * t, 4), True))
        for t in range(2):
            p.e(mf(Dr + 4 * t, vr(Bn, 4), vr(vS32 + 4 * t, 4), False))
        for t in range(2):
            p.e(mf(Di + 4 * t, vr(Bi, 4), vr(aC32 + 4 * t, 4, "a"), False))
        hook("s3i", 128)
        p.e([f"s_lshr_b32 s{sT0}, s{sWv}, 1", f"s_lshl_b32 s{sT0}, s{sT0}, 10", f"s_and_b32 s{sT2}, s{sWv}, 1",
             f"s_lshl3_add_u32 s{sT0}, s{sT2}, s{sT0}", f"v_add_u32 v{fa0}, s{sT0}, v{vL16}"])
        p.e(cmul(vT2c, vT2s, +1))
        for part in range(2):
            for t in range(2):
                p.e(I(f"ds_write_b64 v{fa0}, {vr((Br if part == 0 else Bi)+2*t,2)} offset:{EXC + (4*part+2*t)*1024}", tag="exw"))
        p.e(W(ds="exw"))
        p.e("s_barrier")
        for ks in range(2):
            for part in range(2):
                for t in range(2):
                    p.e(I(f"ds_read_b128 {vr(af(part,t,ks),4)}, v{vL16} offset:{EXC + (4*part+2*t+ks)*1024}", tag=f"b{part}{t}{ks}"))
        hook("tw2", 300)
        big(+1, "b")
        hook("s1i", 64)
        for j in range(4):
            p.e(f"v_cvt_pk_bf16_f32 v{Br+j}, v{Dr+2*j}, v{Dr+2*j+1}")
        p.e(I(f"buffer_store_dwordx4 {vr(Br,4)}, v{vL16}, {srd(sWS)}, s{sZs} offen sc1", tag="zre"))
        for j in range(4):
            p.e(f"v_cvt_pk_bf16_f32 v{Bi+j}, v{Di+2*j}, v{Di+2*j+1}")
        p.e(I(f"buffer_store_dwordx4 {vr(Bi,4)}, v{fim}, {srd(sWS)}, s{sZs} offen sc1", tag="zim"))

    def epi(self, acc, tmp):
        q = []
        for k in range(4):
            g0, g1, u0, u1 = acc + 2 * k, acc + 2 * k + 1, acc + 8 + 2 * k, acc + 9 + 2 * k
            t0, t1 = tmp + 2 * (k & 1), tmp + 2 * (k & 1) + 1
            q += [f"v_mul_f32 v{t0}, s{sK}, v{g0}", f"v_mul_f32 v{t1}, s{sK}, v{g1}",
                  f"v_exp_f32 v{t0}, v{t0}", f"v_exp_f32 v{t1}, v{t1}",
                  f"v_mul_f32 v{u0}, v{g0}, v{u0}", f"v_mul_f32 v{u1}, v{g1}, v{u1}",
                  f"v_add_f32 v{t0}, 1.0, v{t0}", f"v_add_f32 v{t1}, 1.0, v{t1}",
                  f"v_rcp_f32 v{t0}, v{t0}", f"v_rcp_f32 v{t1}, v{t1}",
                  f"v_mul_f32 v{u0}, v{u0}, v{t0}", f"v_mul_f32 v{u1}, v{u1}, v{t1}",
                  f"v_cvt_pk_bf16_f32 v{acc+k}, v{u0}, v{u1}"]
        return q

    def epi_pk(self, acc, tmp):
        q = []
        for k in range(4):
            q.append(f"v_pk_mul_f32 {vr(tmp+2*k,2)}, {vr(acc+2*k,2)}, s[{sK}:{sK+1}]")
        for j in range(8):
            q.append(f"v_exp_f32 v{tmp+j}, v{tmp+j}")
        for k in range(4):
            q.append(f"v_pk_mul_f32 {vr(acc+8+2*k,2)}, {vr(acc+2*k,2)}, {vr(acc+8+2*k,2)}")
        for k in range(4):
            q.append(f"v_pk_add_f32 {vr(tmp+2*k,2)}, {vr(tmp+2*k,2)}, 1.0 op_sel_hi:[1,0]")
        for j in range(8):
            q.append(f"v_rcp_f32 v{tmp+j}, v{tmp+j}")
        for k in range(4):
            q.append(f"v_pk_mul_f32 {vr(acc+8+2*k,2)}, {vr(acc+8+2*k,2)}, {vr(tmp+2*k,2)}")
        for k in range(4):
            q.append(f"v_cvt_pk_bf16_f32 v{acc+k}, v{acc+8+2*k}, v{acc+9+2*k}")
        return q

    def hstore(self, base, n, tag):
        tl, i = n >> 1, n & 1
        return I(f"buffer_store_dwordx4 {vr(base+16*n,4)}, v{vL16}, {srd(sWS)}, s{sHst1 if i else sHst} offen offset:{tl*2048} sc1", tag=tag)

    def rec_step(self, st, ks, dst):
        P = st + 8 * (ks & 1)
        Q = st + 8 * ((ks + 1) & 1)
        c = st + 16 + (0 if ks & 1 else 1)
        q = [f"v_fmac_f32 v{P+j}, v{c}, v{Q+j}" for j in range(8)]
        return q + self.rec_pack(st, ks, dst)

    def rec_pack(self, st, ks, dst):
        P = st + 8 * (ks & 1)
        n = "-" if ks & 2 else ""
        return [f"v_cvt_pk_bf16_f32 v{dst+j}, {n}v{P+2*j}, {n}v{P+2*j+1}" for j in range(4)]

    def put_scalars(self, G, groups, g0, g1):
        g = g0
        for x in groups:
            while G.s[g] or g in G.light:
                g += 1
            G.s[g] += x if isinstance(x, list) else [x]
        assert g < g1, (g, g1)
        return g

    def build(self):
        o, p = self.o, self.p
        e = p.e
        e(self.stamp("start"))
        e([x.replace("s_memtime", "s_memrealtime") for x in self.stamp("rt0")])
        e([f"s_load_dwordx2 s[{sX}:{sX+1}], s[0:1], 0", f"s_load_dwordx2 s[{sG}:{sG+1}], s[0:1], 32",
           f"s_load_dwordx2 s[{sU}:{sU+1}], s[0:1], 40"])
        e([f"v_lshrrev_b32 v2, 6, v0", f"v_lshlrev_b32 v3, 5, v0", f"v_and_b32 v0, 63, v0"])
        sj, sidx, sr = sT0, sT1, sT2
        e([f"s_lshr_b32 s{sidx}, s2, 3", f"v_readfirstlane_b32 s{sWv}, v2", f"s_and_b32 s{sj}, s2, 7",
           f"s_cmp_lt_u32 s{sidx}, 28", "s_cbranch_scc1 L_main"])
        if o["pf"]:
            p.raw(f"s_getpc_b64 s[{sT2}:{sT3}]")
            p.raw("L_pc:")
            p.raw(f"s_and_b32 s{sCnt}, s{sidx}, 3")
            p.raw(f"v_lshl_add_u32 v3, s{sCnt}, 13, v3")
            p.raw(f"v_min_u32 v3, L_codeend-L_pc-4, v3")
            p.raw(f"global_load_dword v255, v3, s[{sT2}:{sT3}]")
        p.raw("L_main:")
        for s, off in ((sD, 48), (sO, 64), (sDBG, 72), (sWS, 80)):
            e(f"s_load_dwordx2 s[{s}:{s+1}], s[0:1], {off}")

        def mod7(s, t):
            return [f"s_mul_i32 s{t}, s{s}, 37", f"s_lshr_b32 s{t}, s{t}, 8", f"s_mul_i32 s{t}, s{t}, 7", f"s_sub_u32 s{s}, s{s}, s{t}"]
        sRot1 = sHst
        e([f"s_mul_i32 s{sr}, s{sidx}, 37", f"s_lshr_b32 s{sr}, s{sr}, 8",
           f"s_mul_i32 s{sCt}, s{sr}, 7", f"s_sub_u32 s{sCt}, s{sidx}, s{sCt}",
           f"s_lshr_b32 s{sT3}, s{sj}, 1", f"s_lshl2_add_u32 s{sRg}, s{sT3}, s{sr}",
           f"s_and_b32 s{sC}, s{sj}, 1", f"s_mul_i32 s{sC}, s{sC}, 7", f"s_add_u32 s{sC}, s{sC}, s{sCt}",
           ])
        norot = o["rot1"] == "0"
        if not norot or o["rot2"] == "1":
            e([f"s_lshl1_add_u32 s{sRot2}, s{sr}, s{sCt}",
               f"s_cmp_ge_u32 s{sRot2}, 7", f"s_cselect_b32 s{sCnt}, 7, 0", f"s_sub_u32 s{sRot2}, s{sRot2}, s{sCnt}"])
        if norot:
            pass
        elif o["rot1"] == "full":
            e(f"s_mov_b32 s{sRot1}, s{sRot2}")
        elif o["rot1"] == "fullx":
            e([f"s_add_u32 s{sRot1}, s{sRot2}, s{sT3}", f"s_cmp_ge_u32 s{sRot1}, 7", f"s_cselect_b32 s{sCnt}, 7, 0",
               f"s_sub_u32 s{sRot1}, s{sRot1}, s{sCnt}"])
        elif o["rot1"] == "half":
            e([f"s_add_u32 s{sRot1}, s{sr}, s{sCt}", f"s_and_b32 s{sRot1}, s{sRot1}, 1", f"s_mul_i32 s{sRot1}, s{sRot1}, 3"])
        elif o["rot1"] == "xcd":
            e([f"s_mov_b32 s{sRot1}, s{sj}"] + mod7(sRot1, sCnt))
        t0, t1, t2, t3, t4, t5, t6 = range(vAB + 8, vAB + 15)
        e([f"s_lshl2_add_u32 s{sCnt}, s{sT3}, s{sWv}", f"s_lshl4_add_u32 s{sCnt}, s{sCnt}, s{sr}",
           f"s_mul_i32 s{sCnt}, s{sCnt}, {8*896}",
           f"v_lshrrev_b32 v{t0}, 3, v0", f"v_mul_u32_u24 v{t0}, 896, v{t0}", f"v_add_u32 v{t0}, s{sCnt}, v{t0}",
           f"v_and_b32 v{t1}, 7, v0", f"v_lshrrev_b32 v{t2}, 4, v0", f"v_xor_b32 v{t1}, v{t1}, v{t2}",
           f"v_lshl_add_u32 v{vXd}, v{t1}, 4, v{t0}",
           f"v_xor_b32 v{t1}, 4, v{t1}", f"v_lshl_add_u32 v{vXd+1}, v{t1}, 4, v{t0}",
           f"v_add_u32 v{vXd+2}, {2*(28672-1024)}, v{vXd}", f"v_add_u32 v{vXd+3}, {3*(28672-1024)}, v{vXd+1}",
           f"v_add_u32 v{vXd+1}, {28672-1024}, v{vXd+1}"])
        e([f"v_lshrrev_b32 v{t4}, 5, v0", f"v_and_b32 v{t6}, 3, v0", f"v_lshl_add_u32 v{t2}, v{t4}, 2, v{t6}",
           f"v_lshlrev_b32 v{t2}, 4, v{t2}", f"v_bfe_u32 v{t3}, v0, 2, 3",
           f"v_lshl_add_u32 v{t0}, s{sWv}, 4, v{t3}", f"v_mul_u32_u24 v{t0}, 3584, v{t0}",
           f"s_lshl_b32 s{sCnt}, s{sC}, 8", f"v_add3_u32 v{vWd}, v{t0}, v{t2}, s{sCnt}",
           f"v_add_u32 v{vWd+1}, {8*3584-1024}, v{vWd}"])
        e([f"s_mul_i32 s{sWm}, s{sWv}, 4160", f"s_lshl_b32 s{sXm}, s{sWv}, 14", f"s_add_u32 s{sXm}, s{sXm}, {XS}"])
        for s, n in ((sX, 2048 * 896), (sG, 448 * 3584), (sU, 448 * 3584)):
            e([f"s_mov_b32 s{s+2}, {n}", f"s_mov_b32 s{s+3}, 0x20000"])

        def chunk_tab(i):
            r = [f"s_mov_b32 s{sCnt}, s{sRot1}"] if i == 0 else \
                [f"s_add_u32 s{sCnt}, s{sCnt}, 1", f"s_cmp_eq_u32 s{sCnt}, 7", f"s_cselect_b32 s{sCnt}, 0, s{sCnt}"]
            return r + [f"s_lshl_b32 s{sXo+i}, s{sCnt}, 7", f"s_mul_i32 s{sWo+i}, s{sCnt}, {64*3584}"]
        if not norot:
            e(chunk_tab(0) + chunk_tab(1))
        e([f"s_cmp_ge_u32 s{sidx}, 28", "s_cbranch_scc1 L_auxh"])
        snap_aux0 = p.snapshot()
        p.raw("s_waitcnt lgkmcnt(0)")
        e(self.stamp("kargs"))

        self.m0 = None

        def xdma(j):
            r = [dict(t=f"buffer_load_dwordx4 v{vXd+i}, {srd(sX)}, s{sXo+j} offen offset:{1024*i} lds", tag=f"x{j}",
                      m0=(sXm, 4096 * (j % 4)), ds=None) for i in range(4)]
            if norot:
                r[0]["pre"] = [f"s_movk_i32 s{sXo+j}, {128*j}"]
            return r

        def wdma(i):
            r = []
            for mat in range(2):
                for hh in range(2):
                    r.append(dict(t=f"buffer_load_dwordx4 v{vWd+hh}, {srd(sG if mat == 0 else sU)}, s{sWo+i%7} offen offset:{1024*hh} lds",
                                  tag=f"w{i}", m0=(sWm, WSLOT * (i % NWS) + 2080 * mat), ds=None))
            if i >= 7:
                r[0]["pre"] = [f"s_addk_i32 s{sWo+i%7}, 128"]
            elif norot:
                r[0]["pre"] = [f"s_mov_b32 s{sWo+i}, {i*64*3584}"]
            return r

        def ddma(gi):
            r = [dict(t=f"buffer_load_dwordx4 v{vDd+i}, {srd(sD)}, s{sDo+gi%7} offen offset:{1024*i} lds", tag=f"d{gi}",
                      m0=(sXm, 4096 * ((gi + 3) % 4)), ds=(f"dr{gi-4}" if gi >= 4 and i == 0 else None)) for i in range(4)]
            if gi >= 7:
                r[0]["pre"] = [f"s_add_u32 s{sDo+gi%7}, s{sDo+gi%7}, 57344"]
            return r

        def dma_items(d):
            s = []
            if d["m0"] and self.m0 != d["m0"]:
                self.m0 = d["m0"]
                s.append(f"s_add_u32 m0, s{d['m0'][0]}, {d['m0'][1]}")
            return s + list(d.get("pre", [])), [I(d["t"], tag=d["tag"], ds=d["ds"])]

        L, NB = 3, 4
        U = [5 * (f // 2) + 2 * (f % 2) for f in range(56)] + [140 + 2 * f for f in range(56)]
        bar_gap = {j: U[8 * j - L] - 1 for j in range(1, 14)}
        q1 = []
        for i in range(14):
            ear = -1 if i <= o["LA"] - 1 else (0 if i == o["LA"] else bar_gap[i - o["LA"]] + 1)
            for d in (xdma(i) if i < 7 else []) + wdma(i):
                d["ear"] = ear
                q1.append(d)

        def issue_pro(n):
            for _ in range(n):
                assert q1[0]["ear"] < 0
                s, m = dma_items(q1.pop(0))
                e(s)
                e(m)
        issue_pro(o["npre"])
        p.raw("s_branch L_main2")
        snap_main = p.snapshot()
        p.restore(snap_aux0)
        p.raw("L_auxh:")
        self.aux_head(sj, sidx)
        p.raw("s_branch L_aux")
        snap_aux = p.snapshot()
        p.restore(snap_main)
        p.raw("L_main2:")
        for i in range(2, 7):
            if not norot:
                e(chunk_tab(i))
        e([f"s_lshl2_add_u32 s{sRt}, s{sj}, s{sr}", f"s_mul_i32 s{sKd}, s{sj}, 28", f"s_add_u32 s{sKd}, s{sKd}, s{sidx}",
           f"s_movk_i32 s{s7f}, 0x7f", f"v_lshlrev_b32 v{vL16}, 4, v0"])
        sq = sr
        e([f"v_and_b32 v{t0}, 31, v0", f"v_bfe_u32 v{t1}, v0, 1, 3",
           f"v_xor_b32 v{t1}, v{t1}, v{t4}", f"v_lshlrev_b32 v{t1}, 4, v{t1}",
           f"v_lshl_add_u32 v{t1}, v{t0}, 7, v{t1}",
           f"s_xor_b32 s{sT0}, s{sWv}, 1", f"s_lshl_b32 s{sT0}, s{sT0}, 14", f"s_add_u32 s{sT0}, s{sT0}, {XS}"])
        for kk in range(4):
            if kk:
                e(f"v_xor_b32 v{t5}, {32*kk}, v{t1}")
            e([f"v_add_u32 v{vXr+kk}, s{sXm}, v{t5 if kk else t1}", f"v_add_u32 v{vXr+4+kk}, s{sT0}, v{t5 if kk else t1}"])
        e([f"v_bfe_u32 v{t1}, v0, 4, 1", f"v_bfe_u32 v{t5}, v0, 2, 2",
           f"s_and_b32 s{sT0}, s{sWv}, 1", f"s_lshl_b32 s{sT1}, s{sT0}, 9",
           f"v_mul_u32_u24 v{vTr}, 2080, v{t1}", f"v_lshl_add_u32 v{vTr}, v{t4}, 10, v{vTr}",
           f"v_lshl_add_u32 v{vTr}, v{t5}, 6, v{vTr}", f"v_lshl_add_u32 v{vTr}, v{t6}, 3, v{vTr}",
           f"v_add_u32 v{vTr}, s{sT1}, v{vTr}", f"v_add_u32 v{vTr+1}, {4*WSLOT}, v{vTr}"])
        st, fbuf = vAA, [vAB, vAB + 4]
        ph, stp, tq, y0, y1, y2 = range(vAA + 20, vAA + 26)
        pk = vAA + 32
        e([f"v_lshl_add_u32 v{y0}, s{sC}, 5, v{t0}",
           f"v_lshrrev_b32 v{y1}, 1, v{y0}", f"v_and_b32 v{y2}, 1, v{y0}",
           f"v_cmp_eq_u32 vcc, 1, v{y0}", f"v_mov_b32 v{tq}, 224", f"s_mov_b32 s{sCnt}, {STEP448}",
           f"v_cndmask_b32 v{y1}, v{y1}, v{tq}, vcc", f"v_cndmask_b32 v{y2}, v{y2}, 0, vcc",
           f"v_mul_lo_u32 v{stp}, v{y1}, s{sCnt}"])
        e([f"s_lshl_b32 s{sCnt}, s{sWv}, 6"] if norot else [f"s_add_u32 s{sCnt}, s{sRot1}, s{sWv}", f"s_lshl_b32 s{sCnt}, s{sCnt}, 6"])
        e([f"v_lshl_add_u32 v{y1}, v{t4}, 3, s{sCnt}",
           f"v_mul_lo_u32 v{ph}, v{y1}, v{stp}", f"v_lshl_add_u32 v{ph}, v{y2}, 30, v{ph}",
           f"v_lshlrev_b32 v{y1}, 4, v{stp}", f"v_add_u32 v{vFr}, {FS}, v{vL16}", f"v_lshl_add_u32 v{y2}, s{sWv}, 12, v{vFr}"])
        e(self.trig(st + 16, y1, tq))
        for ks in range(2):
            for j in range(8):
                e(self.trig(st + 8 * ks + j, ph, tq + (j & 1)))
                if ks == 0 or j < 7:
                    e(f"v_add_u32 v{ph}, v{ph}, v{stp}")
            if ks == 0:
                e([f"v_lshl_add_u32 v{ph}, v{stp}, 3, v{ph}", f"v_mul_f32 v{st+17}, -2.0, v{st+16}", f"v_add_f32 v{st+16}, v{st+16}, v{st+16}"])
        e(self.rec_pack(st, 0, pk) + self.rec_pack(st, 1, pk + 4) + self.rec_step(st, 2, pk + 8) + self.rec_step(st, 3, pk + 12))
        e(f"s_cmp_eq_u32 s{sWv}, 3")
        for k in range(4):
            if k == 2:
                e("s_cbranch_scc1 L_f2")
            e(I(f"ds_write_b128 v{y2}, {vr(pk+4*k,4)} offset:{1024*k}", tag="fw"))
        p.raw("L_f2:")
        issue_pro(o["npro"] - o["npre"])
        for d in q1:
            d["ear"] = max(d["ear"], 0)
        lq = []
        for s, n in ((sD, 1792 * 896), (sDBG, 256), (sWS, WSEND), (sO, 2048 * 896)):
            lq += [f"s_mov_b32 s{s+2}, {n}", f"s_mov_b32 s{s+3}, 0x20000"]
        lq += [f"v_mul_u32_u24 v{vDd}, 896, v{t3}", f"s_lshl_b32 s{sCnt}, s{sCt}, 7", f"v_add3_u32 v{vDd}, v{vDd}, v{t2}, s{sCnt}"]
        for i in range(1, 4):
            lq += [f"v_add_u32 v{vDd+i}, {i*(8*896-1024)}, v{vDd}"]
        lq += [f"v_lshl_add_u32 v{vDr}, v{t4}, 2, v{t5}", f"v_lshlrev_b32 v{vDr}, 6, v{vDr}",
               f"v_lshl_add_u32 v{vDr}, v{t1}, 4, v{vDr}",
               f"v_and_b32 v{t5}, 1, v0", f"v_lshl_add_u32 v{vDr}, v{t5}, 5, v{vDr}",
               f"v_bfe_u32 v{t5}, v0, 1, 1", f"v_lshl_add_u32 v{vDr}, v{t5}, 3, v{vDr}",
               f"v_lshlrev_b32 v{vSg}, 31, v{t5}",
               f"v_add_u32 v{vDr}, s{sT1}, v{vDr}", f"v_xor_b32 v{vDr+1}, 0x200, v{vDr}",
               f"v_add_u32 v{vDr}, s{sXm}, v{vDr}", f"v_add_u32 v{vDr+1}, s{sXm}, v{vDr+1}",
               f"v_lshlrev_b32 v{vPg}, 3, v{t0}"]
        lq += [f"s_and_b32 s{sCnt}, s{sq}, 2", f"s_add_u32 s{sCnt}, s{sCnt}, s{sq}", f"s_lshl_b32 s{sCnt}, s{sCnt}, 4",
               f"v_xor_b32 v{t5}, s{sCnt}, v{t2}", f"v_lshl_add_u32 v{vX1g}, v{t3}, 14, v{t5}",
               f"s_lshl_b32 s{sCnt}, s{sC}, 8", f"s_add_u32 s{sCnt}, s{sCnt}, s{sRg}", f"s_lshl2_add_u32 s{sCnt}, s{sCnt}, s{sWv}",
               f"s_lshl_b32 s{sCnt}, s{sCnt}, 7", f"s_add_u32 s{sCnt}, s{sCnt}, {X1T}", f"v_add_u32 v{vX1g}, s{sCnt}, v{vX1g}"]
        if o["rot2"] == "0":
            lq += [f"s_mul_i32 s{sT0}, s{sWv}, 7"]
        else:
            if o["rot2"] == "ct":
                lq += [f"s_mov_b32 s{sRot2}, s{sCt}"]
            if o["rot2"] == "xcd":
                lq += [f"s_lshr_b32 s{sRot2}, s{sRt}, 2", f"s_min_u32 s{sRot2}, s{sRot2}, 6"]
            lq += [f"s_mul_i32 s{sT1}, s{sWv}, 7", f"s_add_u32 s{sT0}, s{sT1}, s{sRot2}", f"s_add_u32 s{sT2}, s{sT1}, 7"]
        for i in range(7):
            if i:
                lq += [f"s_add_u32 s{sT0}, s{sT0}, 1"]
                if o["rot2"] != "0":
                    lq += [[f"s_cmp_eq_u32 s{sT0}, s{sT2}", f"s_cselect_b32 s{sT0}, s{sT1}, s{sT0}"]]
            lq += [f"s_and_b32 s{sCnt}, s{sT0}, 30", f"s_add_u32 s{sCnt}, s{sCnt}, s{sT0}", f"s_mul_i32 s{sDo+i}, s{sCnt}, {2*16*896}",
                   f"s_lshl_b32 s{sHo+i}, s{sT0}, 12"]
        n_early = len(lq)
        assert HH % 2048 == 0
        lq += [f"s_lshr_b32 s{sT0}, s{sWv}, 1", f"s_lshl1_add_u32 s{sT0}, s{sRg}, s{sT0}", f"s_mul_i32 s{sHst}, s{sT0}, 229376",
               f"s_and_b32 s{sT1}, s{sWv}, 1", f"s_lshl1_add_u32 s{sT2}, s{sC}, s{sT1}", f"s_lshl2_add_u32 s{sT1}, s{sT2}, s{sT1}",
               f"s_lshl_b32 s{sT1}, s{sT1}, 10", f"s_add_u32 s{sHst}, s{sHst}, s{sT1}", f"s_add_u32 s{sHst}, s{sHst}, {HH}",
               f"s_xor_b32 s{sHst1}, s{sHst}, 0x400",
               f"s_lshl_b32 s{sT0}, s{sT0}, 5", f"s_add_u32 s{sT0}, s{sT0}, s{sT2}", f"s_lshl_b32 s{sT0}, s{sT0}, 7",
               f"s_add_u32 s{sFh}, s{sT0}, {FH}",
               f"s_mov_b32 s{sK}, 0xbfb8aa3b", f"s_mov_b32 s{sK+1}, 0xbfb8aa3b",
               f"s_mov_b32 s{sSc}, {fbits(2.0/(2048*448))}",
               [f"s_cmp_eq_u32 s{sKd}, 0", f"s_cselect_b32 s{sSc}, {fbits(1.0/(2048*448))}, s{sSc}"],
               f"s_lshl_b32 s{sCnt}, s{sKd}, 31", f"s_or_b32 s{sSc}, s{sSc}, s{sCnt}",
               f"s_lshl4_add_u32 s{sFx}, s{sC}, s{sRg}", f"s_lshl2_add_u32 s{sFx}, s{sFx}, s{sWv}", f"s_lshl_b32 s{sFx}, s{sFx}, 7",
               f"s_movk_i32 s{s8k}, 8192"]
        sc, vv = self.poll1_addr(vT + 14, vT + 15, sT1, sT2)
        lq += sc + vv + self.fft_setup_regs() + self.fft_consts(vAB + 32)
        lq2 = self.fft_scalars() + self.fft_addr2()
        vH, vPh, sFp = vXd, vXd + 2, sXo + 2
        lq2 += [f"s_lshr_b32 s{sCnt}, s{sWv}, 1", f"s_lshl_b32 s{sCnt}, s{sCnt}, 10",
                f"s_mul_i32 s{sFp}, s{sRt}, 229376", f"s_add_u32 s{sCnt}, s{sCnt}, s{sFp}", f"s_add_u32 s{sCnt}, s{sCnt}, {HH}",
                f"v_min_u32 v{vPh}, 6, v0", f"v_lshlrev_b32 v{vPh}, 7, v{vPh}", f"v_add_u32 v{vH}, s{sCnt}, v{vL16}",
                f"v_xor_b32 v{vH+1}, 0x400, v{vH}",
                f"s_mul_i32 s{sFp}, s{sWv}, 7", f"s_lshl_b32 s{sCnt}, s{sRt}, 5", f"s_add_u32 s{sFp}, s{sFp}, s{sCnt}",
                f"s_lshl_b32 s{sFp}, s{sFp}, 7", f"s_add_u32 s{sFp}, s{sFp}, {FH}"]
        e(lq[:o["cpro"]])
        n_early = max(0, n_early - o["cpro"])
        lq = lq[o["cpro"]:]
        e(self.stamp("pro"))

        def wread(f):
            i, kk, tl = f // 8, (f // 2) % 4, f % 2
            slot = i % NWS
            base, off = (vTr, slot * WSLOT) if slot < 4 else (vTr + 1, 0)
            off += kk * 4160 + tl * 32
            b = vWF + 4 * (f % NB)
            return [I(f"ds_read_b64_tr_b16 {vr(b+2*h,2)}, v{base} offset:{off+256*h}", tag=f"wf{f}") for h in range(2)]

        def xread(ks, i):
            return I(f"ds_read_b128 {vr(aX+8*ks+4*i,4,'a')}, v{vXr+4*i+ks%4} offset:{4096*((ks//4)%4)}", tag=f"xr{ks}")

        mf = []
        for ph_, acc in ((0, vAA), (1, vAB)):
            for ks in range(28):
                for n in range(4):
                    tl, i = n >> 1, n & 1
                    d = vr(acc + 16 * n, 16)
                    mf.append(f"v_mfma_f32_32x32x16_bf16 {d}, {vr(vWF+4*((2*ks+tl)%NB),4)}, {vr(aX+8*ks+4*i,4,'a')}, {d if ks else 0}")
                if ph_ == 0:
                    d = vr(vAX, 16)
                    mf.append(f"v_mfma_f32_32x32x16_bf16 {d}, {vr(aX+8*ks,4,'a')}, {vr(fbuf[ks&1],4)}, {d if ks else 0}")
        G = Gaps(mf)
        G.light = set(bar_gap.values())
        for f in range(L, 112):
            r = wread(f)
            g = U[f - L]
            G.m[g].append(r[0])
            G.m[g if g + 1 in G.light else g + 1].append(r[1])
        def fread(ks):
            return I(f"ds_read_b128 {vr(fbuf[ks&1],4)}, v{vFr} offset:{1024*(ks%14)}", tag=f"fr{ks}")
        for ks in range(2, 28):
            G.m[5 * (ks - 2) + 4] += [xread(ks, 0), xread(ks, 1)]
            G.m[5 * (ks - 1) + 2].append(fread(ks))
        for f in range(1, 112):
            tags = [f"wf{f}"]
            if f < 56:
                tags.append(f"fr{f//2}" if f % 2 else f"xr{f//2}")
            g = U[f] - 1
            if g in G.light:
                j = [k for k, v in bar_gap.items() if v == g][0]
                if j <= 7:
                    tags.append(f"xr{4*j-1}")
                G.s[g] += [W(vm=f"w{j}", ds=tags), "s_barrier"]
            else:
                G.s[g].append(W(ds=tags))

        class BG:
            pass
        bg = BG()
        bg.q2 = [d for gi in range(14) for d in ddma(gi)]
        bg.nd = 0
        bg.ntr = 0
        bg.t_issue = {}
        bg.t_read = {}
        bg.nxt = 0
        T_B = 140 * 32

        def dtr(n):
            wi, h = n // 2, n % 2
            gi, step, u = wi // 4, wi // 2, wi % 2
            off = 4096 * ((gi + 3) % 4) + 2048 * (step & 1) + 1024 * h
            return I(f"ds_read_b64_tr_b16 {vr(4*wi+2*h,2,'a')}, v{vDr+u} offset:{off}", tag=f"dr{gi}",
                     vm=(f"d{gi}" if n % 8 == 0 else None))

        def bg_step(t, ndma=1, ntr=1, force=False, paced=True):
            s, m = [], []
            for _ in range(ntr):
                n = bg.ntr
                gi = n // 8
                if n >= 112 or gi not in bg.t_issue:
                    break
                if not force and t < bg.t_issue[gi] + 32 * o["wd_delay"]:
                    break
                if t < T_B + 128 * (n // 4 + 1):
                    break
                m.append(dtr(n))
                bg.ntr += 1
                if n % 8 == 7:
                    bg.t_read[gi] = t
            for _ in range(ndma):
                if paced and t < bg.nxt:
                    break
                d = None
                if q1 and t >= 32 * q1[0]["ear"]:
                    d = q1.pop(0)
                elif bg.q2 and t >= 32 * o["wd_start"]:
                    gi = bg.nd // 4
                    ok = (t > 32 * bar_gap[gi + 4]) if gi < 4 else (gi - 4 in bg.t_read and t >= bg.t_read[gi - 4] + 96)
                    if ok:
                        d = bg.q2.pop(0)
                        bg.nd += 1
                        if bg.nd % 4 == 0:
                            bg.t_issue[gi] = t
                if d is None:
                    break
                a, b = dma_items(d)
                if any(kind(txt(x)) == "G" for x in m):
                    m += a
                else:
                    s += a
                m += b
                per = o["perA"] if t < T_B else o["perB"]
                bg.nxt = max(bg.nxt + per, t + per - 31)
            return s, m
        fl = self.fft_loads()
        q3 = [dict(t=fl[1].t, tag="x1", m0=(sT0, IMG), ds=None), dict(t=fl[2].t, tag="x1", m0=(sT0, IMG), ds=None),
              dict(t=fl[3].t, tag="wtre", m0=None, ds=None), dict(t=fl[5].t, tag="wtim", m0=None, ds=None, pre=[fl[4]])]
        assert o["chk1"] > bar_gap[12]
        for d in q3:
            d["ear"] = o["chk1"] + 1
        q1 += q3
        for g in range(G.n):
            if g in G.light:
                continue
            behind = g > o["trprio"] and bg.ntr < (g - 148)
            s, m = bg_step(32 * g, 1, 2 if behind else 1)
            G.s[g] += s
            G.m[g] += m
        assert not q1
        gol = f"buffer_load_dword v{vP}, v{vPg}, {srd(sDBG)}, 0 offen sc1"
        G.m[o["go_ld"]].append(I(gol, tag="go"))
        G.post[138].append(self.poll_check("go", "go", gol, vP))
        G.s[139] += self.stamp("A")
        g, left = G.pour([f"v_xor_b32 v{vAX+j}, v{vSg}, v{vAX+j}" for j in range(16)], 72, 74, budget=11)
        assert not left
        g, left = G.pour(lq[:n_early], 0, min(o["wd_start"], o["go_ld"], 70) - 1)
        assert not left
        g, left = G.pour(lq[n_early:], g, 138)
        assert not left, len(left)
        g, left = G.pour(lq2, max(g, 100), 138)
        self.log(f"late setup ends at gap {g}, left {len(left)}")
        assert not left
        dpp = "quad_perm:[2,3,0,1] row_mask:0xf bank_mask:0xf"
        xq = [["s_mov_b32 vcc_lo, 0x33333333", "s_mov_b32 vcc_hi, 0x33333333"]]
        xq += [f"v_cvt_pk_bf16_f32 v{vAX+j}, v{vAX+2*j}, v{vAX+2*j+1}" for j in range(8)]
        xq += [f"v_cndmask_b32_dpp v{vAX+8+j}, v{vAX+4+j}, v{vAX+j}, vcc {dpp}" for j in range(4)]
        xq += ["s_not_b64 vcc, vcc"]
        xq += [f"v_cndmask_b32_dpp v{vAX+12+j}, v{vAX+j}, v{vAX+4+j}, vcc {dpp}" for j in range(4)]
        xq += [I(f"buffer_store_dwordx4 {vr(vAX+8,4)}, v{vX1g}, {srd(sWS)}, 0 offen sc1", tag="x1s"),
               I(f"buffer_store_dwordx4 {vr(vAX+12,4)}, v{vX1g}, {srd(sWS)}, s{s8k} offen sc1", tag="x1s")]
        g, left = G.pour(xq, 142, window=1)

        def nl(g):
            while g in G.light:
                g += 1
            return g
        eq = []
        for n in range(4):
            eq += self.epi(vAA + 16 * n, vE) + [self.hstore(vAA, n, "hA")]
        gx = nl(o["x1flag"])
        G.m[gx].append(self.flag_store(sFx, "x1s"))
        gend, left = G.pour(eq, 141, budget=o["epi_budget"])
        assert not left, len(left)
        self.log(f"group A epilogue ends at gap {gend}; wd dmas {bg.nd} trs {bg.ntr}")
        g1 = nl(o["poll1"])
        pl = f"buffer_load_dword v{vPr}, v{vPa}, {srd(sWS)}, 0 offen sc1"
        G.m[g1].append(I(pl, tag="p1"))
        if o["stop"] != "gemm1":
            G.post[o["chk1"]].append(self.poll_check("p1", "p1", pl, vPr))
        pollH = f"buffer_load_dword v{vPr}, v{vPh}, {srd(sWS)}, s{sFp} offen sc1"
        gpa = o["pollA"]
        if gpa < 252:
            assert gpa > o["chk1"]
            G.m[nl(gpa)].append(I(pollH, tag="pA"))
        gh = o["hAflag"]
        if gh < 252:
            assert gh > gend
            G.m[nl(gh)].append(self.flag_store(sFh, "hA"))

        for x in filter(None, o["st1"].split(",")):
            G.s[int(x)] += self.stamp("@" + x)
        e(W(vm="w0", ds="fw"))
        e("s_barrier")
        e([xread(0, 0)] + wread(0) + [xread(0, 1)] + wread(1) + [fread(0), xread(1, 0), xread(1, 1)] + wread(2) + [fread(1)])
        e(self.stamp("data0"))
        e(W(ds=["wf0", "xr0"]))
        G.emit(p)
        e(self.stamp("B"))
        stop1 = o["stop"] == "gemm1"
        e([f"s_add_u32 s{sHst}, s{sHst}, 114688", f"s_add_u32 s{sHst1}, s{sHst1}, 114688"])
        hring = o["hring"]
        hreg = [vAB + 4 * n for n in range(hring)]
        hl = []
        for step in range(28):
            i7, k2 = (step % 14) // 2, step & 1
            for i in range(2):
                n = 2 * step + i
                hl.append(I(f"buffer_load_dwordx4 {vr(hreg[n%hring],4)}, v{vH+i}, {srd(sWS)}, s{sHo+i7} offen offset:{2048*k2} sc1", tag=f"h{n}"))
        rec = Rec()
        for n in range(4):
            rec.e(self.epi_pk(vAB + 16 * n, vE))
            rec.e(self.hstore(vAB, n, "hB"))
            rec.mark(f"e{n}")
        rec.mark("epi")
        self.p = rec
        self.fft_body(lambda name, dt: rec.mark(name))
        self.p = p
        ev = []
        st_ = dict(nh=0, lim=0, epi=False)
        if gh >= 252:
            ev.append((o["t_hAflag"], [self.flag_store(sFh, "hA")], None))
        if gpa >= 252:
            ev.append((o["t_pollA"], [I(pollH, tag="pA")], None))
        if not stop1:
            ev.append((o["t_chkA"], [self.poll_check("pA", "pA", pollH, vPr)], "lim"))
        ev.append((o["t_hBflag"], [f"s_add_u32 s{sFh}, s{sFh}, {1024*128}", self.flag_store(sFh, "hB")], None))
        ev.sort(key=lambda x: x[0])
        T_E = 252 * 32
        t, nxt, prevk = 0, max(0, bg.nxt - T_E), "M"
        for x in rec.items:
            if isinstance(x, Mark):
                self.log(f"  est t={t} {x.name}: wd dmas {bg.nd} trs {bg.ntr} hloads {st_['nh']}")
                if x.name in o["only"].split(",") or x.name == "epi":
                    e(self.stamp(x.name))
                if x.name == "epi":
                    st_["epi"] = True
                    if stop1:
                        e("s_branch L_fin")
                continue
            e(x)
            tx = txt(x)
            k = kind(tx)
            if k == "M":
                t += 16
            elif not tx:
                t += 50
            elif tx == "s_barrier":
                t += 40
            else:
                t += 4 * cost(tx) + (28 if prevk == "M" and k == "V" and tx.startswith("v_pk") else 0)
            if k == "G":
                nxt = max(nxt, t) + o["perS"]
            prevk = k
            if tx.startswith("s_cmp") or tx.startswith("ds_write") or (not tx) or tx == "s_barrier" or tx.startswith("ds_read"):
                continue
            while ev and ev[0][0] <= t:
                _, its, cb = ev.pop(0)
                e(its)
                t += 16
                if cb:
                    st_["lim"] = hring
                else:
                    nxt = max(nxt, t) + o["perE"] // 2
            s_, m_ = bg_step(T_E + t, 0, 2)
            e(m_)
            t += 4 * len(m_)
            if t >= nxt:
                hok = st_["nh"] < st_["lim"] and st_["epi"]
                s_, m_ = ([], []) if (hok and st_["nh"] < o["hfirst"]) else bg_step(T_E + t, 1, 0, paced=False)
                if not m_ and hok:
                    m_ = [hl[st_["nh"]]]
                    st_["nh"] += 1
                if m_:
                    e(s_)
                    e(m_)
                    t += 4 * (len(s_) + len(m_)) + 8
                    nxt = max(nxt + o["perE"], t)
        for _, its, cb in ev:
            e(its)
        while st_["nh"] < 2:
            e(hl[st_["nh"]])
            st_["nh"] += 1
        now = [T_E + t]
        e(self.stamp("fft"))
        self.log(f"after fft (est t={t}): wd dmas {bg.nd} trs {bg.ntr} hloads {st_['nh']}")
        if o["stop"] == "fft":
            e("s_branch L_fin")

        accb, acca = vAA, vAB + 48
        assert hring <= 16
        LZ, NZ = 5, 6
        zreg = [vWF, vWF + 4, vWF + 8, vWF + 12, vAX, vAX + 4]
        vZd, vZr, vGv, vOo, vRw, vRr = vXr, vXr + 1, vXr + 2, vXr + 3, vXr + 4, vXr + 5

        def fi_reg(ks):
            if ks < 8:
                return "v", vT1c + 4 * ks
            if ks < 16:
                return "a", 224 + 4 * (ks - 8)
            return "a", 4 * (ks - 16)
        mf = []
        for step in range(28):
            for i in range(2):
                for u in range(2):
                    d = vr(accb + 16 * (2 * i + u), 16)
                    mf.append(f"v_mfma_f32_32x32x16_bf16 {d}, {vr(4*(2*step+u),4,'a')}, {vr(hreg[(2*step+i)%hring],4)}, {d if step else 0}")
        for ks in range(28):
            c, b = fi_reg(ks)
            d = vr(acca, 16)
            mf.append(f"v_mfma_f32_32x32x16_bf16 {d}, {vr(b,4,c)}, {vr(zreg[ks%NZ],4)}, {d if ks else 0}")
        G = Gaps(mf)
        gb = 112 - LZ - 1
        G.light = {gb}
        T0 = now[0] + 100
        nh = st_["nh"]
        G.s[o["pollB_ld"]].append(f"s_add_u32 s{sFp}, s{sFp}, {1024*128}")
        G.m[o["pollB_ld"]].append(I(pollH, tag="pB"))
        gpb = o["pollB_chk"]
        G.post[gpb].append(self.poll_check("pB", "pB", pollH, vPr))
        busy = {o["pollB_ld"]}
        hgap = {}
        lastg = -2
        for n in range(nh, 56):
            g = max(2 * (n - hring) + 1, lastg + o["hramp"], 0)
            while g in busy:
                g += 1
            if n == 28:
                g = max(g, gpb + 1)
            if n >= 28 and n % 4 == 0 and not (n == 28 and o["touchB"]):
                i7 = (n - 28) // 4
                G.s[g - 1].append(f"s_add_u32 s{sHo+i7}, s{sHo+i7}, 114688")
            G.m[g].append(hl[n])
            hgap[n] = g
            lastg = g
            assert g < 2 * n - 1, (n, g)
        busy |= set(hgap.values())
        if o["touchB"]:
            g = gpb + 1
            while g in busy:
                g += 1
            assert g < hgap[28] and gpb > 8
            G.s[gpb] += [f"s_add_u32 s{sHo}, s{sHo}, 114688"]
            G.v[gpb - 1] += [f"v_and_b32 v{vWd}, 0xfffff800, v{vH}", f"v_lshl_add_u32 v{vWd}, v0, 6, v{vWd}"]
            G.m[g].append(f"buffer_load_dword v{vWd+1}, v{vWd}, {srd(sWS)}, s{sHo} offen sc1")
            busy.add(g)
        for n in range(1, 56):
            G.s[2 * n - 1].insert(0, W(vm=f"h{n}"))
        for g in range(112):
            if bg.ntr >= 112:
                break
            need = bg.ntr - 12 <= g
            s, m = bg_step(T0 + 32 * g, 1, 2, force=need)
            G.s[g] += s
            G.m[g] += m
            for x in m:
                if isinstance(x, I) and x.tag and x.tag.startswith("dr"):
                    assert g < 8 * int(x.tag[2:]) - 2, ("w_down late", g, x.tag)
                elif kind(txt(x)) == "G":
                    busy.add(g)
        assert bg.ntr == 112
        for gi in range(1, 14):
            G.s[8 * gi - 1].insert(0, W(ds=f"dr{gi}"))
        gz = o["zflag"]
        sFz = sWo + 2
        self.put_scalars(G, [f"s_lshl_b32 s{sFz}, s{sWv}, 8", f"s_add_u32 s{sFz}, s{sFz}, s{sKd}",
                             f"s_lshl_b32 s{sFz}, s{sFz}, 7", f"s_add_u32 s{sFz}, s{sFz}, {FZ}"], 0, gz)
        G.m[gz].append(self.flag_store(sFz, ["zre", "zim"]))
        busy.add(gz)
        sZo, sZm, sZp = sWo + 3, sWo + 4, sWo
        vPz = vTr
        pollZ = f"buffer_load_dword v{vPr}, v{vPz}, {srd(sWS)}, 0 offen sc1"
        gl, gc = o["pollZ_ld"], o["pollZ_chk"]
        assert gl > gpb
        G.m[gl].append(I(pollZ, tag="pZ"))
        busy.add(gl)
        G.post[gc].append(self.poll_check("pZ", "pZ", pollZ, vPr))
        g = gc + 1
        for i in range(14):
            while g in busy:
                g += 1
            G.s[g] += [f"s_mov_b32 m0, s{sZm}"]
            G.m[g] += [f"s_lshl_b32 s{sZo}, s{sZm}, 5",
                       I(f"buffer_load_dwordx4 v{vZd}, {srd(sWS)}, s{sZo} offen sc1 lds", tag="z")]
            if i < 13:
                G.post[g] += [f"s_addk_i32 s{sZm}, 1024"] + \
                    ([f"s_cmp_eq_u32 s{sZm}, s{sT1}", f"s_cselect_b32 s{sZm}, s{sRg}, s{sZm}"] if o["zrot"] else [])
            g += o["zsp"] if g > max(busy) else 1
        self.log(f"last z dma at gap {g}")
        assert g <= gb
        G.s[gb] += [W(vm="z"), "s_barrier"]
        for ks in range(28):
            b = zreg[ks % NZ]
            G.m[112 + ks - LZ] += [I(f"ds_read_b64_tr_b16 {vr(b+2*h,2)}, v{vZr} offset:{(2*ks+h)*1024}", tag=f"zf{ks}") for h in range(2)]
        for ks in range(-1, 27, 2):
            G.s[112 + ks].insert(0, W(ds=f"zf{min(ks+2,27)}"))
        st = vS32
        x0, x1, x2, x3, ph, stp = range(vS32 + 18, vS32 + 24)
        pkb = vS32 + 24
        sU_, sI_ = sWo + 5, sWo + 6
        pre = [f"s_and_b32 s{sU_}, s{sWv}, 1", f"s_lshr_b32 s{sI_}, s{sWv}, 1"]
        vq = []
        pre += [f"s_lshl1_add_u32 s{sT0}, s{sCt}, s{sU_}", f"s_lshl_b32 s{sT0}, s{sT0}, 5", f"s_mov_b32 s{sT2}, {STEP448}"]
        pre += [f"s_lshr_b32 s{sZp}, s{sRt}, 3", f"s_lshl_b32 s{sZp}, s{sZp}, 8", f"s_add_u32 s{sZp}, s{sZp}, {FZ//128}",
                f"s_mul_i32 s{sC}, s{sWv}, 56", f"s_add_u32 s{sC}, s{sC}, s{sZp}", f"s_addk_i32 s{sZp}, 224",
                f"s_add_u32 s{sFx}, s{sRt}, {FG//128}"]
        vq += [f"v_add_u32 v{vPz}, s{sC}, v0", f"v_subrev_u32 v{x0}, 56, v0", f"v_ashrrev_i32 v{x0}, 31, v{x0}",
               f"v_bfi_b32 v{vPz}, v{x0}, v{vPz}, s{sZp}", f"v_subrev_u32 v{x0}, 60, v0", f"v_ashrrev_i32 v{x0}, 31, v{x0}",
               f"v_bfi_b32 v{vPz}, v{x0}, v{vPz}, s{sFx}", f"v_lshlrev_b32 v{vPz}, 7, v{vPz}"]
        vq += [f"v_and_b32 v{x0}, 3, v0", f"v_bfe_u32 v{x1}, v0, 2, 1", f"v_lshl_add_u32 v{x0}, v{x1}, 4, v{x0}",
               f"v_bfe_u32 v{x1}, v0, 3, 2", f"v_lshl_add_u32 v{x0}, v{x1}, 2, v{x0}",
               f"v_add_u32 v{x0}, s{sT0}, v{x0}", f"v_mul_lo_u32 v{stp}, v{x0}, s{sT2}",
               f"v_lshrrev_b32 v{x1}, 5, v0", f"v_lshlrev_b32 v{x2}, 1, v{x1}", f"v_mul_lo_u32 v{ph}, v{x2}, v{stp}",
               f"v_lshlrev_b32 v{x2}, 3, v{stp}"]
        vq += self.trig(st + 16, x2, x3)
        for ks in range(2):
            for jj in range(4):
                vq += [f"v_alignbit_b32 v{x3}, s{s7f}, v{ph}, 9", f"v_cos_f32 v{st+8*ks+2*jj}, v{x3}",
                       f"v_sin_f32 v{st+8*ks+2*jj+1}, -v{x3}"]
                if jj & 1:
                    vq += [f"v_lshl_add_u32 v{ph}, v{stp}, 1, v{ph}"]
                vq += [f"v_add_u32 v{ph}, v{ph}, v{stp}"]
        vq += [f"v_mul_f32 v{st+17}, -2.0, v{st+16}", f"v_add_f32 v{st+16}, v{st+16}, v{st+16}"]
        vq += self.rec_pack(st, 0, fi_reg(0)[1]) + self.rec_pack(st, 1, fi_reg(1)[1])
        f0 = fi_reg(0)[1]
        vq += [f"v_lshlrev_b32 v{x2}, 31, v{x0}", f"v_or_b32 v{x2}, 0x3f803f80, v{x2}", f"v_add_u32 v{x3}, -1, v{x1}",
               f"v_bfi_b32 v{f0}, v{x3}, v{x2}, v{f0}",
               f"v_and_b32 v{x3}, 31, v0", f"v_lshrrev_b32 v{x0}, 3, v{x3}"]
        pre += [f"s_lshr_b32 s{sT3}, s{sRt}, 3", f"s_and_b32 s{sCnt}, s{sRt}, 1",
                f"s_lshl1_add_u32 s{sT3}, s{sT3}, s{sCnt}", f"s_lshl1_add_u32 s{sT3}, s{sT3}, s{sI_}",
                f"s_bfe_u32 s{sCnt}, s{sRt}, 0x20001", f"s_lshl4_add_u32 s{sT3}, s{sT3}, s{sCnt}",
                f"s_lshl_b32 s{sT3}, s{sT3}, 3"]
        vq += [f"v_and_b32 v{x2}, 7, v0", f"v_lshl_add_u32 v{x2}, v{x0}, 5, v{x2}", f"v_add_u32 v{x2}, s{sT3}, v{x2}",
               f"v_mul_u32_u24 v{vOo}, 896, v{x2}", f"v_lshl_add_u32 v{x2}, v{x1}, 4, s{sT0}", f"v_lshl_add_u32 v{vOo}, v{x2}, 1, v{vOo}"]
        sGo = sHst
        pre += [f"s_lshl1_add_u32 s{sGo}, s{sRt}, s{sI_}", f"s_lshl_b32 s{sGo}, s{sGo}, 7", f"s_add_u32 s{sGo}, s{sGo}, {GOFF}"]
        vq += [f"v_lshlrev_b32 v{vGv}, 2, v{x3}"]
        G.m[gb + 2].append(I(f"buffer_load_dword v{vGv}, v{vGv}, {srd(sWS)}, s{sGo} offen sc1", tag="g"))
        pre += [f"s_lshl_b32 s{sRot2}, s{sRt}, 7", f"s_add_u32 s{sRot2}, s{sRot2}, {ZT-32*ZS}",
                f"s_lshl_b32 s{sHst1}, s{sI_}, 9", f"s_add_u32 s{sHst1}, s{sHst1}, {ZS}",
                f"s_mul_i32 s{sRg}, s{sWv}, {14*1024}", f"s_add_u32 s{sRg}, s{sRg}, {ZS}",
                f"s_lshl_b32 s{sZm}, s{sCt}, 11" if o["zrot"] else f"s_mov_b32 s{sZm}, 0", f"s_add_u32 s{sZm}, s{sZm}, s{sRg}"]
        G.s[gz + 2] += [f"s_add_u32 s{sT1}, s{sRg}, {14*1024}"]
        vq += [f"v_bfe_u32 v{x2}, v0, 2, 3", f"v_and_b32 v{x0}, 3, v0", f"v_lshl_add_u32 v{vZd}, v{x1}, 2, v{x0}",
               f"v_lshlrev_b32 v{vZd}, 4, v{vZd}", f"v_lshl_add_u32 v{vZd}, v{x2}, 12, v{vZd}", f"v_add_u32 v{vZd}, s{sRot2}, v{vZd}",
               f"v_and_b32 v{x2}, 3, v{x2}", f"v_lshl_add_u32 v{x2}, v{x1}, 2, v{x2}", f"v_lshlrev_b32 v{vZr}, 6, v{x2}",
               f"v_bfe_u32 v{x2}, v0, 4, 1", f"v_lshl_add_u32 v{vZr}, v{x2}, 5, v{vZr}", f"v_lshl_add_u32 v{vZr}, v{x0}, 3, v{vZr}",
               f"v_add_u32 v{vZr}, s{sHst1}, v{vZr}"]
        vq += [f"v_lshl_add_u32 v{x2}, s{sWv}, 12, v{vL16}", f"v_add_u32 v{vRw}, {RED}, v{x2}"]
        for k in range(1, 4):
            vq += [f"v_xor_b32 v{vRr+k-1}, {4096*k}, v{x2}", f"v_add_u32 v{vRr+k-1}, {RED+16384*(k-1)}, v{vRr+k-1}"]
        g, left = G.pour(vq, 0)
        assert g < gc
        for ks in range(2, 28):
            c, b = fi_reg(ks)
            if c == "v":
                qq = self.rec_step(st, ks, b)
            else:
                qq = self.rec_step(st, ks, pkb) + [f"v_accvgpr_write_b32 a{b+j}, v{pkb+j}" for j in range(4)]
            g, left = G.pour(qq, max(g, 25 if ks >= 16 else 0), 112 + ks - 1)
            assert not left, ks
        self.log(f"finv done at gap {g}")
        g = 113
        for k in range(1, 4):
            for j in range(4):
                G.m[g].append(I(f"ds_write_b128 v{vRw}, {vr(accb+16*k+4*j,4)} offset:{16384*(k-1)+1024*j}", tag="rw"))
                g += 1 + (j & 1)
        g = 134
        G.s[g] += [W(ds="rw"), "s_barrier"]
        rd = []
        for k in range(3):
            for j in range(4):
                rd.append(I(f"ds_read_b128 {vr(vAB+16*k+4*j,4)}, v{vRr+k} offset:{1024*j}", tag=f"rr{k}"))
        g += 1
        while rd:
            G.m[g] += rd[:3]
            rd = rd[3:]
            g += 1
        for x in filter(None, o["st2"].split(",")):
            G.s[int(x)] += self.stamp("@" + x)
        G.s[111] += self.stamp("g2h")

        e(pre)
        assert st_["nh"] >= 1
        e(W(vm="h0", ds="dr0"))
        G.emit(p)
        e(self.stamp("g2"))
        og = vS32
        e(W(vm="g"))
        e([f"v_mov_b32 v{og}, v{vGv}", f"v_sub_f32 v{og+2}, 1.0, v{vGv}"])
        e(W(ds="rr0"))
        for k in range(8):
            e(f"v_pk_add_f32 {vr(accb+2*k,2)}, {vr(accb+2*k,2)}, {vr(vAB+2*k,2)}")
        e(W(ds="rr2"))
        for k in range(8):
            e(f"v_pk_add_f32 {vr(vAB+16+2*k,2)}, {vr(vAB+16+2*k,2)}, {vr(vAB+32+2*k,2)}")
        for half in range(2):
            ks_ = range(4 * half, 4 * half + 4)
            for k in ks_:
                e(f"v_pk_mul_f32 {vr(acca+2*k,2)}, {vr(acca+2*k,2)}, {vr(og,2)} op_sel_hi:[1,0]")
            for k in ks_:
                e(f"v_pk_add_f32 {vr(accb+2*k,2)}, {vr(accb+2*k,2)}, {vr(vAB+16+2*k,2)}")
            for k in ks_:
                e(f"v_pk_fma_f32 {vr(acca+2*k,2)}, {vr(accb+2*k,2)}, {vr(og+2,2)}, {vr(acca+2*k,2)} op_sel_hi:[1,0,1]")
            for k in ks_:
                e(f"v_cvt_pk_bf16_f32 v{og+4+k}, v{acca+2*k}, v{acca+2*k+1}")
            e(f"buffer_store_dwordx4 {vr(og+4+4*half,4)}, v{vOo}, {srd(sO)}, 0 offen offset:{16*half} {o['outfl'].replace('+',' ')}".strip())
        p.raw("L_fin:")
        self.dump_stamps()
        p.raw("L_end:")
        p.raw("s_endpgm")

        p.restore(snap_aux)
        self.aux(sj, sidx)
        for l in self.slow:
            p.raw(l)
        p.raw("L_codeend:")
        return self.finish()

    def dump_stamps(self):
        if not self.o["stamps"]:
            return
        p = self.p
        p.raw("s_waitcnt vmcnt(0)")
        p.e(self.stamp("end"))
        p.raw("s_waitcnt lgkmcnt(0)")
        p.e([f"s_lshl_b32 s{sT0}, s2, 2", f"s_add_u32 s{sT0}, s{sT0}, s{sWv}", f"s_lshl_b32 s{sT0}, s{sT0}, 6",
             f"s_add_u32 s{sT0}, s{sT0}, {STAMP}", "s_mov_b64 exec, 1"])
        p.e([f"s_memrealtime s[{sT2}:{sT3}]"])
        for k in range(self.nst):
            p.e([f"v_mov_b32 v2, s{sX if k == self.nst-1 else sST+2*k}", f"buffer_store_dword v2, off, {srd(sWS)}, s{sT0} offset:{4*k}"])
        p.raw("s_waitcnt lgkmcnt(0)")
        p.e([f"v_mov_b32 v2, s{sT2}", f"buffer_store_dword v2, off, {srd(sWS)}, s{sT0} offset:60"])

    def aux_tok(self, tok):
        p = self.p
        e = p.e
        sA, vt16 = sRt, 2
        vx, vw, vd = 12, 13, 14

        def masked(lo, hi, ops):
            m = ((1 << hi) - 1) ^ ((1 << lo) - 1)
            e([f"s_mov_b32 exec_lo, {m & 0xffffffff:#x}", f"s_mov_b32 exec_hi, {m >> 32:#x}"] + ops + ["s_mov_b64 exec, -1"])
        if tok[0] == "x":
            a, b = int(tok[1]), int(tok[2])
            masked(0, 16 * (b - a + 1), [f"buffer_load_dword v15, v{vx}, {srd(sX)}, 0 offen offset:{128*a}"])
        elif tok[0] in "wv":
            a, b = int(tok[1]), int(tok[2])
            off = 128 if tok[0] == "v" else 0
            masked(8 * a, 8 * (b + 1), [f"buffer_load_dword v15, v{vw}, {srd(q)}, 0 offen offset:{off}" for q in (sG, sU)])
        elif tok[0] == "d":
            e(f"s_mov_b32 s{sT1}, {57344*int(tok[1])}")
            masked(0, 49, [f"buffer_load_dword v15, v{vd}, {srd(sD)}, s{sT1} offen"])
        elif tok == "clr":
            e([f"v_mov_b32 v{4+k}, 0" for k in range(4)] + [f"s_lshl_b32 s{sT1}, s{sA}, 14"])
            for k in range(4):
                e([I(f"buffer_store_dwordx4 v[4:7], v{vt16}, {srd(sWS)}, s{sT1} offen sc1", tag="clr"), f"s_addk_i32 s{sT1}, 4096"])
        elif tok == "go":
            e([f"s_lshl_b32 s{sT1}, s{sA}, 3", f"v_mov_b32 v8, 1", f"v_mov_b32 v9, s{sT0}", W(vm="clr"), "s_barrier",
               "s_mov_b64 exec, 1", f"buffer_store_dword v8, v9, {srd(sDBG)}, s{sT1} offen sc1", "s_mov_b64 exec, -1"])
        elif tok == "WT":
            sq, skg = sRg, sC
            e([f"s_lshr_b32 s{sq}, s{sA}, 3", f"s_and_b32 s{skg}, s{sA}, 7",
               f"s_lshl_b32 s{sT1}, s{sq}, 6", f"s_add_u32 s{sT1}, s{sT1}, s{skg}", f"s_mul_i32 s{sT1}, s{sT1}, 3600"])
            e([f"v_lshrrev_b32 v16, 5, v0", f"v_lshl_add_u32 v17, s{sWv}, 1, v16", f"v_mul_u32_u24 v17, 28, v17",
               f"v_and_b32 v18, 31, v0", f"v_add3_u32 v17, v17, v18, v16", f"v_add_u32 v17, -1, v17", f"v_max_i32 v17, 0, v17",
               f"v_lshlrev_b32 v17, 4, v17", f"s_mul_i32 s{sT2}, s{sWv}, 1120"])
            for j in range(8):
                for part in range(2):
                    e([f"s_add_u32 m0, s{sT2}, {(8*part+j)*RS}", "s_nop 0",
                       I(f"buffer_load_dwordx4 v17, {srd(sWr if part == 0 else sWi)}, s{sT1} offen lds", tag="wl")])
                e(f"s_add_u32 s{sT1}, s{sT1}, {64*450}")
        else:
            raise SystemExit(tok)

    def aux_head(self, sj, sidx):
        p, o = self.p, self.o
        e = p.e
        sA, vt16 = sRt, 2
        vx, vw, vd = 12, 13, 14
        e(["s_cmp_ge_u32 s2, 256", "s_cbranch_scc1 L_end"])
        e([f"s_lshl2_add_u32 s{sA}, s{sj}, s{sidx}", f"s_sub_u32 s{sA}, s{sA}, 28",
           f"s_lshl2_add_u32 s{sCnt}, s{sA}, s{sWv}",
           f"v_and_b32 v4, 15, v0", f"v_lshl_add_u32 v4, s{sCnt}, 4, v4", f"v_mul_u32_u24 v4, 896, v4",
           f"v_lshrrev_b32 v5, 4, v0", f"v_lshl_add_u32 v{vx}, v5, 7, v4",
           f"s_lshr_b32 s{sT2}, s{sj}, 1", f"s_and_b32 s{sT3}, s{sCnt}, 15", f"s_lshl4_add_u32 s{sT2}, s{sT2}, s{sT3}",
           f"s_mul_i32 s{sT2}, s{sT2}, 3584", f"s_and_b32 s{sT3}, s{sj}, 1", f"s_mul_i32 s{sT3}, s{sT3}, {7*256}",
           f"s_add_u32 s{sT2}, s{sT2}, s{sT3}",
           f"v_lshrrev_b32 v4, 3, v0", f"v_mul_u32_u24 v4, {64*3584}, v4", f"v_and_b32 v5, 7, v0", f"v_min_u32 v5, 6, v5",
           f"v_lshl_add_u32 v4, v5, 8, v4", f"v_add_u32 v{vw}, s{sT2}, v4"])
        p.raw("s_waitcnt lgkmcnt(0)")
        for s, off in ((sWr, 8), (sWi, 16), (sGw, 56)):
            e(f"s_load_dwordx2 s[{s}:{s+1}], s[0:1], {off}")
        self.toks = o["apf"].split(",")
        while self.toks[0][0] in "xwv":
            self.aux_tok(self.toks.pop(0))

    def aux(self, sj, sidx):
        p, o = self.p, self.o
        e = p.e
        p.raw("L_aux:")
        sA, vt16 = sRt, 2
        sq, skg = sRg, sC
        e([f"v_lshlrev_b32 v{vL16}, 4, v0", f"s_lshl_b32 s{sT0}, s{sWv}, 10", f"v_add_u32 v{vt16}, s{sT0}, v{vL16}",
           f"s_mul_i32 s{sCnt}, s{sCnt}, 49", f"v_add_u32 v4, s{sCnt}, v0", f"v_mul_u32_u24 v5, 9363, v4", f"v_lshrrev_b32 v5, 22, v5",
           f"v_mul_u32_u24 v5, 57344, v5", f"v_lshl_add_u32 v14, v4, 7, v5"])
        for s, n in ((sWr, 2048 * 450), (sWi, 2048 * 450), (sD, 1792 * 896), (sGw, 896), (sDBG, 256), (sWS, WSEND)):
            e([f"s_mov_b32 s{s+2}, {n}", f"s_mov_b32 s{s+3}, 0x20000"])
        e([f"s_mov_b32 s{sK}, 0xbfb8aa3b", f"s_movk_i32 s{s7f}, 0x7f"])
        p.raw("s_waitcnt lgkmcnt(0)")
        e(self.astamp("head"))
        for t in self.toks:
            self.aux_tok(t)
            if t in ("clr", "go", "WT"):
                e(self.astamp(t))
        vo, vg = 3, 8
        xb, gb = 32, 96
        e([f"s_lshr_b32 s{sT1}, s{sA}, 3", f"s_lshl_b32 s{sT1}, s{sT1}, 1", f"s_and_b32 s{sT2}, s{sA}, 1",
           f"s_add_u32 s{sT1}, s{sT1}, s{sT2}", f"s_lshl_b32 s{sT1}, s{sT1}, 2", f"s_add_u32 s{sT1}, s{sT1}, s{sWv}",
           f"s_lshl_b32 s{sT1}, s{sT1}, 3", f"s_bfe_u32 s{sT2}, s{sA}, 0x20001", f"s_add_u32 s{sT1}, s{sT1}, s{sT2}",
           f"s_lshl_b32 s{sT1}, s{sT1}, 3",
           f"v_lshrrev_b32 v4, 5, v0", f"v_bfe_u32 v5, v0, 2, 3", f"v_lshl_add_u32 v4, v4, 5, v5", f"v_add_u32 v4, s{sT1}, v4",
           f"v_and_b32 v{vg}, 48, v{vL16}", f"v_mul_u32_u24 v4, 896, v4", f"v_add_u32 v{vo}, v4, v{vg}"])
        e([f"v_and_b32 v{vPg}, 31, v0", f"v_lshlrev_b32 v{vPg}, 3, v{vPg}"])
        gol = f"buffer_load_dword v{vP}, v{vPg}, {srd(sDBG)}, 0 offen sc1"
        vra, vwa = 9, 10
        e([f"v_and_b32 v4, 7, v0", f"v_lshrrev_b32 v5, 7, v{vt16}", f"v_lshrrev_b32 v6, 1, v4", f"v_mul_u32_u24 v{vra}, 1120, v6",
           f"v_and_b32 v6, 1, v0", f"v_mul_u32_u24 v6, 496, v6", f"v_add3_u32 v{vra}, v{vra}, v6, 16",
           f"v_add_u32 v6, v4, v5", f"v_lshl_add_u32 v{vra}, v6, 1, v{vra}", f"v_add_u32 v17, {8*RS}, v{vra}",
           f"v_lshlrev_b32 v{vwa}, 13, v5", f"v_lshl_add_u32 v{vwa}, v4, 4, v{vwa}",
           f"s_lshr_b32 s{sT1}, s{skg}, 1", f"s_lshl_b32 s{sT1}, s{sT1}, 2", f"s_add_u32 s{sT1}, s{sT1}, s{sq}",
           f"s_lshl_b32 s{sT1}, s{sT1}, 1", f"s_and_b32 s{sT2}, s{skg}, 1", f"s_add_u32 s{sT1}, s{sT1}, s{sT2}",
           f"s_lshl_b32 s{sT1}, s{sT1}, 7", f"s_add_u32 s{sT1}, s{sT1}, {WT}", f"s_add_u32 s{sT2}, s{sT1}, 4096"])
        e(W(vm="wl"))
        e("s_barrier")
        e(self.astamp("wl"))
        def rd(n):
            return [I(f"ds_read_u16 v{160+8*(n&1)+j}, v{17 if n & 1 else vra} offset:{j*RS+64*(n>>1)}", tag=f"g{n}") for j in range(8)]
        e(rd(0))
        for n in range(16):
            part = n & 1
            nx = rd(n + 1) if n < 15 else []
            e(nx[:6])
            if n == 14:
                e([f"v_cmp_gt_u32 vcc, 8192, v{vwa}", "s_nop 1", f"v_cndmask_b32 v{vwa}, 2.0, v{vwa}, vcc"])
            e(W(ds=f"g{n}"))
            e(nx[6:])
            for j in range(4):
                e(f"v_lshl_or_b32 v{176+4*part+j}, v{160+8*part+2*j+1}, 16, v{160+8*part+2*j}")
            e([f"buffer_store_dwordx4 {vr(176+4*part,4)}, v{vwa}, {srd(sWS)}, s{sT1+part} offen sc1",
               f"s_add_u32 s{sT1+part}, s{sT1+part}, {32*8192}"])
        p.reset()
        e(self.astamp("gath"))
        e(I(gol, tag="go"))
        for k in range(14):
            e(I(f"buffer_load_dwordx4 {vr(xb+4*k,4)}, v{vo}, {srd(sX)}, 0 offen offset:{64*k}", tag="gx"))
            e(I(f"buffer_load_dwordx4 {vr(gb+4*k,4)}, v{vg}, {srd(sGw)}, 0 offen offset:{64*k}", tag="gx"))
            if k == 3:
                e(self.poll_check("goa", "go", gol, vP))
                e(["s_barrier", f"s_lshl_b32 s{sT3}, s{sA}, 7", f"s_add_u32 s{sT3}, s{sT3}, {FAUX}",
                   f"s_cmp_lg_u32 s{sWv}, 0", f"s_cselect_b32 s{sT2}, {OOB}, 0", f"v_mov_b32 v16, s{sT2}",
                   "s_mov_b64 exec, 1", f"buffer_store_dword v{vP}, v16, {srd(sWS)}, s{sT3} offen sc1", "s_mov_b64 exec, -1"])
                e(self.astamp("faux"))
        e(W(vm="gx"))
        for k in range(4):
            e(f"v_mov_b32 v{4+k}, 0")
        for k in range(56):
            e(f"v_dot2_f32_bf16 v{4+k%4}, v{xb+k}, v{gb+k}, v{4+k%4}")
        e([f"v_add_f32 v4, v4, v5", f"v_add_f32 v6, v6, v7", f"v_add_f32 v4, v4, v6",
           f"v_add_f32_dpp v4, v4, v4 quad_perm:[1,0,3,2] row_mask:0xf bank_mask:0xf",
           f"v_add_f32_dpp v4, v4, v4 quad_perm:[2,3,0,1] row_mask:0xf bank_mask:0xf",
           f"v_mul_f32 v4, s{sK}, v4", f"v_exp_f32 v4, v4", f"v_add_f32 v4, 1.0, v4", f"v_rcp_f32 v4, v4",
           f"v_and_b32 v5, 60, v0",
           f"s_lshl_b32 s{sT1}, s{sA}, 2", f"s_add_u32 s{sT1}, s{sT1}, s{sWv}", f"s_lshl_b32 s{sT1}, s{sT1}, 6",
           f"s_add_u32 s{sT1}, s{sT1}, {GOFF}",
           f"buffer_store_dword v4, v5, {srd(sWS)}, s{sT1} offen sc1"])
        p.raw("s_waitcnt vmcnt(0)")
        p.reset()
        e(["s_barrier", f"s_addk_i32 s{sT3}, {FG-FAUX}",
           "s_mov_b64 exec, 1", f"buffer_store_dword v{vP}, v16, {srd(sWS)}, s{sT3} offen sc1", "s_mov_b64 exec, -1"])
        if o["stamps"]:
            e(self.astamp("fg"))
            p.raw("s_waitcnt lgkmcnt(0)")
            e([f"s_lshl_b32 s{sT1}, s2, 2", f"s_add_u32 s{sT1}, s{sT1}, s{sWv}", f"s_lshl_b32 s{sT1}, s{sT1}, 6",
               f"s_add_u32 s{sT1}, s{sT1}, {STAMP}", "s_mov_b64 exec, 1"])
            for k in range(len(self.anames)):
                e([f"v_mov_b32 v2, s{sST+2*k}", f"buffer_store_dword v2, off, {srd(sWS)}, s{sT1} offset:{4*k}"])
            e("s_mov_b64 exec, -1")
        e([f"s_cmp_lg_u32 s{sA}, 4", "s_cbranch_scc1 L_end"])
        if o["stop"] == "gemm1":
            e("s_branch L_end")
        e([f"s_movk_i32 s{sKd}, 224", f"s_mov_b32 s{sSc}, {fbits(1.0/(2048*448))}"])
        e(self.fft_consts(vAB + 32))
        sc, vv = self.poll1_addr(vT + 14, vT + 15, sT1, sT2)
        e(sc)
        e(vv)
        pl = f"buffer_load_dword v{vPr}, v{vPa}, {srd(sWS)}, 0 offen sc1"
        e(I(pl, tag="p1"))
        e(self.fft_scalars())
        e(self.fft_setup_regs())
        e(self.fft_addr2())
        e(self.poll_check("p1a", "p1", pl, vPr))
        e(self.fft_loads())
        self.fft_body(lambda n, dt: None)
        e([f"s_lshl_b32 s{sT0}, s{sWv}, 15", f"s_add_u32 s{sT0}, s{sT0}, {FZ+224*128}"])
        e(self.flag_store(sT0, ["zre", "zim"]))
        p.raw("s_endpgm")

    def finish(self):
        out = self.p.out
        d = self.o["diag"].split(",")
        if "plainst" in d:
            out = [l.replace(" sc1", "") if l.startswith("buffer_store_dwordx4") else l for l in out]
        if "plainld" in d:
            out = [l.replace(" sc1", "") if l.startswith("buffer_load_dwordx4") else l for l in out]
        if "nopoll" in d:
            out = ["s_nop 0" if l.startswith("s_cbranch_vccnz L_slow") else l for l in out]
        if "nost" in d:
            out = [re.sub(r"buffer_store_dwordx4 (\S+), v\d+,", r"buffer_store_dwordx4 \1, v31,", l) if l.startswith("buffer_store_dwordx4") and "sc1" in l else l for l in out]
            out = ["v_mov_b32 v31, 2.0"] + out
        if "nox1" in d:
            out = [l.replace(f", v{vX1g},", ", v31,") if l.startswith("buffer_store_dwordx4") else l for l in out]
            out = ["v_mov_b32 v31, 2.0"] + out
        if "noh" in d:
            out = [l.replace(f", v{vL16},", ", v31,") if l.startswith("buffer_store_dwordx4") and (f"s{sHst} offen" in l or f"s{sHst1} offen" in l) else l for l in out]
            out = ["v_mov_b32 v31, 2.0"] + out
        if "nowd" in d:
            out = [re.sub(r"dwordx4 v\d+,", "dwordx4 v31,", l) if l.startswith("buffer_load_dwordx4") and f"s[{sD}:" in l else l for l in out]
            out = ["v_mov_b32 v31, 2.0"] + out
        if "noflag" in d:
            out = [l.replace(", off,", ", v31,").replace(" sc1", " offen sc1") if l.startswith("buffer_store_dword v") and "off," in l and "sc1" in l else l for l in out]
            out = ["v_mov_b32 v31, 2.0"] + out
        if "noz" in d:
            out = [l.replace(f"v{vXr},", "v31,") if l.startswith(f"buffer_load_dwordx4 v{vXr}, s[20:23]") else l for l in out]
            out = ["v_mov_b32 v31, 2.0"] + out
        if "nobar" in d:
            out = ["s_nop 0" if l.startswith("s_barrier") else l for l in out]
        if "novm" in d:
            out = [(re.sub(r" vmcnt\(\d+\)", " vmcnt(63)", l) if l.startswith("s_waitcnt") and "vmcnt(0)" not in l else l) for l in out]
        lines, nfix = check_hazards(out)
        self.log(f"{len(lines)} lines, {nfix} hazard nops inserted, {getattr(self.p,'n_sat',0)} lgkm saturation waits")
        ref = open("gated_mix__spectral_gfnet__swiglu_ffn__prompt.s.ref").read().split("\n")
        head = [l for l in ref if l.startswith(";") and "@launch" not in l and "Override" not in l and "grid=ceil" not in l]
        s = "\n".join(head) + "\n"
        s += f"; @launch grid=(256,1,1) block=(256,1,1) lds={LDS_BYTES}\n"
        s += '.amdgcn_target "amdgcn-amd-amdhsa--gfx950"\n.text\n'
        s += f".globl {NAME}\n.p2align 8\n.type {NAME},@function\n{NAME}:\n"
        s += "\n".join(lines) + "\n"
        s += f"""s_endpgm
.section .rodata,"a"
.p2align 6
.amdhsa_kernel {NAME}
  .amdhsa_next_free_vgpr 512
  .amdhsa_next_free_sgpr 102
  .amdhsa_accum_offset 256
  .amdhsa_group_segment_fixed_size 0
  .amdhsa_kernarg_size 88
  .amdhsa_user_sgpr_count 2
  .amdhsa_user_sgpr_kernarg_segment_ptr 1
  .amdhsa_system_sgpr_workgroup_id_x 1
  .amdhsa_float_denorm_mode_32 3
.end_amdhsa_kernel
"""
        return s


def parse_opts(args):
    kw = {}
    for a in args:
        k, v = a.split("=")
        assert k in DEF, k
        if isinstance(DEF[k], bool):
            v = v not in ("0", "False")
        elif isinstance(DEF[k], int):
            v = int(v)
        kw[k] = v
    return kw


if __name__ == "__main__":
    out = sys.argv[1]
    g = Gen(**parse_opts(sys.argv[2:]))
    s = g.build()
    open(out, "w").write(s)
    print("; stamps:", g.stamp_names, file=sys.stderr)
```

```python
import sys, struct, re
from asmlib import *

NAME = "gated_mix__spectral_gfnet__swiglu_ffn__prompt_kernel"

FX1 = 0
FAUX = FX1 + 896 * 128
FG = FAUX + 32 * 128
FH = 1024 * 128
FZ = 1280 * 128
FEND = 2048 * 128
GOFF = FEND
STAMP = FEND + 65536
X1T = 1 << 20
ZT = X1T + 448 * 4096
WT = ZT + 448 * 4096
HH = WT + 225 * 8192
PP = HH + 64 * 114688
WSEND = PP + 1024 * 2048
OOB = 0x40000000

WSLOT = 16640
NWS = 5
XS = NWS * WSLOT
FS = XS + 65536
IMG = FS
EXC = 8192
ZS = XS - 57344
RED = XS
LDS_BYTES = 163840

sFx, s8k, sHst1 = 0, 1, 3
sX, sG, sU, sD, sWS, sO, sDBG = 4, 8, 12, 16, 20, 24, 28
sWv, sRg, sC, sRt, sCt, sKd = 32, 33, 34, 35, 36, 37
sWm, sXm = 38, 39
sT0, sT1, sT2, sT3 = 40, 41, 42, 43
sK = 44
s7f = 46
sCnt = 47
sXo, sWo, sDo = 48, 55, 62
sPe, sHc, sPs, sPl, sFs, sSp = 72, 73, 74, 75, 76, 77
sHst, sRot2 = 69, 70
sSc = 71
sFh = 79
sWr, sWi, sGw = 48, 52, 56
RS = 4480
sZs, sSw = 48, 49
sST = 80

vL16 = 1
vXd, vXr, vWd, vTr, vDd, vDr = 2, 6, 14, 16, 18, 22
vFr, vSg, vX1g, vPa, vP, vPr, vPg, vPw = 24, 25, 26, 27, 28, 29, 30, 31
vWF = 32
vT1c, vT1s, vT2c, vT2s = 48, 56, 64, 72
vAX, vAA, vAB, vS32, vT = 80, 96, 160, 224, 232
aX, aC64, aS64, aN64, aC32 = 0, 224, 232, 240, 248
STEP448 = 9586981
fA = vAA
fDr, fDi, fTm = vAA + 32, vAA + 40, vAA + 48
fBr, fBi, fBn = vAX, vAX + 4, vAX + 8
fWraw = vT
fWr, fWi = vWF, vWF + 8
fa0, fim, fx = vT + 8, vT + 12, vT + 13
vE = vT + 16


def srd(s):
    return f"s[{s}:{s+3}]"


def vr(b, n, c="v"):
    return f"{c}[{b}:{b+n-1}]"


def fbits(x):
    return "0x%08x" % struct.unpack("<I", struct.pack("<f", x))[0]


def txt(x):
    return x.t if isinstance(x, I) else (x if isinstance(x, str) else "s_nop 0")


DEF = dict(rot1="half", LA=3, npre=12, npro=16, wd_at='96,114,152,170,198,214,228', wd_delay=36, xsp=8, nlds=14, stop=None, stamps=False,
           go_ld=100, go_chk=130, n1=8, x1flag=146, pollW=200, chkW=222, hAflag=250, poll1=168, perA=64, perB=64, hring=16, cpro=40,
           chk1=190, pollA=252, t_hAflag=200, t_pollA=500, t_chkA=1100, t_hBflag=1950, t_pollB=2500, pld=116, pchk=140, pclr=104, g2tr=1, fw_at=94, spA=1, spB=1, fi_budget=6, align=1, touch=0, fft_head='B', hfirst=4, perE=64, perS=64, trprio=144, hramp=1, hbatch=0, zsp=1,
           pollB_ld=6, pollB_chk=24,
           pollZ_ld=58, pollZ_chk=76, zflag=26, zst='7,7', spin=200000, sleep=4, pf=1, epi_budget=6, outfl="",
           apf='clr,v06,go,d0,WT,d1', rt=False, st1='', st2='', only='', diag='')


class Gen:
    def __init__(self, **kw):
        self.o = dict(DEF)
        self.o.update(kw)
        self.p = Prog()
        self.slow = []
        self.nst = 0
        self.stamp_names = []
        self.anames = ['start', 'rt0']

    def log(self, s):
        print("; " + s, file=sys.stderr)

    def stamp(self, name):
        if not self.o["stamps"]:
            return []
        if self.o["only"] and name not in ("start", "rt0", "end") and name not in self.o["only"].split(",") and name[0] != "@":
            return []
        i = self.nst
        self.nst += 1
        r = sX if name == "end" else sST + 2 * i
        assert r + 1 <= 101
        self.stamp_names.append(name)
        return [f"{'s_memrealtime' if self.o['rt'] else 's_memtime'} s[{r}:{r+1}]"]

    def astamp(self, name):
        if not self.o["stamps"]:
            return []
        self.anames.append(name)
        r = sST + 2 * (len(self.anames) - 1)
        assert r <= 100
        return [f"{'s_memrealtime' if self.o['rt'] else 's_memtime'} s[{r}:{r+1}]"]

    def poll_check(self, name, tags, load, reg):
        def f(p):
            p.wait(vm=tags)
            p.e(f"v_cmp_ne_u32 vcc, 1, v{reg}")
            p.e(f"s_cbranch_vccnz L_slow_{name}")
            p.raw(f"L_back_{name}:")
        s = [f"L_slow_{name}:", f"s_mov_b32 s{sSp}, 0", f"L_spin_{name}:", load, "s_waitcnt vmcnt(0)",
             f"v_cmp_ne_u32 vcc, 1, v{reg}", f"s_cbranch_vccz L_back_{name}", f"s_sleep {32 if name == 'p1a' else self.o['sleep']}",
             f"s_add_u32 s{sSp}, s{sSp}, 1", f"s_cmp_lt_u32 s{sSp}, {self.o['spin']}",
             f"s_cbranch_scc1 L_spin_{name}", "s_endpgm"]
        self.slow += s
        return f

    def spoll_load(self, soff):
        return [f"s_load_dwordx8 s[4:11], s[{sWS}:{sWS+1}], s{soff} glc", f"s_load_dwordx8 s[12:19], s[{sWS}:{sWS+1}], s{soff} offset:512 glc"]

    def spoll_check(self, name, load, reg):
        self.poll_check(name, None, load, reg)

        def f(p):
            p.raw("s_waitcnt lgkmcnt(0)")
            p.ds_done = p.ds_n
            p.e([f"s_and_b64 s[4:5], s[4:5], s[{k}:{k+1}]" for k in (6, 8, 12, 14, 16)])
            p.e([f"s_and_b32 s4, s4, s{k}" for k in (10, 18, 5)])
            p.e(f"s_cbranch_scc0 L_slow_{name}")
            p.raw(f"L_back_{name}:")
        return f

    def flag_store(self, soff, tags):
        def f(p):
            p.wait(vm=tags)
            p.e("s_mov_b64 exec, 1")
            p.e(f"buffer_store_dword v{vP}, off, {srd(sWS)}, s{soff} sc1")
            p.e("s_mov_b64 exec, -1")
        return f

    def trig(self, dst, phase, tmp, fn="cos"):
        return [f"v_alignbit_b32 v{tmp}, s{s7f}, v{phase}, 9", f"v_{fn}_f32 v{dst}, v{tmp}"]

    def fft_consts(self, t):
        vn, vq, vcol, vidx, va, vb, vk, vsg = range(t, t + 8)
        c0, s0 = t + 8, t + 16
        pk = t + 24
        q = [f"v_lshrrev_b32 v{vq}, 4, v0", f"v_and_b32 v{vn}, 15, v0",
             f"v_lshl_add_u32 v{vcol}, s{sWv}, 4, v{vn}",
             f"v_lshrrev_b32 v{va}, 2, v{vn}", f"v_and_b32 v{vb}, 3, v{vn}", f"v_lshl_add_u32 v{vidx}, v{va}, 3, v{vb}",
             f"v_bfe_i32 v{vsg}, v0, 0, 1", f"v_and_b32 v{vsg}, 0x80008000, v{vsg}",
             f"v_cvt_f32_u32 v{vcol}, v{vcol}", f"v_cvt_f32_u32 v{vidx}, v{vidx}", f"v_cvt_f32_u32 v{vq}, v{vq}"]

        def angles(dst, mul, base, ks):
            return [f"v_mov_b32 v{dst+j}, v{base}" if k == 0 else f"v_fmamk_f32 v{dst+j}, v{mul}, {fbits(float(k))}, v{base}"
                    for j, k in enumerate(ks)]

        def cs(c, s, n):
            r = []
            for j in range(n):
                r += [f"v_cos_f32 v{c+j}, v{s+j}", f"v_sin_f32 v{s+j}, v{s+j}"]
            return r

        def pack(dst, src):
            return [f"v_cvt_pk_bf16_f32 v{dst+j}, v{src+2*j}, v{src+2*j+1}" for j in range(4)]

        def acc(dst, src):
            return [f"v_accvgpr_write_b32 a{dst+j}, v{src+j}" for j in range(4)]

        def xr(dst, m):
            return [f"v_xor_b32 v{dst+j}, {m}, v{dst+j}" for j in range(4)]
        q += [f"v_mul_f32 v{va}, {fbits(1/64)}, v{vcol}", f"v_mul_f32 v{vb}, 4.0, v{vq}", f"v_mul_f32 v{vb}, v{vb}, v{va}"]
        q += angles(s0, va, vb, [16 * (j >> 2) + (j & 3) for j in range(8)]) + cs(c0, s0, 8)
        q += pack(pk, c0) + pack(pk + 4, s0)
        q += acc(aC64, pk) + acc(aS64, pk + 4) + xr(pk, f"v{vsg}") + xr(pk + 4, f"v{vsg}")
        q += acc(aC64 + 4, pk) + acc(aS64 + 4, pk + 4) + xr(pk + 4, "0x80008000") + acc(aN64 + 4, pk + 4)
        q += xr(pk + 4, f"v{vsg}") + acc(aN64, pk + 4)
        q += [f"v_mul_f32 v{va}, {fbits(1/32)}, v{va}", f"v_mul_f32 v{vb}, {fbits(1/16)}, v{vb}"]
        q += angles(vT1s, va, vb, range(8)) + cs(vT1c, vT1s, 8)
        q += [f"v_cvt_f32_u32 v{vk}, s{sWv}", f"v_fma_f32 v{vk}, v{vk}, 4.0, v{vq}", f"v_mul_f32 v{vk}, 4.0, v{vk}",
              f"v_mul_f32 v{vq}, {fbits(8.0)}, v{vq}"]
        for tt in range(2):
            if tt:
                q.append(f"v_add_f32 v{vidx}, 4.0, v{vidx}")
            q += [f"v_mul_f32 v{va}, {fbits(1/32)}, v{vidx}", f"v_mul_f32 v{vb}, v{vq}, v{va}"]
            q += angles(s0, va, vb, range(8)) + cs(c0, s0, 8)
            q += pack(pk, c0) + pack(vS32 + 4 * tt, s0) + acc(aC32 + 4 * tt, pk)
            q += [f"v_mul_f32 v{va}, {fbits(1/64)}, v{va}", f"v_mul_f32 v{vb}, v{vk}, v{va}"]
            q += angles(vT2s + 4 * tt, va, vb, range(4)) + cs(vT2c + 4 * tt, vT2s + 4 * tt, 4)
        for i in range(8):
            q += [f"v_mul_f32 v{vT2c+i}, s{sSc}, v{vT2c+i}", f"v_mul_f32 v{vT2s+i}, s{sSc}, v{vT2s+i}"]
        return q

    def fft_setup_regs(self):
        t0, t1 = vT + 14, vT + 15
        return [f"v_and_b32 v{t1}, 3, v0", f"v_lshrrev_b32 v{t0}, 4, v0",
                f"v_lshl_add_u32 v{fa0}, v{t1}, 2, v{t0}",
                f"v_lshlrev_b32 v{fa0}, 3, v{fa0}",
                f"v_and_b32 v{t0}, 2, v{t1}", f"v_add3_u32 v{fa0}, v{fa0}, v{t1}, v{t0}",
                f"v_bfe_u32 v{t0}, v0, 3, 1", f"v_lshl_add_u32 v{fa0}, v{t0}, 1, v{fa0}",
                f"v_bfe_u32 v{t0}, v0, 2, 1", f"v_lshl_add_u32 v{fa0}, v{fa0}, 1, v{t0}",
                f"v_lshlrev_b32 v{fa0}, 3, v{fa0}", f"v_add_u32 v{fa0}, {IMG}, v{fa0}",
                f"v_xor_b32 v{fa0+1}, 16, v{fa0}", f"v_xor_b32 v{fa0+2}, 64, v{fa0}", f"v_xor_b32 v{fa0+3}, 0x50, v{fa0}",
                f"v_lshrrev_b32 v{t0}, 5, v0", f"v_xor_b32 v{t0}, v{t0}, v0", f"v_bfe_i32 v{fx}, v{t0}, 0, 1"]

    def fft_scalars(self):
        return [[f"s_lshl_b32 s{sT1}, s{sKd}, 13"], [f"s_lshl_b32 s{sT0}, s{sWv}, 10"],
                [f"s_add_u32 s{sT2}, s{sT1}, s{sT0}"],
                [f"s_cmp_eq_u32 s{sKd}, 224", f"s_cselect_b32 s{sZs}, 4096, s{sT1}", f"s_cselect_b32 s{sT1}, 0, s{sT1}",
                 f"s_cselect_b32 s{sSw}, 16, 0"],
                [f"s_cmp_eq_u32 s{sT1}, 0", f"s_cselect_b32 s{sT3}, {OOB}, 0"],
                [f"s_add_u32 s{sZs}, s{sZs}, s{sT0}"], [f"s_lshl_b32 s{sT0}, s{sT0}, 1"], [f"s_add_u32 s{sT1}, s{sT1}, s{sT0}"],
                [f"s_add_u32 s{sT1}, s{sT1}, {X1T}"], [f"s_add_u32 s{sT2}, s{sT2}, {WT}"], [f"s_add_u32 s{sZs}, s{sZs}, {ZT}"]]

    def fft_addr2(self):
        return [f"v_xor_b32 v{fim}, s{sSw}, v{vL16}", f"v_and_or_b32 v{fx}, v{fx}, s{sT3}, v{fim}",
                f"v_or_b32 v{fim}, s{sT3}, v{vL16}", f"v_add_u32 v{fim}, 0x1000, v{fim}"]

    def poll1_addr(self, t0, t1, sa, sb, extra=None):
        sc = [[f"s_lshr_b32 s{sa}, s{sKd}, 4", f"s_cmp_eq_u32 s{sa}, 14", f"s_cselect_b32 s{sa}, 0, s{sa}"],
              [f"s_lshl2_add_u32 s{sa}, s{sa}, s{sWv}"], [f"s_lshl_b32 s{sa}, s{sa}, 4"],
              [f"s_lshl_b32 s{sb}, s{sWv}, 1"]]
        v = [f"v_add_u32 v{vPa}, s{sa}, v0",
             f"v_bfe_u32 v{t0}, v0, 1, 2", f"v_and_b32 v{t1}, 1, v0", f"v_lshl_add_u32 v{t0}, v{t0}, 3, v{t1}",
             f"v_add_u32 v{t0}, s{sb}, v{t0}",
             f"v_add_u32 v{t0}, {FAUX//128}, v{t0}"]
        if extra is not None:
            v += [f"v_lshlrev_b32 v{vPw}, 7, v{t0}", f"v_mov_b32 v{t0}, s{extra}"]
        v += [
             f"v_subrev_u32 v{t1}, 16, v0", f"v_ashrrev_i32 v{t1}, 31, v{t1}",
             f"v_bfi_b32 v{vPa}, v{t1}, v{vPa}, v{t0}", f"v_lshlrev_b32 v{vPa}, 7, v{vPa}"]
        return sc, v

    def fft_loads(self):
        return [f"s_add_u32 m0, s{sT0}, {IMG}",
                I(f"buffer_load_dwordx4 v{fx}, {srd(sWS)}, s{sT1} offen sc1 lds", tag="x1"),
                I(f"buffer_load_dwordx4 v{fx}, {srd(sWS)}, s{sT1} offen offset:1024 sc1 lds", tag="x1"),
                I(f"buffer_load_dwordx4 {vr(fWraw,4)}, v{vL16}, {srd(sWS)}, s{sT2} offen sc1", tag="wtre"),
                f"s_add_u32 s{sT2}, s{sT2}, 4096",
                I(f"buffer_load_dwordx4 {vr(fWraw+4,4)}, v{vL16}, {srd(sWS)}, s{sT2} offen sc1", tag="wtim")]

    def fft_body(self, hook):
        p = self.p
        Dr, Di, tm, Br, Bi, Bn = fDr, fDi, fTm, fBr, fBi, fBn

        def af(part, t, ks):
            return fA + 4 * (4 * part + 2 * t + ks)

        def mf(d, a, b, first):
            return f"v_mfma_f32_16x16x32_bf16 {vr(d,4)}, {a}, {b}, {'0' if first else vr(d,4)}"

        def cmul(c, s, sign, neg=None):
            q = []
            n1 = " neg_lo:[0,0,1] neg_hi:[0,0,1]"
            for j in range(0, 8, 2):
                q += [f"v_pk_mul_f32 {vr(tm+8+j,2)}, {vr(Dr+j,2)}, {vr(s+j,2)}",
                      f"v_pk_mul_f32 {vr(tm+j,2)}, {vr(Di+j,2)}, {vr(s+j,2)}"]
            for j in range(0, 8, 2):
                q += [f"v_pk_fma_f32 {vr(tm+j,2)}, {vr(Dr+j,2)}, {vr(c+j,2)}, {vr(tm+j,2)}" + (n1 if sign > 0 else ""),
                      f"v_pk_fma_f32 {vr(tm+8+j,2)}, {vr(Di+j,2)}, {vr(c+j,2)}, {vr(tm+8+j,2)}" + ("" if sign > 0 else n1)]
            for j in range(4):
                q += [f"v_cvt_pk_bf16_f32 v{Br+j}, v{tm+2*j}, v{tm+2*j+1}"]
            for j in range(4):
                q += [f"v_cvt_pk_bf16_f32 v{Bi+j}, v{tm+8+2*j}, v{tm+8+2*j+1}"]
            return q

        def negs(src):
            return [f"v_xor_b32 v{Bn+j}, 0x80008000, v{src+j}" for j in range(4)]

        def big(sgn, pre):
            Sre, Sim = (aS64, aN64) if sgn < 0 else (aN64, aS64)
            n = 0
            for ks in range(2):
                for part in range(2):
                    for t in range(2):
                        a = vr(af(part, t, ks), 4)
                        first = ks == 0 and part == 0
                        bre = (aC64 if part == 0 else Sre) + 4 * ks
                        bim = (Sim if part == 0 else aC64) + 4 * ks
                        p.e(I(mf(Dr + 4 * t, a, vr(bre, 4, "a"), first), ds=f"{pre}{part}{t}{ks}"))
                        p.e(mf(Di + 4 * t, a, vr(bim, 4, "a"), first))
                        n += 1
                        if n in (2, 4, 6):
                            hook(f"{pre}m{n}", 64)

        hook("h0", 0)
        p.e(W(vm="x1"))
        p.e("s_barrier")
        for ks in range(2):
            for part in range(2):
                for t in range(2):
                    for h in range(2):
                        p.e(I(f"ds_read_b64_tr_b16 {vr(af(part,t,ks)+2*h,2)}, v{fa0+2*t+part} "
                              f"offset:{2048*(2*ks+h)}", tag=f"a{part}{t}{ks}"))
        hook("s1", 100)
        big(-1, "a")
        p.e(W(vm=["wtre", "wtim"]))
        for j in range(4):
            p.e([f"v_lshlrev_b32 v{fWr+2*j}, 16, v{fWraw+j}", f"v_and_b32 v{fWr+2*j+1}, 0xffff0000, v{fWraw+j}"])
        p.e(cmul(vT1c, vT1s, -1))
        hook("tw1", 200)
        ng = negs(Br)
        for t in range(2):
            p.e(mf(Dr + 4 * t, vr(aC32 + 4 * t, 4, "a"), vr(Br, 4), True))
            p.e(ng[2 * t:2 * t + 2])
        for t in range(2):
            p.e(mf(Di + 4 * t, vr(aC32 + 4 * t, 4, "a"), vr(Bi, 4), True))
        for t in range(2):
            p.e(mf(Dr + 4 * t, vr(vS32 + 4 * t, 4), vr(Bi, 4), False))
        for t in range(2):
            p.e(mf(Di + 4 * t, vr(vS32 + 4 * t, 4), vr(Bn, 4), False))
        hook("s3", 128)
        for j in range(4):
            p.e([f"v_lshlrev_b32 v{fWi+2*j}, 16, v{fWraw+4+j}", f"v_and_b32 v{fWi+2*j+1}, 0xffff0000, v{fWraw+4+j}"])
        p.e(cmul(fWr, fWi, +1))
        hook("wm", 140)
        ng = negs(Bi)
        for t in range(2):
            p.e(mf(Dr + 4 * t, vr(Br, 4), vr(aC32 + 4 * t, 4, "a"), True))
            p.e(ng[2 * t:2 * t + 2])
        for t in range(2):
            p.e(mf(Di + 4 * t, vr(Br, 4), vr(vS32 + 4 * t, 4), True))
        for t in range(2):
            p.e(mf(Dr + 4 * t, vr(Bn, 4), vr(vS32 + 4 * t, 4), False))
        for t in range(2):
            p.e(mf(Di + 4 * t, vr(Bi, 4), vr(aC32 + 4 * t, 4, "a"), False))
        hook("s3i", 128)
        p.e([f"s_lshr_b32 s{sT0}, s{sWv}, 1", f"s_lshl_b32 s{sT0}, s{sT0}, 10", f"s_and_b32 s{sT2}, s{sWv}, 1",
             f"s_lshl3_add_u32 s{sT0}, s{sT2}, s{sT0}", f"v_add_u32 v{fa0}, s{sT0}, v{vL16}"])
        p.e(cmul(vT2c, vT2s, +1))
        for part in range(2):
            for t in range(2):
                p.e(I(f"ds_write_b64 v{fa0}, {vr((Br if part == 0 else Bi)+2*t,2)} offset:{EXC + (4*part+2*t)*1024}", tag="exw"))
        hook("h2", 0)
        p.e(W(ds="exw"))
        p.e("s_barrier")
        for ks in range(2):
            for part in range(2):
                for t in range(2):
                    p.e(I(f"ds_read_b128 {vr(af(part,t,ks),4)}, v{vL16} offset:{EXC + (4*part+2*t+ks)*1024}", tag=f"b{part}{t}{ks}"))
        hook("tw2", 300)
        big(+1, "b")
        hook("s1i", 64)
        for j in range(4):
            p.e(f"v_cvt_pk_bf16_f32 v{Br+j}, v{Dr+2*j}, v{Dr+2*j+1}")
        p.e(I(f"buffer_store_dwordx4 {vr(Br,4)}, v{vL16}, {srd(sWS)}, s{sZs} offen sc1", tag="zre"))
        for j in range(4):
            p.e(f"v_cvt_pk_bf16_f32 v{Bi+j}, v{Di+2*j}, v{Di+2*j+1}")
        p.e(I(f"buffer_store_dwordx4 {vr(Bi,4)}, v{fim}, {srd(sWS)}, s{sZs} offen sc1", tag="zim"))

    def epi(self, acc, tmp):
        q = []
        for k in range(4):
            g0, g1, u0, u1 = acc + 2 * k, acc + 2 * k + 1, acc + 8 + 2 * k, acc + 9 + 2 * k
            t0, t1 = tmp + 2 * (k & 1), tmp + 2 * (k & 1) + 1
            q += [f"v_mul_f32 v{t0}, s{sK}, v{g0}", f"v_mul_f32 v{t1}, s{sK}, v{g1}",
                  f"v_exp_f32 v{t0}, v{t0}", f"v_exp_f32 v{t1}, v{t1}",
                  f"v_mul_f32 v{u0}, v{g0}, v{u0}", f"v_mul_f32 v{u1}, v{g1}, v{u1}",
                  f"v_add_f32 v{t0}, 1.0, v{t0}", f"v_add_f32 v{t1}, 1.0, v{t1}",
                  f"v_rcp_f32 v{t0}, v{t0}", f"v_rcp_f32 v{t1}, v{t1}",
                  f"v_mul_f32 v{u0}, v{u0}, v{t0}", f"v_mul_f32 v{u1}, v{u1}, v{t1}",
                  f"v_cvt_pk_bf16_f32 v{acc+k}, v{u0}, v{u1}"]
        return q

    def epi_pk(self, acc, tmp):
        q = []
        for k in range(4):
            q.append(f"v_pk_mul_f32 {vr(tmp+2*k,2)}, {vr(acc+2*k,2)}, s[{sK}:{sK+1}]")
        for j in range(8):
            q.append(f"v_exp_f32 v{tmp+j}, v{tmp+j}")
        for k in range(4):
            q.append(f"v_pk_mul_f32 {vr(acc+8+2*k,2)}, {vr(acc+2*k,2)}, {vr(acc+8+2*k,2)}")
        for k in range(4):
            q.append(f"v_pk_add_f32 {vr(tmp+2*k,2)}, {vr(tmp+2*k,2)}, 1.0 op_sel_hi:[1,0]")
        for j in range(8):
            q.append(f"v_rcp_f32 v{tmp+j}, v{tmp+j}")
        for k in range(4):
            q.append(f"v_pk_mul_f32 {vr(acc+8+2*k,2)}, {vr(acc+8+2*k,2)}, {vr(tmp+2*k,2)}")
        for k in range(4):
            q.append(f"v_cvt_pk_bf16_f32 v{acc+k}, v{acc+8+2*k}, v{acc+9+2*k}")
        return q

    def hstore(self, base, n, tag):
        tl, i = n >> 1, n & 1
        return I(f"buffer_store_dwordx4 {vr(base+16*n,4)}, v{vL16}, {srd(sWS)}, s{sHst1 if i else sHst} offen offset:{tl*1024} sc1", tag=tag)

    def rec_step(self, st, ks, dst):
        P = st + 8 * (ks & 1)
        Q = st + 8 * ((ks + 1) & 1)
        c = st + 16 + (0 if ks & 1 else 1)
        q = [f"v_fmac_f32 v{P+j}, v{c}, v{Q+j}" for j in range(8)]
        return q + self.rec_pack(st, ks, dst)

    def rec_pack(self, st, ks, dst):
        P = st + 8 * (ks & 1)
        n = "-" if ks & 2 else ""
        return [f"v_cvt_pk_bf16_f32 v{dst+j}, {n}v{P+2*j}, {n}v{P+2*j+1}" for j in range(4)]

    def put_scalars(self, G, groups, g0, g1):
        g = g0
        for x in groups:
            while G.s[g] or g in G.light:
                g += 1
            G.s[g] += x if isinstance(x, list) else [x]
        assert g < g1, (g, g1)
        return g

    def build(self):
        o, p = self.o, self.p
        e = p.e
        e(self.stamp("start"))
        e([x.replace("s_memtime", "s_memrealtime") for x in self.stamp("rt0")])
        e([f"s_load_dwordx2 s[{sX}:{sX+1}], s[0:1], 0", f"s_load_dwordx2 s[{sG}:{sG+1}], s[0:1], 32",
           f"s_load_dwordx2 s[{sU}:{sU+1}], s[0:1], 40"])
        e([f"v_lshrrev_b32 v2, 6, v0", f"v_lshlrev_b32 v3, 5, v0", f"v_and_b32 v0, 63, v0"])
        sj, sidx, sr = sT0, sT1, sT2
        e([f"s_lshr_b32 s{sidx}, s2, 3", f"v_readfirstlane_b32 s{sWv}, v2", f"s_and_b32 s{sj}, s2, 7",
           f"s_cmp_lt_u32 s{sidx}, 28", "s_cbranch_scc1 L_main"])
        if o["pf"]:
            p.raw(f"s_getpc_b64 s[{sT2}:{sT3}]")
            p.raw("L_pc:")
            p.raw(f"s_and_b32 s{sCnt}, s{sidx}, 3")
            p.raw(f"v_lshl_add_u32 v3, s{sCnt}, 13, v3")
            p.raw(f"v_min_u32 v3, L_codeend-L_pc-4, v3")
            p.raw(f"global_load_dword v255, v3, s[{sT2}:{sT3}]")
        p.raw("L_main:")
        for s, off in ((sD, 48), (sO, 64), (sDBG, 72), (sWS, 80)):
            e(f"s_load_dwordx2 s[{s}:{s+1}], s[0:1], {off}")

        def mod7(s, t):
            return [f"s_mul_i32 s{t}, s{s}, 37", f"s_lshr_b32 s{t}, s{t}, 8", f"s_mul_i32 s{t}, s{t}, 7", f"s_sub_u32 s{s}, s{s}, s{t}"]
        sRot1 = sHst
        e([f"s_mul_i32 s{sr}, s{sidx}, 37", f"s_lshr_b32 s{sr}, s{sr}, 8",
           f"s_mul_i32 s{sCt}, s{sr}, 7", f"s_sub_u32 s{sCt}, s{sidx}, s{sCt}",
           f"s_lshr_b32 s{sT3}, s{sj}, 1", f"s_lshl2_add_u32 s{sRg}, s{sT3}, s{sr}",
           f"s_and_b32 s{sC}, s{sj}, 1", f"s_mul_i32 s{sC}, s{sC}, 7", f"s_add_u32 s{sC}, s{sC}, s{sCt}",
           ])
        norot = o["rot1"] == "0"
        if not norot:
            e([f"s_lshl1_add_u32 s{sRot2}, s{sr}, s{sCt}",
               f"s_cmp_ge_u32 s{sRot2}, 7", f"s_cselect_b32 s{sCnt}, 7, 0", f"s_sub_u32 s{sRot2}, s{sRot2}, s{sCnt}"])
        if norot:
            pass
        elif o["rot1"] == "full":
            e(f"s_mov_b32 s{sRot1}, s{sRot2}")
        elif o["rot1"] == "fullx":
            e([f"s_add_u32 s{sRot1}, s{sRot2}, s{sT3}", f"s_cmp_ge_u32 s{sRot1}, 7", f"s_cselect_b32 s{sCnt}, 7, 0",
               f"s_sub_u32 s{sRot1}, s{sRot1}, s{sCnt}"])
        elif o["rot1"] == "half":
            e([f"s_add_u32 s{sRot1}, s{sr}, s{sCt}", f"s_and_b32 s{sRot1}, s{sRot1}, 1", f"s_mul_i32 s{sRot1}, s{sRot1}, 3"])
        elif o["rot1"] == "xcd":
            e([f"s_mov_b32 s{sRot1}, s{sj}"] + mod7(sRot1, sCnt))
        t0, t1, t2, t3, t4, t5, t6 = range(vAB + 8, vAB + 15)
        e([f"s_lshl2_add_u32 s{sCnt}, s{sT3}, s{sWv}", f"s_lshl4_add_u32 s{sCnt}, s{sCnt}, s{sr}",
           f"s_mul_i32 s{sCnt}, s{sCnt}, {8*896}",
           f"v_lshrrev_b32 v{t0}, 3, v0", f"v_mul_u32_u24 v{t0}, 896, v{t0}", f"v_add_u32 v{t0}, s{sCnt}, v{t0}",
           f"v_and_b32 v{t1}, 7, v0", f"v_lshrrev_b32 v{t2}, 4, v0", f"v_xor_b32 v{t1}, v{t1}, v{t2}",
           f"v_lshl_add_u32 v{vXd}, v{t1}, 4, v{t0}",
           f"v_xor_b32 v{t1}, 4, v{t1}", f"v_lshl_add_u32 v{vXd+1}, v{t1}, 4, v{t0}",
           f"v_add_u32 v{vXd+2}, {2*(28672-1024)}, v{vXd}", f"v_add_u32 v{vXd+3}, {3*(28672-1024)}, v{vXd+1}",
           f"v_add_u32 v{vXd+1}, {28672-1024}, v{vXd+1}"])
        e([f"v_lshrrev_b32 v{t4}, 5, v0", f"v_and_b32 v{t6}, 3, v0", f"v_lshl_add_u32 v{t2}, v{t4}, 2, v{t6}",
           f"v_lshlrev_b32 v{t2}, 4, v{t2}", f"v_bfe_u32 v{t3}, v0, 2, 3",
           f"v_lshl_add_u32 v{t0}, s{sWv}, 4, v{t3}", f"v_mul_u32_u24 v{t0}, 3584, v{t0}",
           f"s_lshl_b32 s{sCnt}, s{sC}, 8", f"v_add3_u32 v{vWd}, v{t0}, v{t2}, s{sCnt}",
           f"v_add_u32 v{vWd+1}, {8*3584-1024}, v{vWd}"])
        e([f"s_mul_i32 s{sWm}, s{sWv}, 4160", f"s_lshl_b32 s{sXm}, s{sWv}, 14", f"s_add_u32 s{sXm}, s{sXm}, {XS}"])
        for s, n in ((sX, 2048 * 896), (sG, 448 * 3584), (sU, 448 * 3584)):
            e([f"s_mov_b32 s{s+2}, {n}", f"s_mov_b32 s{s+3}, 0x20000"])

        def chunk_tab(i):
            r = [f"s_mov_b32 s{sCnt}, s{sRot1}"] if i == 0 else \
                [f"s_add_u32 s{sCnt}, s{sCnt}, 1", f"s_cmp_eq_u32 s{sCnt}, 7", f"s_cselect_b32 s{sCnt}, 0, s{sCnt}"]
            return r + [f"s_lshl_b32 s{sXo+i}, s{sCnt}, 7", f"s_mul_i32 s{sWo+i}, s{sCnt}, {64*3584}"]
        if not norot:
            e(chunk_tab(0) + chunk_tab(1))
        e([f"s_cmp_ge_u32 s{sidx}, 28", "s_cbranch_scc1 L_auxh"])
        snap_aux0 = p.snapshot()
        p.raw("s_waitcnt lgkmcnt(0)")
        e(self.stamp("kargs"))

        self.m0 = None

        def xdma(j):
            r = [dict(t=f"buffer_load_dwordx4 v{vXd+i}, {srd(sX)}, s{sXo+j} offen offset:{1024*i} lds", tag=f"x{j}",
                      m0=(sXm, 4096 * (j % 4)), ds=None) for i in range(4)]
            if norot:
                r[0]["pre"] = [f"s_movk_i32 s{sXo+j}, {128*j}"]
            return r

        def wdma(i):
            r = []
            for mat in range(2):
                for hh in range(2):
                    r.append(dict(t=f"buffer_load_dwordx4 v{vWd+hh}, {srd(sG if mat == 0 else sU)}, s{sWo+i%7} offen offset:{1024*hh} lds",
                                  tag=f"w{i}", m0=(sWm, WSLOT * (i % NWS) + 2080 * mat), ds=None))
            if i >= 7:
                r[0]["pre"] = [f"s_addk_i32 s{sWo+i%7}, 128"]
            elif norot:
                r[0]["pre"] = [f"s_mov_b32 s{sWo+i}, {i*64*3584}"]
            return r

        def ddma(sg):
            return [dict(t=f"buffer_load_dwordx4 v{vDd+i}, {srd(sD)}, s{sDo+sg} offen offset:{1024*i} lds", tag=f"d{sg}",
                         m0=(sXm, 4096 * ((sg + 3) % 4)), ds=None) for i in range(4)]

        def dma_items(d):
            s = []
            if d["m0"] and self.m0 != d["m0"]:
                self.m0 = d["m0"]
                s.append(f"s_add_u32 m0, s{d['m0'][0]}, {d['m0'][1]}")
            return s + list(d.get("pre", [])), [I(d["t"], tag=d["tag"], ds=d["ds"])]

        L, NB = 3, 4
        n1 = o["n1"]
        dks = [d if d < n1 else n1 + (d - n1) // 2 for d in range(28)]
        K0 = [4 * ks + sum(1 for x in dks if x < ks) for ks in range(29)]
        Dg = [K0[dks[d]] + 4 + (d - dks.index(dks[d])) for d in range(28)]
        U = [K0[f // 2] + 2 * (f % 2) for f in range(56)] + [140 + 2 * f for f in range(56)]
        bar_gap = {j: U[8 * j - L] - 1 for j in range(1, 14)}
        q1 = []
        for i in range(14):
            ear = -1 if i <= o["LA"] - 1 else (0 if i == o["LA"] else bar_gap[i - o["LA"]] + 1)
            for d in (xdma(i) if i < 7 else []) + wdma(i):
                d["ear"] = ear
                q1.append(d)

        def issue_pro(n):
            for _ in range(n):
                assert q1[0]["ear"] < 0
                s, m = dma_items(q1.pop(0))
                e(s)
                e(m)
        if o["touch"]:
            issue_pro(o["touch"])
            sQ = 64
            u0, u1, u2 = vAA, vAA + 1, vAA + 2
            e([f"s_cmp_eq_u32 s{sWv}, 2", f"s_cselect_b64 s[{sQ}:{sQ+1}], s[{sG}:{sG+1}], s[{sU}:{sU+1}]",
               f"s_lshl1_add_u32 s{sRt}, s{sC}, s{sWv}", f"v_and_b32 v{u0}, 31, v0",
               f"v_lshl_add_u32 v{u1}, s{sRt}, 5, v{u0}",
               f"v_mul_u32_u24 v{u2}, 1171, v{u1}", f"v_lshrrev_b32 v{u2}, 16, v{u2}",
               f"v_mul_u32_u24 v{u2}, {32*896-56*128}, v{u2}", f"v_lshl_add_u32 v{u1}, v{u1}, 7, v{u2}",
               f"s_lshl_b32 s{sRt}, s{sT3}, 6", f"s_add_u32 s{sRt}, s{sRt}, s{sr}", f"s_mul_i32 s{sRt}, s{sRt}, {8*896}",
               f"v_add_u32 v{u1}, s{sRt}, v{u1}",
               f"v_min_u32 v{u0}, 23, v{u0}", f"s_mul_i32 s{sRt}, s{sRg}, {24*3584}", f"s_lshl_b32 s{sKd}, s{sC}, 8",
               f"s_add_u32 s{sRt}, s{sRt}, s{sKd}", f"s_add_u32 s{sRt}, s{sRt}, {64*3584}",
               f"v_mul_u32_u24 v{u2}, 3584, v{u0}", f"v_add_u32 v{u2}, s{sRt}, v{u2}",
               f"s_cmp_lt_u32 s{sWv}, 2", f"s_cselect_b64 vcc, -1, 0",
               f"s_cselect_b64 s[{sQ}:{sQ+1}], s[{sX}:{sX+1}], s[{sQ}:{sQ+1}]",
               f"s_cselect_b32 s{sQ+2}, s{sX+2}, s{sG+2}", f"s_mov_b32 s{sQ+3}, 0x20000",
               f"v_cndmask_b32 v{u1}, v{u2}, v{u1}, vcc",
               f"buffer_load_dword v{vPr}, v{u1}, {srd(sQ)}, 0 offen"])
        issue_pro(o["npre"] - o["touch"])
        p.raw("s_branch L_main2")
        snap_main = p.snapshot()
        p.restore(snap_aux0)
        p.raw("L_auxh:")
        self.aux_head(sj, sidx)
        p.raw("s_branch L_aux")
        snap_aux = p.snapshot()
        p.restore(snap_main)
        p.raw("L_main2:")
        for i in range(2, 7):
            if not norot:
                e(chunk_tab(i))
        e([f"s_and_b32 s{sRt}, s{sj}, 1", f"s_lshl1_add_u32 s{sRt}, s{sRg}, s{sRt}", f"s_mul_i32 s{sKd}, s{sj}, 28", f"s_add_u32 s{sKd}, s{sKd}, s{sidx}",
           f"s_movk_i32 s{s7f}, 0x7f", f"v_lshlrev_b32 v{vL16}, 4, v0"])
        sq = sr
        e([f"v_and_b32 v{t0}, 31, v0", f"v_bfe_u32 v{t1}, v0, 1, 3",
           f"v_xor_b32 v{t1}, v{t1}, v{t4}", f"v_lshlrev_b32 v{t1}, 4, v{t1}",
           f"v_lshl_add_u32 v{t1}, v{t0}, 7, v{t1}",
           f"s_xor_b32 s{sT0}, s{sWv}, 1", f"s_lshl_b32 s{sT0}, s{sT0}, 14", f"s_add_u32 s{sT0}, s{sT0}, {XS}"])
        for kk in range(4):
            if kk:
                e(f"v_xor_b32 v{t5}, {32*kk}, v{t1}")
            e([f"v_add_u32 v{vXr+kk}, s{sXm}, v{t5 if kk else t1}", f"v_add_u32 v{vXr+4+kk}, s{sT0}, v{t5 if kk else t1}"])
        e([f"v_bfe_u32 v{t1}, v0, 4, 1", f"v_bfe_u32 v{t5}, v0, 2, 2",
           f"s_and_b32 s{sT0}, s{sWv}, 1", f"s_lshl_b32 s{sT1}, s{sT0}, 9",
           f"v_mul_u32_u24 v{vTr}, 2080, v{t1}", f"v_lshl_add_u32 v{vTr}, v{t4}, 10, v{vTr}",
           f"v_lshl_add_u32 v{vTr}, v{t5}, 6, v{vTr}", f"v_lshl_add_u32 v{vTr}, v{t6}, 3, v{vTr}",
           f"v_add_u32 v{vTr}, s{sT1}, v{vTr}", f"v_add_u32 v{vTr+1}, {4*WSLOT}, v{vTr}"])
        st, fbuf = vAA, [vAB, vAB + 4, vE, vE + 4]
        vA2 = vAB + 16
        ph, stp, tq, y0, y1, y2 = range(vAA + 20, vAA + 26)
        pk = vAA + 32
        e([f"v_lshl_add_u32 v{y0}, s{sC}, 5, v{t0}",
           f"v_lshrrev_b32 v{y1}, 1, v{y0}", f"v_and_b32 v{y2}, 1, v{y0}",
           f"v_cmp_eq_u32 vcc, 1, v{y0}", f"v_mov_b32 v{tq}, 224", f"s_mov_b32 s{sCnt}, {STEP448}",
           f"v_cndmask_b32 v{y1}, v{y1}, v{tq}, vcc", f"v_cndmask_b32 v{y2}, v{y2}, 0, vcc",
           f"v_mul_lo_u32 v{stp}, v{y1}, s{sCnt}"])
        e([f"s_lshl_b32 s{sCnt}, s{sWv}, 6"] if norot else [f"s_add_u32 s{sCnt}, s{sRot1}, s{sWv}", f"s_lshl_b32 s{sCnt}, s{sCnt}, 6"])
        e([f"v_lshl_add_u32 v{y1}, v{t4}, 3, s{sCnt}",
           f"v_mul_lo_u32 v{ph}, v{y1}, v{stp}", f"v_lshl_add_u32 v{ph}, v{y2}, 30, v{ph}",
           f"v_lshlrev_b32 v{y1}, 4, v{stp}", f"v_add_u32 v{vFr}, {FS}, v{vL16}", f"v_lshl_add_u32 v{y2}, s{sWv}, 12, v{vFr}"])
        e(self.trig(st + 16, y1, tq))
        for ks in range(2):
            for j in range(8):
                e(self.trig(st + 8 * ks + j, ph, tq + (j & 1)))
                if ks == 0 or j < 7:
                    e(f"v_add_u32 v{ph}, v{ph}, v{stp}")
            if ks == 0:
                e([f"v_lshl_add_u32 v{ph}, v{stp}, 3, v{ph}", f"v_mul_f32 v{st+17}, -2.0, v{st+16}", f"v_add_f32 v{st+16}, v{st+16}, v{st+16}"])
        e(self.rec_pack(st, 0, pk) + self.rec_pack(st, 1, pk + 4) + self.rec_step(st, 2, pk + 8) + self.rec_step(st, 3, pk + 12))
        e(f"s_cmp_eq_u32 s{sWv}, 3")
        for k in range(4):
            if k == 2:
                e("s_cbranch_scc1 L_f2")
            e(I(f"ds_write_b128 v{y2}, {vr(pk+4*k,4)} offset:{1024*k}", tag="fw"))
        p.raw("L_f2:")
        issue_pro(o["npro"] - o["npre"])
        for d in q1:
            d["ear"] = max(d["ear"], 0)
        lq = []
        for s, n in ((sD, 1792 * 896), (sDBG, 256), (sWS, WSEND), (sO, 2048 * 896)):
            lq += [f"s_mov_b32 s{s+2}, {n}", f"s_mov_b32 s{s+3}, 0x20000"]
        lq += [f"v_mul_u32_u24 v{vDd}, 896, v{t3}", f"s_lshl_b32 s{sCnt}, s{sCt}, 7", f"v_add3_u32 v{vDd}, v{vDd}, v{t2}, s{sCnt}"]
        for i in range(1, 4):
            lq += [f"v_add_u32 v{vDd+i}, {i*(8*896-1024)}, v{vDd}"]
        lq += [f"v_lshl_add_u32 v{vDr}, v{t4}, 2, v{t5}", f"v_lshlrev_b32 v{vDr}, 6, v{vDr}",
               f"v_lshl_add_u32 v{vDr}, v{t1}, 4, v{vDr}",
               f"v_and_b32 v{t5}, 1, v0", f"v_lshl_add_u32 v{vDr}, v{t5}, 5, v{vDr}",
               f"v_bfe_u32 v{t5}, v0, 1, 1", f"v_lshl_add_u32 v{vDr}, v{t5}, 3, v{vDr}",
               f"v_lshlrev_b32 v{vSg}, 31, v{t5}", f"v_or_b32 v{vSg}, 1.0, v{vSg}",
               f"s_lshr_b32 s{sT1}, s{sWv}, 1", f"v_lshl_add_u32 v{vDr}, s{sT1}, 9, v{vDr}", f"v_xor_b32 v{vDr+1}, 0x200, v{vDr}",
               f"s_lshl_b32 s{sCnt}, s{sT1}, 15", f"s_add_u32 s{sCnt}, s{sCnt}, {XS}",
               f"v_add_u32 v{vDr}, s{sCnt}, v{vDr}", f"v_add_u32 v{vDr+1}, s{sCnt}, v{vDr+1}",
               f"v_lshlrev_b32 v{vPg}, 3, v{t0}"]
        lq += [f"s_and_b32 s{sCnt}, s{sq}, 2", f"s_add_u32 s{sCnt}, s{sCnt}, s{sq}", f"s_lshl_b32 s{sCnt}, s{sCnt}, 4",
               f"v_xor_b32 v{t5}, s{sCnt}, v{t2}", f"v_lshl_add_u32 v{vX1g}, v{t3}, 14, v{t5}",
               f"s_lshl_b32 s{sCnt}, s{sC}, 8", f"s_add_u32 s{sCnt}, s{sCnt}, s{sRg}", f"s_lshl2_add_u32 s{sCnt}, s{sCnt}, s{sWv}",
               f"s_lshl_b32 s{sCnt}, s{sCnt}, 7", f"s_add_u32 s{sCnt}, s{sCnt}, {X1T}", f"v_add_u32 v{vX1g}, s{sCnt}, v{vX1g}"]
        lq += [f"s_and_b32 s{sT0}, s{sRt}, 1", f"s_lshl1_add_u32 s{sT0}, s{sT0}, s{sT1}", f"s_mul_i32 s{sPe}, s{sT0}, 7",
               f"s_and_b32 s{sT2}, s{sWv}, 1", f"s_add_u32 s{sT0}, s{sPe}, s{sT2}"]
        for sg in range(7):
            if sg == 3:
                lq += [f"s_mul_i32 s{sCnt}, s{sT2}, -6", f"s_add_i32 s{sT1}, s{sPe}, s{sCnt}", f"s_add_u32 s{sT1}, s{sT1}, 6",
                       f"s_and_b32 s{sCnt}, s{sT1}, 30", f"s_add_u32 s{sCnt}, s{sCnt}, s{sT1}", f"s_lshl1_add_u32 s{sCnt}, s{sT2}, s{sCnt}"]
            else:
                lq += [f"s_add_u32 s{sT1}, s{sT0}, {2*sg if sg < 3 else 2*sg-7}", f"s_and_b32 s{sCnt}, s{sT1}, 30",
                       f"s_add_u32 s{sCnt}, s{sCnt}, s{sT1}"] + ([f"s_add_u32 s{sCnt}, s{sCnt}, 2"] if sg > 3 else [])
            lq += [f"s_mul_i32 s{sDo+sg}, s{sCnt}, {2*16*896}"]
        lq += [f"s_lshl3_add_u32 s{sPl}, s{sRt}, s{sCt}", f"s_lshl2_add_u32 s{sPl}, s{sPl}, s{sWv}", f"s_lshl_b32 s{sPl}, s{sPl}, 11",
               f"s_xor_b32 s{sPs}, s{sPl}, 0x10000", f"s_add_u32 s{sPl}, s{sPl}, {PP}", f"s_add_u32 s{sPs}, s{sPs}, {PP}",
               f"s_movk_i32 s{s8k}, 8192"] + [f"v_mov_b32 v{vT+j}, -1" for j in range(4)]
        n_early = len(lq)
        assert HH % 2048 == 0
        lq += [f"s_lshr_b32 s{sT0}, s{sWv}, 1", f"s_lshl1_add_u32 s{sT0}, s{sRg}, s{sT0}", f"s_mul_i32 s{sHst}, s{sT0}, 229376",
               f"s_and_b32 s{sT1}, s{sWv}, 1", f"s_lshl1_add_u32 s{sT2}, s{sC}, s{sT1}", f"s_lshl_b32 s{sCnt}, s{sT2}, 11",
               f"s_add_u32 s{sHst}, s{sHst}, s{sCnt}", f"s_mul_i32 s{sT1}, s{sT1}, 57344",
               f"s_sub_u32 s{sHst1}, s{sHst}, s{sT1}", f"s_add_u32 s{sHst}, s{sHst}, s{sT1}",
               f"s_add_u32 s{sHst}, s{sHst}, {HH}", f"s_add_u32 s{sHst1}, s{sHst1}, {HH+57344}",
               f"s_mul_i32 s{sT1}, s{sT2}, 37", f"s_lshr_b32 s{sT1}, s{sT1}, 8", f"s_mul_i32 s{sT1}, s{sT1}, 25",
               f"s_add_u32 s{sT1}, s{sT1}, s{sT2}", f"s_lshl_b32 s{sT0}, s{sT0}, 9", f"s_lshl2_add_u32 s{sT0}, s{sT1}, s{sT0}",
               f"s_add_u32 s{sFh}, s{sT0}, {FH}",

               f"s_mov_b32 s{sK}, 0xbfb8aa3b", f"s_mov_b32 s{sK+1}, 0xbfb8aa3b",
               f"s_mov_b32 s{sSc}, {fbits(2.0/(2048*448))}",
               [f"s_cmp_eq_u32 s{sKd}, 0", f"s_cselect_b32 s{sSc}, {fbits(1.0/(2048*448))}, s{sSc}"],
               f"s_lshl_b32 s{sCnt}, s{sKd}, 31", f"s_or_b32 s{sSc}, s{sSc}, s{sCnt}",
               f"s_lshl4_add_u32 s{sFx}, s{sC}, s{sRg}", f"s_lshl2_add_u32 s{sFx}, s{sFx}, s{sWv}", f"s_lshl_b32 s{sFx}, s{sFx}, 7"]
        lq += [f"s_and_b32 s{sT0}, s{sRt}, 1", f"s_xor_b32 s{sT0}, s{sT0}, 1", f"s_mul_i32 s{sT0}, s{sT0}, 7", f"s_add_u32 s{sT0}, s{sT0}, s{sCt}",
               f"s_lshl4_add_u32 s{sT0}, s{sT0}, s{sRg}", f"s_lshl2_add_u32 s{sT0}, s{sT0}, s{sWv}"]
        sc, vv = self.poll1_addr(vT + 14, vT + 15, sT1, sT2, sT0)
        lq += sc + vv + self.fft_setup_regs() + self.fft_consts(vAB + 32)
        lq2 = self.fft_scalars() + self.fft_addr2()
        vH, vPh, sFp = vXd, vXd + 2, sXo + 2
        lq2 += [f"s_and_b32 s{sCnt}, s{sWv}, 1", f"s_mul_i32 s{sCnt}, s{sCnt}, 28", f"s_add_u32 s{sCnt}, s{sCnt}, s{sPe}",
                f"s_lshl_b32 s{sCnt}, s{sCnt}, 11",
                f"s_add_u32 s{sCnt}, s{sCnt}, {HH}", f"v_add_u32 v{vH}, s{sCnt}, v{vL16}",
                f"s_mul_i32 s{sFp}, s{sRt}, 229376", f"v_add_u32 v{vH+1}, s{sFp}, v{vH}",
                f"s_xor_b32 s{sCnt}, s{sRt}, 1", f"s_mul_i32 s{sFp}, s{sCnt}, 229376", f"v_add_u32 v{vH}, s{sFp}, v{vH}",
                f"v_and_b32 v{vPh}, 7, v0", f"v_min_u32 v{vPh}, 6, v{vPh}", f"v_bfe_u32 v{vPh+1}, v0, 3, 1",
                f"v_lshl_add_u32 v{vPh}, v{vPh+1}, 7, v{vPh}", f"v_lshlrev_b32 v{vPh}, 2, v{vPh}",
                f"s_mul_i32 s{sCnt}, s{sPe}, 37", f"s_lshr_b32 s{sCnt}, s{sCnt}, 8", f"s_lshl3_add_u32 s{sFp}, s{sRg}, s{sCnt}",
                f"s_lshl_b32 s{sFp}, s{sFp}, 7", f"s_add_u32 s{sFp}, s{sFp}, {FH}"]
        e(lq[:o["cpro"]])
        n_early = max(0, n_early - o["cpro"])
        lq = lq[o["cpro"]:]
        e(self.stamp("pro"))

        def wread(f):
            i, kk, tl = f // 8, (f // 2) % 4, f % 2
            slot = i % NWS
            base, off = (vTr, slot * WSLOT) if slot < 4 else (vTr + 1, 0)
            off += kk * 4160 + tl * 32
            b = vWF + 4 * (f % NB)
            return [I(f"ds_read_b64_tr_b16 {vr(b+2*h,2)}, v{base} offset:{off+256*h}", tag=f"wf{f}") for h in range(2)]

        def xread(ks, i):
            return I(f"ds_read_b128 {vr(aX+8*ks+4*i,4,'a')}, v{vXr+4*i+ks%4} offset:{4096*((ks//4)%4)}", tag=f"xr{ks}_{i}",
                     vm=(f"x{ks//4}" if i == 0 and ks % 4 == 0 else None))

        mf = []
        for ph_, acc in ((0, vAA), (1, vAB)):
            for ks in range(28):
                for n in range(4):
                    tl, i = n >> 1, n & 1
                    d = vr(acc + 16 * n, 16)
                    mf.append(f"v_mfma_f32_32x32x16_bf16 {d}, {vr(vWF+4*((2*ks+tl)%NB),4)}, {vr(aX+8*ks+4*i,4,'a')}, {d if ks else 0}")
                for dd in range(28):
                    if ph_ == 0 and dks[dd] == ks:
                        d = vr(vAX if dd < 14 else vA2, 16)
                        mf.append(f"v_mfma_f32_32x32x16_bf16 {d}, {vr(aX+8*dd,4,'a')}, {vr(fbuf[dd%4],4)}, {d if dd % 14 else 0}")
        G = Gaps(mf)
        G.light = set(bar_gap.values())
        barW = {}
        for f in range(L, 112):
            r = wread(f)
            g = U[f - L]
            G.m[g].append(r[0])
            G.m[g if g + 1 in G.light else g + 1].append(r[1])
        def fread(d):
            return I(f"ds_read_b128 {vr(fbuf[d%4],4)}, v{vFr} offset:{1024*(d%14)}", tag=f"fr{d}")

        def least(lo, hi):
            return min((g for g in range(lo, hi) if g not in G.light), key=lambda g: (len(G.m[g]), g))
        for ks in range(2, 28):
            G.m[least(K0[ks - 2] + 2, K0[ks - 1])].append(xread(ks, 1))
            if dks[ks] == ks:
                G.m[least(K0[ks - 2] + 2, K0[ks - 1])].append(xread(ks, 0))
        lo = 0
        for d in range(2, 28):
            if dks[d] < d:
                lo = least(max(lo, K0[dks[d] - 1]), K0[dks[d]] - 1)
                G.m[lo].append(xread(d, 0))
            G.m[least(K0[dks[d] - 1], K0[dks[d]] - 1)].append(fread(d))
        for f in range(1, 112):
            tags = [f"wf{f}"]
            if f < 56:
                if f % 2:
                    tags += [t_ for d in range(28) if dks[d] == f // 2 for t_ in (f"fr{d}", f"xr{d}_0")]
                else:
                    tags += [f"xr{f//2}_1"] + ([f"xr{f//2}_0"] if dks[f // 2] == f // 2 else [])
            g = U[f] - 1
            if g in G.light:
                j = [k for k, v in bar_gap.items() if v == g][0]
                if j <= 7:
                    tags += [f"xr{4*j-1}_0", f"xr{4*j-1}_1"]
                barW[j] = W(vm=[f"w{j}"], ds=tags)
                G.s[g] += [barW[j], "s_barrier"]
            else:
                G.s[g].append(W(ds=tags))

        class BG:
            pass
        bg = BG()
        bg.q2 = [d for sg in range(7) for d in ddma(sg)]
        bg.nd = 0
        bg.ntr = 0
        bg.t_issue = {}
        bg.t_read = {}
        bg.vis, bg.free = set(), set()
        bg.nxt = 0
        T_B = 140 * 32
        wd_at = [int(x) for x in o["wd_at"].split(",")]

        def dtr(n):
            wi, h = n // 2, n % 2
            gi, step, u = wi // 4, wi // 2, wi % 2
            off = 16384 * (gi & 1) + 4096 * ((gi // 2 + 3) % 4) + 2048 * (step & 1) + 1024 * h
            return I(f"ds_read_b64_tr_b16 {vr(4*wi+2*h,2,'a')}, v{vDr+u} offset:{off}", tag=f"dr{gi//2}")

        def bg_barrier(j):
            t = 32 * bar_gap[j]
            for sg, ti in bg.t_issue.items():
                if sg not in bg.vis and t >= ti + 32 * o["wd_delay"]:
                    bg.vis.add(sg)
                    barW[j].vm.append(f"d{sg}")
            for sg, tr in bg.t_read.items():
                if sg not in bg.free and t >= tr + 64:
                    bg.free.add(sg)
                    barW[j].ds.append(f"dr{sg}")

        def bg_step(t, ndma=1, ntr=1, paced=True):
            s, m = [], []
            for _ in range(ntr):
                n = bg.ntr
                if n >= 112 or n // 16 not in bg.vis or t < T_B + 128 * (n // 4 + 1):
                    break
                m.append(dtr(n))
                bg.ntr += 1
                if n % 16 == 15:
                    bg.t_read[n // 16] = t
            for _ in range(ndma):
                if paced and t < bg.nxt:
                    break
                d = None
                if q1 and t >= 32 * q1[0]["ear"]:
                    d = q1.pop(0)
                elif bg.q2:
                    sg = bg.nd // 4
                    ok = (t > 32 * max(bar_gap[sg + 4], wd_at[sg])) if sg < 4 else (sg - 4 in bg.free and t > 32 * wd_at[sg])
                    if ok:
                        d = bg.q2.pop(0)
                        bg.nd += 1
                        if bg.nd % 4 == 0:
                            bg.t_issue[sg] = t
                if d is None:
                    break
                a, b = dma_items(d)
                if any(kind(txt(x)) == "G" for x in m):
                    m += a
                else:
                    s += a
                m += b
                per = o["perA"] if t < T_B else o["perB"]
                bg.nxt = max(bg.nxt + per, t + per - 31)
            return s, m
        fl = self.fft_loads()
        q3 = [dict(t=fl[1].t, tag="x1", m0=(sT0, IMG), ds=None), dict(t=fl[2].t, tag="x1", m0=(sT0, IMG), ds=None),
              dict(t=fl[3].t, tag="wtre", m0=None, ds=None), dict(t=fl[5].t, tag="wtim", m0=None, ds=None, pre=[fl[4]])]
        for d in q3:
            d["ear"] = (o["chk1"] if d["tag"] == "x1" else o["chkW"]) + 1
        q1 += q3
        q1.sort(key=lambda d: d["ear"])
        for g in range(G.n):
            if g in G.light:
                bg_barrier([k for k, v in bar_gap.items() if v == g][0])
                continue
            behind = g > o["trprio"] and bg.ntr < (g - 146)
            s, m = bg_step(32 * g, 1, 2 if behind else 1)
            G.s[g] += s
            G.m[g] += m
        assert not q1 and bg.nd == 28 and bg.ntr >= 64, (bg.vis, bg.nd, bg.ntr)
        self.log(f"wd issue gaps {[v//32 for v in bg.t_issue.values()]} read gaps {[v//32 for v in bg.t_read.values()]}")
        gol = f"buffer_load_dword v{vP}, v{vPg}, {srd(sDBG)}, 0 offen sc1"
        G.m[o["go_ld"]].append(I(gol, tag="go"))
        G.post[o["go_chk"]].append(self.poll_check("go", "go", gol, vP))
        assert o["go_chk"] < o["x1flag"]
        G.s[139] += self.stamp("A")
        g, left = G.pour(lq[:n_early], 0, min(o["go_ld"], 70) - 1)
        assert not left
        ge = g
        dpp = "quad_perm:[2,3,0,1] row_mask:0xf bank_mask:0xf"
        xq = [["s_mov_b32 vcc_lo, 0x33333333", "s_mov_b32 vcc_hi, 0x33333333"]]
        xq += [f"v_fmac_f32 v{vA2+j}, v{vSg}, v{vAX+j}" for j in range(16)]
        xq += [f"v_cvt_pk_bf16_f32 v{vAX+j}, v{vA2+2*j}, v{vA2+2*j+1}" for j in range(8)]
        xq += [f"v_cndmask_b32_dpp v{vAX+8+j}, v{vAX+4+j}, v{vAX+j}, vcc {dpp}" for j in range(4)]
        xq += [I(f"buffer_store_dwordx4 {vr(vAX+8,4)}, v{vX1g}, {srd(sWS)}, 0 offen sc1", tag="x1s")]
        xq += ["s_not_b64 vcc, vcc"]
        xq += [f"v_cndmask_b32_dpp v{vAX+12+j}, v{vAX+j}, v{vAX+4+j}, vcc {dpp}" for j in range(4)]
        xq += [I(f"buffer_store_dwordx4 {vr(vAX+12,4)}, v{vX1g}, {srd(sWS)}, s{s8k} offen sc1", tag="x1s")]
        assert o["pclr"] > ge
        for hf in range(2):
            g = o["pclr"] + 2 * hf
            G.m[g + (g in G.light)].append(I(f"buffer_store_dwordx4 {vr(vT,4)}, v{vL16}, {srd(sWS)}, s{sPs} offen offset:{1024*hf} sc1", tag="pcl"))
        g, left = G.pour(xq, Dg[27] + 3, 137, window=2)
        self.log(f"dft ends at gap {Dg[27]}, x1 stored at gap {g}")
        assert not left and not (Dg[27] + 3 <= o["go_chk"] <= g)
        g, left = G.pour(lq[n_early:], ge, 139)
        assert not left, len(left)
        g, left = G.pour(lq2, max(g, 100), min(o["chk1"], 160))
        self.log(f"late setup ends at gap {g}, left {len(left)}")
        assert not left

        def nl(g):
            while g in G.light:
                g += 1
            return g
        eq = []
        for n in range(4):
            eq += self.epi(vAA + 16 * n, vE) + ([] if o["hbatch"] else [self.hstore(vAA, n, "hA")])
        gx = nl(o["x1flag"])
        G.m[gx].append(self.flag_store(sFx, ["x1s", "pcl"]))
        gend, left = G.pour(eq, 141, budget=o["epi_budget"])
        assert not left, len(left)
        if o["hbatch"] == 1:
            for n in range(4):
                gend = nl(gend + 1)
                G.m[gend].append(self.hstore(vAA, n, "hA"))
        self.log(f"group A epilogue ends at gap {gend}; wd dmas {bg.nd} trs {bg.ntr}")
        g1 = nl(o["poll1"])
        pl = f"buffer_load_dword v{vPr}, v{vPa}, {srd(sWS)}, 0 offen sc1"
        pw = f"buffer_load_dword v{vPr}, v{vPw}, {srd(sWS)}, 0 offen sc1"
        G.m[g1].append(I(pl, tag="p1"))
        assert o["pollW"] > o["chk1"]
        G.m[nl(o["pollW"])].append(I(pw, tag="pW"))
        if o["stop"] != "gemm1":
            G.post[o["chk1"]].append(self.poll_check("p1", "p1", pl, vPr))
            G.post[o["chkW"]].append(self.poll_check("pW", "pW", pw, vPr))
        pollH = f"buffer_load_dword v{vPr}, v{vPh}, {srd(sWS)}, s{sFp} offen sc1"
        gpa = o["pollA"]
        if gpa < 252:
            assert gpa > o["chkW"]
            G.m[nl(gpa)].append(I(pollH, tag="pA"))
        gh = o["hAflag"]
        if gh < 252:
            assert gh > gend
            G.m[nl(gh)].append(self.flag_store(sFh, "hA"))

        rec = Rec()
        for n in range(4):
            rec.e(self.epi_pk(vAB + 16 * n, vE))
            rec.e(self.hstore(vAB, n, "hB"))
            rec.mark(f"e{n}")
        rec.mark("epi")
        self.p = rec
        self.fft_body(lambda name, dt: rec.mark(name))
        self.p = p
        if o["fft_head"] == "B":
            names = [x.name if isinstance(x, Mark) else None for x in rec.items]
            i0, i1 = names.index("h0"), names.index("s1")
            rds = [x for x in rec.items[i0:i1] if isinstance(x, I) and x.t.startswith("ds_read")]
            rec.items = [W(ds="all")] + rec.items[:i0] + rec.items[i1:]
            barW[13].vm.append("x1")
            assert gend < bar_gap[13]
            for k_, x in enumerate(rds):
                G.m[bar_gap[13] + 3 + k_].append(x)
        for x in filter(None, o["st1"].split(",")):
            G.s[int(x)] += self.stamp("@" + x)
        if o["align"]:
            p.raw("s_branch L_body")
            p.raw("@SLOW@")
            p.raw(".p2align 12")
            p.raw("L_body:")
        e(W(vm="w0", ds="fw"))
        e("s_barrier")
        e([xread(0, 0)] + wread(0) + [xread(0, 1)] + wread(1) + [fread(0), xread(1, 0), xread(1, 1)] + wread(2) + [fread(1)])
        e(self.stamp("data0"))
        e(W(ds=["wf0", "xr0_1"]))
        G.emit(p)
        e(self.stamp("B"))
        stop1 = o["stop"] == "gemm1"
        if o["hbatch"] == 2:
            e([self.hstore(vAA, n, "hA") for n in range(4)])
        e([f"s_add_u32 s{sHst}, s{sHst}, 114688", f"s_add_u32 s{sHst1}, s{sHst1}, 114688"])
        hring = o["hring"]
        hreg = [vAB + 4 * n for n in range(hring)]
        xs = o["xsp"]
        seq = [(0, s_) for s_ in range(14)] + [(1, s_) for s_ in range(xs)] + [(0, s_) for s_ in range(14, 28)] + \
              [(1, s_) for s_ in range(xs, 28)]
        firstB = 14 + xs
        npre_h = min(hring, firstB)
        lset = [n for n in range(npre_h, 56) if seq[n][1] < 14][:o["nlds"]]
        self.hc = None
        dset = [n for n in range(56) if n not in lset]
        hr = {n: hreg[m % hring] for m, n in enumerate(dset)}
        hr.update({n: vWF + 4 * (m % 4) for m, n in enumerate(lset)})
        hfree = {n: (2 * dset[m - hring] + 1 if m >= hring else 0) for m, n in enumerate(dset)}

        self.hm = None
        sZm = sWo + 4
        e([f"s_mul_i32 s{sZm}, s{sWv}, 14336", f"s_add_u32 s{sZm}, s{sZm}, {ZS}"])

        def hload(n):
            ph_, step = seq[n]
            c = (step // 14) * 114688 + (step % 14) * 1024
            s_ = []
            if self.hc is None or not 0 <= c - self.hc <= 3072 or (n in lset and 1024 * lset.index(n) < c - self.hc):
                self.hc = c
                s_.append(f"s_mov_b32 s{sHc}, {c}")
            imm = c - self.hc
            if n in lset:
                mb = 1024 * lset.index(n) - imm
                if mb != self.hm:
                    self.hm = mb
                    s_.insert(0, f"s_add_u32 m0, s{sZm}, {mb}")
                t_ = f"buffer_load_dwordx4 v{vH+ph_}, {srd(sWS)}, s{sHc} offen offset:{imm} sc1 lds"
            else:
                t_ = f"buffer_load_dwordx4 {vr(hr[n],4)}, v{vH+ph_}, {srd(sWS)}, s{sHc} offen offset:{imm} sc1"
            return s_, I(t_, tag=f"h{n}")
        preq = list(range(npre_h)) + lset
        names = [x.name if isinstance(x, Mark) else None for x in rec.items]
        i0, i1, i2 = (0, 0, 0) if o["fft_head"] == "B" else (names.index("h0"), names.index("s1"), names.index(o["fft_head"]))
        if i2 < i0:
            head = rec.items[i0:i1 + 1]
            rest = rec.items[i2 + 1:i0]
            rec.items = rec.items[:i2 + 1] + head + rest[:24] + [W(ds="all"), Mark("dsq")] + rest[24:] + rec.items[i1 + 1:]
        ev = []
        st_ = dict(nh=0, lim=0, epi=False, ne=0)
        if gh >= 252:
            ev.append((o["t_hAflag"], [self.flag_store(sFh, "hA")], None))
        if gpa >= 252:
            ev.append((o["t_pollA"], self.spoll_load(sFp) if o["spA"] else [I(pollH, tag="pA")], None))
        if not stop1:
            ev.append((o["t_chkA"], [self.spoll_check("pA", pollH, vPr) if o["spA"] else self.poll_check("pA", "pA", pollH, vPr)], "lim"))
        ev.append((o["t_hBflag"], [f"s_add_u32 s{sFh}, s{sFh}, {128*128}", self.flag_store(sFh, "hB")], None))
        if o["pollB_ld"] < 0:
            ev.append((o["t_pollB"], [f"s_add_u32 s{sFp}, s{sFp}, {128*128}"] + (self.spoll_load(sFp) if o["spB"] else [I(pollH, tag="pB")]), None))
            assert o["t_pollB"] > o["t_chkA"]
        ev.sort(key=lambda x: x[0])
        T_E = 252 * 32
        t, nxt, prevk = 0, max(0, bg.nxt - T_E), "M"
        for x in rec.items:
            if isinstance(x, Mark):
                self.log(f"  est t={t} {x.name}: wd dmas {bg.nd} trs {bg.ntr} hloads {st_['nh']}")
                if x.name in o["only"].split(",") or x.name == "epi":
                    e(self.stamp(x.name))
                if x.name in ("e0", "e1", "e2", "e3"):
                    st_["ne"] += 1
                if x.name == ("tw2" if o["fft_head"] == "B" else "s1"):
                    st_["epi"] = True
                if x.name == "h2":
                    e(W(vm="d6"))
                if x.name == "epi":
                    if stop1:
                        e("s_branch L_fin")
                continue
            e(x)
            tx = txt(x)
            k = kind(tx)
            if k == "M":
                t += 16
            elif not tx:
                t += 4 if x.ds == "all" or x.vm else 50
            elif tx == "s_barrier":
                t += 40
            else:
                t += 4 * cost(tx) + (28 if prevk == "M" and k == "V" and tx.startswith("v_pk") else 0)
            if k == "G":
                nxt = max(nxt, t) + o["perS"]
            prevk = k
            if tx.startswith("s_cmp") or tx.startswith("ds_write") or (not tx) or tx == "s_barrier" or tx.startswith("ds_read"):
                continue
            while ev and ev[0][0] <= t:
                _, its, cb = ev.pop(0)
                e(its)
                t += 16
                if cb:
                    st_["lim"] = hring
                else:
                    nxt = max(nxt, t) + o["perE"] // 2
            if t >= nxt - (24 if k == "M" else 0):
                s_, m_ = [], []
                if preq and st_["lim"] and (st_["epi"] if preq[0] in lset else preq[0] < 4 * st_["ne"]):
                    s_, m_ = hload(preq.pop(0))
                    m_ = [m_]
                    st_["nh"] += 1
                if m_:
                    e(s_)
                    e(m_)
                    t += 0 if k == "M" else 4 * (len(s_) + len(m_)) + 8
                    nxt = max(nxt + o["perE"], t)
        for _, its, cb in ev:
            e(its)
        while st_["nh"] < 2:
            e(hload(preq.pop(0)))
            st_["nh"] += 1
        now = [T_E + t]
        e(self.stamp("fft"))
        self.log(f"after fft (est t={t}): wd dmas {bg.nd} trs {bg.ntr} hloads {st_['nh']}")
        if o["stop"] == "fft":
            e("s_branch L_fin")

        accp, acco, acca = vAA, vAA + 32, vAB + 48
        assert hring == 16
        LZ, NZ = 5, 6
        zreg = [vWF, vWF + 4, vWF + 8, vWF + 12, vAX, vAX + 4]
        vZd, vZr, vGv, vOo, vRw, vRr, vHl = range(vXr, vXr + 7)

        own_fi = [vT1c + 4 * a for a in range(8)] + [vAX + 8, vAX + 12, vS32 + 24, vS32 + 28, vS32 + 18, vDd]
        vW1, vW2, vR1, vR2, vR3, vZr1 = vFr, vSg, vX1g, vPa, vPg, vXr + 7

        def fi_reg(m):
            return ("a", 224 + 4 * ((m >> 1) % 8)) if m & 1 else ("v", own_fi[m >> 1])

        def fi_loc(a, rd):
            if a < 4:
                return (vR1 if rd else vW1), 4096 * (a & 1) + 16384 * (a >> 1)
            if a < 7:
                return (vR2 if rd else vW2), 4096 * (a - 4)
            return (vR3 if rd else vRw), 1024 * (a - 7)
        mf = []
        for n, (ph_, step) in enumerate(seq):
            for u in (1, 0):
                d = vr((acco if ph_ else accp) + 16 * u, 16)
                mf.append(f"v_mfma_f32_32x32x16_bf16 {d}, {vr(4*(2*step+u),4,'a')}, {vr(hr[n],4)}, {d if step else 0}")
        for ks in range(28):
            c, b = fi_reg(ks)
            d = vr(acca, 16)
            mf.append(f"v_mfma_f32_32x32x16_bf16 {d}, {vr(b,4,c)}, {vr(zreg[ks%NZ],4)}, {d if ks else 0}")
        G = Gaps(mf)
        gb = 112 - LZ - 1
        gP = 2 * (28 + xs)
        gbp, gbo = gP + 7, 112 + 8
        G.light = {gb, gbp, gbo}
        busy = set(G.light)
        gpb = o["pollB_chk"]
        if o["pollB_ld"] >= 0:
            G.s[o["pollB_ld"]].append(f"s_add_u32 s{sFp}, s{sFp}, {128*128}")
            G.m[o["pollB_ld"]] += self.spoll_load(sFp) if o["spB"] else [I(pollH, tag="pB")]
            busy.add(o["pollB_ld"])
        G.post[gpb].append(self.spoll_check("pB", pollH, vPr) if o["spB"] else self.poll_check("pB", "pB", pollH, vPr))
        G.light.add(gpb)
        busy |= {o["zflag"], o["pollZ_ld"]}
        pend = sorted(preq + [n for n in range(npre_h, 56) if n not in lset])
        hgap = {}
        lastg = -9
        for g in range(112):
            if g in busy or g - lastg < o["hramp"]:
                continue
            for n in pend:
                if (n in lset or g >= hfree[n]) and (seq[n][1] < 14 or g > gpb):
                    s_, m_ = hload(n)
                    G.s[g] += s_
                    G.m[g].append(m_)
                    hgap[n] = lastg = g
                    pend.remove(n)
                    assert g < 2 * n - (8 if n in lset else 1), (n, g)
                    break
        assert not pend
        self.log(f"h load gaps {sorted(hgap.items())}")
        busy |= set(hgap.values())
        for n in range(1, 56):
            if n in lset:
                g = 2 * n - 6
                G.m[g - (g in G.light)].append(I(f"ds_read_b128 {vr(hr[n],4)}, v{vHl} offset:{1024*lset.index(n)}", tag=f"hr{n}", vm=f"h{n}"))
                G.s[2 * n - 1].insert(0, W(ds=f"hr{n}"))
            else:
                G.s[2 * n - 1].insert(0, W(vm=f"h{n}"))
        bg.vis = set(range(7))
        g = 0
        first_use = {}
        for n, (ph_, step) in enumerate(seq):
            first_use.setdefault(step // 4, 2 * n)
        while bg.ntr < 112:
            if g not in G.light:
                assert g < first_use[bg.ntr // 16] - 4
                G.m[g] += bg_step(10 ** 6, 0, o["g2tr"])[1]
            g += 1
        for sg in range(4, 7):
            G.s[first_use[sg] - 1].insert(0, W(ds=f"dr{sg}"))
        gz = o["zflag"]
        sFz = sWo + 2
        self.put_scalars(G, [f"s_lshl_b32 s{sFz}, s{sWv}, 8", f"s_add_u32 s{sFz}, s{sFz}, s{sKd}",
                             f"s_lshl_b32 s{sFz}, s{sFz}, 5", f"s_add_u32 s{sFz}, s{sFz}, {FZ}"], 0, gz)
        G.m[gz].append(self.flag_store(sFz, ["zre", "zim"]))
        sZo, sZp = sWo + 3, sWo
        vPz = vTr
        pollZ = f"buffer_load_dword v{vPr}, v{vPz}, {srd(sWS)}, 0 offen sc1"
        gl, gc = o["pollZ_ld"], o["pollZ_chk"]
        assert gl > gpb
        G.m[gl].append(I(pollZ, tag="pZ"))
        G.post[gc].append(self.poll_check("pZ", "pZ", pollZ, vPr))
        g = gc + 1
        zst = [int(x) for x in o["zst"].split(",")]
        assert sum(zst) == 14
        zbar = {}
        acc_ = 0
        for n_ in zst:
            zb = 112 + 2 * acc_ - LZ - 1
            acc_ += n_
            zbar[zb] = acc_ - 1
        G.light |= set(zbar)
        busy |= set(zbar)
        for i in range(14):
            while g in busy:
                g += 1
            if i < len(lset):
                while g < 2 * lset[i] or g in busy:
                    g += 1
            G.s[g] += [f"s_add_u32 m0, s{sZm}, {1024*i}"]
            G.m[g] += [f"s_mov_b32 s{sZo}, {131072*i}",
                       I(f"buffer_load_dwordx4 v{vZd}, {srd(sWS)}, s{sZo} offen sc1 lds", tag=f"z{i}")]
            assert all(g < zb for zb, last in zbar.items() if last >= i), (i, g)
            busy.add(g)
            g += o["zsp"]
        self.log(f"last z dma at gap {g}, z barriers {zbar}")
        for zb, last in zbar.items():
            if zb == gbo:
                G.s[zb] += [W(vm=f"z{last}")]
            else:
                G.s[zb] += [W(vm=f"z{last}", ds="fw6" if zb == gb else None), "s_barrier"]
        for a in range(14):
            g = 112 + 2 * a + 1 - LZ
            r_, off = fi_loc(a, True)
            assert g > (gb if a < 7 else gbo)
            G.m[g - (g in G.light)].append(I(f"ds_read_b128 {vr(fi_reg(2*a+1)[1],4,'a')}, v{r_} offset:{off}"))
        for ks in range(28):
            b = zreg[ks % NZ]
            g = 112 + ks - LZ
            G.m[g - (g in G.light)] += [I(f"ds_read_b64_tr_b16 {vr(b+2*h,2)}, v{vZr1 if ks & 1 else vZr} offset:{h*14336+(ks>>1)*1024}", tag=f"zf{ks}") for h in range(2)]
        for ks in range(-1, 27, 2):
            G.s[112 + ks].insert(0, W(ds=f"zf{min(ks+2,27)}"))
        st = vS32
        x0, x1, x2, x3, ph, stp = range(vS32 + 18, vS32 + 24)
        pkb = vS32 + 24
        sU_, sI_ = sWo + 5, sWo + 6
        pre = [f"s_and_b32 s{sI_}, s{sWv}, 1", f"s_lshr_b32 s{sU_}, s{sWv}, 1"]
        vq = [f"v_add_u32 v{vHl}, s{sZm}, v{vL16}", f"v_add_u32 v{vRw}, s{sXm}, v{vL16}", f"s_xor_b32 s{sFs}, s{sWv}, 2", f"s_lshl_b32 s{sFs}, s{sFs}, 14",
              f"s_add_u32 s{sFs}, s{sFs}, {XS}", f"v_add_u32 v{vRr}, s{sFs}, v{vL16}"]
        pre += [f"s_lshl1_add_u32 s{sT0}, s{sCt}, s{sU_}", f"s_lshl_b32 s{sT0}, s{sT0}, 5", f"s_mov_b32 s{sT2}, {STEP448}"]
        pre += [f"s_lshr_b32 s{sZp}, s{sRt}, 3", f"s_lshl_b32 s{sZp}, s{sZp}, 8", f"s_add_u32 s{sZp}, s{sZp}, {FZ//32}",
                f"s_lshl2_add_u32 s{sC}, s{sWv}, s{sZp}", f"s_addk_i32 s{sZp}, 224",
                f"s_lshl2_add_u32 s{sFx}, s{sRt}, {FG//32}"]
        vq += [f"v_and_b32 v{x0}, 60, v0", f"v_mul_u32_u24 v{x0}, 3, v{x0}", f"v_add3_u32 v{vPz}, v{x0}, v0, s{sC}",
               f"v_subrev_u32 v{x0}, 56, v0", f"v_ashrrev_i32 v{x0}, 31, v{x0}",
               f"v_bfi_b32 v{vPz}, v{x0}, v{vPz}, s{sZp}", f"v_subrev_u32 v{x0}, 60, v0", f"v_ashrrev_i32 v{x0}, 31, v{x0}",
               f"v_bfi_b32 v{vPz}, v{x0}, v{vPz}, s{sFx}", f"v_lshlrev_b32 v{vPz}, 5, v{vPz}"]
        vq += [f"v_and_b32 v{x0}, 3, v0", f"v_bfe_u32 v{x1}, v0, 2, 1", f"v_lshl_add_u32 v{x0}, v{x1}, 4, v{x0}",
               f"v_bfe_u32 v{x1}, v0, 3, 2", f"v_lshl_add_u32 v{x0}, v{x1}, 2, v{x0}",
               f"v_add_u32 v{x0}, s{sT0}, v{x0}", f"v_mul_lo_u32 v{stp}, v{x0}, s{sT2}",
               f"v_lshrrev_b32 v{x1}, 5, v0", f"v_lshl_add_u32 v{x2}, s{sI_}, 2, v{x1}", f"v_lshlrev_b32 v{x2}, 1, v{x2}",
               f"v_mul_lo_u32 v{ph}, v{x2}, v{stp}", f"v_lshlrev_b32 v{x2}, 4, v{stp}"]
        vq += self.trig(st + 16, x2, x3)
        for ks in range(2):
            for jj in range(4):
                vq += [f"v_alignbit_b32 v{x3}, s{s7f}, v{ph}, 9", f"v_cos_f32 v{st+8*ks+2*jj}, v{x3}",
                       f"v_sin_f32 v{st+8*ks+2*jj+1}, -v{x3}"]
                if jj == 3 and ks == 1:
                    continue
                if jj & 1:
                    vq += [f"v_lshl_add_u32 v{ph}, v{stp}, 1, v{ph}"]
                if jj == 3:
                    vq += [f"v_lshl_add_u32 v{ph}, v{stp}, 3, v{ph}"]
                vq += [f"v_add_u32 v{ph}, v{ph}, v{stp}"]
        vq += [f"v_mul_f32 v{st+17}, -2.0, v{st+16}", f"v_add_f32 v{st+16}, v{st+16}, v{st+16}"]
        vq += self.rec_pack(st, 0, own_fi[0]) + self.rec_pack(st, 1, own_fi[1])
        f0 = fi_reg(0)[1]
        vq += [f"v_lshlrev_b32 v{x2}, 31, v{x0}", f"v_or_b32 v{x2}, 0x3f803f80, v{x2}", f"v_add3_u32 v{x3}, v{x1}, s{sI_}, -1",
               f"v_ashrrev_i32 v{x3}, 31, v{x3}", f"v_bfi_b32 v{f0}, v{x3}, v{x2}, v{f0}",
               f"v_and_b32 v{x3}, 31, v0", f"v_lshrrev_b32 v{x0}, 3, v{x3}"]
        pre += [f"s_lshr_b32 s{sT3}, s{sRt}, 3", f"s_and_b32 s{s8k}, s{sRt}, 1",
                f"s_lshl1_add_u32 s{sT3}, s{sT3}, s{s8k}", f"s_lshl1_add_u32 s{sT3}, s{sT3}, s{sI_}",
                f"s_bfe_u32 s{s8k}, s{sRt}, 0x20001", f"s_lshl4_add_u32 s{sT3}, s{sT3}, s{s8k}",
                f"s_lshl_b32 s{sT3}, s{sT3}, 3"]
        vq += [f"v_and_b32 v{x2}, 4, v0", f"v_lshl_add_u32 v{x2}, v{x0}, 5, v{x2}", f"v_add3_u32 v{x2}, v{x2}, v{x1}, s{sT3}",
               f"v_mul_u32_u24 v{vOo}, 896, v{x2}", f"v_and_b32 v{x2}, 48, v{vL16}", f"v_lshl_add_u32 v{x2}, s{sT0}, 1, v{x2}",
               f"v_add_u32 v{vOo}, v{x2}, v{vOo}"]
        sGo = sHst
        pre += [f"s_lshl1_add_u32 s{sGo}, s{sRt}, s{sI_}", f"s_lshl_b32 s{sGo}, s{sGo}, 7", f"s_add_u32 s{sGo}, s{sGo}, {GOFF}"]
        vq += [f"v_lshlrev_b32 v{vGv}, 2, v{x3}"]
        G.m[gc + 1].append(I(f"buffer_load_dword v{vGv}, v{vGv}, {srd(sWS)}, s{sGo} offen sc1", tag="g"))
        pre += [f"s_lshl_b32 s{sRot2}, s{sWv}, 8", f"s_add_u32 s{sRot2}, s{sRot2}, s{sRt}", f"s_lshl_b32 s{sRot2}, s{sRot2}, 7",
                f"s_add_u32 s{sRot2}, s{sRot2}, {ZT}",
                f"s_lshl_b32 s{sHst1}, s{sI_}, 9", f"s_add_u32 s{sHst1}, s{sHst1}, {ZS}"]
        vq += [f"v_bfe_u32 v{x2}, v0, 2, 3", f"v_and_b32 v{x0}, 3, v0", f"v_lshl_add_u32 v{vZd}, v{x1}, 2, v{x0}",
               f"v_lshlrev_b32 v{vZd}, 4, v{vZd}", f"v_lshl_add_u32 v{vZd}, v{x2}, 12, v{vZd}", f"v_add_u32 v{vZd}, s{sRot2}, v{vZd}",
               f"v_and_b32 v{x2}, 3, v{x2}", f"v_lshl_add_u32 v{x2}, v{x1}, 2, v{x2}", f"v_lshlrev_b32 v{vZr}, 6, v{x2}",
               f"v_bfe_u32 v{x2}, v0, 4, 1", f"v_lshl_add_u32 v{vZr}, v{x2}, 5, v{vZr}", f"v_lshl_add_u32 v{vZr}, v{x0}, 3, v{vZr}",
               f"v_add_u32 v{vZr}, s{sHst1}, v{vZr}",
               f"s_mul_i32 s{sFs}, s{sI_}, 28672", f"v_subrev_u32 v{vZr1}, s{sFs}, v{vZr}", f"v_add_u32 v{vZr1}, 28672, v{vZr1}",
               f"v_add_u32 v{vZr}, s{sFs}, v{vZr}",
               f"v_lshl_add_u32 v{vW1}, s{sWv}, 10, v{vL16}", f"v_xor_b32 v{vR1}, 0x400, v{vW1}",
               f"v_add_u32 v{vW2}, {FS}, v{vW1}", f"v_add_u32 v{vR2}, {FS}, v{vR1}",
               f"s_xor_b32 s{sFs}, s{sWv}, 1", f"s_lshl_b32 s{sFs}, s{sFs}, 14", f"s_add_u32 s{sFs}, s{sFs}, {XS}",
               f"v_add_u32 v{vR3}, s{sFs}, v{vL16}"]
        for j in range(4):
            G.m[gP + 1 + j].append(I(f"ds_write_b128 v{vRw}, {vr(accp+16+4*j,4)} offset:{8192+1024*j}", tag="rwp"))
            G.m[gbp + 1 + j // 2].append(I(f"ds_read_b128 {vr(accp+16+4*j,4)}, v{vRr} offset:{8192+1024*j}", tag=f"rrp{j//2}"))
        G.s[gbp] += [W(ds="rwp"), "s_barrier"]
        g = gbp + 4
        for hf in range(2):
            G.s[g].append(W(ds=f"rrp{hf}"))
            pq = [f"v_add_f32 v{accp+8*hf+j}, v{accp+8*hf+j}, v{accp+16+8*hf+j}" for j in range(8)]
            pq += [f"v_cvt_pk_bf16_f32 v{accp+8*hf+j}, v{accp+8*hf+2*j}, v{accp+8*hf+2*j+1}" for j in range(4)]
            pq += [f"v_min_u32 v{accp+8*hf}, -2, v{accp+8*hf}"]
            pq += [I(f"buffer_store_dwordx4 {vr(accp+8*hf,4)}, v{vL16}, {srd(sWS)}, s{sPs} offen offset:{1024*hf} sc1", tag="ps")]
            g, left = G.pour(pq, g)
        self.log(f"partial stored at gap {g}")
        assert o["pld"] > g + 2
        pld = [f"buffer_load_dwordx4 {vr(accp+4*hf,4)}, v{vL16}, {srd(sWS)}, s{sPl} offen offset:{1024*hf} sc1" for hf in range(2)]
        for hf in range(2):
            G.m[o["pld"] + hf].append(I(pld[hf], tag="pl"))
        pchk = [f"v_max_u32 v{vPr}, v{accp}, v{accp+4}", f"v_cmp_eq_u32 vcc, -1, v{vPr}"]
        self.slow += ["L_slow_pP:", f"s_mov_b32 s{sCnt}, 0", "L_spin_pP:"] + pld + ["s_waitcnt vmcnt(0)"] + pchk + \
            ["s_cbranch_vccz L_back_pP", f"s_sleep {o['sleep']}", f"s_add_u32 s{sCnt}, s{sCnt}, 1", f"s_cmp_lt_u32 s{sCnt}, {o['spin']}",
             "s_cbranch_scc1 L_spin_pP", "s_endpgm"]
        rdo = vAB + 32
        for j in range(4):
            G.m[113 + j].append(I(f"ds_write_b128 v{vRw}, {vr(acco+16+4*j,4)} offset:{12288+1024*j}", tag="rwo"))
            G.m[gbo + 1 + j].append(I(f"ds_read_b128 {vr(rdo+4*j,4)}, v{vRr} offset:{12288+1024*j}", tag="rro"))
        G.s[gbo] += [W(ds="rwo"), "s_barrier"]
        g, left = G.pour(vq[:1] + pre + vq[1:], 0)
        self.log(f"g2 setup done at gap {g}")
        assert g < gl
        def fwr(a):
            r_, off = fi_loc(a, False)
            return I(f"ds_write_b128 v{r_}, {vr(own_fi[a],4)} offset:{off}", tag=f"fw{a}")
        qq = [fwr(0), fwr(1)]
        for a in range(2, 14):
            qq += self.rec_step(st, a, own_fi[a]) + ([fwr(a)] if a < 7 else [])
        g, left = G.pour(qq, g + 1, gb - 3, budget=o["fi_budget"])
        assert not left
        gw = max(g + 1, o["fw_at"], gbp + 1)
        for a in range(7, 14):
            while gw in G.light:
                gw += 1
            G.m[gw].append(fwr(a))
            gw += 2
        assert gw <= 113, gw
        self.log(f"finv done at gap {g}")
        og = vXd + 2
        G.s[gbo + 8].append(W(vm="g", ds="rro"))
        oq = [f"v_mov_b32 v{og}, v{vGv}", f"v_sub_f32 v{vWd}, 1.0, v{vGv}"]
        oq += [f"v_add_f32 v{acco+j}, v{acco+j}, v{rdo+j}" for j in range(16)]
        g, oleft = G.pour(oq, gbo + 8)
        pu = accp + 16
        pq = []
        for k in range(8):
            pq += [f"v_lshlrev_b32 v{pu+2*k}, 16, v{accp+k}", f"v_and_b32 v{pu+2*k+1}, 0xffff0000, v{accp+k}"]

        def pcheck(p):
            p.e([W(vm="pl")] + pchk + ["s_cbranch_vccnz L_slow_pP"])
            p.raw("L_back_pP:")
        if o["pchk"] < 140:
            G.post[o["pchk"]].append(pcheck)
            g, pq = G.pour(pq, max(g, o["pchk"] + 1))
        for x in filter(None, o["st2"].split(",")):
            G.s[int(x)] += self.stamp("@" + x)
        G.s[111] += self.stamp("g2h")

        assert st_["nh"] >= 1
        e(W(vm="h0"))
        G.emit(p)
        e(self.stamp("g2"))
        e(oleft)
        if o["pchk"] >= 140:
            e(pcheck)
        e(pq)
        e(["s_mov_b32 vcc_lo, 0x55555555", "s_mov_b32 vcc_hi, 0x55555555"])
        for k in range(8):
            e(f"v_pk_add_f32 {vr(acco+2*k,2)}, {vr(acco+2*k,2)}, {vr(pu+2*k,2)}")
        for k in range(8):
            e(f"v_pk_mul_f32 {vr(acco+2*k,2)}, {vr(acco+2*k,2)}, {vr(vWd,2)} op_sel_hi:[1,0]")
        for k in range(8):
            e(f"v_pk_fma_f32 {vr(acca+2*k,2)}, {vr(acca+2*k,2)}, {vr(og,2)}, {vr(acco+2*k,2)} op_sel_hi:[1,0,1]")
        R, S_ = accp, accp + 8
        for k in range(8):
            e(f"v_cvt_pk_bf16_f32 v{R+k}, v{acca+2*k}, v{acca+2*k+1}")

        def xchg(dst, src, perm):
            d_ = f"quad_perm:{perm} row_mask:0xf bank_mask:0xf"
            e([f"v_cndmask_b32_dpp v{dst+j}, v{src+4+j}, v{src+j}, vcc {d_}" for j in range(4)])
            yield
            e("s_not_b64 vcc, vcc")
            e([f"v_cndmask_b32_dpp v{dst+4+j}, v{src+j}, v{src+4+j}, vcc {d_}" for j in range(4)])
            yield
        list(xchg(S_, R, "[1,0,3,2]"))
        e(["s_mov_b32 vcc_lo, 0x33333333", "s_mov_b32 vcc_hi, 0x33333333"])
        e([f"v_permlane32_swap_b32 v{S_+j}, v{S_+4+j}" for j in range(4)])
        for half, _ in enumerate(xchg(R, S_, "[2,3,0,1]")):
            e(f"buffer_store_dwordx4 {vr(R+4*half,4)}, v{vOo}, {srd(sO)}, 0 offen offset:{1792*half} {o['outfl'].replace('+',' ')}".strip())
        p.raw("L_fin:")
        self.dump_stamps()
        p.raw("L_end:")
        p.raw("s_endpgm")

        p.restore(snap_aux)
        self.aux(sj, sidx)
        if o["align"]:
            i = p.out.index("@SLOW@")
            p.out[i:i + 1] = self.slow
        else:
            for l in self.slow:
                p.raw(l)
        p.raw("L_codeend:")
        return self.finish()

    def dump_stamps(self):
        if not self.o["stamps"]:
            return
        p = self.p
        p.raw("s_waitcnt vmcnt(0)")
        p.e(self.stamp("end"))
        p.raw("s_waitcnt lgkmcnt(0)")
        p.e([f"s_lshl_b32 s{sT0}, s2, 2", f"s_add_u32 s{sT0}, s{sT0}, s{sWv}", f"s_lshl_b32 s{sT0}, s{sT0}, 6",
             f"s_add_u32 s{sT0}, s{sT0}, {STAMP}", "s_mov_b64 exec, 1"])
        p.e([f"s_memrealtime s[{sT2}:{sT3}]"])
        for k in range(self.nst):
            p.e([f"v_mov_b32 v2, s{sX if k == self.nst-1 else sST+2*k}", f"buffer_store_dword v2, off, {srd(sWS)}, s{sT0} offset:{4*k}"])
        p.raw("s_waitcnt lgkmcnt(0)")
        p.e([f"v_mov_b32 v2, s{sT2}", f"buffer_store_dword v2, off, {srd(sWS)}, s{sT0} offset:60"])

    def aux_tok(self, tok):
        p = self.p
        e = p.e
        sA, vt16 = sRt, 2
        vx, vw, vd = 12, 13, 14

        def masked(lo, hi, ops):
            m = ((1 << hi) - 1) ^ ((1 << lo) - 1)
            e([f"s_mov_b32 exec_lo, {m & 0xffffffff:#x}", f"s_mov_b32 exec_hi, {m >> 32:#x}"] + ops + ["s_mov_b64 exec, -1"])
        if tok[0] == "x":
            a, b = int(tok[1]), int(tok[2])
            masked(0, 16 * (b - a + 1), [f"buffer_load_dword v15, v{vx}, {srd(sX)}, 0 offen offset:{128*a}"])
        elif tok[0] in "wv":
            a, b = int(tok[1]), int(tok[2])
            off = 128 if tok[0] == "v" else 0
            masked(8 * a, 8 * (b + 1), [f"buffer_load_dword v15, v{vw}, {srd(q)}, 0 offen offset:{off}" for q in (sG, sU)])
        elif tok[0] == "d":
            e(f"s_mov_b32 s{sT1}, {57344*int(tok[1])}")
            masked(0, 49, [f"buffer_load_dword v15, v{vd}, {srd(sD)}, s{sT1} offen"])
        elif tok == "clr":
            e([f"v_mov_b32 v{4+k}, 0" for k in range(4)] + [f"s_mul_i32 s{sT1}, s{sA}, {FEND//32}"])
            for k in range(2):
                e([I(f"buffer_store_dwordx4 v[4:7], v{vt16}, {srd(sWS)}, s{sT1} offen sc1", tag="clr"), f"s_addk_i32 s{sT1}, 4096"])
        elif tok == "go":
            e([f"s_lshl_b32 s{sT1}, s{sA}, 3", f"v_mov_b32 v8, 1", f"v_mov_b32 v9, s{sT0}", W(vm="clr"), "s_barrier",
               "s_mov_b64 exec, 1", f"buffer_store_dword v8, v9, {srd(sDBG)}, s{sT1} offen sc1", "s_mov_b64 exec, -1"])
        elif tok == "WT":
            sq, skg = sRg, sC
            e([f"s_lshr_b32 s{sq}, s{sA}, 3", f"s_and_b32 s{skg}, s{sA}, 7",
               f"s_lshl_b32 s{sT1}, s{sq}, 6", f"s_add_u32 s{sT1}, s{sT1}, s{skg}", f"s_mul_i32 s{sT1}, s{sT1}, 3600"])
            e([f"v_lshrrev_b32 v16, 5, v0", f"v_lshl_add_u32 v17, s{sWv}, 1, v16", f"v_mul_u32_u24 v17, 28, v17",
               f"v_and_b32 v18, 31, v0", f"v_add3_u32 v17, v17, v18, v16", f"v_add_u32 v17, -1, v17", f"v_max_i32 v17, 0, v17",
               f"v_lshlrev_b32 v17, 4, v17", f"s_mul_i32 s{sT2}, s{sWv}, 1120"])
            for j in range(8):
                for part in range(2):
                    e([f"s_add_u32 m0, s{sT2}, {(8*part+j)*RS}", "s_nop 0",
                       I(f"buffer_load_dwordx4 v17, {srd(sWr if part == 0 else sWi)}, s{sT1} offen lds", tag="wl")])
                e(f"s_add_u32 s{sT1}, s{sT1}, {64*450}")
        else:
            raise SystemExit(tok)

    def aux_head(self, sj, sidx):
        p, o = self.p, self.o
        e = p.e
        sA, vt16 = sRt, 2
        vx, vw, vd = 12, 13, 14
        e(["s_cmp_ge_u32 s2, 256", "s_cbranch_scc1 L_end"])
        e([f"s_lshl2_add_u32 s{sA}, s{sj}, s{sidx}", f"s_sub_u32 s{sA}, s{sA}, 28",
           f"s_lshl2_add_u32 s{sCnt}, s{sA}, s{sWv}",
           f"v_and_b32 v4, 15, v0", f"v_lshl_add_u32 v4, s{sCnt}, 4, v4", f"v_mul_u32_u24 v4, 896, v4",
           f"v_lshrrev_b32 v5, 4, v0", f"v_lshl_add_u32 v{vx}, v5, 7, v4",
           f"s_lshr_b32 s{sT2}, s{sj}, 1", f"s_and_b32 s{sT3}, s{sCnt}, 15", f"s_lshl4_add_u32 s{sT2}, s{sT2}, s{sT3}",
           f"s_mul_i32 s{sT2}, s{sT2}, 3584", f"s_and_b32 s{sT3}, s{sj}, 1", f"s_mul_i32 s{sT3}, s{sT3}, {7*256}",
           f"s_add_u32 s{sT2}, s{sT2}, s{sT3}",
           f"v_lshrrev_b32 v4, 3, v0", f"v_mul_u32_u24 v4, {64*3584}, v4", f"v_and_b32 v5, 7, v0", f"v_min_u32 v5, 6, v5",
           f"v_lshl_add_u32 v4, v5, 8, v4", f"v_add_u32 v{vw}, s{sT2}, v4"])
        p.raw("s_waitcnt lgkmcnt(0)")
        for s, off in ((sWr, 8), (sWi, 16), (sGw, 56)):
            e(f"s_load_dwordx2 s[{s}:{s+1}], s[0:1], {off}")
        self.toks = o["apf"].split(",")
        while self.toks[0][0] in "xwv":
            self.aux_tok(self.toks.pop(0))

    def aux(self, sj, sidx):
        p, o = self.p, self.o
        e = p.e
        p.raw("L_aux:")
        sA, vt16 = sRt, 2
        sq, skg = sRg, sC
        e([f"v_lshlrev_b32 v{vL16}, 4, v0", f"s_lshl_b32 s{sT0}, s{sWv}, 10", f"v_add_u32 v{vt16}, s{sT0}, v{vL16}",
           f"s_mul_i32 s{sCnt}, s{sCnt}, 49", f"v_add_u32 v4, s{sCnt}, v0", f"v_mul_u32_u24 v5, 9363, v4", f"v_lshrrev_b32 v5, 22, v5",
           f"v_mul_u32_u24 v5, 57344, v5", f"v_lshl_add_u32 v14, v4, 7, v5"])
        for s, n in ((sWr, 2048 * 450), (sWi, 2048 * 450), (sD, 1792 * 896), (sGw, 896), (sDBG, 256), (sWS, WSEND)):
            e([f"s_mov_b32 s{s+2}, {n}", f"s_mov_b32 s{s+3}, 0x20000"])
        e([f"s_mov_b32 s{sK}, 0xbfb8aa3b", f"s_movk_i32 s{s7f}, 0x7f"])
        p.raw("s_waitcnt lgkmcnt(0)")
        e(self.astamp("head"))
        for t in self.toks:
            self.aux_tok(t)
            if t in ("clr", "go", "WT"):
                e(self.astamp(t))
        vo, vg = 3, 8
        xb, gb = 32, 96
        e([f"s_lshr_b32 s{sT1}, s{sA}, 3", f"s_lshl_b32 s{sT1}, s{sT1}, 1", f"s_and_b32 s{sT2}, s{sA}, 1",
           f"s_add_u32 s{sT1}, s{sT1}, s{sT2}", f"s_lshl_b32 s{sT1}, s{sT1}, 2", f"s_add_u32 s{sT1}, s{sT1}, s{sWv}",
           f"s_lshl_b32 s{sT1}, s{sT1}, 3", f"s_bfe_u32 s{sT2}, s{sA}, 0x20001", f"s_add_u32 s{sT1}, s{sT1}, s{sT2}",
           f"s_lshl_b32 s{sT1}, s{sT1}, 3",
           f"v_lshrrev_b32 v4, 5, v0", f"v_bfe_u32 v5, v0, 2, 3", f"v_lshl_add_u32 v4, v4, 5, v5", f"v_add_u32 v4, s{sT1}, v4",
           f"v_and_b32 v{vg}, 48, v{vL16}", f"v_mul_u32_u24 v4, 896, v4", f"v_add_u32 v{vo}, v4, v{vg}"])
        e([f"v_and_b32 v{vPg}, 31, v0", f"v_lshlrev_b32 v{vPg}, 3, v{vPg}"])
        gol = f"buffer_load_dword v{vP}, v{vPg}, {srd(sDBG)}, 0 offen sc1"
        vra, vwa = 9, 10
        e([f"v_and_b32 v4, 7, v0", f"v_lshrrev_b32 v5, 7, v{vt16}", f"v_lshrrev_b32 v6, 1, v4", f"v_mul_u32_u24 v{vra}, 1120, v6",
           f"v_and_b32 v6, 1, v0", f"v_mul_u32_u24 v6, 496, v6", f"v_add3_u32 v{vra}, v{vra}, v6, 16",
           f"v_add_u32 v6, v4, v5", f"v_lshl_add_u32 v{vra}, v6, 1, v{vra}", f"v_add_u32 v17, {8*RS}, v{vra}",
           f"v_lshlrev_b32 v{vwa}, 13, v5", f"v_lshl_add_u32 v{vwa}, v4, 4, v{vwa}",
           f"s_lshr_b32 s{sT1}, s{skg}, 1", f"s_lshl_b32 s{sT1}, s{sT1}, 2", f"s_add_u32 s{sT1}, s{sT1}, s{sq}",
           f"s_lshl_b32 s{sT1}, s{sT1}, 1", f"s_and_b32 s{sT2}, s{skg}, 1", f"s_add_u32 s{sT1}, s{sT1}, s{sT2}",
           f"s_lshl_b32 s{sT1}, s{sT1}, 7", f"s_add_u32 s{sT1}, s{sT1}, {WT}", f"s_add_u32 s{sT2}, s{sT1}, 4096"])
        e(W(vm="wl"))
        e("s_barrier")
        e(self.astamp("wl"))
        def rd(n):
            return [I(f"ds_read_u16 v{160+8*(n&1)+j}, v{17 if n & 1 else vra} offset:{j*RS+64*(n>>1)}", tag=f"g{n}") for j in range(8)]
        e(rd(0))
        for n in range(16):
            part = n & 1
            nx = rd(n + 1) if n < 15 else []
            e(nx[:6])
            if n == 14:
                e([f"v_cmp_gt_u32 vcc, 8192, v{vwa}", "s_nop 1", f"v_cndmask_b32 v{vwa}, 2.0, v{vwa}, vcc"])
            e(W(ds=f"g{n}"))
            e(nx[6:])
            for j in range(4):
                e(f"v_lshl_or_b32 v{176+4*part+j}, v{160+8*part+2*j+1}, 16, v{160+8*part+2*j}")
            e([f"buffer_store_dwordx4 {vr(176+4*part,4)}, v{vwa}, {srd(sWS)}, s{sT1+part} offen sc1",
               f"s_add_u32 s{sT1+part}, s{sT1+part}, {32*8192}"])
        p.reset()
        e(self.astamp("gath"))
        e(I(gol, tag="go"))
        for k in range(14):
            e(I(f"buffer_load_dwordx4 {vr(xb+4*k,4)}, v{vo}, {srd(sX)}, 0 offen offset:{64*k}", tag="gx"))
            e(I(f"buffer_load_dwordx4 {vr(gb+4*k,4)}, v{vg}, {srd(sGw)}, 0 offen offset:{64*k}", tag="gx"))
            if k == 3:
                e(self.poll_check("goa", "go", gol, vP))
                e(["s_barrier", f"s_lshl_b32 s{sT3}, s{sA}, 7", f"s_add_u32 s{sT3}, s{sT3}, {FAUX}",
                   f"s_cmp_lg_u32 s{sWv}, 0", f"s_cselect_b32 s{sT2}, {OOB}, 0", f"v_mov_b32 v16, s{sT2}",
                   "s_mov_b64 exec, 1", f"buffer_store_dword v{vP}, v16, {srd(sWS)}, s{sT3} offen sc1", "s_mov_b64 exec, -1"])
                e(self.astamp("faux"))
        e(W(vm="gx"))
        for k in range(4):
            e(f"v_mov_b32 v{4+k}, 0")
        for k in range(56):
            e(f"v_dot2_f32_bf16 v{4+k%4}, v{xb+k}, v{gb+k}, v{4+k%4}")
        e([f"v_add_f32 v4, v4, v5", f"v_add_f32 v6, v6, v7", f"v_add_f32 v4, v4, v6",
           f"v_add_f32_dpp v4, v4, v4 quad_perm:[1,0,3,2] row_mask:0xf bank_mask:0xf",
           f"v_add_f32_dpp v4, v4, v4 quad_perm:[2,3,0,1] row_mask:0xf bank_mask:0xf",
           f"v_mul_f32 v4, s{sK}, v4", f"v_exp_f32 v4, v4", f"v_add_f32 v4, 1.0, v4", f"v_rcp_f32 v4, v4",
           f"v_and_b32 v5, 60, v0",
           f"s_lshl_b32 s{sT1}, s{sA}, 2", f"s_add_u32 s{sT1}, s{sT1}, s{sWv}", f"s_lshl_b32 s{sT1}, s{sT1}, 6",
           f"s_add_u32 s{sT1}, s{sT1}, {GOFF}",
           f"buffer_store_dword v4, v5, {srd(sWS)}, s{sT1} offen sc1"])
        p.raw("s_waitcnt vmcnt(0)")
        p.reset()
        e(["s_barrier", f"s_addk_i32 s{sT3}, {FG-FAUX}",
           "s_mov_b64 exec, 1", f"buffer_store_dword v{vP}, v16, {srd(sWS)}, s{sT3} offen sc1", "s_mov_b64 exec, -1"])
        if o["stamps"]:
            e(self.astamp("fg"))
            p.raw("s_waitcnt lgkmcnt(0)")
            e([f"s_lshl_b32 s{sT1}, s2, 2", f"s_add_u32 s{sT1}, s{sT1}, s{sWv}", f"s_lshl_b32 s{sT1}, s{sT1}, 6",
               f"s_add_u32 s{sT1}, s{sT1}, {STAMP}", "s_mov_b64 exec, 1"])
            for k in range(len(self.anames)):
                e([f"v_mov_b32 v2, s{sST+2*k}", f"buffer_store_dword v2, off, {srd(sWS)}, s{sT1} offset:{4*k}"])
            e("s_mov_b64 exec, -1")
        e([f"s_cmp_lg_u32 s{sA}, 4", "s_cbranch_scc1 L_end"])
        if o["stop"] == "gemm1":
            e("s_branch L_end")
        e([f"s_movk_i32 s{sKd}, 224", f"s_mov_b32 s{sSc}, {fbits(1.0/(2048*448))}"])
        e(self.fft_consts(vAB + 32))
        sc, vv = self.poll1_addr(vT + 14, vT + 15, sT1, sT2)
        e(sc)
        e(vv)
        pl = f"buffer_load_dword v{vPr}, v{vPa}, {srd(sWS)}, 0 offen sc1"
        e(I(pl, tag="p1"))
        e(self.fft_scalars())
        e(self.fft_setup_regs())
        e(self.fft_addr2())
        e(self.poll_check("p1a", "p1", pl, vPr))
        e(self.fft_loads())
        self.fft_body(lambda n, dt: None)
        e([f"s_lshl_b32 s{sT0}, s{sWv}, 13", f"s_add_u32 s{sT0}, s{sT0}, {FZ+224*32}"])
        e(self.flag_store(sT0, ["zre", "zim"]))
        p.raw("s_endpgm")

    def finish(self):
        out = self.p.out
        d = self.o["diag"].split(",")
        if "plainst" in d:
            out = [l.replace(" sc1", "") if l.startswith("buffer_store_dwordx4") else l for l in out]
        if "plainld" in d:
            out = [l.replace(" sc1", "") if l.startswith("buffer_load_dwordx4") else l for l in out]
        if "nopoll" in d:
            out = ["s_nop 0" if l.startswith("s_cbranch_vccnz L_slow") or l.startswith("s_cbranch_scc0 L_slow") else l for l in out]
        if "nost" in d:
            out = [re.sub(r"buffer_store_dwordx4 (\S+), v\d+,", r"buffer_store_dwordx4 \1, v239,", l) if l.startswith("buffer_store_dwordx4") and "sc1" in l else l for l in out]
            out = ["v_mov_b32 v239, 2.0"] + out
        if "nox1" in d:
            out = [l.replace(f", v{vX1g},", ", v239,") if l.startswith("buffer_store_dwordx4") else l for l in out]
            out = ["v_mov_b32 v239, 2.0"] + out
        if "noh" in d:
            out = [l.replace(f", v{vL16},", ", v239,") if l.startswith("buffer_store_dwordx4") and (f"s{sHst} offen" in l or f"s{sHst1} offen" in l) else l for l in out]
            out = ["v_mov_b32 v239, 2.0"] + out
        if "nowd" in d:
            out = [re.sub(r"dwordx4 v\d+,", "dwordx4 v239,", l) if l.startswith("buffer_load_dwordx4") and f"s[{sD}:" in l else l for l in out]
            out = ["v_mov_b32 v239, 2.0"] + out
        if "noflag" in d:
            out = [l.replace(", off,", ", v239,").replace(" sc1", " offen sc1") if l.startswith("buffer_store_dword v") and "off," in l and "sc1" in l else l for l in out]
            out = ["v_mov_b32 v239, 2.0"] + out
        if "noz" in d:
            out = [l.replace(f"v{vXr},", "v239,") if l.startswith(f"buffer_load_dwordx4 v{vXr}, s[20:23]") else l for l in out]
            out = ["v_mov_b32 v239, 2.0"] + out
        if "nomfma" in d:
            out = ["s_nop 7" if l.startswith("v_mfma_f32_32x32") else l for l in out]
        if "m16" in d:
            o2, cnt, i = [], {}, 0
            while i < len(out):
                l = out[i]
                m = re.match(r"v_mfma_f32_32x32x16_bf16 v\[(\d+):\d+\], (\S+), (\S+), (\S+)", l)
                if not m:
                    o2.append(l); i += 1
                    continue
                b = int(m.group(1))
                if m.group(4) == "0":
                    cnt[b] = 0
                k = cnt[b]; cnt[b] += 1
                j = i + 1
                while j < len(out) and not out[j].startswith("v_mfma") and j - i < 12:
                    j += 1
                gap = out[i + 1:j]
                if j - i >= 12:
                    gap, j = [], i + 1
                tot = sum(cost(x) for x in gap); acc = 0; cutp = 0
                for q, x in enumerate(gap):
                    if acc >= (tot + 1) // 2 and not x.startswith("s_cselect") and not x.startswith("s_cbranch") and "exec" not in x and "exec, 1" not in gap[q-1]:
                        break
                    acc += cost(x); cutp = q + 1
                def mm(blk, A, B):
                    dd = f"v[{b+4*blk}:{b+4*blk+3}]"
                    return f"v_mfma_f32_16x16x32_bf16 {dd}, {A}, {B}, {'0' if k < 2 else dd}"
                A, B = m.group(2), m.group(3)
                A0, B0 = A, B
                pa, pb = cnt.get("p", (A, B))
                if "m16b" in d:
                    mb = re.match(r"a\[(\d+):", B); ma = re.match(r"a\[(\d+):", A)
                    if mb:
                        q_ = max(int(mb.group(1)) - 8, int(mb.group(1)) & 4); B0 = f"a[{q_}:{q_+3}]"
                        if "100" and b >= vAB and b != vAB + 16 and int(mb.group(1)) < 216:
                            q_ = int(mb.group(1)) + 8; B0 = f"a[{q_}:{q_+3}]"
                    elif ma:
                        q_ = max(int(ma.group(1)) - 8, 0); A0 = f"a[{q_}:{q_+3}]"
                    else:
                        A0 = pa
                cnt["p"] = (A, B)
                o2 += [mm(k & 1, A0, B0)] + gap[:cutp] + [mm(2 + (k & 1), A, B)] + gap[cutp:]
                i = j
            out = o2
        if "nobar" in d:
            out = ["s_nop 0" if l.startswith("s_barrier") else l for l in out]
        if "novm" in d:
            out = [(re.sub(r" vmcnt\(\d+\)", " vmcnt(63)", l) if l.startswith("s_waitcnt") and "vmcnt(0)" not in l else l) for l in out]
        lines, nfix = check_hazards(out)
        self.log(f"{len(lines)} lines, {nfix} hazard nops inserted, {getattr(self.p,'n_sat',0)} lgkm saturation waits")
        ref = open("gated_mix__spectral_gfnet__swiglu_ffn__prompt.s.ref").read().split("\n")
        head = [l for l in ref if l.startswith(";") and "@launch" not in l and "Override" not in l and "grid=ceil" not in l]
        s = "\n".join(head) + "\n"
        s += f"; @launch grid=(256,1,1) block=(256,1,1) lds={LDS_BYTES}\n"
        s += '.amdgcn_target "amdgcn-amd-amdhsa--gfx950"\n.text\n'
        if self.o["align"]:
            s += ".p2align 12\n"
        s += f".globl {NAME}\n.p2align 8\n.type {NAME},@function\n{NAME}:\n"
        s += "\n".join(lines) + "\n"
        s += f"""s_endpgm
.section .rodata,"a"
.p2align 6
.amdhsa_kernel {NAME}
  .amdhsa_next_free_vgpr 512
  .amdhsa_next_free_sgpr 102
  .amdhsa_accum_offset 256
  .amdhsa_group_segment_fixed_size 0
  .amdhsa_kernarg_size 88
  .amdhsa_user_sgpr_count 2
  .amdhsa_user_sgpr_kernarg_segment_ptr 1
  .amdhsa_system_sgpr_workgroup_id_x 1
  .amdhsa_float_denorm_mode_32 3
.end_amdhsa_kernel
"""
        return s


def parse_opts(args):
    kw = {}
    for a in args:
        k, v = a.split("=")
        assert k in DEF, k
        if isinstance(DEF[k], bool):
            v = v not in ("0", "False")
        elif isinstance(DEF[k], int):
            v = int(v)
        kw[k] = v
    return kw


if __name__ == "__main__":
    out = sys.argv[1]
    g = Gen(**parse_opts(sys.argv[2:]))
    s = g.build()
    open(out, "w").write(s)
    print("; stamps:", g.stamp_names, file=sys.stderr)
```

```python
import re


class I:
    __slots__ = ("t", "tag", "vm", "ds")

    def __init__(self, t, tag=None, vm=None, ds=None):
        self.t = t
        self.tag = tag
        self.vm = vm
        self.ds = ds


def W(vm=None, ds=None):
    return I("", vm=vm, ds=ds)


def kind(t):
    op = t.split()[0] if t else "s_waitcnt"
    if op.startswith("v_mfma"):
        return "M"
    if op.startswith("ds_"):
        return "D"
    if op.startswith("buffer_") or op.startswith("global_"):
        return "G"
    if op.startswith("v_"):
        return "V"
    return "S"


TRANS = ("v_exp_f32", "v_rcp_f32", "v_cos_f32", "v_sin_f32", "v_log_f32", "v_rsq_f32", "v_sqrt_f32")


def cost(t):
    op = t.split()[0] if t else ""
    return 2 if op in TRANS else 1


class Prog:
    def __init__(self):
        self.out = []
        self.reset()

    def reset(self):
        self.vm_n = 0
        self.vm_done = 0
        self.vm_tag = {}
        self.ds_n = 0
        self.ds_done = 0
        self.ds_tag = {}

    def snapshot(self):
        return (self.vm_n, self.vm_done, dict(self.vm_tag), self.ds_n, self.ds_done, dict(self.ds_tag))

    def restore(self, s):
        self.vm_n, self.vm_done, vt, self.ds_n, self.ds_done, dt = s
        self.vm_tag = dict(vt)
        self.ds_tag = dict(dt)

    def raw(self, t):
        self.out.append(t)

    def _idx(self, tags, table, n):
        if tags is None:
            return 0
        if tags == "all":
            return n
        if not isinstance(tags, (list, tuple)):
            tags = [tags]
        return max([table[t] for t in tags], default=0)

    def wait(self, vm=None, ds=None):
        a = self._idx(vm, self.vm_tag, self.vm_n)
        b = self._idx(ds, self.ds_tag, self.ds_n)
        s = ""
        if a > self.vm_done:
            n = min(self.vm_n - a, 63)
            s += f" vmcnt({n})"
            self.vm_done = self.vm_n - n
        if b > self.ds_done:
            n = min(self.ds_n - b, 15)
            s += f" lgkmcnt({n})"
            self.ds_done = self.ds_n - n
        if s:
            self.out.append("s_waitcnt" + s)
        return bool(s)

    def e(self, it, tag=None, vm=None, ds=None):
        if isinstance(it, (list, tuple)):
            for x in it:
                self.e(x)
            return
        if callable(it):
            it(self)
            return
        if isinstance(it, str):
            if "\n" in it:
                for l in it.split("\n"):
                    if l.strip():
                        self.e(l.strip())
                return
            it = I(it, tag, vm, ds)
        self.wait(it.vm, it.ds)
        if not it.t:
            return
        k = kind(it.t)
        if k == "G":
            self.vm_n += 1
            assert self.vm_n - self.vm_done <= 63, "too many vmem outstanding"
            if it.tag:
                self.vm_tag[it.tag] = self.vm_n
        elif k == "D":
            if self.ds_n - self.ds_done >= 15:
                self.out.append("s_waitcnt lgkmcnt(10)")
                self.ds_done = self.ds_n - 10
                self.n_sat = getattr(self, "n_sat", 0) + 1
            self.ds_n += 1
            if it.tag:
                self.ds_tag[it.tag] = self.ds_n
        self.out.append(it.t)


class Mark:
    def __init__(self, name):
        self.name = name


class Rec:
    def __init__(self):
        self.items = []

    def e(self, it):
        if isinstance(it, (list, tuple)):
            for x in it:
                self.e(x)
        else:
            self.items.append(it)

    def mark(self, name):
        self.items.append(Mark(name))


class Gaps:
    def __init__(self, mf, budget=6):
        self.mf = mf
        self.n = len(mf)
        self.s = [[] for _ in mf]
        self.m = [[] for _ in mf]
        self.v = [[] for _ in mf]
        self.post = [[] for _ in mf]
        self.budget = budget
        self.light = set()
        self._wrote, self._read = {}, {}

    def used(self, g):
        def c(x):
            if isinstance(x, I):
                return cost(x.t) + (1 if (x.t and (x.vm or x.ds)) else 0)
            if isinstance(x, str):
                return cost(x)
            if isinstance(x, list):
                return sum(map(c, x))
            return 4
        return (max(0, sum(map(c, self.s[g])) - 1) + sum(map(c, self.m[g])) + sum(map(c, self.v[g]))
                + sum(map(c, self.post[g])))

    def pour(self, seq, g0, g1=None, budget=None, window=14):
        budget = budget or self.budget
        g1 = self.n if g1 is None else g1
        g = g0
        items = []
        for x in seq:
            if isinstance(x, list):
                ps = [parse(y) for y in x]
                items.append((x, len(x), "grp", "S", set().union(*[q[2] for q in ps]), set().union(*[q[3] for q in ps])))
                continue
            t = x.t if isinstance(x, I) else x
            op, k, w, r, _ = parse(t)
            items.append((x, cost(t), op, k, w, r))
        last = g0
        wrote, read = self._wrote, self._read
        while items and g < g1:
            if g in self.light:
                g += 1
                continue
            placed = False
            lastv = self.v[g][-1] if self.v[g] else None
            lw = set()
            if lastv is not None and not isinstance(lastv, list):
                lt = lastv.t if isinstance(lastv, I) else lastv
                lop, _, lw_, _, _ = parse(lt)
                if lop in TRANS:
                    lw = lw_
            want2 = False
            if budget - self.used(g) == 2:
                sw, sr = set(), set()
                for (x, t, op, k, w, r) in items[:window]:
                    if op in TRANS and not ((w & sw) or (w & sr) or (r & sw)):
                        want2 = True
                        break
                    sw |= w
                    sr |= r
            sw, sr = set(), set()
            for j, (x, t, op, k, w, r) in enumerate(items[:window]):
                dep = (w & sw) or (w & sr) or (r & sw) or (want2 and op not in TRANS)
                if not dep:
                    early = not any(wrote.get(z, -1) >= g for z in (r | w)) and not any(read.get(z, -1) >= g for z in w)
                    if k in "DG":
                        if early and self.used(g) + 1 <= budget + (budget > 3) \
                                and not any(kk in "DG" for (_, _, _, kk, _, _) in items[:j]):
                            self.m[g].append(x)
                            for z in r:
                                read[z] = g
                            placed = True
                    elif k == "S" and early and not self.s[g] and self.used(g) + t - 1 <= max(budget, t - 1):
                        self.s[g].append(x)
                        placed = True
                    elif self.used(g) + t <= budget and not (lw & r and op not in TRANS):
                        self.v[g].append(x)
                        for z in w:
                            wrote[z] = g
                        for z in r:
                            read[z] = g
                        placed = True
                if placed:
                    items.pop(j)
                    last = g
                    break
                sw |= w
                sr |= r
            if not placed:
                g += 1
        return last, [it[0] for it in items]

    def emit(self, p, g0=0, g1=None):
        for g in range(g0, self.n if g1 is None else g1):
            p.e(self.mf[g])
            p.e(self.s[g])
            p.e(self.m[g])
            p.e(self.v[g])
            p.e(self.post[g])


_REG = re.compile(r"(?<![\w.])([vas])(\d+)(?!\w)|(?<![\w.])([vas])\[(\d+):(\d+)\]")


def regs(op):
    r = set()
    for m in _REG.finditer(op):
        if m.group(1):
            r.add((m.group(1), int(m.group(2))))
        else:
            for i in range(int(m.group(4)), int(m.group(5)) + 1):
                r.add((m.group(3), i))
    if re.search(r"\bvcc(_lo|_hi)?\b", op):
        r.add(("s", "vcc"))
    if re.search(r"\bm0\b", op):
        r.add(("s", "m0"))
    if re.search(r"\bexec(_lo|_hi)?\b", op):
        r.add(("s", "exec"))
    return r


def parse(t):
    t = t.split(";")[0].strip()
    sp = t.split(None, 1)
    op = sp[0]
    ops = [o.strip() for o in sp[1].split(",")] if len(sp) > 1 else []
    k = kind(t)
    w, r = set(), set()
    allr = [regs(o) for o in ops]
    U = lambda l: set().union(*l) if l else set()
    if k == "M":
        w = allr[0]
        r = U(allr[1:])
    elif k == "D":
        if op.startswith("ds_read") or op.startswith("ds_bpermute"):
            w = allr[0]
            r = U(allr[1:])
        else:
            r = U(allr)
    elif k == "G":
        if " lds" in t:
            r = U(allr) | {("s", "m0")}
        elif "_load" in op:
            w = allr[0]
            r = U(allr[1:])
        else:
            r = U(allr)
    elif k == "V":
        w = allr[0]
        r = U(allr[1:])
        if op.startswith("v_fmac") or op.startswith("v_dot2c") or "permlane" in op or op.startswith("v_writelane"):
            r |= w
        if "permlane" in op and "swap" in op:
            w = w | allr[1]
        if op.startswith("v_cmpx"):
            w = w | {("s", "exec")}
    else:
        if op.startswith("s_cmp") or op.startswith("s_cbranch") or op.startswith("s_bitcmp") or op in (
                "s_waitcnt", "s_nop", "s_barrier", "s_branch", "s_sleep", "s_endpgm", "s_setprio"):
            r = U(allr)
        elif allr:
            w = allr[0]
            r = U(allr[1:])
            if "saveexec" in op:
                w = w | {("s", "exec")}
            if op in ("s_addk_i32", "s_mulk_i32", "s_bitset1_b32", "s_bitset0_b32"):
                r = r | w
    return op, k, w, r, allr


def check_hazards(lines, fix=True):
    out = []
    hist = []
    nfix = 0
    for t in lines:
        s = t.strip()
        if not s or s.startswith(";") or s.startswith(".") or s.endswith(":"):
            out.append(t)
            continue
        op, k, w, r, allr = parse(s)
        need = 0
        dist = 0
        for (pop, pk, pw, pr, pall, pst) in reversed(hist):
            req = 0
            vw = {x for x in pw if x[0] in "va"}
            sw = {x for x in pw if x[0] == "s"}
            if pk == "M":
                passes = 8 if "32x32x16" in pop else 4
                big = 12 if passes == 8 else 8
                if k == "M":
                    if pw & (allr[1] | allr[2]):
                        req = big
                    elif pw & allr[3] and not (pw == allr[3] and pop == op):
                        req = 10 if passes == 8 else 6
                    elif pw & w and not (pw == allr[3]):
                        req = big
                elif pw & (r | w):
                    req = big
                if k == "V" and (pall[3] & w):
                    req = max(req, 7 if passes == 8 else 3)
            elif pk == "V":
                if k == "M" and vw & r:
                    req = 2
                if k == "M" and ("s", "exec") in pw:
                    req = 4
                if pop in TRANS and k != "S" and op not in TRANS and vw & r:
                    req = max(req, 1)
                if pop.startswith("v_dot") and vw & (r | w) and not (op == pop and not (vw & (allr[1] | allr[2]))):
                    req = max(req, 3)
                if (op.startswith("v_readlane") or op.startswith("v_readfirstlane")) and vw & r:
                    req = max(req, 1)
                if ("permlane" in op or "dpp" in s) and vw & r:
                    req = max(req, 2)
                if k == "G" and sw & r:
                    req = max(req, 5)
                if k == "V" and sw & r:
                    req = max(req, 2)
                if k == "S" and sw & r and not op.startswith("s_cbranch"):
                    req = max(req, 1)
            elif pk == "G":
                if "store" in pop and ("x4" in pop or "x3" in pop) and (pall[0] & w):
                    req = 2
            elif pk == "S":
                if ("s", "m0") in pw and k == "G" and " lds" in s:
                    req = 1
                if ("s", "exec") in pw and "dpp" in s:
                    req = 5
            if req > dist:
                need = max(need, req - dist)
            dist += pst
            if dist > 20:
                break
        if need:
            nfix += 1
            if not fix:
                raise SystemExit(f"hazard before: {s} need {need}")
            out.append(f"s_nop {need-1}")
            hist.append(("s_nop", "S", set(), set(), [], need))
        st = 1
        if op == "s_nop":
            st = int(s.split()[1]) + 1
        hist.append((op, k, w, r, allr, st))
        hist = hist[-24:]
        out.append(t)
    return out, nfix
```

```python
import sys, struct, re
from asmlib import *

NAME = "gated_mix__spectral_gfnet__swiglu_ffn__prompt_kernel"

FX1 = 0
FAUX = FX1 + 896 * 128
FG = FAUX + 32 * 128
FH = 1024 * 128
FZ = 1280 * 128
FEND = 2048 * 128
GOFF = FEND
STAMP = FEND + 65536
X1T = 1 << 20
ZT = X1T + 448 * 4096
WT = ZT + 448 * 4096
HH = WT + 225 * 8192
PP = HH + 64 * 114688
WSEND = PP + 1024 * 2048
OOB = 0x40000000

WSLOT = 16640
NWS = 5
XS = NWS * WSLOT
FS = XS + 65536
IMG = FS
EXC = 8192
ZS = XS - 57344
RED = XS
LDS_BYTES = 163840

sFx, s8k, sHst1 = 0, 1, 3
sX, sG, sU, sD, sWS, sO, sDBG = 4, 8, 12, 16, 20, 24, 28
sWv, sRg, sC, sRt, sCt, sKd = 32, 33, 34, 35, 36, 37
sWm, sXm = 38, 39
sT0, sT1, sT2, sT3 = 40, 41, 42, 43
sK = 44
s7f = 46
sCnt = 47
sXo, sWo, sDo = 48, 55, 62
sPe, sHc, sPs, sPl, sFs, sSp = 72, 73, 74, 75, 76, 77
sHst, sRot2 = 69, 70
sSc = 71
sFh = 79
sWr, sWi, sGw = 48, 52, 56
RS = 4480
sZs, sSw = 48, 49
sST = 80

vL16 = 1
vXd, vXr, vDr, vWd, vTr, vDd, vY = 2, 6, 10, 14, 16, 18, 22
vFr, vSg, vX1g, vPa, vP, vPr, vPg, vPw = 24, 25, 26, 27, 28, 29, 30, 31
vWF = 32
vT1c, vT1s, vT2c, vT2s = 48, 56, 64, 72
vAX, vAA, vAB, vS32, vT = 80, 96, 160, 224, 232
aX, aC64, aS64, aN64, aC32 = 0, 224, 232, 240, 248
STEP448 = 9586981
fA = vAA
fDr, fDi, fTm = vAA + 32, vAA + 40, vAA + 48
fBr, fBi, fBn = vAX, vAX + 4, vAX + 8
fWraw = vT
fWr, fWi = vWF, vWF + 8
fa0, fim, fx = vT + 8, vT + 12, vT + 13
vE = vT + 16


def srd(s):
    return f"s[{s}:{s+3}]"


def vr(b, n, c="v"):
    return f"{c}[{b}:{b+n-1}]"


def fbits(x):
    return "0x%08x" % struct.unpack("<I", struct.pack("<f", x))[0]


def txt(x):
    return x.t if isinstance(x, I) else (x if isinstance(x, str) else "s_nop 0")


DEF = dict(rot1="t03", LA=3, npre=12, npro=16, cpro=60, n1=4, touch=0, align=1, pf=1,
           perA=64, perE=64, perB=64, perF=64, perG=48, perS=64,
           wd_at='A180,A220,A250,E0,B0,B0,B0', wd_delay=1300,
           go_ld='A190', go_chk='A250', pclr='A206', x1flag='E150', poll1='B44', chk1='B96', pollW='B140', chkW='B176',
           hAflag='B56', pollA='B98', chkA='B138', hBflag='F1950', pollB='G10', chkB='G46',
           zflag='G52', pollZ='G116', chkZ='G152', zst='7,7', xsp=4, nlds=12, pld='G232', fw_at=190,
           fft_head='e1', budA=2, budG=2,
           apf='clr,v06,go,d0,WT,d1', spin=200000, sleep=4, outfl="",
           stop=None, stamps=False, rt=False, st1='', st2='', st3='', only='', diag='')


class Gen:
    def __init__(self, **kw):
        self.o = dict(DEF)
        self.o.update(kw)
        self.p = Prog()
        self.slow = []
        self.nst = 0
        self.stamp_names = []
        self.anames = ['start', 'rt0']

    def log(self, s):
        print("; " + s, file=sys.stderr)

    def stamp(self, name):
        if not self.o["stamps"]:
            return []
        if self.o["only"] and name not in ("start", "rt0", "end") and name not in self.o["only"].split(",") and name[0] != "@":
            return []
        i = self.nst
        self.nst += 1
        r = sX if name == "end" else sST + 2 * i
        assert r + 1 <= 101
        self.stamp_names.append(name)
        return [f"{'s_memrealtime' if self.o['rt'] else 's_memtime'} s[{r}:{r+1}]"]

    def astamp(self, name):
        if not self.o["stamps"]:
            return []
        self.anames.append(name)
        r = sST + 2 * (len(self.anames) - 1)
        assert r <= 100
        return [f"{'s_memrealtime' if self.o['rt'] else 's_memtime'} s[{r}:{r+1}]"]

    def poll_check(self, name, tags, load, reg):
        def f(p):
            p.wait(vm=tags)
            p.e(f"v_cmp_ne_u32 vcc, 1, v{reg}")
            p.e(f"s_cbranch_vccnz L_slow_{name}")
            p.raw(f"L_back_{name}:")
        s = [f"L_slow_{name}:", f"s_mov_b32 s{sSp}, 0", f"L_spin_{name}:", load, "s_waitcnt vmcnt(0)",
             f"v_cmp_ne_u32 vcc, 1, v{reg}", f"s_cbranch_vccz L_back_{name}", f"s_sleep {32 if name == 'p1a' else self.o['sleep']}",
             f"s_add_u32 s{sSp}, s{sSp}, 1", f"s_cmp_lt_u32 s{sSp}, {self.o['spin']}",
             f"s_cbranch_scc1 L_spin_{name}", "s_endpgm"]
        self.slow += s
        return f

    def spoll_load(self, soff):
        return [f"s_load_dwordx8 s[4:11], s[{sWS}:{sWS+1}], s{soff} glc", f"s_load_dwordx8 s[12:19], s[{sWS}:{sWS+1}], s{soff} offset:512 glc"]

    def spoll_check(self, name, load, reg):
        self.poll_check(name, None, load, reg)

        def f(p):
            p.raw("s_waitcnt lgkmcnt(0)")
            p.ds_done = p.ds_n
            p.e([f"s_and_b64 s[4:5], s[4:5], s[{k}:{k+1}]" for k in (6, 8, 12, 14, 16)])
            p.e([f"s_and_b32 s4, s4, s{k}" for k in (10, 18, 5)])
            p.e(f"s_cbranch_scc0 L_slow_{name}")
            p.raw(f"L_back_{name}:")
        return f

    def flag_store(self, soff, tags):
        def f(p):
            p.wait(vm=tags)
            p.e("s_mov_b64 exec, 1")
            p.e(f"buffer_store_dword v{vP}, off, {srd(sWS)}, s{soff} sc1")
            p.e("s_mov_b64 exec, -1")
        return f

    def trig(self, dst, phase, tmp, fn="cos"):
        return [f"v_alignbit_b32 v{tmp}, s{s7f}, v{phase}, 9", f"v_{fn}_f32 v{dst}, v{tmp}"]

    def fft_consts(self, t):
        vn, vq, vcol, vidx, va, vb, vk, vsg = range(t, t + 8)
        c0, s0 = t + 8, t + 16
        pk = t + 24
        q = [f"v_lshrrev_b32 v{vq}, 4, v0", f"v_and_b32 v{vn}, 15, v0",
             f"v_lshl_add_u32 v{vcol}, s{sWv}, 4, v{vn}",
             f"v_lshrrev_b32 v{va}, 2, v{vn}", f"v_and_b32 v{vb}, 3, v{vn}", f"v_lshl_add_u32 v{vidx}, v{va}, 3, v{vb}",
             f"v_bfe_i32 v{vsg}, v0, 0, 1", f"v_and_b32 v{vsg}, 0x80008000, v{vsg}",
             f"v_cvt_f32_u32 v{vcol}, v{vcol}", f"v_cvt_f32_u32 v{vidx}, v{vidx}", f"v_cvt_f32_u32 v{vq}, v{vq}"]

        def coef():
            return [f"v_cos_f32 v{vn}, v{va}", f"v_add_f32 v{vn}, v{vn}, v{vn}"]

        def run(c, s, n, scale=False):
            r = [f"v_add_f32 v{s+1}, v{vb}, v{va}", f"v_cos_f32 v{c}, v{vb}", f"v_sin_f32 v{s}, v{vb}",
                 f"v_cos_f32 v{c+1}, v{s+1}", f"v_sin_f32 v{s+1}, v{s+1}"]
            if scale:
                r += [f"v_mul_f32 v{x}, s{sSc}, v{x}" for x in (c, s, c + 1, s + 1)]
            for j in range(2, n):
                r += [f"v_fma_f32 v{x+j}, v{vn}, v{x+j-1}, -v{x+j-2}" for x in (c, s)]
            return r

        def pack(dst, src):
            return [f"v_cvt_pk_bf16_f32 v{dst+j}, v{src+2*j}, v{src+2*j+1}" for j in range(4)]

        def acc(dst, src):
            return [f"v_accvgpr_write_b32 a{dst+j}, v{src+j}" for j in range(4)]

        def xr(dst, m):
            return [f"v_xor_b32 v{dst+j}, {m}, v{dst+j}" for j in range(4)]
        q += [f"v_mul_f32 v{va}, {fbits(1/64)}, v{vcol}", f"v_mul_f32 v{vb}, 4.0, v{vq}", f"v_mul_f32 v{vb}, v{vb}, v{va}"]
        q += coef() + run(c0, s0, 4) + [f"v_mul_f32 v{vk}, {fbits(1/16)}, v{vb}", f"v_fmamk_f32 v{vb}, v{va}, {fbits(16.0)}, v{vb}"]
        q += run(c0 + 4, s0 + 4, 4)
        q += pack(pk, c0) + pack(pk + 4, s0)
        q += acc(aC64, pk) + acc(aS64, pk + 4) + xr(pk, f"v{vsg}") + xr(pk + 4, f"v{vsg}")
        q += acc(aC64 + 4, pk) + acc(aS64 + 4, pk + 4) + xr(pk + 4, "0x80008000") + acc(aN64 + 4, pk + 4)
        q += xr(pk + 4, f"v{vsg}") + acc(aN64, pk + 4)
        q += [f"v_mul_f32 v{va}, {fbits(1/32)}, v{va}", f"v_mov_b32 v{vb}, v{vk}"]
        q += coef() + run(vT1c, vT1s, 8)
        q += [f"v_cvt_f32_u32 v{vk}, s{sWv}", f"v_fma_f32 v{vk}, v{vk}, 4.0, v{vq}", f"v_mul_f32 v{vk}, 4.0, v{vk}",
              f"v_mul_f32 v{vq}, {fbits(8.0)}, v{vq}"]
        for tt in range(2):
            if tt:
                q.append(f"v_add_f32 v{vidx}, 4.0, v{vidx}")
            q += [f"v_mul_f32 v{va}, {fbits(1/32)}, v{vidx}", f"v_mul_f32 v{vb}, v{vq}, v{va}"]
            q += coef() + run(c0, s0, 8)
            q += pack(pk, c0) + pack(vS32 + 4 * tt, s0) + acc(aC32 + 4 * tt, pk)
            q += [f"v_mul_f32 v{va}, {fbits(1/64)}, v{va}", f"v_mul_f32 v{vb}, v{vk}, v{va}"]
            q += coef() + run(vT2c + 4 * tt, vT2s + 4 * tt, 4, True)
        return q

    def fft_setup_regs(self):
        t0, t1 = vT + 14, vT + 15
        return [f"v_and_b32 v{t1}, 3, v0", f"v_mul_u32_u24 v{fa0}, 528, v{t1}",
                f"v_lshrrev_b32 v{t0}, 4, v0", f"v_lshl_add_u32 v{fa0}, v{t0}, 7, v{fa0}",
                f"v_bfe_u32 v{t0}, v0, 2, 1", f"v_lshl_add_u32 v{fa0}, v{t0}, 6, v{fa0}",
                f"v_and_b32 v{t0}, 8, v0", f"v_add_u32 v{fa0}, v{t0}, v{fa0}", f"v_add_u32 v{fa0}, {IMG}, v{fa0}",
                f"v_xor_b32 v{fa0+1}, 16, v{fa0}", f"v_xor_b32 v{fa0+2}, 32, v{fa0}", f"v_xor_b32 v{fa0+3}, 48, v{fa0}",
                f"v_lshrrev_b32 v{t0}, 5, v0", f"v_xor_b32 v{t0}, v{t0}, v0", f"v_bfe_i32 v{fx}, v{t0}, 0, 1"]

    def fft_scalars(self):
        return [[f"s_lshl_b32 s{sT1}, s{sKd}, 13"], [f"s_lshl_b32 s{sT0}, s{sWv}, 10"],
                [f"s_add_u32 s{sT2}, s{sT1}, s{sT0}"],
                [f"s_cmp_eq_u32 s{sKd}, 224", f"s_cselect_b32 s{sZs}, 4096, s{sT1}", f"s_cselect_b32 s{sT1}, 0, s{sT1}",
                 f"s_cselect_b32 s{sSw}, 16, 0"],
                [f"s_cmp_eq_u32 s{sT1}, 0", f"s_cselect_b32 s{sT3}, {OOB}, 0"],
                [f"s_add_u32 s{sZs}, s{sZs}, s{sT0}"], [f"s_lshl_b32 s{sT0}, s{sT0}, 1"], [f"s_add_u32 s{sT1}, s{sT1}, s{sT0}"],
                [f"s_add_u32 s{sT1}, s{sT1}, {X1T}"], [f"s_add_u32 s{sT2}, s{sT2}, {WT}"], [f"s_add_u32 s{sZs}, s{sZs}, {ZT}"]]

    def fft_addr2(self):
        return [f"v_xor_b32 v{fim}, s{sSw}, v{vL16}", f"v_and_or_b32 v{fx}, v{fx}, s{sT3}, v{fim}",
                f"v_or_b32 v{fim}, s{sT3}, v{vL16}", f"v_add_u32 v{fim}, 0x1000, v{fim}"]

    def poll1_addr(self, t0, t1, sa, sb, extra=None):
        sc = [[f"s_lshr_b32 s{sa}, s{sKd}, 4", f"s_cmp_eq_u32 s{sa}, 14", f"s_cselect_b32 s{sa}, 0, s{sa}"],
              [f"s_lshl2_add_u32 s{sa}, s{sa}, s{sWv}"], [f"s_lshl_b32 s{sa}, s{sa}, 4"],
              [f"s_lshl_b32 s{sb}, s{sWv}, 1"]]
        v = [f"v_add_u32 v{vPa}, s{sa}, v0",
             f"v_bfe_u32 v{t0}, v0, 1, 2", f"v_and_b32 v{t1}, 1, v0", f"v_lshl_add_u32 v{t0}, v{t0}, 3, v{t1}",
             f"v_add_u32 v{t0}, s{sb}, v{t0}",
             f"v_add_u32 v{t0}, {FAUX//128}, v{t0}"]
        if extra is not None:
            v += [f"v_lshlrev_b32 v{vPw}, 7, v{t0}", f"v_mov_b32 v{t0}, s{extra}"]
        v += [
             f"v_subrev_u32 v{t1}, 16, v0", f"v_ashrrev_i32 v{t1}, 31, v{t1}",
             f"v_bfi_b32 v{vPa}, v{t1}, v{vPa}, v{t0}", f"v_lshlrev_b32 v{vPa}, 7, v{vPa}"]
        return sc, v

    def fft_loads(self):
        return [f"s_add_u32 m0, s{sT0}, {IMG}",
                I(f"buffer_load_dwordx4 v{fx}, {srd(sWS)}, s{sT1} offen sc1 lds", tag="x1"),
                I(f"buffer_load_dwordx4 v{fx}, {srd(sWS)}, s{sT1} offen offset:1024 sc1 lds", tag="x1"),
                I(f"buffer_load_dwordx4 {vr(fWraw,4)}, v{vL16}, {srd(sWS)}, s{sT2} offen sc1", tag="wtre"),
                f"s_add_u32 s{sT2}, s{sT2}, 4096",
                I(f"buffer_load_dwordx4 {vr(fWraw+4,4)}, v{vL16}, {srd(sWS)}, s{sT2} offen sc1", tag="wtim")]

    def fft_body(self, hook):
        p = self.p
        Dr, Di, tm, Br, Bi, Bn = fDr, fDi, fTm, fBr, fBi, fBn

        def af(part, t, ks):
            return fA + 4 * (4 * part + 2 * t + ks)

        def mf(d, a, b, first):
            return f"v_mfma_f32_16x16x32_bf16 {vr(d,4)}, {a}, {b}, {'0' if first else vr(d,4)}"

        def cmul(c, s, sign, neg=None):
            q = []
            n1 = " neg_lo:[0,0,1] neg_hi:[0,0,1]"
            for j in range(0, 8, 2):
                q += [f"v_pk_mul_f32 {vr(tm+8+j,2)}, {vr(Dr+j,2)}, {vr(s+j,2)}",
                      f"v_pk_mul_f32 {vr(tm+j,2)}, {vr(Di+j,2)}, {vr(s+j,2)}"]
            for j in range(0, 8, 2):
                q += [f"v_pk_fma_f32 {vr(tm+j,2)}, {vr(Dr+j,2)}, {vr(c+j,2)}, {vr(tm+j,2)}" + (n1 if sign > 0 else ""),
                      f"v_pk_fma_f32 {vr(tm+8+j,2)}, {vr(Di+j,2)}, {vr(c+j,2)}, {vr(tm+8+j,2)}" + ("" if sign > 0 else n1)]
            for j in range(4):
                q += [f"v_cvt_pk_bf16_f32 v{Br+j}, v{tm+2*j}, v{tm+2*j+1}"]
            for j in range(4):
                q += [f"v_cvt_pk_bf16_f32 v{Bi+j}, v{tm+8+2*j}, v{tm+8+2*j+1}"]
            return q

        def negs(src):
            return [f"v_xor_b32 v{Bn+j}, 0x80008000, v{src+j}" for j in range(4)]

        def big(sgn, pre):
            Sre, Sim = (aS64, aN64) if sgn < 0 else (aN64, aS64)
            n = 0
            for ks in range(2):
                for part in range(2):
                    for t in range(2):
                        a = vr(af(part, t, ks), 4)
                        first = ks == 0 and part == 0
                        bre = (aC64 if part == 0 else Sre) + 4 * ks
                        bim = (Sim if part == 0 else aC64) + 4 * ks
                        p.e(I(mf(Dr + 4 * t, a, vr(bre, 4, "a"), first), ds=f"{pre}{part}{t}{ks}"))
                        p.e(mf(Di + 4 * t, a, vr(bim, 4, "a"), first))
                        n += 1
                        if n in (2, 4, 6):
                            hook(f"{pre}m{n}", 64)

        hook("h0", 0)
        p.e(W(vm="x1"))
        p.e("s_barrier")
        for ks in range(2):
            for part in range(2):
                for t in range(2):
                    for h in range(2):
                        p.e(I(f"ds_read_b64_tr_b16 {vr(af(part,t,ks)+2*h,2)}, v{fa0+2*t+part} "
                              f"offset:{2048*(2*ks+h)}", tag=f"a{part}{t}{ks}"))
        hook("s1", 100)
        big(-1, "a")
        p.e(W(vm=["wtre", "wtim"]))
        for j in range(4):
            p.e([f"v_lshlrev_b32 v{fWr+2*j}, 16, v{fWraw+j}", f"v_and_b32 v{fWr+2*j+1}, 0xffff0000, v{fWraw+j}"])
        p.e(cmul(vT1c, vT1s, -1))
        hook("tw1", 200)
        ng = negs(Br)
        for t in range(2):
            p.e(mf(Dr + 4 * t, vr(aC32 + 4 * t, 4, "a"), vr(Br, 4), True))
            p.e(ng[2 * t:2 * t + 2])
        for t in range(2):
            p.e(mf(Di + 4 * t, vr(aC32 + 4 * t, 4, "a"), vr(Bi, 4), True))
        for t in range(2):
            p.e(mf(Dr + 4 * t, vr(vS32 + 4 * t, 4), vr(Bi, 4), False))
        for t in range(2):
            p.e(mf(Di + 4 * t, vr(vS32 + 4 * t, 4), vr(Bn, 4), False))
        hook("s3", 128)
        for j in range(4):
            p.e([f"v_lshlrev_b32 v{fWi+2*j}, 16, v{fWraw+4+j}", f"v_and_b32 v{fWi+2*j+1}, 0xffff0000, v{fWraw+4+j}"])
        p.e(cmul(fWr, fWi, +1))
        hook("wm", 140)
        ng = negs(Bi)
        for t in range(2):
            p.e(mf(Dr + 4 * t, vr(Br, 4), vr(aC32 + 4 * t, 4, "a"), True))
            p.e(ng[2 * t:2 * t + 2])
        for t in range(2):
            p.e(mf(Di + 4 * t, vr(Br, 4), vr(vS32 + 4 * t, 4), True))
        for t in range(2):
            p.e(mf(Dr + 4 * t, vr(Bn, 4), vr(vS32 + 4 * t, 4), False))
        for t in range(2):
            p.e(mf(Di + 4 * t, vr(Bi, 4), vr(aC32 + 4 * t, 4, "a"), False))
        hook("s3i", 128)
        p.e([f"s_lshr_b32 s{sT0}, s{sWv}, 1", f"s_lshl_b32 s{sT0}, s{sT0}, 10", f"s_and_b32 s{sT2}, s{sWv}, 1",
             f"s_lshl3_add_u32 s{sT0}, s{sT2}, s{sT0}", f"v_add_u32 v{fa0}, s{sT0}, v{vL16}"])
        p.e(cmul(vT2c, vT2s, +1))
        for part in range(2):
            for t in range(2):
                p.e(I(f"ds_write_b64 v{fa0}, {vr((Br if part == 0 else Bi)+2*t,2)} offset:{EXC + (4*part+2*t)*1024}", tag="exw"))
        hook("h2", 0)
        p.e(W(ds="exw"))
        p.e("s_barrier")
        for ks in range(2):
            for part in range(2):
                for t in range(2):
                    p.e(I(f"ds_read_b128 {vr(af(part,t,ks),4)}, v{vL16} offset:{EXC + (4*part+2*t+ks)*1024}", tag=f"b{part}{t}{ks}"))
        hook("tw2", 300)
        big(+1, "b")
        hook("s1i", 64)
        for j in range(4):
            p.e(f"v_cvt_pk_bf16_f32 v{Br+j}, v{Dr+2*j}, v{Dr+2*j+1}")
        p.e(I(f"buffer_store_dwordx4 {vr(Br,4)}, v{vL16}, {srd(sWS)}, s{sZs} offen sc1", tag="zre"))
        for j in range(4):
            p.e(f"v_cvt_pk_bf16_f32 v{Bi+j}, v{Di+2*j}, v{Di+2*j+1}")
        p.e(I(f"buffer_store_dwordx4 {vr(Bi,4)}, v{fim}, {srd(sWS)}, s{sZs} offen sc1", tag="zim"))

    def epi(self, acc, tmp):
        q = []
        for k in range(4):
            g0, g1, u0, u1 = acc + 2 * k, acc + 2 * k + 1, acc + 8 + 2 * k, acc + 9 + 2 * k
            t0, t1 = tmp + 2 * (k & 1), tmp + 2 * (k & 1) + 1
            q += [f"v_mul_f32 v{t0}, s{sK}, v{g0}", f"v_mul_f32 v{t1}, s{sK}, v{g1}",
                  f"v_exp_f32 v{t0}, v{t0}", f"v_exp_f32 v{t1}, v{t1}",
                  f"v_mul_f32 v{u0}, v{g0}, v{u0}", f"v_mul_f32 v{u1}, v{g1}, v{u1}",
                  f"v_add_f32 v{t0}, 1.0, v{t0}", f"v_add_f32 v{t1}, 1.0, v{t1}",
                  f"v_rcp_f32 v{t0}, v{t0}", f"v_rcp_f32 v{t1}, v{t1}",
                  f"v_mul_f32 v{u0}, v{u0}, v{t0}", f"v_mul_f32 v{u1}, v{u1}, v{t1}",
                  f"v_cvt_pk_bf16_f32 v{acc+k}, v{u0}, v{u1}"]
        return q

    def epi_pk(self, acc, tmp):
        q = []
        for k in range(4):
            q.append(f"v_pk_mul_f32 {vr(tmp+2*k,2)}, {vr(acc+2*k,2)}, s[{sK}:{sK+1}]")
        for j in range(8):
            q.append(f"v_exp_f32 v{tmp+j}, v{tmp+j}")
        for k in range(4):
            q.append(f"v_pk_mul_f32 {vr(acc+8+2*k,2)}, {vr(acc+2*k,2)}, {vr(acc+8+2*k,2)}")
        for k in range(4):
            q.append(f"v_pk_add_f32 {vr(tmp+2*k,2)}, {vr(tmp+2*k,2)}, 1.0 op_sel_hi:[1,0]")
        for j in range(8):
            q.append(f"v_rcp_f32 v{tmp+j}, v{tmp+j}")
        for k in range(4):
            q.append(f"v_pk_mul_f32 {vr(acc+8+2*k,2)}, {vr(acc+8+2*k,2)}, {vr(tmp+2*k,2)}")
        for k in range(4):
            q.append(f"v_cvt_pk_bf16_f32 v{acc+k}, v{acc+8+2*k}, v{acc+9+2*k}")
        return q

    def hstore(self, base, n, tag):
        i, tl = n >> 1, n & 1
        return I(f"buffer_store_dwordx4 {vr(base+16*n,4)}, v{vL16}, {srd(sWS)}, s{sHst1 if i else sHst} offen offset:{tl*1024} sc1", tag=tag)

    def rec_step(self, st, ks, dst):
        P = st + 8 * (ks & 1)
        Q = st + 8 * ((ks + 1) & 1)
        c = st + 16 + (0 if ks & 1 else 1)
        q = [f"v_fmac_f32 v{P+j}, v{c}, v{Q+j}" for j in range(8)]
        return q + self.rec_pack(st, ks, dst)

    def rec_pack(self, st, ks, dst):
        P = st + 8 * (ks & 1)
        n = "-" if ks & 2 else ""
        return [f"v_cvt_pk_bf16_f32 v{dst+j}, {n}v{P+2*j}, {n}v{P+2*j+1}" for j in range(4)]

    def put_scalars(self, G, groups, g0, g1):
        g = g0
        for x in groups:
            while G.s[g] or g in G.light:
                g += 1
            G.s[g] += x if isinstance(x, list) else [x]
        assert g < g1, (g, g1)
        return g

    def build(self):
        o, p = self.o, self.p
        e = p.e
        e(self.stamp("start"))
        e([x.replace("s_memtime", "s_memrealtime") for x in self.stamp("rt0")])
        e([f"s_load_dwordx2 s[{sX}:{sX+1}], s[0:1], 0", f"s_load_dwordx2 s[{sG}:{sG+1}], s[0:1], 32",
           f"s_load_dwordx2 s[{sU}:{sU+1}], s[0:1], 40"])
        e([f"v_lshrrev_b32 v2, 6, v0", f"v_mul_u32_u24 v3, 40, v0", f"v_and_b32 v0, 63, v0"])
        sj, sidx, sr = sT0, sT1, sT2
        e([f"s_lshr_b32 s{sidx}, s2, 3", f"v_readfirstlane_b32 s{sWv}, v2", f"s_and_b32 s{sj}, s2, 7",
           f"s_cmp_lt_u32 s{sidx}, 28", "s_cbranch_scc1 L_main"])
        if o["pf"]:
            p.raw(f"s_getpc_b64 s[{sT2}:{sT3}]")
            p.raw("L_pc:")
            p.raw(f"s_and_b32 s{sCnt}, s{sidx}, 3")
            p.raw(f"s_mul_i32 s{sCnt}, s{sCnt}, 10240")
            p.raw(f"v_add_u32 v3, s{sCnt}, v3")
            p.raw(f"v_min_u32 v3, L_codeend-L_pc-4, v3")
            p.raw(f"global_load_dword v255, v3, s[{sT2}:{sT3}]")
        p.raw("L_main:")
        for s, off in ((sD, 48), (sO, 64), (sDBG, 72), (sWS, 80)):
            e(f"s_load_dwordx2 s[{s}:{s+1}], s[0:1], {off}")

        def mod7(s, t):
            return [f"s_mul_i32 s{t}, s{s}, 37", f"s_lshr_b32 s{t}, s{t}, 8", f"s_mul_i32 s{t}, s{t}, 7", f"s_sub_u32 s{s}, s{s}, s{t}"]
        sRot1 = sHst
        e([f"s_mul_i32 s{sr}, s{sidx}, 37", f"s_lshr_b32 s{sr}, s{sr}, 8",
           f"s_mul_i32 s{sCt}, s{sr}, 7", f"s_sub_u32 s{sCt}, s{sidx}, s{sCt}",
           f"s_lshr_b32 s{sT3}, s{sj}, 1", f"s_lshl2_add_u32 s{sRg}, s{sT3}, s{sr}",
           f"s_and_b32 s{sC}, s{sj}, 1", f"s_mul_i32 s{sC}, s{sC}, 7", f"s_add_u32 s{sC}, s{sC}, s{sCt}",
           ])
        norot = o["rot1"] == "0"
        if o["rot1"].startswith("full"):
            e([f"s_lshl1_add_u32 s{sRot2}, s{sr}, s{sCt}",
               f"s_cmp_ge_u32 s{sRot2}, 7", f"s_cselect_b32 s{sCnt}, 7, 0", f"s_sub_u32 s{sRot2}, s{sRot2}, s{sCnt}"])
        if norot:
            pass
        elif o["rot1"] == "full":
            e(f"s_mov_b32 s{sRot1}, s{sRot2}")
        elif o["rot1"] == "fullx":
            e([f"s_add_u32 s{sRot1}, s{sRot2}, s{sT3}", f"s_cmp_ge_u32 s{sRot1}, 7", f"s_cselect_b32 s{sCnt}, 7, 0",
               f"s_sub_u32 s{sRot1}, s{sRot1}, s{sCnt}"])
        elif o["rot1"] == "half":
            e([f"s_add_u32 s{sRot1}, s{sr}, s{sCt}", f"s_and_b32 s{sRot1}, s{sRot1}, 1", f"s_mul_i32 s{sRot1}, s{sRot1}, 3"])
        elif o["rot1"][0] == "t":
            tab = [int(c_) for c_ in o["rot1"][1:]]
            val = sum(tab[k % len(tab)] << (3 * k) for k in range(10))
            e([f"s_add_u32 s{sRot1}, s{sr}, s{sCt}", f"s_mul_i32 s{sRot1}, s{sRot1}, 3", f"s_lshr_b32 s{sRot1}, {val:#x}, s{sRot1}",
               f"s_and_b32 s{sRot1}, s{sRot1}, 7"])
        elif o["rot1"] == "xcd":
            e([f"s_mov_b32 s{sRot1}, s{sj}"] + mod7(sRot1, sCnt))
        t0, t1, t2, t3, t4, t5, t6 = range(vAB + 8, vAB + 15)
        e([f"s_lshl2_add_u32 s{sCnt}, s{sT3}, s{sWv}", f"s_lshl4_add_u32 s{sCnt}, s{sCnt}, s{sr}",
           f"s_mul_i32 s{sCnt}, s{sCnt}, {8*896}",
           f"v_lshrrev_b32 v{t0}, 3, v0", f"v_mul_u32_u24 v{t0}, 896, v{t0}", f"v_add_u32 v{t0}, s{sCnt}, v{t0}",
           f"v_and_b32 v{t1}, 7, v0", f"v_lshrrev_b32 v{t2}, 4, v0", f"v_xor_b32 v{t1}, v{t1}, v{t2}",
           f"v_lshl_add_u32 v{vXd}, v{t1}, 4, v{t0}",
           f"v_xor_b32 v{t1}, 4, v{t1}", f"v_lshl_add_u32 v{vXd+1}, v{t1}, 4, v{t0}",
           f"v_add_u32 v{vXd+2}, {2*(28672-1024)}, v{vXd}", f"v_add_u32 v{vXd+3}, {3*(28672-1024)}, v{vXd+1}",
           f"v_add_u32 v{vXd+1}, {28672-1024}, v{vXd+1}"])
        e([f"v_lshrrev_b32 v{t4}, 5, v0", f"v_and_b32 v{t6}, 3, v0", f"v_lshl_add_u32 v{t2}, v{t4}, 2, v{t6}",
           f"v_lshlrev_b32 v{t2}, 4, v{t2}", f"v_bfe_u32 v{t3}, v0, 2, 3",
           f"v_lshl_add_u32 v{t0}, s{sWv}, 4, v{t3}", f"v_mul_u32_u24 v{t0}, 3584, v{t0}",
           f"s_lshl_b32 s{sCnt}, s{sC}, 8", f"v_add3_u32 v{vWd}, v{t0}, v{t2}, s{sCnt}",
           f"v_add_u32 v{vWd+1}, {8*3584-1056}, v{vWd}"])
        e([f"s_mul_i32 s{sWm}, s{sWv}, 4160", f"s_lshl_b32 s{sXm}, s{sWv}, 14", f"s_add_u32 s{sXm}, s{sXm}, {XS}"])
        for s, n in ((sX, 2048 * 896), (sG, 448 * 3584), (sU, 448 * 3584)):
            e([f"s_mov_b32 s{s+2}, {n}", f"s_mov_b32 s{s+3}, 0x20000"])

        def chunk_tab(i):
            r = [f"s_mov_b32 s{sCnt}, s{sRot1}"] if i == 0 else \
                [f"s_add_u32 s{sCnt}, s{sCnt}, 1", f"s_cmp_eq_u32 s{sCnt}, 7", f"s_cselect_b32 s{sCnt}, 0, s{sCnt}"]
            return r + [f"s_lshl_b32 s{sXo+i}, s{sCnt}, 7", f"s_mul_i32 s{sWo+i}, s{sCnt}, {64*3584}"]
        if not norot:
            e(chunk_tab(0) + chunk_tab(1))
        e([f"s_cmp_ge_u32 s{sidx}, 28", "s_cbranch_scc1 L_auxh"])
        snap_aux0 = p.snapshot()
        p.raw("s_waitcnt lgkmcnt(0)")
        e(self.stamp("kargs"))

        self.m0 = None

        def xdma(j):
            r = [dict(t=f"buffer_load_dwordx4 v{vXd+i}, {srd(sX)}, s{sXo+j} offen offset:{1024*i} lds", tag=f"x{j}",
                      m0=(sXm, 4096 * (j % 4)), ds=None) for i in range(4)]
            if norot:
                r[0]["pre"] = [f"s_movk_i32 s{sXo+j}, {128*j}"]
            return r

        def wdma(i):
            r = []
            for mat in range(2):
                for hh in range(2):
                    r.append(dict(t=f"buffer_load_dwordx4 v{vWd+hh}, {srd(sG if mat == 0 else sU)}, s{sWo+i%7} offen offset:{1056*hh} lds",
                                  tag=f"w{i}", m0=(sWm, WSLOT * (i % NWS) + 2080 * mat), ds=None))
            if i >= 7:
                r[0]["pre"] = [f"s_addk_i32 s{sWo+i%7}, 128"]
            elif norot:
                r[0]["pre"] = [f"s_mov_b32 s{sWo+i}, {i*64*3584}"]
            return r

        def ddma(sg):
            return [dict(t=f"buffer_load_dwordx4 v{vDd+i}, {srd(sD)}, s{sDo+sg} offen offset:{1024*i} lds", tag=f"d{sg}",
                         m0=(sXm, 4096 * ((sg + 3) % 4)), ds=None) for i in range(4)]

        def dma_items(d):
            s = []
            if d["m0"] and self.m0 != d["m0"]:
                self.m0 = d["m0"]
                s.append(f"s_add_u32 m0, s{d['m0'][0]}, {d['m0'][1]}")
            return s + list(d.get("pre", [])), [I(d["t"], tag=d["tag"], ds=d["ds"])]

        L, NB = 3, 4
        n1 = o["n1"]
        dks = [d if d < n1 else n1 + (d - n1) // 2 for d in range(14)]
        K0 = [16 * ks + 4 * sum(1 for x in dks if x < ks) for ks in range(15)]
        Dg = [K0[dks[d]] + 16 + 4 * (d - dks.index(dks[d])) for d in range(14)]
        NA, NBg = 280, 224
        U = [K0[f // 4] + 4 * (f % 4) for f in range(56)] + [NA + 4 * f for f in range(56)]
        bar_gap = {j: U[8 * j - L] - 1 for j in range(1, 14)}
        TE = 16 * NA
        TB = TE + 860
        TF = TB + 16 * NBg
        TG = TF + 2400

        def tg(g):
            return 16 * g if g < NA else TB + 16 * (g - NA)

        def T(spec):
            n = int(spec[1:])
            return {"A": 16 * n, "E": TE + n, "B": TB + 16 * n, "F": TF + n, "G": TG + 16 * n}[spec[0]]
        q1 = []
        for i in range(14):
            ear = -1 if i <= o["LA"] - 1 else (0 if i == o["LA"] else tg(bar_gap[i - o["LA"]] + 1))
            for d in (xdma(i) if i < 7 else []) + wdma(i):
                d["ear"] = ear
                d["dl"] = tg(bar_gap[i]) if i else 0
                if d["tag"][0] == "x" and dks[2 * i] < 2 * i:
                    d["dl"] = 16 * (K0[dks[2 * i] - 1] + 12)
                q1.append(d)

        def issue_pro(n):
            for _ in range(n):
                assert q1[0]["ear"] < 0
                s, m = dma_items(q1.pop(0))
                e(s)
                e(m)
        if o["touch"]:
            issue_pro(o["touch"])
            sQ = 64
            u0, u1, u2 = vAA, vAA + 1, vAA + 2
            e([f"s_cmp_eq_u32 s{sWv}, 2", f"s_cselect_b64 s[{sQ}:{sQ+1}], s[{sG}:{sG+1}], s[{sU}:{sU+1}]",
               f"s_lshl1_add_u32 s{sRt}, s{sC}, s{sWv}", f"v_and_b32 v{u0}, 31, v0",
               f"v_lshl_add_u32 v{u1}, s{sRt}, 5, v{u0}",
               f"v_mul_u32_u24 v{u2}, 1171, v{u1}", f"v_lshrrev_b32 v{u2}, 16, v{u2}",
               f"v_mul_u32_u24 v{u2}, {32*896-56*128}, v{u2}", f"v_lshl_add_u32 v{u1}, v{u1}, 7, v{u2}",
               f"s_lshl_b32 s{sRt}, s{sT3}, 6", f"s_add_u32 s{sRt}, s{sRt}, s{sr}", f"s_mul_i32 s{sRt}, s{sRt}, {8*896}",
               f"v_add_u32 v{u1}, s{sRt}, v{u1}",
               f"v_min_u32 v{u0}, 23, v{u0}", f"s_mul_i32 s{sRt}, s{sRg}, {24*3584}", f"s_lshl_b32 s{sKd}, s{sC}, 8",
               f"s_add_u32 s{sRt}, s{sRt}, s{sKd}", f"s_add_u32 s{sRt}, s{sRt}, {64*3584}",
               f"v_mul_u32_u24 v{u2}, 3584, v{u0}", f"v_add_u32 v{u2}, s{sRt}, v{u2}",
               f"s_cmp_lt_u32 s{sWv}, 2", f"s_cselect_b64 vcc, -1, 0",
               f"s_cselect_b64 s[{sQ}:{sQ+1}], s[{sX}:{sX+1}], s[{sQ}:{sQ+1}]",
               f"s_cselect_b32 s{sQ+2}, s{sX+2}, s{sG+2}", f"s_mov_b32 s{sQ+3}, 0x20000",
               f"v_cndmask_b32 v{u1}, v{u2}, v{u1}, vcc",
               f"buffer_load_dword v{vPr}, v{u1}, {srd(sQ)}, 0 offen"])
        issue_pro(o["npre"] - o["touch"])
        p.raw("s_branch L_main2")
        snap_main = p.snapshot()
        p.restore(snap_aux0)
        p.raw("L_auxh:")
        self.aux_head(sj, sidx)
        p.raw("s_branch L_aux")
        snap_aux = p.snapshot()
        p.restore(snap_main)
        p.raw("L_main2:")
        for i in range(2, 7):
            if not norot:
                e(chunk_tab(i))
        e([f"s_and_b32 s{sRt}, s{sj}, 1", f"s_lshl1_add_u32 s{sRt}, s{sRg}, s{sRt}", f"s_mul_i32 s{sKd}, s{sj}, 28", f"s_add_u32 s{sKd}, s{sKd}, s{sidx}",
           f"s_movk_i32 s{s7f}, 0x7f", f"v_lshlrev_b32 v{vL16}, 4, v0"])
        sq = sr
        tq_, tn = vAB + 15, t0
        e([f"v_and_b32 v{tn}, 15, v0", f"v_lshrrev_b32 v{tq_}, 4, v0", f"v_bfe_u32 v{t1}, v0, 1, 3",
           f"v_xor_b32 v{t1}, v{t1}, v{tq_}", f"v_lshlrev_b32 v{t1}, 4, v{t1}",
           f"v_lshl_add_u32 v{t1}, v{tn}, 7, v{t1}", f"v_xor_b32 v{t5}, 64, v{t1}",
           f"s_xor_b32 s{sT0}, s{sWv}, 1", f"s_lshl_b32 s{sT0}, s{sT0}, 14", f"s_add_u32 s{sT0}, s{sT0}, {XS}",
           f"v_add_u32 v{vXr}, s{sXm}, v{t1}", f"v_add_u32 v{vXr+1}, s{sXm}, v{t5}",
           f"v_add_u32 v{vXr+2}, s{sT0}, v{t1}", f"v_add_u32 v{vXr+3}, s{sT0}, v{t5}"])
        e([f"v_bfe_u32 v{t1}, v0, 4, 1", f"v_bfe_u32 v{t5}, v0, 2, 2",
           f"s_and_b32 s{sT0}, s{sWv}, 1", f"s_lshl_b32 s{sT1}, s{sT0}, 9",
           f"v_mul_u32_u24 v{vTr}, 1056, v{t1}", f"v_mul_u32_u24 v{vTr+1}, 4160, v{t4}", f"v_add3_u32 v{vTr}, v{vTr}, v{vTr+1}, s{sT1}",
           f"v_lshl_add_u32 v{vTr}, v{t5}, 6, v{vTr}", f"v_lshl_add_u32 v{vTr}, v{t6}, 3, v{vTr}",
           f"v_add_u32 v{vTr+1}, {4*WSLOT}, v{vTr}"])
        st, fbuf = vAA, [vAB, vAB + 4, vE, vE + 4]
        vA2 = vAB + 16
        ph, stp, tq, y0, y1, y2 = range(vAA + 20, vAA + 26)
        pk = vAA + 32
        e([f"s_lshl1_add_u32 s{sCnt}, s{sC}, s{sT0}", f"v_lshl_add_u32 v{y0}, s{sCnt}, 4, v{tn}",
           f"v_lshrrev_b32 v{y1}, 1, v{y0}", f"v_and_b32 v{y2}, 1, v{y0}",
           f"v_cmp_eq_u32 vcc, 1, v{y0}", f"v_mov_b32 v{tq}, 224", f"s_mov_b32 s{sCnt}, {STEP448}",
           f"v_cndmask_b32 v{y1}, v{y1}, v{tq}, vcc", f"v_cndmask_b32 v{y2}, v{y2}, 0, vcc",
           f"v_mul_lo_u32 v{stp}, v{y1}, s{sCnt}", f"s_and_b32 s{sCnt}, s{sWv}, 2", f"s_lshl2_add_u32 s{sT0}, s{sCnt}, s{sT0}"])
        if not norot:
            e(f"s_add_u32 s{sCnt}, s{sCnt}, s{sRot1}")
        e([f"s_lshl_b32 s{sCnt}, s{sCnt}, 6",
           f"v_lshl_add_u32 v{y1}, v{tq_}, 3, s{sCnt}",
           f"v_mul_lo_u32 v{ph}, v{y1}, v{stp}", f"v_lshl_add_u32 v{ph}, v{y2}, 30, v{ph}",
           f"v_lshlrev_b32 v{y1}, 5, v{stp}", f"v_add_u32 v{vFr}, {FS}, v{vL16}", f"v_lshl_add_u32 v{y2}, s{sT0}, 10, v{vFr}"])
        e(self.trig(st + 16, y1, tq))
        for ks in range(2):
            for j in range(8):
                e(self.trig(st + 8 * ks + j, ph, tq + (j & 1)))
                if ks == 0 or j < 7:
                    e(f"v_add_u32 v{ph}, v{ph}, v{stp}")
            if ks == 0:
                e([f"v_lshl_add_u32 v{ph}, v{stp}, 3, v{ph}", f"v_lshl_add_u32 v{ph}, v{stp}, 4, v{ph}",
                   f"v_mul_f32 v{st+17}, -2.0, v{st+16}", f"v_add_f32 v{st+16}, v{st+16}, v{st+16}"])
        e(self.rec_pack(st, 0, pk) + self.rec_pack(st, 1, pk + 4) + self.rec_step(st, 2, pk + 8) + self.rec_step(st, 3, pk + 12))
        e(f"s_cmp_ge_u32 s{sWv}, 2")
        for k in range(4):
            if k == 3:
                e("s_cbranch_scc1 L_f2")
            e(I(f"ds_write_b128 v{y2}, {vr(pk+4*k,4)} offset:{2048*k}", tag="fw"))
        p.raw("L_f2:")
        issue_pro(o["npro"] - o["npre"])
        for d in q1:
            d["ear"] = max(d["ear"], 0)
        lq = []
        for s, n in ((sD, 1792 * 896), (sDBG, 256), (sWS, WSEND), (sO, 2048 * 896)):
            lq += [f"s_mov_b32 s{s+2}, {n}", f"s_mov_b32 s{s+3}, 0x20000"]
        lq += [f"v_lshlrev_b32 v{vY}, 5, v{t1}", f"v_xor_b32 v{vY+1}, v{vY}, v{t2}",
               f"v_mul_u32_u24 v{vDd}, 896, v{t3}", f"s_lshl_b32 s{sCnt}, s{sCt}, 7", f"v_add3_u32 v{vDd}, v{vDd}, v{vY+1}, s{sCnt}"]
        for i in range(1, 4):
            lq += [f"v_add_u32 v{vDd+i}, {i*(8*896-1024)}, v{vDd}"]
        lq += [f"v_lshl_add_u32 v{vY}, v{t3}, 6, v{vY}", f"v_lshl_add_u32 v{vY}, v{t6}, 3, v{vY}",
               f"v_lshl_add_u32 v{vY+1}, v{t3}, 12, v{vY+1}",
               f"s_lshr_b32 s{sT1}, s{sWv}, 1", f"s_and_b32 s{sT0}, s{sWv}, 1", f"s_lshl4_add_u32 s{sT0}, s{sT1}, s{sT0}",
               f"s_lshl_b32 s{sT0}, s{sT0}, 5", f"v_lshl_add_u32 v{vDr}, v{t4}, 10, v{vY}", f"v_xor_b32 v{vDr}, s{sT0}, v{vDr}",
               f"v_xor_b32 v{vDr+1}, 32, v{vDr}", f"v_xor_b32 v{vDr+2}, 0x200, v{vDr}", f"v_xor_b32 v{vDr+3}, 0x220, v{vDr}",
               f"s_lshl_b32 s{sCnt}, s{sT1}, 15", f"s_add_u32 s{sCnt}, s{sCnt}, {XS}"]
        lq += [f"v_add_u32 v{vDr+k}, s{sCnt}, v{vDr+k}" for k in range(4)]
        lq += [f"v_bfe_u32 v{t5}, v0, 1, 1", f"v_lshlrev_b32 v{vSg}, 31, v{t5}", f"v_or_b32 v{vSg}, 1.0, v{vSg}",
               f"v_and_b32 v{vPg}, 31, v0", f"v_lshlrev_b32 v{vPg}, 3, v{vPg}"]
        lq += [f"s_lshl_b32 s{sCnt}, s{sq}, 4",
               f"v_xor_b32 v{t5}, s{sCnt}, v{t2}", f"v_lshl_add_u32 v{vX1g}, v{t3}, 14, v{t5}",
               f"s_lshl_b32 s{sCnt}, s{sC}, 8", f"s_add_u32 s{sCnt}, s{sCnt}, s{sRg}", f"s_lshl2_add_u32 s{sCnt}, s{sCnt}, s{sWv}",
               f"s_lshl_b32 s{sCnt}, s{sCnt}, 7", f"s_add_u32 s{sCnt}, s{sCnt}, {X1T}", f"v_add_u32 v{vX1g}, s{sCnt}, v{vX1g}"]
        lq += [f"s_and_b32 s{sT0}, s{sRt}, 1", f"s_lshl1_add_u32 s{sT0}, s{sT0}, s{sT1}", f"s_mul_i32 s{sPe}, s{sT0}, 7",
               f"s_and_b32 s{sT2}, s{sWv}, 1", f"s_add_u32 s{sT0}, s{sPe}, s{sT2}"]
        for sg in range(7):
            if sg == 3:
                lq += [f"s_mul_i32 s{sCnt}, s{sT2}, -6", f"s_add_i32 s{sT1}, s{sPe}, s{sCnt}", f"s_add_u32 s{sT1}, s{sT1}, 6",
                       f"s_and_b32 s{sCnt}, s{sT1}, 30", f"s_add_u32 s{sCnt}, s{sCnt}, s{sT1}", f"s_lshl1_add_u32 s{sCnt}, s{sT2}, s{sCnt}"]
            else:
                lq += [f"s_add_u32 s{sT1}, s{sT0}, {2*sg if sg < 3 else 2*sg-7}", f"s_and_b32 s{sCnt}, s{sT1}, 30",
                       f"s_add_u32 s{sCnt}, s{sCnt}, s{sT1}"] + ([f"s_add_u32 s{sCnt}, s{sCnt}, 2"] if sg > 3 else [])
            lq += [f"s_mul_i32 s{sDo+sg}, s{sCnt}, {2*16*896}"]
        lq += [f"s_lshl3_add_u32 s{sPl}, s{sRt}, s{sCt}", f"s_lshl2_add_u32 s{sPl}, s{sPl}, s{sWv}", f"s_lshl_b32 s{sPl}, s{sPl}, 11",
               f"s_xor_b32 s{sPs}, s{sPl}, 0x10000", f"s_add_u32 s{sPl}, s{sPl}, {PP}", f"s_add_u32 s{sPs}, s{sPs}, {PP}",
               f"s_movk_i32 s{s8k}, 8192"] + [f"v_mov_b32 v{vT+j}, -1" for j in range(4)]
        n_early = len(lq)
        assert HH % 2048 == 0
        lq += [f"s_lshr_b32 s{sT0}, s{sWv}, 1", f"s_lshl1_add_u32 s{sT0}, s{sRg}, s{sT0}", f"s_mul_i32 s{sHst}, s{sT0}, 229376",
               f"s_and_b32 s{sT1}, s{sWv}, 1", f"s_lshl1_add_u32 s{sT2}, s{sC}, s{sT1}", f"s_lshl_b32 s{sCnt}, s{sT2}, 11",
               f"s_add_u32 s{sHst}, s{sHst}, s{sCnt}", f"s_mul_i32 s{sT1}, s{sT1}, 57344",
               f"s_sub_u32 s{sHst1}, s{sHst}, s{sT1}", f"s_add_u32 s{sHst}, s{sHst}, s{sT1}",
               f"s_add_u32 s{sHst}, s{sHst}, {HH}", f"s_add_u32 s{sHst1}, s{sHst1}, {HH+57344}",
               f"s_mul_i32 s{sT1}, s{sT2}, 37", f"s_lshr_b32 s{sT1}, s{sT1}, 8", f"s_mul_i32 s{sT1}, s{sT1}, 25",
               f"s_add_u32 s{sT1}, s{sT1}, s{sT2}", f"s_lshl_b32 s{sT0}, s{sT0}, 9", f"s_lshl2_add_u32 s{sT0}, s{sT1}, s{sT0}",
               f"s_add_u32 s{sFh}, s{sT0}, {FH}",

               f"s_mov_b32 s{sK}, 0xbfb8aa3b", f"s_mov_b32 s{sK+1}, 0xbfb8aa3b",
               f"s_mov_b32 s{sSc}, {fbits(2.0/(2048*448))}",
               [f"s_cmp_eq_u32 s{sKd}, 0", f"s_cselect_b32 s{sSc}, {fbits(1.0/(2048*448))}, s{sSc}"],
               f"s_lshl_b32 s{sCnt}, s{sKd}, 31", f"s_or_b32 s{sSc}, s{sSc}, s{sCnt}",
               f"s_lshl4_add_u32 s{sFx}, s{sC}, s{sRg}", f"s_lshl2_add_u32 s{sFx}, s{sFx}, s{sWv}", f"s_lshl_b32 s{sFx}, s{sFx}, 7"]
        lq += [f"s_and_b32 s{sT0}, s{sRt}, 1", f"s_xor_b32 s{sT0}, s{sT0}, 1", f"s_mul_i32 s{sT0}, s{sT0}, 7", f"s_add_u32 s{sT0}, s{sT0}, s{sCt}",
               f"s_lshl4_add_u32 s{sT0}, s{sT0}, s{sRg}", f"s_lshl2_add_u32 s{sT0}, s{sT0}, s{sWv}"]
        sc, vv = self.poll1_addr(vT + 14, vT + 15, sT1, sT2, sT0)
        lq += sc + vv
        n_mid = len(lq)
        lq += self.fft_setup_regs() + self.fft_consts(vAB + 32)
        lq2 = self.fft_scalars() + self.fft_addr2()
        vH, vPh, sFp = vXd, vXd + 2, sXo + 2
        lq2 += [f"s_and_b32 s{sCnt}, s{sWv}, 1", f"s_mul_i32 s{sCnt}, s{sCnt}, 28", f"s_add_u32 s{sCnt}, s{sCnt}, s{sPe}",
                f"s_lshl_b32 s{sCnt}, s{sCnt}, 11",
                f"s_add_u32 s{sCnt}, s{sCnt}, {HH}", f"v_add_u32 v{vH}, s{sCnt}, v{vL16}",
                f"s_mul_i32 s{sFp}, s{sRt}, 229376", f"v_add_u32 v{vH+1}, s{sFp}, v{vH}",
                f"s_xor_b32 s{sCnt}, s{sRt}, 1", f"s_mul_i32 s{sFp}, s{sCnt}, 229376", f"v_add_u32 v{vH}, s{sFp}, v{vH}",
                f"v_and_b32 v{vPh}, 7, v0", f"v_min_u32 v{vPh}, 6, v{vPh}", f"v_bfe_u32 v{vPh+1}, v0, 3, 1",
                f"v_lshl_add_u32 v{vPh}, v{vPh+1}, 7, v{vPh}", f"v_lshlrev_b32 v{vPh}, 2, v{vPh}",
                f"s_mul_i32 s{sCnt}, s{sPe}, 37", f"s_lshr_b32 s{sCnt}, s{sCnt}, 8", f"s_lshl3_add_u32 s{sFp}, s{sRg}, s{sCnt}",
                f"s_lshl_b32 s{sFp}, s{sFp}, 7", f"s_add_u32 s{sFp}, s{sFp}, {FH}"]
        e(lq[:o["cpro"]])
        n_early = max(0, n_early - o["cpro"])
        n_mid = max(0, n_mid - o["cpro"])
        lq = lq[o["cpro"]:]
        e(self.stamp("pro"))

        def m16(d, a, b, first):
            return f"v_mfma_f32_16x16x32_bf16 {vr(d,4)}, {a}, {b}, {'0' if first else vr(d,4)}"

        def wread(f):
            i, kk, mat, tl = f // 8, (f // 4) % 2, (f // 2) % 2, f % 2
            slot = i % NWS
            base, off = (vTr, slot * WSLOT) if slot < 4 else (vTr + 1, 0)
            off += kk * 8320 + mat * 2080 + tl * 32
            b = vWF + 4 * (f % NB)
            return [I(f"ds_read_b64_tr_b16 {vr(b+2*h,2)}, v{base} offset:{off+256*h}", tag=f"wf{f}") for h in range(2)]

        def xread(ks, j):
            return I(f"ds_read_b128 {vr(aX+16*ks+4*j,4,'a')}, v{vXr+(j&2)+ks%2} offset:{4096*((ks//2)%4)+2048*(j&1)}", tag=f"xr{ks}_{j>>1}",
                     vm=(f"x{ks//2}" if j == 0 and ks % 2 == 0 else None))

        def fread(d, s_):
            return I(f"ds_read_b128 {vr(fbuf[2*(d&1)+s_],4)}, v{vFr} offset:{2048*(d%7)+1024*s_}", tag=f"fr{d}")
        mf = []
        for ph_ in range(2):
            for ks in range(14):
                for ff in range(4):
                    for j in range(4):
                        mf.append(m16(vAA + 16 * j + 4 * ff, vr(vWF + 4 * ff, 4), vr(aX + 16 * ks + 4 * j, 4, "a"), ks == 0))
                for dd in range(14):
                    if ph_ == 0 and dks[dd] == ks:
                        for s_ in range(2):
                            for jj in range(2):
                                mf.append(m16((vAX if dd < 7 else vA2) + 8 * s_ + 4 * jj, vr(aX + 16 * dd + 4 * jj, 4, "a"),
                                              vr(fbuf[2 * (dd & 1) + s_], 4), dd % 7 == 0))
        G = Gaps(mf, 2)
        G.light = set(bar_gap.values())
        barW = {}
        for f in range(L, 112):
            G.m[U[f - L]] += wread(f)

        def pair(lo, its):
            while lo in G.light or G.m[lo]:
                lo += 1
            G.m[lo] += its
            return lo + 1
        for ks in range(1, 14):
            lo = K0[ks - 1] + (4 if ks % 2 == 0 else 0)
            if dks[ks] == ks:
                lo = pair(lo, [xread(ks, 0), xread(ks, 1)]) + 3
            pair(lo, [xread(ks, 2), xread(ks, 3)])
        for d in range(1, 14):
            k_ = dks[d]
            if k_ < d:
                pair(K0[k_ - 1] + 12 + 5 * (d - dks.index(k_)), [xread(d, 0), xread(d, 1)])
            pair(K0[k_] + 4 * (d - dks.index(k_)), [fread(d, 0), fread(d, 1)])
        for f in range(1, 112):
            tags = [f"wf{f}"]
            if f < 56 and f % 4 == 0:
                tags += [f"xr{f//4}_1", f"xr{f//4}_0"]
            g = U[f] - 1
            if g in G.light:
                j = [k for k, v in bar_gap.items() if v == g][0]
                barW[j] = W(vm=[f"w{j}"] + ([f"x{j}"] if j < 7 else []), ds=tags)
                G.s[g] += [barW[j], "s_barrier"]
            else:
                G.s[g].append(W(ds=tags))
        for ks in set(dks):
            G.s[K0[ks] + 15].append(W(ds=[t_ for d in range(14) if dks[d] == ks for t_ in (f"fr{d}", f"xr{d}_0")]))

        hring = 16
        hreg = [vAB + 4 * n for n in range(hring)]
        xs = o["xsp"]
        sq2 = [(0, s_) for s_ in range(7)] + [(1, s_) for s_ in range(xs)] + [(0, s_) for s_ in range(7, 14)] + \
              [(1, s_) for s_ in range(xs, 14)]
        seq = [(ph_, step, jj) for ph_, step in sq2 for jj in range(2)]
        npre_h = min(hring, 14 + 2 * xs)
        lset = [n for n in range(npre_h, 56) if seq[n][1] < 7][:o["nlds"]]
        dset = [n for n in range(56) if n not in lset]
        hr = {n: hreg[m % hring] for m, n in enumerate(dset)}
        hr.update({n: vWF + 4 * (m % 4) for m, n in enumerate(lset)})
        hfree = {n: (4 * dset[m - hring] + 3 if m >= hring else -1) for m, n in enumerate(dset)}
        accp, acco, acca = vAA, vAA + 32, vAB + 48
        zreg = [vWF, vWF + 4, vWF + 8, vWF + 12, vAX, vAX + 4]
        own_fi = [vT1c + 4 * a for a in range(8)] + [vAX + 8, vAX + 12, vS32 + 24, vS32 + 28, vS32 + 18, vDd]
        vZr, vZd, vZr1, vGa, vG, vOG = vY, vY + 1, vXr, vXr + 1, vXr + 2, vWd
        vOo, vRw, vRr, vHl, vR3, vPz, vOw, vOr, vW1, vR1 = vFr, vSg, vX1g, vPg, vXd + 3, vPa, vPw, vTr, vDr, vDr + 1
        mf = []
        for n, (ph_, step, jj) in enumerate(seq):
            for k in (2, 3, 0, 1):
                mf.append(m16((acco if ph_ else accp) + 16 * (k >> 1) + 8 * jj + 4 * (k & 1), vr(16 * step + 4 * k, 4, "a"), vr(hr[n], 4), step == 0))
        NH = 224
        for ks in range(14):
            for jj in range(2):
                for tt in range(2):
                    a_ = vr(224 + 4 * (ks % 8), 4, "a") if tt else vr(own_fi[ks], 4)
                    mf.append(m16(acca + 8 * jj + 4 * tt, a_, vr(zreg[(2 * ks + jj) % 6], 4), ks == 0))
        H = Gaps(mf, o["budG"])
        LZ = 10
        gP = 8 * (14 + xs)
        gbp, gbo = gP + 13, NH + 17
        zbar = {}
        acc_ = 0
        for n_ in [int(x) for x in o["zst"].split(",")]:
            zbar[NH + 4 * acc_ - LZ - 1] = acc_ + n_ - 1
            acc_ += n_
        assert acc_ == 14
        gb = NH - LZ - 1
        H.light = {gbp, gbo} | set(zbar)

        evs = {"E": [], "F": []}
        busy = {"G1": set(G.light), "G": set(H.light)}

        def at(spec, items, post=False):
            ph_, n = spec[0], int(spec[1:])
            if ph_ in "EF":
                evs[ph_].append((n, items, post))
                return
            S_, key = (H, "G") if ph_ == "G" else (G, "G1")
            g = n + (NA if ph_ == "B" else 0)
            assert g not in S_.light, spec
            (S_.post if post else S_.m)[g] += items
            busy[key].add(g)
        for a_, b_ in (("go_ld", "go_chk"), ("go_chk", "x1flag"), ("pclr", "x1flag"), ("poll1", "chk1"), ("chk1", "pollA"), ("pollA", "chkA"),
                       ("chkA", "pollW"), ("pollW", "chkW"), ("hAflag", "hBflag"), ("chkA", "pollB"), ("pollB", "chkB"), ("chkB", "pollZ"),
                       ("pollZ", "chkZ")):
            assert T(o[a_]) < T(o[b_]), (a_, b_)
        stop1 = o["stop"] == "gemm1"
        gol = f"buffer_load_dword v{vP}, v{vPg}, {srd(sDBG)}, 0 offen sc1"
        at(o["go_ld"], [I(gol, tag="go")])
        at(o["go_chk"], [self.poll_check("go", "go", gol, vP)], True)
        for hf in range(2):
            at(o["pclr"][0] + str(int(o["pclr"][1:]) + 4 * hf),
               [I(f"buffer_store_dwordx4 {vr(vT,4)}, v{vL16}, {srd(sWS)}, s{sPs} offen offset:{1024*hf} sc1", tag="pcl")])
        at(o["x1flag"], [self.flag_store(sFx, ["x1s", "pcl"])])
        pl = f"buffer_load_dword v{vPr}, v{vPa}, {srd(sWS)}, 0 offen sc1"
        pw = f"buffer_load_dword v{vPr}, v{vPw}, {srd(sWS)}, 0 offen sc1"
        pollH = f"buffer_load_dword v{vPr}, v{vPh}, {srd(sWS)}, s{sFp} offen sc1"
        pollZ = f"buffer_load_dword v{vPr}, v{vPz}, {srd(sWS)}, 0 offen sc1"
        at(o["poll1"], [I(pl, tag="p1")])
        at(o["pollW"], [I(pw, tag="pW")])
        at(o["pollA"], [I(pollH, tag="pA")])
        at(o["hAflag"], [self.flag_store(sFh, "hA")])
        if not stop1:
            at(o["chk1"], [self.poll_check("p1", "p1", pl, vPr)], True)
            at(o["chkW"], [self.poll_check("pW", "pW", pw, vPr)], True)
            at(o["chkA"], [self.poll_check("pA", "pA", pollH, vPr)], True)
        at(o["hBflag"], [f"s_add_u32 s{sFh}, s{sFh}, {128*128}", self.flag_store(sFh, "hB")])
        at(o["pollB"], [f"s_add_u32 s{sFp}, s{sFp}, {128*128}"] + self.spoll_load(sFp))
        at(o["chkB"], [self.spoll_check("pB", pollH, vPr)], True)
        sFz, sZo, sZm, sZp, sU_, sI_, sGo = sXo + 3, sXo + 4, sXo + 5, sXo + 6, sRot2, s8k, 78
        at(o["zflag"], [self.flag_store(sFz, ["zre", "zim"])])
        at(o["pollZ"], [I(pollZ, tag="pZ")])
        at(o["chkZ"], [self.poll_check("pZ", "pZ", pollZ, vPr)] +
           [I(f"buffer_load_dword v{vG+jj}, v{vGa}, {srd(sWS)}, s{sGo} offen offset:{64*jj} sc1", tag="g") for jj in range(2)], True)
        pld = [f"buffer_load_dwordx4 {vr(accp+4*hf,4)}, v{vL16}, {srd(sWS)}, s{sPl} offen offset:{1024*hf} sc1" for hf in range(2)]
        for hf in range(2):
            at("G" + str(int(o["pld"][1:]) + 2 * hf), [I(pld[hf], tag="pl")])

        class BG:
            pass
        bg = BG()
        bg.q2 = [d for sg in range(7) for d in ddma(sg)]
        bg.nd = bg.ntr = bg.nz = 0
        bg.t_issue, bg.t_read = {}, {}
        bg.vis, bg.free = set(), set()
        bg.nxt = 0
        bg.lds_ok = False
        bg.hp = list(range(56))
        bg.log = []
        self.hc = None
        wd_at = [T(x) for x in o["wd_at"].split(",")]
        fl = self.fft_loads()
        q3 = [dict(t=fl[1].t, tag="x1", m0=(sT0, IMG), ds=None), dict(t=fl[2].t, tag="x1", m0=(sT0, IMG), ds=None),
              dict(t=fl[3].t, tag="wtre", m0=None, ds=None), dict(t=fl[5].t, tag="wtim", m0=None, ds=None, pre=[fl[4]])]
        for d in q3:
            d["ear"] = T(o["chk1"] if d["tag"] == "x1" else o["chkW"]) + 1
        for d in q3:
            d["dl"] = tg(bar_gap[13]) + 1
        q1 += q3
        q1.sort(key=lambda d: d["dl"])

        def dtr(n):
            step, k, t_ = n // 8, (n // 2) % 4, n % 2
            off = 16384 * (step & 1) + 4096 * ((step // 2 + 3) % 4) + 2048 * t_
            return I(f"ds_read_b64_tr_b16 {vr(16*step+4*k+2*t_,2,'a')}, v{vDr+k} offset:{off}", tag=f"dr{step//2}")

        def bg_barrier(j):
            t = tg(bar_gap[j])
            for sg, ti in bg.t_issue.items():
                if sg not in bg.vis and (t >= ti + o["wd_delay"] or j == 13):
                    bg.vis.add(sg)
                    barW[j].vm.append(f"d{sg}")
            for sg, tr in bg.t_read.items():
                if sg not in bg.free and t >= tr + 48:
                    bg.free.add(sg)
                    barW[j].ds.append(f"dr{sg}")

        def bg_tr(t):
            n = bg.ntr
            if n >= 112 or n // 16 not in bg.vis or t < TB + 256 * (n // 8 + 1) - 16:
                return []
            bg.ntr += 1
            if n % 16 == 15:
                bg.t_read[n // 16] = t
            return [dtr(n)]

        def hload(n):
            ph_, step, jj = seq[n]
            c = (step // 7) * 114688 + (2 * (step % 7) + jj) * 1024
            pre = []
            if self.hc is None or not 0 <= c - self.hc <= 3072 or (n in lset and 1024 * lset.index(n) < c - self.hc):
                self.hc = c
                pre.append(f"s_mov_b32 s{sHc}, {c}")
            imm = c - self.hc
            if n in lset:
                return dict(t=f"buffer_load_dwordx4 v{vH+ph_}, {srd(sWS)}, s{sHc} offen offset:{imm} sc1 lds", tag=f"h{n}",
                            m0=(sZm, 1024 * lset.index(n) - imm), ds=None, pre=pre)
            return dict(t=f"buffer_load_dwordx4 {vr(hr[n],4)}, v{vH+ph_}, {srd(sWS)}, s{sHc} offen offset:{imm} sc1", tag=f"h{n}",
                        m0=None, ds=None, pre=pre)

        def bg_dma(t, per, g2=None):
            if t < bg.nxt:
                return [], []
            d = None
            sg = bg.nd // 4
            wd_ok = bg.q2 and t >= wd_at[sg] and (t > tg(bar_gap[sg + 4]) if sg < 4 else sg - 4 in bg.free)
            if wd_ok and sg >= 4:
                pass
            elif any(t >= x["ear"] for x in q1):
                d = [x for x in q1 if t >= x["ear"]][0]
                q1.remove(d)
                wd_ok = False
            if wd_ok:
                d = bg.q2.pop(0)
                bg.nd += 1
                if bg.nd % 4 == 0:
                    bg.t_issue[sg] = t
            if d is None:
                for n in bg.hp:
                    if t > T(o["chkA"] if seq[n][1] < 7 else o["chkB"]) and \
                            (bg.lds_ok if n in lset else (hfree[n] < 0 or (g2 is not None and g2 >= hfree[n]))):
                        assert g2 is None or g2 < 4 * n - (16 if n in lset else 2), ("h late", n, g2)
                        d = hload(n)
                        bg.hp.remove(n)
                        break
            if d is None and bg.nz < 14 and t > T(o["chkZ"]):
                i = bg.nz
                if i >= len(lset) or g2 >= 4 * lset[i]:
                    d = dict(t=f"buffer_load_dwordx4 v{vZd}, {srd(sWS)}, s{sZo} offen sc1 lds", tag=f"z{i}",
                             m0=(sZm, 1024 * i), ds=None, pre=[f"s_mov_b32 s{sZo}, {131072*i}"])
                    assert all(g2 < zb for zb, last in zbar.items() if last >= i), (i, g2)
                    bg.nz += 1
            if d is None:
                return [], []
            bg.log.append((d["tag"], t))
            bg.nxt = max(bg.nxt + per, t + per // 2)
            return dma_items(d)

        def run_gaps(S_, key, g0, g1, tf, per):
            lastd = g0 - 1
            for g in range(g0, g1):
                if S_ is G and g in G.light:
                    bg_barrier([k for k, v in bar_gap.items() if v == g][0])
                if g in busy[key]:
                    continue
                if len(S_.m[g]) < 2:
                    s_, m_ = bg_dma(tf(g), per, g if S_ is H else None)
                    if m_:
                        for x in s_:
                            cand = [k for k in range(g - (1 if "m0" in x else 0), lastd, -1) if not S_.s[k]]
                            S_.s[cand[0] if cand else (g - 1 if g - 1 > lastd and g - 1 not in S_.light and len(S_.m[g - 1]) < 2 else g)].append(x)
                        lastd = g
                    S_.m[g] += m_
                while S_ is G and len(S_.m[g]) < 2 and (S_.m[g] or g % 4 == 2):
                    m_ = bg_tr(tf(g))
                    if not m_:
                        break
                    S_.m[g] += m_

        def merge(items, ph_, T0, per):
            out, t, prevk = [], 0, "M"
            ev = sorted(evs[ph_], key=lambda x: x[0])
            for x in items:
                if isinstance(x, Mark):
                    self.log(f"  est {ph_}{t} {x.name}")
                    if x.name in o["only"].split(",") or x.name in ("epiA", "epi"):
                        out += self.stamp(x.name)
                    if x.name == "bE":
                        bg.lds_ok = True
                    if x.name == "epi" and stop1:
                        out.append("s_branch L_fin")
                    continue
                out.append(x)
                tx = txt(x)
                k = kind(tx)
                if k == "M":
                    t += 16
                elif not tx:
                    t += 4 if x.ds == "all" or x.vm else 50
                elif tx == "s_barrier":
                    t += 30
                else:
                    t += 4 * cost(tx) + (28 if prevk == "M" and tx.startswith("v_pk") else 0)
                if k == "G":
                    bg.nxt = max(bg.nxt, T0 + t) + o["perS"]
                prevk = k
                if tx.startswith("s_cmp") or k == "D" or (not tx) or tx == "s_barrier":
                    continue
                while ev and ev[0][0] <= t:
                    out += ev.pop(0)[1]
                    t += 16
                s_, m_ = bg_dma(T0 + t + (24 if k == "M" else 0), per)
                out += s_ + m_
                t += 0 if k == "M" or not m_ else 4 * (len(s_) + len(m_)) + 8
            for x in ev:
                out += x[1]
            self.log(f"  est {ph_}{t} end")
            return out
        run_gaps(G, "G1", 0, NA, tg, o["perA"])
        rec = Rec()
        for n in range(4):
            rec.e(self.epi_pk(vAA + 16 * n, vE))
            rec.e(self.hstore(vAA, n, "hA"))
        rec.mark("epiA")
        codeE = merge(rec.items, "E", TE, o["perE"])
        bg.nxt = min(bg.nxt, TB + 64)
        run_gaps(G, "G1", NA, NA + NBg, tg, o["perB"])
        assert not q1 and len(bg.vis) == 7, (bg.vis, bg.nd, bg.ntr)
        barW[13].vm.append("x1")
        assert T(o["chk1"]) + 400 < tg(bar_gap[13])
        rec = Rec()
        while bg.ntr < 112:
            rec.e(bg_tr(TF))
        for n in range(4):
            rec.e(self.epi_pk(vAA + 16 * n, vE))
            if n == 0:
                rec.e([W(ds="all"), "s_barrier"])
                rec.mark("bE")
            rec.e(self.hstore(vAA, n, "hB"))
            rec.mark(f"e{n}")
        rec.mark("epi")
        self.p = rec
        self.fft_body(lambda name, dt: rec.mark(name))
        self.p = p
        names = [x.name if isinstance(x, Mark) else None for x in rec.items]
        i0, i1, i2 = names.index("h0"), names.index("s1"), names.index(o["fft_head"])
        rds = [x for x in rec.items[i0:i1] if isinstance(x, I) and x.t.startswith("ds_read")]
        rec.items = rec.items[:i2 + 1] + rds + rec.items[i2 + 1:i0] + rec.items[i1:]
        codeF = merge(rec.items, "F", TF, o["perF"])
        bg.nxt = min(bg.nxt, TG + 64)
        run_gaps(H, "G", 0, H.n, lambda g: TG + 16 * g, o["perG"])
        assert not bg.hp and bg.nz == 14

        def nm(t):
            return f"A{t//16}" if t < TE else f"E{t-TE}" if t < TB else f"B{(t-TB)//16}" if t < TF else f"F{t-TF}" if t < TG else f"G{(t-TG)//16}"
        self.log("dma: " + " ".join(f"{a_}@{nm(t)}" for a_, t in bg.log))
        self.log(f"wd read done {[nm(v) for v in bg.t_read.values()]}")

        G.s[NA - 1] += self.stamp("A")
        g, left = G.pour(lq[:n_early], 0, min(T(o["go_ld"]), T(o["pclr"]), wd_at[0]) // 16 - 1, budget=o["budA"])
        assert not left
        ge, left = G.pour(lq[n_early:n_mid], g, NA - 1, budget=o["budA"])
        assert not left
        dpp = "quad_perm:[2,3,0,1] row_mask:0xf bank_mask:0xf"
        xq = ["s_mov_b32 vcc_lo, 0x33333333", "s_mov_b32 vcc_hi, 0x33333333"]
        xq += [f"v_fmac_f32 v{vA2+j}, v{vSg}, v{vAX+j}" for j in range(16)]
        xq += [f"v_cvt_pk_bf16_f32 v{vAX+j}, v{vA2+2*j}, v{vA2+2*j+1}" for j in range(8)]
        xq += [f"v_permlane16_swap_b32 v{vAX+j}, v{vAX+4+j}" for j in range(4)]
        xq += [f"v_cndmask_b32_dpp v{vAX+8+j}, v{vAX+4+j}, v{vAX+j}, vcc {dpp}" for j in range(4)]
        xq += [I(f"buffer_store_dwordx4 {vr(vAX+8,4)}, v{vX1g}, {srd(sWS)}, 0 offen sc1", tag="x1s")]
        xq += ["s_not_b64 vcc, vcc"]
        xq += [f"v_cndmask_b32_dpp v{vAX+12+j}, v{vAX+j}, v{vAX+4+j}, vcc {dpp}" for j in range(4)]
        xq += [I(f"buffer_store_dwordx4 {vr(vAX+12,4)}, v{vX1g}, {srd(sWS)}, s{s8k} offen sc1", tag="x1s")]
        g, left = G.pour(xq, Dg[13] + 6, NA - 1, window=2)
        self.log(f"dft ends at gap {Dg[13]+3}, x1 stored at gap {g}, mid setup done at {ge}")
        assert not left and not (Dg[13] + 6 <= T(o["go_chk"]) / 16 <= g) and 16 * g < T(o["x1flag"])
        lim = NA + (min(T(o["chk1"]), T(o["pollA"])) - TB) // 16 - 1
        g2_, left = G.pour(lq[n_mid:n_mid + 15] + lq2, max(ge, 200), lim)
        assert not left
        th8 = min(dict(bg.log)[f"h{dset[8]}"], TF)
        g, left = G.pour(lq[n_mid + 15:], ge, NA + (th8 - TB) // 16 - 1, budget=o["budA"], window=40)
        self.log(f"fft constants end at gap {g}, left {len(left)}")
        assert not left
        x0, x1 = vT + 14, vT + 15
        bq = [f"s_add_u32 s{sHst}, s{sHst}, 114688", f"s_add_u32 s{sHst1}, s{sHst1}, 114688",
              f"s_and_b32 s{sI_}, s{sWv}, 1", f"s_lshr_b32 s{sU_}, s{sWv}, 1",
              f"s_mul_i32 s{sZm}, s{sWv}, 14336", f"s_add_u32 s{sZm}, s{sZm}, {ZS}",
              f"v_add_u32 v{vHl}, s{sZm}, v{vL16}", f"v_add_u32 v{vRw}, s{sXm}, v{vL16}",
              f"s_xor_b32 s{sFs}, s{sWv}, 2", f"s_lshl_b32 s{sFs}, s{sFs}, 14", f"s_add_u32 s{sFs}, s{sFs}, {XS}", f"v_add_u32 v{vRr}, s{sFs}, v{vL16}",
              f"s_xor_b32 s{sFs}, s{sWv}, 1", f"s_lshl_b32 s{sFs}, s{sFs}, 14", f"s_add_u32 s{sFs}, s{sFs}, {XS}", f"v_add_u32 v{vR3}, s{sFs}, v{vL16}",
              f"s_lshl_b32 s{sFz}, s{sWv}, 8", f"s_add_u32 s{sFs}, s{sFz}, s{sRt}", f"s_add_u32 s{sFz}, s{sFz}, s{sKd}",
              f"s_lshl_b32 s{sFz}, s{sFz}, 5", f"s_add_u32 s{sFz}, s{sFz}, {FZ}",
              f"s_lshl_b32 s{sFs}, s{sFs}, 7", f"s_add_u32 s{sFs}, s{sFs}, {ZT}", f"v_add_u32 v{vZd}, s{sFs}, v{vZd}",
              f"s_lshl_b32 s{sFs}, s{sI_}, 9", f"s_add_u32 s{sFs}, s{sFs}, {ZS}", f"v_lshrrev_b32 v{x0}, 5, v0",
              f"v_mul_u32_u24 v{x1}, 14336, v{x0}", f"v_add3_u32 v{vZr}, v{vZr}, v{x1}, s{sFs}", f"v_xor_b32 v{vZr1}, 32, v{vZr}",
              f"s_lshr_b32 s{sFs}, s{sRt}, 3", f"s_and_b32 s{sCnt}, s{sRt}, 1",
              f"s_lshl1_add_u32 s{sFs}, s{sFs}, s{sCnt}", f"s_lshl1_add_u32 s{sFs}, s{sFs}, s{sI_}",
              f"s_bfe_u32 s{sCnt}, s{sRt}, 0x20001", f"s_lshl4_add_u32 s{sFs}, s{sFs}, s{sCnt}", f"s_mul_i32 s{sFs}, s{sFs}, {8*896}",
              f"s_lshl1_add_u32 s{sU_}, s{sCt}, s{sU_}", f"s_lshl_b32 s{sCnt}, s{sU_}, 6", f"s_add_u32 s{sFs}, s{sFs}, s{sCnt}",
              f"v_bfe_u32 v{x1}, v0, 2, 3", f"v_lshl_add_u32 v{x1}, v{x0}, 5, v{x1}", f"v_mul_u32_u24 v{x1}, 896, v{x1}",
              f"v_and_b32 v{x0}, 48, v{vL16}", f"v_add3_u32 v{vOo}, v{x0}, v{x1}, s{sFs}",
              f"s_lshl1_add_u32 s{sGo}, s{sRt}, s{sI_}", f"s_lshl_b32 s{sGo}, s{sGo}, 7", f"s_add_u32 s{sGo}, s{sGo}, {GOFF}",
              f"v_and_b32 v{vGa}, 15, v0", f"v_lshlrev_b32 v{vGa}, 2, v{vGa}"]
        assert ZS % 64 == 0
        g, left = G.pour(bq, max(NA, g2_ + 1), NA + NBg)
        assert not left
        bq = [f"s_lshr_b32 s{sZp}, s{sRt}, 3", f"s_lshl_b32 s{sZp}, s{sZp}, 8", f"s_add_u32 s{sZp}, s{sZp}, {FZ//32}",
              f"s_lshl2_add_u32 s{sCnt}, s{sWv}, s{sZp}", f"s_addk_i32 s{sZp}, 224", f"s_lshl2_add_u32 s{sFs}, s{sRt}, {FG//32}",
              f"v_and_b32 v{x0}, 60, v0", f"v_mul_u32_u24 v{x0}, 3, v{x0}", f"v_add3_u32 v{vPz}, v{x0}, v0, s{sCnt}",
              f"v_subrev_u32 v{x0}, 56, v0", f"v_ashrrev_i32 v{x0}, 31, v{x0}",
              f"v_bfi_b32 v{vPz}, v{x0}, v{vPz}, s{sZp}", f"v_subrev_u32 v{x0}, 60, v0", f"v_ashrrev_i32 v{x0}, 31, v{x0}",
              f"v_bfi_b32 v{vPz}, v{x0}, v{vPz}, s{sFs}", f"v_lshlrev_b32 v{vPz}, 5, v{vPz}"]
        g, left = G.pour(bq, max(g + 1, NA + (T(o["chk1"]) - TB) // 16 + 1), NA + NBg)
        self.log(f"g2 address setup ends at gap B{g-NA}")
        assert not left

        for n in range(1, 56):
            if n in lset:
                g = 4 * n - 11
                H.m[g - (g in H.light)].append(I(f"ds_read_b128 {vr(hr[n],4)}, v{vHl} offset:{1024*lset.index(n)}", tag=f"hr{n}", vm=f"h{n}"))
                H.s[4 * n - 1].insert(0, W(ds=f"hr{n}"))
            else:
                H.s[4 * n - 1].insert(0, W(vm=f"h{n}"))

        def fi_loc(a, rd):
            if a < 12:
                return (vR3 if rd else vRw), 1024 * a
            return (vR1 if rd else vW1), 4096 * (a - 12)
        for zb, last in zbar.items():
            H.s[zb] += [W(vm=f"z{last}", ds="fw13" if zb == gb else None)] + ([] if zb == gbo else ["s_barrier"])
        for ks in range(14):
            r_, off = fi_loc(ks, True)
            H.m[NH + 4 * ks - LZ].append(I(f"ds_read_b128 {vr(224+4*(ks%8),4,'a')}, v{r_} offset:{off}"))
            for jj in range(2):
                for t_ in range(2):
                    g = NH + 4 * ks + 2 * jj + t_ - LZ
                    H.m[g - (g in H.light)].append(I(f"ds_read_b64_tr_b16 {vr(zreg[(2*ks+jj)%6]+2*t_,2)}, v{vZr1 if jj else vZr} "
                                                     f"offset:{t_*28672+ks*1024}", tag=f"zf{ks}"))
            H.s[NH + 4 * ks - 1].insert(0, W(ds=f"zf{ks}"))
        for j in range(4):
            H.m[gP + 1 + 2 * j].append(I(f"ds_write_b128 v{vRw}, {vr(accp+16+4*j,4)} offset:{12288+1024*j}", tag="rwp"))
            H.m[gbp + 1 + j].append(I(f"ds_read_b128 {vr(accp+16+4*j,4)}, v{vRr} offset:{12288+1024*j}", tag=f"rrp{j//2}"))
        H.s[gbp] += [W(ds="rwp"), "s_barrier"]
        assert gbp + 12 < gb
        g = gbp + 8
        for hf in range(2):
            H.s[g].append(W(ds=f"rrp{hf}"))
            pq = [f"v_add_f32 v{accp+8*hf+j}, v{accp+8*hf+j}, v{accp+16+8*hf+j}" for j in range(8)]
            pq += [f"v_cvt_pk_bf16_f32 v{accp+8*hf+j}, v{accp+8*hf+2*j}, v{accp+8*hf+2*j+1}" for j in range(4)]
            pq += [f"v_min_u32 v{accp+8*hf}, -2, v{accp+8*hf}"]
            pq += [I(f"buffer_store_dwordx4 {vr(accp+8*hf,4)}, v{vL16}, {srd(sWS)}, s{sPs} offen offset:{1024*hf} sc1", tag="ps")]
            g, left = H.pour(pq, g)
        self.log(f"partial stored at gap G{g}")
        assert int(o["pld"][1:]) > g + 2
        pchk = [f"v_max_u32 v{vPr}, v{accp}, v{accp+4}", f"v_cmp_eq_u32 vcc, -1, v{vPr}"]
        self.slow += ["L_slow_pP:", f"s_mov_b32 s{sSp}, 0", "L_spin_pP:"] + pld + ["s_waitcnt vmcnt(0)"] + pchk + \
            ["s_cbranch_vccz L_back_pP", f"s_sleep {o['sleep']}", f"s_add_u32 s{sSp}, s{sSp}, 1", f"s_cmp_lt_u32 s{sSp}, {o['spin']}",
             "s_cbranch_scc1 L_spin_pP", "s_endpgm"]
        rdo = vAB + 32
        for j in range(4):
            H.m[NH + 3 + 2 * j].append(I(f"ds_write_b128 v{vRw}, {vr(acco+16+4*j,4)} offset:{12288+1024*j}", tag="rwo"))
            H.m[gbo + 2 + 2 * j].append(I(f"ds_read_b128 {vr(rdo+4*j,4)}, v{vRr} offset:{12288+1024*j}", tag="rro"))
        H.s[gbo] += [W(ds="rwo"), "s_barrier"]
        st = vS32
        x0, x1, x2, x3, ph, stp = range(vS32 + 18, vS32 + 24)
        vq = [f"s_lshl1_add_u32 s{sT0}, s{sU_}, s{sI_}", f"s_mov_b32 s{sT2}, {STEP448}",
              f"v_and_b32 v{x0}, 15, v0", f"v_mul_u32_u24 v{vOw}, 80, v{x0}",
              f"v_lshl_add_u32 v{x0}, s{sT0}, 4, v{x0}", f"v_mul_lo_u32 v{stp}, v{x0}, s{sT2}",
              f"v_lshrrev_b32 v{x1}, 4, v0", f"v_lshlrev_b32 v{x2}, 1, v{x1}",
              f"v_mul_lo_u32 v{ph}, v{x2}, v{stp}", f"v_lshlrev_b32 v{x2}, 4, v{stp}"]
        vq += self.trig(st + 16, x2, x3)
        vq += [f"v_mul_lo_u32 v{x2}, v{stp}, 7"]
        for ks in range(2):
            for jj in range(4):
                vq += [f"v_alignbit_b32 v{x3}, s{s7f}, v{ph}, 9", f"v_cos_f32 v{st+8*ks+2*jj}, v{x3}",
                       f"v_sin_f32 v{st+8*ks+2*jj+1}, -v{x3}"]
                if not (jj == 3 and ks == 1):
                    vq += [f"v_add_u32 v{ph}, v{ph}, v{x2 if jj & 1 else stp}"]
        vq += [f"v_mul_f32 v{st+17}, -2.0, v{st+16}", f"v_add_f32 v{st+16}, v{st+16}, v{st+16}"]
        vq += self.rec_pack(st, 0, own_fi[0]) + self.rec_pack(st, 1, own_fi[1])
        vq += [f"v_lshlrev_b32 v{x2}, 31, v{x0}", f"v_or_b32 v{x2}, 0x3f803f80, v{x2}", f"v_add_u32 v{x3}, -1, v{x1}",
               f"v_ashrrev_i32 v{x3}, 31, v{x3}", f"v_bfi_b32 v{own_fi[0]}, v{x3}, v{x2}, v{own_fi[0]}",
               f"v_lshl_add_u32 v{vW1}, s{sWv}, 10, v{vL16}", f"v_xor_b32 v{vR1}, 0x400, v{vW1}",
               f"s_mul_i32 s{sT2}, s{sWv}, 2560", f"s_add_u32 s{sT2}, s{sT2}, {FS}", f"s_lshl_b32 s{sT0}, s{sI_}, 5",
               f"v_lshl_add_u32 v{vOw}, v{x1}, 3, v{vOw}", f"v_add_u32 v{vOw}, s{sT2}, v{vOw}",
               f"v_subrev_u32 v{vOr+1}, s{sT0}, v{vOw}", f"v_add_u32 v{vOw}, s{sT0}, v{vOw}",
               f"v_lshrrev_b32 v{x2}, 2, v0", f"v_mul_u32_u24 v{x2}, 80, v{x2}", f"v_and_b32 v{x3}, 48, v{vL16}",
               f"v_add3_u32 v{vOr}, v{x2}, v{x3}, s{sT2}", f"s_mov_b32 s{sT3}, {64*896}"]

        def fwr(a):
            r_, off = fi_loc(a, False)
            return I(f"ds_write_b128 v{r_}, {vr(own_fi[a],4)} offset:{off}", tag=f"fw{a}")
        g, left = H.pour(vq, 0)
        qq = [fwr(0), fwr(1)]
        for a in range(2, 14):
            qq += self.rec_step(st, a, own_fi[a]) + [fwr(a)]
        g, left = H.pour(qq, g + 1, gb - 6)
        self.log(f"finv done at gap G{g}")
        assert not left
        H.s[gbo + 15].append(W(vm="g", ds="rro"))
        oq = [f"v_sub_f32 v{vOG+jj}, 1.0, v{vG+jj}" for jj in range(2)]
        oq += [f"v_add_f32 v{acco+j}, v{acco+j}, v{rdo+j}" for j in range(16)]
        g, oleft = H.pour(oq, gbo + 15)

        for key, S_, off in (("st1", G, 0), ("st2", G, NA), ("st3", H, 0)):
            for x in filter(None, o[key].split(",")):
                S_.s[int(x) + off] += self.stamp("@" + x)
        if o["align"]:
            p.raw("s_branch L_body")
            p.raw("@SLOW@")
            p.raw(".p2align 12")
            p.raw("L_body:")
        e(W(vm="w0", ds="fw"))
        e("s_barrier")
        e([xread(0, 0)] + wread(0) + [xread(0, 1), xread(0, 2), xread(0, 3)] + wread(1) + wread(2) + [fread(0, 0), fread(0, 1)])
        e(self.stamp("data0"))
        e(W(ds=["wf0", "xr0_1"]))
        G.emit(p, 0, NA)
        e(codeE)
        G.emit(p, NA)
        e(self.stamp("B"))
        e(codeF)
        e(self.stamp("fft"))
        if o["stop"] == "fft":
            e("s_branch L_fin")
        H.s[NH - 1] += self.stamp("g2h")
        e(W(vm="h0"))
        H.emit(p)
        e(self.stamp("g2"))
        pu = accp + 16
        e(oleft)
        e([W(vm="pl")] + pchk + ["s_cbranch_vccnz L_slow_pP"])
        p.raw("L_back_pP:")
        for jj in range(2):
            ks_ = range(4 * jj, 4 * jj + 4)
            sel = "op_sel:[0,1] op_sel_hi:[1,1]" if jj else "op_sel_hi:[1,0]"
            sel3 = "op_sel:[0,1,0] op_sel_hi:[1,1,1]" if jj else "op_sel_hi:[1,0,1]"
            for k in ks_:
                e([f"v_lshlrev_b32 v{pu+2*k}, 16, v{accp+k}", f"v_and_b32 v{pu+2*k+1}, 0xffff0000, v{accp+k}"])
            for k in ks_:
                e(f"v_pk_add_f32 {vr(acco+2*k,2)}, {vr(acco+2*k,2)}, {vr(pu+2*k,2)}")
            for k in ks_:
                e(f"v_pk_mul_f32 {vr(acco+2*k,2)}, {vr(acco+2*k,2)}, {vr(vOG,2)} {sel}")
            for k in ks_:
                e(f"v_pk_fma_f32 {vr(acca+2*k,2)}, {vr(acca+2*k,2)}, {vr(vG,2)}, {vr(acco+2*k,2)} {sel3}")
            for k in ks_:
                e(f"v_cvt_pk_bf16_f32 v{accp+8+k}, v{acca+2*k}, v{acca+2*k+1}")
            e([f"ds_write_b64 v{vOw}, {vr(accp+8+4*jj,2)} offset:{1280*jj}",
               f"ds_write_b64 v{vOr+1}, {vr(accp+10+4*jj,2)} offset:{1280*jj+32}",
               I(f"ds_read_b128 {vr(rdo+4*jj,4)}, v{vOr} offset:{1280*jj}", tag=f"or{jj}")])
        for jj in range(2):
            e(I(f"buffer_store_dwordx4 {vr(rdo+4*jj,4)}, v{vOo}, {srd(sO)}, {'s%d' % sT3 if jj else 0} offen {o['outfl'].replace('+',' ')}".strip(),
                ds=f"or{jj}"))
        p.raw("L_fin:")
        self.dump_stamps()
        p.raw("L_end:")
        p.raw("s_endpgm")

        p.restore(snap_aux)
        self.aux(sj, sidx)
        if o["align"]:
            i = p.out.index("@SLOW@")
            p.out[i:i + 1] = self.slow
        else:
            for l in self.slow:
                p.raw(l)
        p.raw("L_codeend:")
        return self.finish()

    def dump_stamps(self):
        if not self.o["stamps"]:
            return
        p = self.p
        p.raw("s_waitcnt vmcnt(0)")
        p.e(self.stamp("end"))
        p.raw("s_waitcnt lgkmcnt(0)")
        p.e([f"s_lshl_b32 s{sT0}, s2, 2", f"s_add_u32 s{sT0}, s{sT0}, s{sWv}", f"s_lshl_b32 s{sT0}, s{sT0}, 6",
             f"s_add_u32 s{sT0}, s{sT0}, {STAMP}", "s_mov_b64 exec, 1"])
        p.e([f"s_memrealtime s[{sT2}:{sT3}]"])
        for k in range(self.nst):
            p.e([f"v_mov_b32 v2, s{sX if k == self.nst-1 else sST+2*k}", f"buffer_store_dword v2, off, {srd(sWS)}, s{sT0} offset:{4*k}"])
        p.raw("s_waitcnt lgkmcnt(0)")
        p.e([f"v_mov_b32 v2, s{sT2}", f"buffer_store_dword v2, off, {srd(sWS)}, s{sT0} offset:60"])

    def aux_tok(self, tok):
        p = self.p
        e = p.e
        sA, vt16 = sRt, 2
        vx, vw, vd = 12, 13, 14

        def masked(lo, hi, ops):
            m = ((1 << hi) - 1) ^ ((1 << lo) - 1)
            e([f"s_mov_b32 exec_lo, {m & 0xffffffff:#x}", f"s_mov_b32 exec_hi, {m >> 32:#x}"] + ops + ["s_mov_b64 exec, -1"])
        if tok[0] == "x":
            a, b = int(tok[1]), int(tok[2])
            masked(0, 16 * (b - a + 1), [f"buffer_load_dword v15, v{vx}, {srd(sX)}, 0 offen offset:{128*a}"])
        elif tok[0] in "wv":
            a, b = int(tok[1]), int(tok[2])
            off = 128 if tok[0] == "v" else 0
            masked(8 * a, 8 * (b + 1), [f"buffer_load_dword v15, v{vw}, {srd(q)}, 0 offen offset:{off}" for q in (sG, sU)])
        elif tok[0] == "d":
            e(f"s_mov_b32 s{sT1}, {57344*int(tok[1])}")
            masked(0, 49, [f"buffer_load_dword v15, v{vd}, {srd(sD)}, s{sT1} offen"])
        elif tok == "clr":
            e([f"v_mov_b32 v{4+k}, 0" for k in range(4)] + [f"s_mul_i32 s{sT1}, s{sA}, {FEND//32}"])
            for k in range(2):
                e([I(f"buffer_store_dwordx4 v[4:7], v{vt16}, {srd(sWS)}, s{sT1} offen sc1", tag="clr"), f"s_addk_i32 s{sT1}, 4096"])
        elif tok == "go":
            e([f"s_lshl_b32 s{sT1}, s{sA}, 3", f"v_mov_b32 v8, 1", f"v_mov_b32 v9, s{sT0}", W(vm="clr"), "s_barrier",
               "s_mov_b64 exec, 1", f"buffer_store_dword v8, v9, {srd(sDBG)}, s{sT1} offen sc1", "s_mov_b64 exec, -1"])
        elif tok == "WT":
            sq, skg = sRg, sC
            e([f"s_lshr_b32 s{sq}, s{sA}, 3", f"s_and_b32 s{skg}, s{sA}, 7",
               f"s_lshl_b32 s{sT1}, s{sq}, 6", f"s_add_u32 s{sT1}, s{sT1}, s{skg}", f"s_mul_i32 s{sT1}, s{sT1}, 3600"])
            e([f"v_lshrrev_b32 v16, 5, v0", f"v_lshl_add_u32 v17, s{sWv}, 1, v16", f"v_mul_u32_u24 v17, 28, v17",
               f"v_and_b32 v18, 31, v0", f"v_add3_u32 v17, v17, v18, v16", f"v_add_u32 v17, -1, v17", f"v_max_i32 v17, 0, v17",
               f"v_lshlrev_b32 v17, 4, v17", f"s_mul_i32 s{sT2}, s{sWv}, 1120"])
            for j in range(8):
                for part in range(2):
                    e([f"s_add_u32 m0, s{sT2}, {(8*part+j)*RS}", "s_nop 0",
                       I(f"buffer_load_dwordx4 v17, {srd(sWr if part == 0 else sWi)}, s{sT1} offen lds", tag="wl")])
                e(f"s_add_u32 s{sT1}, s{sT1}, {64*450}")
        else:
            raise SystemExit(tok)

    def aux_head(self, sj, sidx):
        p, o = self.p, self.o
        e = p.e
        sA, vt16 = sRt, 2
        vx, vw, vd = 12, 13, 14
        e(["s_cmp_ge_u32 s2, 256", "s_cbranch_scc1 L_end"])
        e([f"s_lshl2_add_u32 s{sA}, s{sj}, s{sidx}", f"s_sub_u32 s{sA}, s{sA}, 28",
           f"s_lshl2_add_u32 s{sCnt}, s{sA}, s{sWv}",
           f"v_and_b32 v4, 15, v0", f"v_lshl_add_u32 v4, s{sCnt}, 4, v4", f"v_mul_u32_u24 v4, 896, v4",
           f"v_lshrrev_b32 v5, 4, v0", f"v_lshl_add_u32 v{vx}, v5, 7, v4",
           f"s_lshr_b32 s{sT2}, s{sj}, 1", f"s_and_b32 s{sT3}, s{sCnt}, 15", f"s_lshl4_add_u32 s{sT2}, s{sT2}, s{sT3}",
           f"s_mul_i32 s{sT2}, s{sT2}, 3584", f"s_and_b32 s{sT3}, s{sj}, 1", f"s_mul_i32 s{sT3}, s{sT3}, {7*256}",
           f"s_add_u32 s{sT2}, s{sT2}, s{sT3}",
           f"v_lshrrev_b32 v4, 3, v0", f"v_mul_u32_u24 v4, {64*3584}, v4", f"v_and_b32 v5, 7, v0", f"v_min_u32 v5, 6, v5",
           f"v_lshl_add_u32 v4, v5, 8, v4", f"v_add_u32 v{vw}, s{sT2}, v4"])
        p.raw("s_waitcnt lgkmcnt(0)")
        for s, off in ((sWr, 8), (sWi, 16), (sGw, 56)):
            e(f"s_load_dwordx2 s[{s}:{s+1}], s[0:1], {off}")
        self.toks = o["apf"].split(",")
        while self.toks[0][0] in "xwv":
            self.aux_tok(self.toks.pop(0))

    def aux(self, sj, sidx):
        p, o = self.p, self.o
        e = p.e
        p.raw("L_aux:")
        sA, vt16 = sRt, 2
        sq, skg = sRg, sC
        e([f"v_lshlrev_b32 v{vL16}, 4, v0", f"s_lshl_b32 s{sT0}, s{sWv}, 10", f"v_add_u32 v{vt16}, s{sT0}, v{vL16}",
           f"s_mul_i32 s{sCnt}, s{sCnt}, 49", f"v_add_u32 v4, s{sCnt}, v0", f"v_mul_u32_u24 v5, 9363, v4", f"v_lshrrev_b32 v5, 22, v5",
           f"v_mul_u32_u24 v5, 57344, v5", f"v_lshl_add_u32 v14, v4, 7, v5"])
        for s, n in ((sWr, 2048 * 450), (sWi, 2048 * 450), (sD, 1792 * 896), (sGw, 896), (sDBG, 256), (sWS, WSEND)):
            e([f"s_mov_b32 s{s+2}, {n}", f"s_mov_b32 s{s+3}, 0x20000"])
        e([f"s_mov_b32 s{sK}, 0xbfb8aa3b", f"s_movk_i32 s{s7f}, 0x7f"])
        p.raw("s_waitcnt lgkmcnt(0)")
        e(self.astamp("head"))
        for t in self.toks:
            self.aux_tok(t)
            if t in ("clr", "go", "WT"):
                e(self.astamp(t))
        vo, vg = 3, 8
        xb, gb = 32, 96
        e([f"s_lshr_b32 s{sT1}, s{sA}, 3", f"s_lshl_b32 s{sT1}, s{sT1}, 1", f"s_and_b32 s{sT2}, s{sA}, 1",
           f"s_add_u32 s{sT1}, s{sT1}, s{sT2}", f"s_lshl_b32 s{sT1}, s{sT1}, 2", f"s_add_u32 s{sT1}, s{sT1}, s{sWv}",
           f"s_lshl_b32 s{sT1}, s{sT1}, 3", f"s_bfe_u32 s{sT2}, s{sA}, 0x20001", f"s_add_u32 s{sT1}, s{sT1}, s{sT2}",
           f"s_lshl_b32 s{sT1}, s{sT1}, 3",
           f"v_lshrrev_b32 v4, 5, v0", f"v_bfe_u32 v5, v0, 2, 3", f"v_lshl_add_u32 v4, v4, 5, v5", f"v_add_u32 v4, s{sT1}, v4",
           f"v_and_b32 v{vg}, 48, v{vL16}", f"v_mul_u32_u24 v4, 896, v4", f"v_add_u32 v{vo}, v4, v{vg}"])
        e([f"v_and_b32 v{vPg}, 31, v0", f"v_lshlrev_b32 v{vPg}, 3, v{vPg}"])
        gol = f"buffer_load_dword v{vP}, v{vPg}, {srd(sDBG)}, 0 offen sc1"
        vra, vwa = 9, 10
        e([f"v_and_b32 v4, 7, v0", f"v_lshrrev_b32 v5, 7, v{vt16}", f"v_lshrrev_b32 v6, 1, v4", f"v_mul_u32_u24 v{vra}, 1120, v6",
           f"v_and_b32 v6, 1, v0", f"v_mul_u32_u24 v6, 496, v6", f"v_add3_u32 v{vra}, v{vra}, v6, 16",
           f"v_add_u32 v6, v4, v5", f"v_lshl_add_u32 v{vra}, v6, 1, v{vra}", f"v_add_u32 v17, {8*RS}, v{vra}",
           f"v_lshlrev_b32 v{vwa}, 13, v5", f"v_lshl_add_u32 v{vwa}, v4, 4, v{vwa}",
           f"s_lshr_b32 s{sT1}, s{skg}, 1", f"s_lshl_b32 s{sT1}, s{sT1}, 2", f"s_add_u32 s{sT1}, s{sT1}, s{sq}",
           f"s_lshl_b32 s{sT1}, s{sT1}, 1", f"s_and_b32 s{sT2}, s{skg}, 1", f"s_add_u32 s{sT1}, s{sT1}, s{sT2}",
           f"s_lshl_b32 s{sT1}, s{sT1}, 7", f"s_add_u32 s{sT1}, s{sT1}, {WT}", f"s_add_u32 s{sT2}, s{sT1}, 4096"])
        e(W(vm="wl"))
        e("s_barrier")
        e(self.astamp("wl"))
        def rd(n):
            return [I(f"ds_read_u16 v{160+8*(n&1)+j}, v{17 if n & 1 else vra} offset:{j*RS+64*(n>>1)}", tag=f"g{n}") for j in range(8)]
        e(rd(0))
        for n in range(16):
            part = n & 1
            nx = rd(n + 1) if n < 15 else []
            e(nx[:6])
            if n == 14:
                e([f"v_cmp_gt_u32 vcc, 8192, v{vwa}", "s_nop 1", f"v_cndmask_b32 v{vwa}, 2.0, v{vwa}, vcc"])
            e(W(ds=f"g{n}"))
            e(nx[6:])
            for j in range(4):
                e(f"v_lshl_or_b32 v{176+4*part+j}, v{160+8*part+2*j+1}, 16, v{160+8*part+2*j}")
            e([f"buffer_store_dwordx4 {vr(176+4*part,4)}, v{vwa}, {srd(sWS)}, s{sT1+part} offen sc1",
               f"s_add_u32 s{sT1+part}, s{sT1+part}, {32*8192}"])
        p.reset()
        e(self.astamp("gath"))
        e(I(gol, tag="go"))
        for k in range(14):
            e(I(f"buffer_load_dwordx4 {vr(xb+4*k,4)}, v{vo}, {srd(sX)}, 0 offen offset:{64*k}", tag="gx"))
            e(I(f"buffer_load_dwordx4 {vr(gb+4*k,4)}, v{vg}, {srd(sGw)}, 0 offen offset:{64*k}", tag="gx"))
            if k == 3:
                e(self.poll_check("goa", "go", gol, vP))
                e(["s_barrier", f"s_lshl_b32 s{sT3}, s{sA}, 7", f"s_add_u32 s{sT3}, s{sT3}, {FAUX}",
                   f"s_cmp_lg_u32 s{sWv}, 0", f"s_cselect_b32 s{sT2}, {OOB}, 0", f"v_mov_b32 v16, s{sT2}",
                   "s_mov_b64 exec, 1", f"buffer_store_dword v{vP}, v16, {srd(sWS)}, s{sT3} offen sc1", "s_mov_b64 exec, -1"])
                e(self.astamp("faux"))
        e(W(vm="gx"))
        for k in range(4):
            e(f"v_mov_b32 v{4+k}, 0")
        for k in range(56):
            e(f"v_dot2_f32_bf16 v{4+k%4}, v{xb+k}, v{gb+k}, v{4+k%4}")
        e([f"v_add_f32 v4, v4, v5", f"v_add_f32 v6, v6, v7", f"v_add_f32 v4, v4, v6",
           f"v_add_f32_dpp v4, v4, v4 quad_perm:[1,0,3,2] row_mask:0xf bank_mask:0xf",
           f"v_add_f32_dpp v4, v4, v4 quad_perm:[2,3,0,1] row_mask:0xf bank_mask:0xf",
           f"v_mul_f32 v4, s{sK}, v4", f"v_exp_f32 v4, v4", f"v_add_f32 v4, 1.0, v4", f"v_rcp_f32 v4, v4",
           f"v_and_b32 v5, 60, v0",
           f"s_lshl_b32 s{sT1}, s{sA}, 2", f"s_add_u32 s{sT1}, s{sT1}, s{sWv}", f"s_lshl_b32 s{sT1}, s{sT1}, 6",
           f"s_add_u32 s{sT1}, s{sT1}, {GOFF}",
           f"buffer_store_dword v4, v5, {srd(sWS)}, s{sT1} offen sc1"])
        p.raw("s_waitcnt vmcnt(0)")
        p.reset()
        e(["s_barrier", f"s_addk_i32 s{sT3}, {FG-FAUX}",
           "s_mov_b64 exec, 1", f"buffer_store_dword v{vP}, v16, {srd(sWS)}, s{sT3} offen sc1", "s_mov_b64 exec, -1"])
        if o["stamps"]:
            e(self.astamp("fg"))
            p.raw("s_waitcnt lgkmcnt(0)")
            e([f"s_lshl_b32 s{sT1}, s2, 2", f"s_add_u32 s{sT1}, s{sT1}, s{sWv}", f"s_lshl_b32 s{sT1}, s{sT1}, 6",
               f"s_add_u32 s{sT1}, s{sT1}, {STAMP}", "s_mov_b64 exec, 1"])
            for k in range(len(self.anames)):
                e([f"v_mov_b32 v2, s{sST+2*k}", f"buffer_store_dword v2, off, {srd(sWS)}, s{sT1} offset:{4*k}"])
            e("s_mov_b64 exec, -1")
        e([f"s_cmp_lg_u32 s{sA}, 4", "s_cbranch_scc1 L_end"])
        if o["stop"] == "gemm1":
            e("s_branch L_end")
        e([f"s_movk_i32 s{sKd}, 224", f"s_mov_b32 s{sSc}, {fbits(1.0/(2048*448))}"])
        e(self.fft_consts(vAB + 32))
        sc, vv = self.poll1_addr(vT + 14, vT + 15, sT1, sT2)
        e(sc)
        e(vv)
        pl = f"buffer_load_dword v{vPr}, v{vPa}, {srd(sWS)}, 0 offen sc1"
        e(I(pl, tag="p1"))
        e(self.fft_scalars())
        e(self.fft_setup_regs())
        e(self.fft_addr2())
        e(self.poll_check("p1a", "p1", pl, vPr))
        e(self.fft_loads())
        self.fft_body(lambda n, dt: None)
        e([f"s_lshl_b32 s{sT0}, s{sWv}, 13", f"s_add_u32 s{sT0}, s{sT0}, {FZ+224*32}"])
        e(self.flag_store(sT0, ["zre", "zim"]))
        p.raw("s_endpgm")

    def finish(self):
        out = self.p.out
        d = self.o["diag"].split(",")
        if "plainst" in d:
            out = [l.replace(" sc1", "") if l.startswith("buffer_store_dwordx4") else l for l in out]
        if "plainld" in d:
            out = [l.replace(" sc1", "") if l.startswith("buffer_load_dwordx4") else l for l in out]
        if "nopoll" in d:
            out = ["s_nop 0" if l.startswith("s_cbranch_vccnz L_slow") or l.startswith("s_cbranch_scc0 L_slow") else l for l in out]
        if "nost" in d:
            out = [re.sub(r"buffer_store_dwordx4 (\S+), v\d+,", r"buffer_store_dwordx4 \1, v239,", l) if l.startswith("buffer_store_dwordx4") and "sc1" in l else l for l in out]
            out = ["v_mov_b32 v239, 2.0"] + out
        if "nox1" in d:
            out = [l.replace(f", v{vX1g},", ", v239,") if l.startswith("buffer_store_dwordx4") else l for l in out]
            out = ["v_mov_b32 v239, 2.0"] + out
        if "noh" in d:
            out = [l.replace(f", v{vL16},", ", v239,") if l.startswith("buffer_store_dwordx4") and (f"s{sHst} offen" in l or f"s{sHst1} offen" in l) else l for l in out]
            out = ["v_mov_b32 v239, 2.0"] + out
        if "nowd" in d:
            out = [re.sub(r"dwordx4 v\d+,", "dwordx4 v239,", l) if l.startswith("buffer_load_dwordx4") and f"s[{sD}:" in l else l for l in out]
            out = ["v_mov_b32 v239, 2.0"] + out
        if "noflag" in d:
            out = [l.replace(", off,", ", v239,").replace(" sc1", " offen sc1") if l.startswith("buffer_store_dword v") and "off," in l and "sc1" in l else l for l in out]
            out = ["v_mov_b32 v239, 2.0"] + out
        if "noz" in d:
            out = [l.replace(f"v{vXr},", "v239,") if l.startswith(f"buffer_load_dwordx4 v{vXr}, s[20:23]") else l for l in out]
            out = ["v_mov_b32 v239, 2.0"] + out
        if "nomfma" in d:
            out = ["s_nop 7" if l.startswith("v_mfma_f32_32x32") else l for l in out]
        if "m16" in d:
            o2, cnt, i = [], {}, 0
            while i < len(out):
                l = out[i]
                m = re.match(r"v_mfma_f32_32x32x16_bf16 v\[(\d+):\d+\], (\S+), (\S+), (\S+)", l)
                if not m:
                    o2.append(l); i += 1
                    continue
                b = int(m.group(1))
                if m.group(4) == "0":
                    cnt[b] = 0
                k = cnt[b]; cnt[b] += 1
                j = i + 1
                while j < len(out) and not out[j].startswith("v_mfma") and j - i < 12:
                    j += 1
                gap = out[i + 1:j]
                if j - i >= 12:
                    gap, j = [], i + 1
                tot = sum(cost(x) for x in gap); acc = 0; cutp = 0
                for q, x in enumerate(gap):
                    if acc >= (tot + 1) // 2 and not x.startswith("s_cselect") and not x.startswith("s_cbranch") and "exec" not in x and "exec, 1" not in gap[q-1]:
                        break
                    acc += cost(x); cutp = q + 1
                def mm(blk, A, B):
                    dd = f"v[{b+4*blk}:{b+4*blk+3}]"
                    return f"v_mfma_f32_16x16x32_bf16 {dd}, {A}, {B}, {'0' if k < 2 else dd}"
                A, B = m.group(2), m.group(3)
                A0, B0 = A, B
                pa, pb = cnt.get("p", (A, B))
                if "m16b" in d:
                    mb = re.match(r"a\[(\d+):", B); ma = re.match(r"a\[(\d+):", A)
                    if mb:
                        q_ = max(int(mb.group(1)) - 8, int(mb.group(1)) & 4); B0 = f"a[{q_}:{q_+3}]"
                        if "100" and b >= vAB and b != vAB + 16 and int(mb.group(1)) < 216:
                            q_ = int(mb.group(1)) + 8; B0 = f"a[{q_}:{q_+3}]"
                    elif ma:
                        q_ = max(int(ma.group(1)) - 8, 0); A0 = f"a[{q_}:{q_+3}]"
                    else:
                        A0 = pa
                cnt["p"] = (A, B)
                o2 += [mm(k & 1, A0, B0)] + gap[:cutp] + [mm(2 + (k & 1), A, B)] + gap[cutp:]
                i = j
            out = o2
        if "nobar" in d:
            out = ["s_nop 0" if l.startswith("s_barrier") else l for l in out]
        if "novm" in d:
            out = [(re.sub(r" vmcnt\(\d+\)", " vmcnt(63)", l) if l.startswith("s_waitcnt") and "vmcnt(0)" not in l else l) for l in out]
        lines, nfix = check_hazards(out)
        self.log(f"{len(lines)} lines, {nfix} hazard nops inserted, {getattr(self.p,'n_sat',0)} lgkm saturation waits")
        ref = open("gated_mix__spectral_gfnet__swiglu_ffn__prompt.s.ref").read().split("\n")
        head = [l for l in ref if l.startswith(";") and "@launch" not in l and "Override" not in l and "grid=ceil" not in l]
        s = "\n".join(head) + "\n"
        s += f"; @launch grid=(256,1,1) block=(256,1,1) lds={LDS_BYTES}\n"
        s += '.amdgcn_target "amdgcn-amd-amdhsa--gfx950"\n.text\n'
        if self.o["align"]:
            s += ".p2align 12\n"
        s += f".globl {NAME}\n.p2align 8\n.type {NAME},@function\n{NAME}:\n"
        s += "\n".join(lines) + "\n"
        s += f"""s_endpgm
.section .rodata,"a"
.p2align 6
.amdhsa_kernel {NAME}
  .amdhsa_next_free_vgpr 512
  .amdhsa_next_free_sgpr 102
  .amdhsa_accum_offset 256
  .amdhsa_group_segment_fixed_size 0
  .amdhsa_kernarg_size 88
  .amdhsa_user_sgpr_count 2
  .amdhsa_user_sgpr_kernarg_segment_ptr 1
  .amdhsa_system_sgpr_workgroup_id_x 1
  .amdhsa_float_denorm_mode_32 3
.end_amdhsa_kernel
"""
        return s


def parse_opts(args):
    kw = {}
    for a in args:
        k, v = a.split("=")
        assert k in DEF, k
        if isinstance(DEF[k], bool):
            v = v not in ("0", "False")
        elif isinstance(DEF[k], int):
            v = int(v)
        kw[k] = v
    return kw


if __name__ == "__main__":
    out = sys.argv[1]
    g = Gen(**parse_opts(sys.argv[2:]))
    s = g.build()
    open(out, "w").write(s)
    print("; stamps:", g.stamp_names, file=sys.stderr)
```

```python
import re


class I:
    __slots__ = ("t", "tag", "vm", "ds")

    def __init__(self, t, tag=None, vm=None, ds=None):
        self.t = t
        self.tag = tag
        self.vm = vm
        self.ds = ds


def W(vm=None, ds=None):
    return I("", vm=vm, ds=ds)


def kind(t):
    op = t.split()[0] if t else "s_waitcnt"
    if op.startswith("v_mfma"):
        return "M"
    if op.startswith("ds_"):
        return "D"
    if op.startswith("buffer_") or op.startswith("global_"):
        return "G"
    if op.startswith("v_"):
        return "V"
    return "S"


TRANS = ("v_exp_f32", "v_rcp_f32", "v_cos_f32", "v_sin_f32", "v_log_f32", "v_rsq_f32", "v_sqrt_f32")


def cost(t):
    op = t.split()[0] if t else ""
    return 2 if op in TRANS or op == "ds_write_b128" else 1


class Prog:
    def __init__(self):
        self.out = []
        self.reset()

    def reset(self):
        self.vm_n = 0
        self.vm_done = 0
        self.vm_tag = {}
        self.ds_n = 0
        self.ds_done = 0
        self.ds_tag = {}

    def snapshot(self):
        return (self.vm_n, self.vm_done, dict(self.vm_tag), self.ds_n, self.ds_done, dict(self.ds_tag))

    def restore(self, s):
        self.vm_n, self.vm_done, vt, self.ds_n, self.ds_done, dt = s
        self.vm_tag = dict(vt)
        self.ds_tag = dict(dt)

    def raw(self, t):
        self.out.append(t)

    def _idx(self, tags, table, n):
        if tags is None:
            return 0
        if tags == "all":
            return n
        if not isinstance(tags, (list, tuple)):
            tags = [tags]
        return max([table[t] for t in tags], default=0)

    def wait(self, vm=None, ds=None):
        a = self._idx(vm, self.vm_tag, self.vm_n)
        b = self._idx(ds, self.ds_tag, self.ds_n)
        s = ""
        if a > self.vm_done:
            n = min(self.vm_n - a, 63)
            s += f" vmcnt({n})"
            self.vm_done = self.vm_n - n
        if b > self.ds_done:
            n = min(self.ds_n - b, 15)
            s += f" lgkmcnt({n})"
            self.ds_done = self.ds_n - n
        if s:
            self.out.append("s_waitcnt" + s)
        return bool(s)

    def e(self, it, tag=None, vm=None, ds=None):
        if isinstance(it, (list, tuple)):
            for x in it:
                self.e(x)
            return
        if callable(it):
            it(self)
            return
        if isinstance(it, str):
            if "\n" in it:
                for l in it.split("\n"):
                    if l.strip():
                        self.e(l.strip())
                return
            it = I(it, tag, vm, ds)
        self.wait(it.vm, it.ds)
        if not it.t:
            return
        k = kind(it.t)
        if k == "G":
            self.vm_n += 1
            assert self.vm_n - self.vm_done <= 63, "too many vmem outstanding"
            if it.tag:
                self.vm_tag[it.tag] = self.vm_n
        elif k == "D":
            if self.ds_n - self.ds_done >= 15:
                self.out.append("s_waitcnt lgkmcnt(10)")
                self.ds_done = self.ds_n - 10
                self.n_sat = getattr(self, "n_sat", 0) + 1
            self.ds_n += 1
            if it.tag:
                self.ds_tag[it.tag] = self.ds_n
        self.out.append(it.t)


class Lab:
    def __init__(self, br, lab):
        self.br, self.lab = br, lab

    def __call__(self, p):
        p.e(self.br)
        p.raw(self.lab)


class Lgkm0:
    def __call__(self, p):
        p.raw("s_waitcnt lgkmcnt(0)")
        p.ds_done = p.ds_n


class Mark:
    def __init__(self, name):
        self.name = name


class Rec:
    def __init__(self):
        self.items = []

    def e(self, it):
        if isinstance(it, (list, tuple)):
            for x in it:
                self.e(x)
        else:
            self.items.append(it)

    def mark(self, name):
        self.items.append(Mark(name))


class Gaps:
    def __init__(self, mf, budget=6):
        self.mf = mf
        self.n = len(mf)
        self.s = [[] for _ in mf]
        self.m = [[] for _ in mf]
        self.v = [[] for _ in mf]
        self.post = [[] for _ in mf]
        self.budget = budget
        self.light = set()
        self._wrote, self._read = set(), set()

    def used(self, g):
        def c(x):
            if isinstance(x, I):
                return cost(x.t) + (1 if (x.t and (x.vm or x.ds)) else 0)
            if isinstance(x, str):
                return cost(x)
            if isinstance(x, list):
                return sum(map(c, x))
            if isinstance(x, (Lab, Lgkm0)):
                return 1
            return 4
        return (max(0, sum(map(c, self.s[g])) - 1) + sum(map(c, self.m[g])) + sum(map(c, self.v[g]))
                + sum(map(c, self.post[g])))

    def pour(self, seq, g0, g1=None, budget=None, window=14):
        budget = budget or self.budget
        g1 = self.n if g1 is None else g1
        g = g0
        items = []
        for x in seq:
            if isinstance(x, list):
                ps = [parse(y) for y in x]
                items.append((x, len(x), "grp", "S", set().union(*[q[2] for q in ps]), set().union(*[q[3] for q in ps])))
                continue
            t = x.t if isinstance(x, I) else x
            op, k, w, r, _ = parse(t)
            items.append((x, cost(t), op, k, w, r))
        last = g0
        wrote, read = self._wrote, self._read
        while items and g < g1:
            if g in self.light:
                g += 1
                continue
            placed = False
            lastv = self.v[g][-1] if self.v[g] else None
            lw = set()
            if lastv is not None and not isinstance(lastv, list):
                lt = lastv.t if isinstance(lastv, I) else lastv
                lop, _, lw_, _, _ = parse(lt)
                if lop in TRANS:
                    lw = lw_
            want2 = False
            if budget - self.used(g) == 2:
                sw, sr = set(), set()
                for (x, t, op, k, w, r) in items[:window]:
                    if op in TRANS and not ((w & sw) or (w & sr) or (r & sw)):
                        want2 = True
                        break
                    sw |= w
                    sr |= r
            sw, sr = set(), set()
            for j, (x, t, op, k, w, r) in enumerate(items[:window]):
                dep = (w & sw) or (w & sr) or (r & sw) or (want2 and op not in TRANS)
                if not dep:
                    early = not any((z, g) in wrote for z in (r | w)) and not any((z, g) in read for z in w)
                    if k in "DG":
                        if early and self.used(g) + t <= budget + (budget > 3) \
                                and not any(kk in "DG" for (_, _, _, kk, _, _) in items[:j]):
                            self.m[g].append(x)
                            for z in r:
                                read.add((z, g))
                            placed = True
                    elif k == "S" and early and not self.s[g] and self.used(g) + t - 1 <= max(budget, t - 1):
                        self.s[g].append(x)
                        placed = True
                    elif self.used(g) + t <= budget and not (lw & r and op not in TRANS):
                        self.v[g].append(x)
                        for z in w:
                            wrote.add((z, g))
                        for z in r:
                            read.add((z, g))
                        placed = True
                if placed:
                    items.pop(j)
                    last = g
                    break
                sw |= w
                sr |= r
            if not placed:
                g += 1
        return last, [it[0] for it in items]

    def emit(self, p, g0=0, g1=None):
        for g in range(g0, self.n if g1 is None else g1):
            p.e(self.mf[g])
            p.e(self.s[g])
            p.e(self.m[g])
            p.e(self.v[g])
            p.e(self.post[g])


_REG = re.compile(r"(?<![\w.])([vas])(\d+)(?!\w)|(?<![\w.])([vas])\[(\d+):(\d+)\]")


def regs(op):
    r = set()
    for m in _REG.finditer(op):
        if m.group(1):
            r.add((m.group(1), int(m.group(2))))
        else:
            for i in range(int(m.group(4)), int(m.group(5)) + 1):
                r.add((m.group(3), i))
    if re.search(r"\bvcc(_lo|_hi)?\b", op):
        r.add(("s", "vcc"))
    if re.search(r"\bm0\b", op):
        r.add(("s", "m0"))
    if re.search(r"\bexec(_lo|_hi)?\b", op):
        r.add(("s", "exec"))
    return r


def parse(t):
    t = t.split(";")[0].strip()
    sp = t.split(None, 1)
    op = sp[0]
    ops = [o.strip() for o in sp[1].split(",")] if len(sp) > 1 else []
    k = kind(t)
    w, r = set(), set()
    allr = [regs(o) for o in ops]
    U = lambda l: set().union(*l) if l else set()
    if k == "M":
        w = allr[0]
        r = U(allr[1:])
    elif k == "D":
        if op.startswith("ds_read") or op.startswith("ds_bpermute"):
            w = allr[0]
            r = U(allr[1:])
        else:
            r = U(allr)
    elif k == "G":
        if " lds" in t:
            r = U(allr) | {("s", "m0")}
        elif "_load" in op:
            w = allr[0]
            r = U(allr[1:])
        else:
            r = U(allr)
    elif k == "V":
        w = allr[0]
        r = U(allr[1:])
        if op.startswith("v_fmac") or op.startswith("v_dot2c") or "permlane" in op or op.startswith("v_writelane"):
            r |= w
        if "permlane" in op and "swap" in op:
            w = w | allr[1]
        if op.startswith("v_cmpx"):
            w = w | {("s", "exec")}
    else:
        if op.startswith("s_cmp") or op.startswith("s_cbranch") or op.startswith("s_bitcmp") or op in (
                "s_waitcnt", "s_nop", "s_barrier", "s_branch", "s_sleep", "s_endpgm", "s_setprio"):
            r = U(allr)
        elif allr:
            w = allr[0]
            r = U(allr[1:])
            if "saveexec" in op:
                w = w | {("s", "exec")}
            if op in ("s_addk_i32", "s_mulk_i32", "s_bitset1_b32", "s_bitset0_b32"):
                r = r | w
    return op, k, w, r, allr


def check_hazards(lines, fix=True):
    out = []
    hist = []
    nfix = 0
    for t in lines:
        s = t.strip()
        if not s or s.startswith(";") or s.startswith(".") or s.endswith(":"):
            out.append(t)
            continue
        op, k, w, r, allr = parse(s)
        need = 0
        dist = 0
        for (pop, pk, pw, pr, pall, pst) in reversed(hist):
            req = 0
            vw = {x for x in pw if x[0] in "va"}
            sw = {x for x in pw if x[0] == "s"}
            if pk == "M":
                passes = 8 if "32x32x16" in pop else 4
                big = 12 if passes == 8 else 8
                if k == "M":
                    if pw & (allr[1] | allr[2]):
                        req = big
                    elif pw & allr[3] and not (pw == allr[3] and pop == op):
                        req = 10 if passes == 8 else 6
                    elif pw & w and not (pw == allr[3]):
                        req = big
                elif pw & (r | w):
                    req = big
                if k == "V" and (pall[3] & w):
                    req = max(req, 7 if passes == 8 else 3)
            elif pk == "V":
                if k == "M" and vw & r:
                    req = 2
                if k == "M" and ("s", "exec") in pw:
                    req = 4
                if pop in TRANS and k != "S" and op not in TRANS and vw & r:
                    req = max(req, 1)
                if pop.startswith("v_dot") and vw & (r | w) and not (op == pop and not (vw & (allr[1] | allr[2]))):
                    req = max(req, 3)
                if (op.startswith("v_readlane") or op.startswith("v_readfirstlane")) and vw & r:
                    req = max(req, 1)
                if ("permlane" in op or "dpp" in s) and vw & r:
                    req = max(req, 2)
                if k == "G" and sw & r:
                    req = max(req, 5)
                if k == "V" and sw & r:
                    req = max(req, 2)
                if k == "S" and sw & r and not op.startswith("s_cbranch"):
                    req = max(req, 1)
            elif pk == "G":
                if "store" in pop and ("x4" in pop or "x3" in pop) and (pall[0] & w):
                    req = 2
            elif pk == "S":
                if ("s", "m0") in pw and k == "G" and " lds" in s:
                    req = 1
                if ("s", "exec") in pw and "dpp" in s:
                    req = 5
            if req > dist:
                need = max(need, req - dist)
            dist += pst
            if dist > 20:
                break
        if need:
            nfix += 1
            if not fix:
                raise SystemExit(f"hazard before: {s} need {need}")
            out.append(f"s_nop {need-1}")
            hist.append(("s_nop", "S", set(), set(), [], need))
        st = 1
        if op == "s_nop":
            st = int(s.split()[1]) + 1
        hist.append((op, k, w, r, allr, st))
        hist = hist[-24:]
        out.append(t)
    return out, nfix
```

```python
import sys, struct, re
from asmlib import *

NAME = "gated_mix__spectral_gfnet__swiglu_ffn__prompt_kernel"

FX1 = 0
FAUX = FX1 + 896 * 128
FG = FAUX + 32 * 128
FH = 1024 * 128
FZ = 1280 * 128
FEND = 2048 * 128
GOFF = FEND
STAMP = FEND + 65536
X1T = 1 << 20
ZT = X1T + 448 * 4096
WT = ZT + 448 * 4096
HH = WT + 225 * 8192
PP = HH + 64 * 114688
WSEND = PP + 1024 * 2048
OOB = 0x40000000

WSLOT = 16640
NWS = 5
XS = NWS * WSLOT
FS = XS + 65536
IMG = FS
EXC = 8192
ZS = XS - 57344
RED = XS
LDS_BYTES = 163840

sFx, s8k, sHst1 = 0, 1, 3
sX, sG, sU, sD, sWS, sO, sDBG = 4, 8, 12, 16, 20, 24, 28
sWv, sRg, sC, sRt, sCt, sKd = 32, 33, 34, 35, 36, 37
sWm, sXm = 38, 39
sT0, sT1, sT2, sT3 = 40, 41, 42, 43
sK = 44
s7f = 46
sCnt = 47
sXo, sWo, sDo = 48, 55, 62
sPe, sHc, sPs, sPl, sFs, sSp = 72, 73, 74, 75, 76, 77
sHst, sRot2 = 69, 70
sSc = 71
sFh = 79
sWr, sWi, sGw = 48, 52, 56
RS = 4480
sZs, sSw = 48, 49
sST = 80

vL16 = 1
vXd, vXr, vDr, vWd, vTr, vDd, vY = 2, 6, 10, 14, 16, 18, 22
vFr, vSg, vX1g, vPa, vP, vPr, vPg, vPw = 24, 25, 26, 27, 28, 29, 30, 31
vFm = vPg
vWF = 32
vT1c, vT1s, vT2c, vT2s = 48, 56, 64, 72
vAX, vAA, vAB, vS32, vT = 80, 96, 160, 224, 232
aX, aC64, aS64, aN64, aC32 = 0, 224, 232, 240, 248
STEP448 = 9586981
fA = vAA
fDr, fDi, fTm = vAA + 32, vAA + 40, vAA + 48
fBr, fBi, fBn = vAX, vAX + 4, vAX + 8
fWraw = vT
fWr, fWi = vWF, vWF + 8
fa0, fim, fx = vT + 8, vT + 12, vT + 13
vE = vT + 16


def srd(s):
    return f"s[{s}:{s+3}]"


def vr(b, n, c="v"):
    return f"{c}[{b}:{b+n-1}]"


def fbits(x):
    return "0x%08x" % struct.unpack("<I", struct.pack("<f", x))[0]


def txt(x):
    return x.t if isinstance(x, I) else (x if isinstance(x, str) else "s_nop 0")


DEF = dict(rot1="q0325", LA=3, npre=12, npro=16, npro2=16, slowend=0, cpro=60, n1=4, touch=0, align=1, pf=1,
           perA=64, perE=64, perB=64, perF=64, perG=48, perS=64,
           wd_at='A180,A254,B0,B34,B0,B0,B0', wd_delay=1000,
           go_ld='A190', go_chk='A250', pclr='A100', x1st='', x1flag='E150', poll1='B44', chk1='B96', pollW='B140', chkW='B190',
           hAflag='B56', pollA='B98', chkA='B138', hBflag='F1750', pollB='G18', chkB='G62',
           zflag='G56', pollZ='G120', chkZ='G152', zst='4,3,7', xsp=7, nlds=0, pld='G244', splp=3, splo=6, lds_at='F0', fonm=0,
           fft_head='e1', budE=5, gapE=90, gapC=280, gapL=240, snake=1, budG=2,
           apf='clr,WT,go,v06,d0,d1,G', spin=200000, sleep=4, outfl="",
           stop=None, stamps=False, rt=False, st1='', st2='', st3='', only='', diag='')


class Gen:
    def __init__(self, **kw):
        self.o = dict(DEF)
        self.o.update(kw)
        self.p = Prog()
        self.slow = []
        self.nst = 0
        self.stamp_names = []
        self.anames = ['start', 'rt0']

    def log(self, s):
        print("; " + s, file=sys.stderr)

    def stamp(self, name):
        if not self.o["stamps"]:
            return []
        if self.o["only"] and name not in ("start", "rt0", "end") and name not in self.o["only"].split(",") and name[0] != "@":
            return []
        i = self.nst
        self.nst += 1
        r = sX if name == "end" else sST + 2 * i
        assert r + 1 <= 101
        self.stamp_names.append(name)
        return [f"{'s_memrealtime' if self.o['rt'] else 's_memtime'} s[{r}:{r+1}]"]

    def astamp(self, name):
        if not self.o["stamps"]:
            return []
        self.anames.append(name)
        r = sST + 2 * (len(self.anames) - 1)
        assert r <= 100
        return [f"{'s_memrealtime' if self.o['rt'] else 's_memtime'} s[{r}:{r+1}]"]

    def poll_check(self, name, tags, load, reg):
        def f(p):
            p.wait(vm=tags)
            p.e(f"v_cmp_ne_u32 vcc, 1, v{reg}")
            p.e(f"s_cbranch_vccnz L_slow_{name}")
            p.raw(f"L_back_{name}:")
        s = [f"L_slow_{name}:", f"s_mov_b32 s{sSp}, 0", f"L_spin_{name}:", load, "s_waitcnt vmcnt(0)",
             f"v_cmp_ne_u32 vcc, 1, v{reg}", f"s_cbranch_vccz L_back_{name}", f"s_sleep {32 if name == 'p1a' else self.o['sleep']}",
             f"s_add_u32 s{sSp}, s{sSp}, 1", f"s_cmp_lt_u32 s{sSp}, {self.o['spin']}",
             f"s_cbranch_scc1 L_spin_{name}", "s_endpgm"]
        self.slow += s
        return f

    def spoll_load(self, soff):
        return [f"s_load_dwordx8 s[4:11], s[{sWS}:{sWS+1}], s{soff} glc", f"s_load_dwordx8 s[12:19], s[{sWS}:{sWS+1}], s{soff} offset:512 glc"]

    def spoll_check(self, name, load, reg):
        self.poll_check(name, None, load, reg)

        def f(p):
            p.raw("s_waitcnt lgkmcnt(0)")
            p.ds_done = p.ds_n
            p.e([f"s_and_b64 s[4:5], s[4:5], s[{k}:{k+1}]" for k in (6, 8, 12, 14, 16)])
            p.e([f"s_and_b32 s4, s4, s{k}" for k in (10, 18, 5)])
            p.e(f"s_cbranch_scc0 L_slow_{name}")
            p.raw(f"L_back_{name}:")
        return f

    def flag1(self, soff, tags):
        return I(f"buffer_store_dword v{vP}, v{vFm}, {srd(sWS)}, s{soff} offen sc1", vm=tags)

    def flag_store(self, soff, tags):
        def f(p):
            p.wait(vm=tags)
            p.e("s_mov_b64 exec, 1")
            p.e(f"buffer_store_dword v{vP}, off, {srd(sWS)}, s{soff} sc1")
            p.e("s_mov_b64 exec, -1")
        return f

    def trig(self, dst, phase, tmp, fn="cos"):
        return [f"v_alignbit_b32 v{tmp}, s{s7f}, v{phase}, 9", f"v_{fn}_f32 v{dst}, v{tmp}"]

    def fft_consts(self, t):
        vn, vq, vcol, vidx, va, vb, vk, vsg = range(t, t + 8)
        c0, s0 = t + 8, t + 16
        pk = t + 24
        q = [f"v_lshrrev_b32 v{vq}, 4, v0", f"v_and_b32 v{vn}, 15, v0",
             f"v_lshl_add_u32 v{vcol}, s{sWv}, 4, v{vn}",
             f"v_lshrrev_b32 v{va}, 2, v{vn}", f"v_and_b32 v{vb}, 3, v{vn}", f"v_lshl_add_u32 v{vidx}, v{va}, 3, v{vb}",
             f"v_bfe_i32 v{vsg}, v0, 0, 1", f"v_and_b32 v{vsg}, 0x80008000, v{vsg}",
             f"v_cvt_f32_u32 v{vcol}, v{vcol}", f"v_cvt_f32_u32 v{vidx}, v{vidx}", f"v_cvt_f32_u32 v{vq}, v{vq}"]

        def coef():
            return [f"v_cos_f32 v{vn}, v{va}", f"v_add_f32 v{vn}, v{vn}, v{vn}"]

        def run(c, s, n, scale=False):
            r = [f"v_add_f32 v{s+1}, v{vb}, v{va}", f"v_cos_f32 v{c}, v{vb}", f"v_sin_f32 v{s}, v{vb}",
                 f"v_cos_f32 v{c+1}, v{s+1}", f"v_sin_f32 v{s+1}, v{s+1}"]
            if scale:
                r += [f"v_mul_f32 v{x}, s{sSc}, v{x}" for x in (c, s, c + 1, s + 1)]
            for j in range(2, n):
                r += [f"v_fma_f32 v{x+j}, v{vn}, v{x+j-1}, -v{x+j-2}" for x in (c, s)]
            return r

        def pack(dst, src):
            return [f"v_cvt_pk_bf16_f32 v{dst+j}, v{src+2*j}, v{src+2*j+1}" for j in range(4)]

        def acc(dst, src):
            return [f"v_accvgpr_write_b32 a{dst+j}, v{src+j}" for j in range(4)]

        def xr(dst, m):
            return [f"v_xor_b32 v{dst+j}, {m}, v{dst+j}" for j in range(4)]
        q += [f"v_mul_f32 v{va}, {fbits(1/64)}, v{vcol}", f"v_mul_f32 v{vb}, 4.0, v{vq}", f"v_mul_f32 v{vb}, v{vb}, v{va}"]
        q += coef() + run(c0, s0, 4) + [f"v_mul_f32 v{vk}, {fbits(1/16)}, v{vb}", f"v_fmamk_f32 v{vb}, v{va}, {fbits(16.0)}, v{vb}"]
        q += run(c0 + 4, s0 + 4, 4)
        q += pack(pk, c0) + pack(pk + 4, s0)
        q += acc(aC64, pk) + acc(aS64, pk + 4) + xr(pk, f"v{vsg}") + xr(pk + 4, f"v{vsg}")
        q += acc(aC64 + 4, pk) + acc(aS64 + 4, pk + 4) + xr(pk + 4, "0x80008000") + acc(aN64 + 4, pk + 4)
        q += xr(pk + 4, f"v{vsg}") + acc(aN64, pk + 4)
        q += [f"v_mul_f32 v{va}, {fbits(1/32)}, v{va}", f"v_mov_b32 v{vb}, v{vk}"]
        q += coef() + run(vT1c, vT1s, 8)
        q += [f"v_cvt_f32_u32 v{vk}, s{sWv}", f"v_fma_f32 v{vk}, v{vk}, 4.0, v{vq}", f"v_mul_f32 v{vk}, 4.0, v{vk}",
              f"v_mul_f32 v{vq}, {fbits(8.0)}, v{vq}"]
        for tt in range(2):
            if tt:
                q.append(f"v_add_f32 v{vidx}, 4.0, v{vidx}")
            q += [f"v_mul_f32 v{va}, {fbits(1/32)}, v{vidx}", f"v_mul_f32 v{vb}, v{vq}, v{va}"]
            q += coef() + run(c0, s0, 8)
            q += pack(pk, c0) + pack(vS32 + 4 * tt, s0) + acc(aC32 + 4 * tt, pk)
            q += [f"v_mul_f32 v{va}, {fbits(1/64)}, v{va}", f"v_mul_f32 v{vb}, v{vk}, v{va}"]
            q += coef() + run(vT2c + 4 * tt, vT2s + 4 * tt, 4, True)
        return q

    def fft_setup_regs(self):
        t0, t1 = vT + 14, vT + 15
        return [f"v_and_b32 v{t1}, 3, v0", f"v_mul_u32_u24 v{fa0}, 528, v{t1}",
                f"v_lshrrev_b32 v{t0}, 4, v0", f"v_lshl_add_u32 v{fa0}, v{t0}, 7, v{fa0}",
                f"v_bfe_u32 v{t0}, v0, 2, 1", f"v_lshl_add_u32 v{fa0}, v{t0}, 6, v{fa0}",
                f"v_and_b32 v{t0}, 8, v0", f"v_add_u32 v{fa0}, v{t0}, v{fa0}", f"v_add_u32 v{fa0}, {IMG}, v{fa0}",
                f"v_xor_b32 v{fa0+1}, 16, v{fa0}", f"v_xor_b32 v{fa0+2}, 32, v{fa0}", f"v_xor_b32 v{fa0+3}, 48, v{fa0}",
                f"v_lshrrev_b32 v{t0}, 5, v0", f"v_xor_b32 v{t0}, v{t0}, v0", f"v_bfe_i32 v{fx}, v{t0}, 0, 1"]

    def fft_scalars(self):
        return [[f"s_lshl_b32 s{sT1}, s{sKd}, 13"], [f"s_lshl_b32 s{sT0}, s{sWv}, 10"],
                [f"s_add_u32 s{sT2}, s{sT1}, s{sT0}"],
                [f"s_cmp_eq_u32 s{sKd}, 224", f"s_cselect_b32 s{sZs}, 4096, s{sT1}", f"s_cselect_b32 s{sT1}, 0, s{sT1}",
                 f"s_cselect_b32 s{sSw}, 16, 0"],
                [f"s_cmp_eq_u32 s{sT1}, 0", f"s_cselect_b32 s{sT3}, {OOB}, 0"],
                [f"s_add_u32 s{sZs}, s{sZs}, s{sT0}"], [f"s_lshl_b32 s{sT0}, s{sT0}, 1"], [f"s_add_u32 s{sT1}, s{sT1}, s{sT0}"],
                [f"s_add_u32 s{sT1}, s{sT1}, {X1T}"], [f"s_add_u32 s{sT2}, s{sT2}, {WT}"], [f"s_add_u32 s{sZs}, s{sZs}, {ZT}"]]

    def fft_addr2(self):
        return [f"v_xor_b32 v{fim}, s{sSw}, v{vL16}", f"v_and_or_b32 v{fx}, v{fx}, s{sT3}, v{fim}",
                f"v_or_b32 v{fim}, s{sT3}, v{vL16}", f"v_add_u32 v{fim}, 0x1000, v{fim}"]

    def poll1_addr(self, t0, t1, sa, sb, extra=None):
        sc = [[f"s_lshr_b32 s{sa}, s{sKd}, 4", f"s_cmp_eq_u32 s{sa}, 14", f"s_cselect_b32 s{sa}, 0, s{sa}"],
              [f"s_lshl2_add_u32 s{sa}, s{sa}, s{sWv}"], [f"s_lshl_b32 s{sa}, s{sa}, 4"],
              [f"s_lshl_b32 s{sb}, s{sWv}, 1"]]
        v = [f"v_add_u32 v{vPa}, s{sa}, v0",
             f"v_bfe_u32 v{t0}, v0, 1, 2", f"v_and_b32 v{t1}, 1, v0", f"v_lshl_add_u32 v{t0}, v{t0}, 3, v{t1}",
             f"v_add_u32 v{t0}, s{sb}, v{t0}",
             f"v_add_u32 v{t0}, {FAUX//128}, v{t0}"]
        if extra is not None:
            v += [f"v_lshlrev_b32 v{vPw}, 7, v{t0}", f"v_mov_b32 v{t0}, s{extra}"]
        v += [
             f"v_subrev_u32 v{t1}, 16, v0", f"v_ashrrev_i32 v{t1}, 31, v{t1}",
             f"v_bfi_b32 v{vPa}, v{t1}, v{vPa}, v{t0}", f"v_lshlrev_b32 v{vPa}, 7, v{vPa}"]
        return sc, v

    def fft_loads(self):
        return [f"s_add_u32 m0, s{sT0}, {IMG}",
                I(f"buffer_load_dwordx4 v{fx}, {srd(sWS)}, s{sT1} offen sc1 lds", tag="x1"),
                I(f"buffer_load_dwordx4 v{fx}, {srd(sWS)}, s{sT1} offen offset:1024 sc1 lds", tag="x1"),
                I(f"buffer_load_dwordx4 {vr(fWraw,4)}, v{vL16}, {srd(sWS)}, s{sT2} offen sc1", tag="wtre"),
                f"s_add_u32 s{sT2}, s{sT2}, 4096",
                I(f"buffer_load_dwordx4 {vr(fWraw+4,4)}, v{vL16}, {srd(sWS)}, s{sT2} offen sc1", tag="wtim")]

    def fft_body(self, hook):
        p = self.p
        Dr, Di, tm, Br, Bi, Bn = fDr, fDi, fTm, fBr, fBi, fBn

        def af(part, t, ks):
            return fA + 4 * (4 * part + 2 * t + ks)

        def mf(d, a, b, first):
            return f"v_mfma_f32_16x16x32_bf16 {vr(d,4)}, {a}, {b}, {'0' if first else vr(d,4)}"

        def cmul(c, s, sign, neg=None):
            q = []
            n1 = " neg_lo:[0,0,1] neg_hi:[0,0,1]"
            for j in range(0, 8, 2):
                q += [f"v_pk_mul_f32 {vr(tm+8+j,2)}, {vr(Dr+j,2)}, {vr(s+j,2)}",
                      f"v_pk_mul_f32 {vr(tm+j,2)}, {vr(Di+j,2)}, {vr(s+j,2)}"]
            for j in range(0, 8, 2):
                q += [f"v_pk_fma_f32 {vr(tm+j,2)}, {vr(Dr+j,2)}, {vr(c+j,2)}, {vr(tm+j,2)}" + (n1 if sign > 0 else ""),
                      f"v_pk_fma_f32 {vr(tm+8+j,2)}, {vr(Di+j,2)}, {vr(c+j,2)}, {vr(tm+8+j,2)}" + ("" if sign > 0 else n1)]
            for j in range(4):
                q += [f"v_cvt_pk_bf16_f32 v{Br+j}, v{tm+2*j}, v{tm+2*j+1}"]
            for j in range(4):
                q += [f"v_cvt_pk_bf16_f32 v{Bi+j}, v{tm+8+2*j}, v{tm+8+2*j+1}"]
            return q

        def negs(src):
            return [f"v_xor_b32 v{Bn+j}, 0x80008000, v{src+j}" for j in range(4)]

        def big(sgn, pre):
            Sre, Sim = (aS64, aN64) if sgn < 0 else (aN64, aS64)
            n = 0
            for ks in range(2):
                for part in range(2):
                    for t in range(2):
                        a = vr(af(part, t, ks), 4)
                        first = ks == 0 and part == 0
                        bre = (aC64 if part == 0 else Sre) + 4 * ks
                        bim = (Sim if part == 0 else aC64) + 4 * ks
                        p.e(I(mf(Dr + 4 * t, a, vr(bre, 4, "a"), first), ds=f"{pre}{part}{t}{ks}"))
                        p.e(mf(Di + 4 * t, a, vr(bim, 4, "a"), first))
                        n += 1
                        if n in (2, 4, 6):
                            hook(f"{pre}m{n}", 64)

        hook("h0", 0)
        p.e(W(vm="x1"))
        p.e("s_barrier")
        for ks in range(2):
            for part in range(2):
                for t in range(2):
                    for h in range(2):
                        p.e(I(f"ds_read_b64_tr_b16 {vr(af(part,t,ks)+2*h,2)}, v{fa0+2*t+part} "
                              f"offset:{2048*(2*ks+h)}", tag=f"a{part}{t}{ks}"))
        hook("s1", 100)
        big(-1, "a")
        p.e(W(vm=["wtre", "wtim"]))
        for j in range(4):
            p.e([f"v_lshlrev_b32 v{fWr+2*j}, 16, v{fWraw+j}", f"v_and_b32 v{fWr+2*j+1}, 0xffff0000, v{fWraw+j}"])
        p.e(cmul(vT1c, vT1s, -1))
        hook("tw1", 200)
        ng = negs(Br)
        for t in range(2):
            p.e(mf(Dr + 4 * t, vr(aC32 + 4 * t, 4, "a"), vr(Br, 4), True))
            p.e(ng[2 * t:2 * t + 2])
        for t in range(2):
            p.e(mf(Di + 4 * t, vr(aC32 + 4 * t, 4, "a"), vr(Bi, 4), True))
        for t in range(2):
            p.e(mf(Dr + 4 * t, vr(vS32 + 4 * t, 4), vr(Bi, 4), False))
        for t in range(2):
            p.e(mf(Di + 4 * t, vr(vS32 + 4 * t, 4), vr(Bn, 4), False))
        hook("s3", 128)
        for j in range(4):
            p.e([f"v_lshlrev_b32 v{fWi+2*j}, 16, v{fWraw+4+j}", f"v_and_b32 v{fWi+2*j+1}, 0xffff0000, v{fWraw+4+j}"])
        p.e(cmul(fWr, fWi, +1))
        hook("wm", 140)
        ng = negs(Bi)
        for t in range(2):
            p.e(mf(Dr + 4 * t, vr(Br, 4), vr(aC32 + 4 * t, 4, "a"), True))
            p.e(ng[2 * t:2 * t + 2])
        for t in range(2):
            p.e(mf(Di + 4 * t, vr(Br, 4), vr(vS32 + 4 * t, 4), True))
        for t in range(2):
            p.e(mf(Dr + 4 * t, vr(Bn, 4), vr(vS32 + 4 * t, 4), False))
        for t in range(2):
            p.e(mf(Di + 4 * t, vr(Bi, 4), vr(aC32 + 4 * t, 4, "a"), False))
        hook("s3i", 128)
        p.e([f"s_lshr_b32 s{sT0}, s{sWv}, 1", f"s_lshl_b32 s{sT0}, s{sT0}, 10", f"s_and_b32 s{sT2}, s{sWv}, 1",
             f"s_lshl3_add_u32 s{sT0}, s{sT2}, s{sT0}", f"v_add_u32 v{fa0}, s{sT0}, v{vL16}"])
        p.e(cmul(vT2c, vT2s, +1))
        for part in range(2):
            for t in range(2):
                p.e(I(f"ds_write_b64 v{fa0}, {vr((Br if part == 0 else Bi)+2*t,2)} offset:{EXC + (4*part+2*t)*1024}", tag="exw"))
        hook("h2", 0)
        p.e(W(ds="exw"))
        p.e("s_barrier")
        for ks in range(2):
            for part in range(2):
                for t in range(2):
                    p.e(I(f"ds_read_b128 {vr(af(part,t,ks),4)}, v{vL16} offset:{EXC + (4*part+2*t+ks)*1024}", tag=f"b{part}{t}{ks}"))
        hook("tw2", 300)
        big(+1, "b")
        hook("s1i", 64)
        for j in range(4):
            p.e(f"v_cvt_pk_bf16_f32 v{Br+j}, v{Dr+2*j}, v{Dr+2*j+1}")
        p.e(I(f"buffer_store_dwordx4 {vr(Br,4)}, v{vL16}, {srd(sWS)}, s{sZs} offen sc1", tag="zre"))
        for j in range(4):
            p.e(f"v_cvt_pk_bf16_f32 v{Bi+j}, v{Di+2*j}, v{Di+2*j+1}")
        p.e(I(f"buffer_store_dwordx4 {vr(Bi,4)}, v{fim}, {srd(sWS)}, s{sZs} offen sc1", tag="zim"))

    def epi(self, acc, tmp):
        q = []
        for k in range(4):
            g0, g1, u0, u1 = acc + 2 * k, acc + 2 * k + 1, acc + 8 + 2 * k, acc + 9 + 2 * k
            t0, t1 = tmp + 2 * (k & 1), tmp + 2 * (k & 1) + 1
            q += [f"v_mul_f32 v{t0}, s{sK}, v{g0}", f"v_mul_f32 v{t1}, s{sK}, v{g1}",
                  f"v_exp_f32 v{t0}, v{t0}", f"v_exp_f32 v{t1}, v{t1}",
                  f"v_mul_f32 v{u0}, v{g0}, v{u0}", f"v_mul_f32 v{u1}, v{g1}, v{u1}",
                  f"v_add_f32 v{t0}, 1.0, v{t0}", f"v_add_f32 v{t1}, 1.0, v{t1}",
                  f"v_rcp_f32 v{t0}, v{t0}", f"v_rcp_f32 v{t1}, v{t1}",
                  f"v_mul_f32 v{u0}, v{u0}, v{t0}", f"v_mul_f32 v{u1}, v{u1}, v{t1}",
                  f"v_cvt_pk_bf16_f32 v{acc+k}, v{u0}, v{u1}"]
        return q

    def epi_pk(self, acc, tmp):
        q = []
        for k in range(4):
            q.append(f"v_pk_mul_f32 {vr(tmp+2*k,2)}, {vr(acc+2*k,2)}, s[{sK}:{sK+1}]")
        for j in range(8):
            q.append(f"v_exp_f32 v{tmp+j}, v{tmp+j}")
        for k in range(4):
            q.append(f"v_pk_mul_f32 {vr(acc+8+2*k,2)}, {vr(acc+2*k,2)}, {vr(acc+8+2*k,2)}")
        for k in range(4):
            q.append(f"v_pk_add_f32 {vr(tmp+2*k,2)}, {vr(tmp+2*k,2)}, 1.0 op_sel_hi:[1,0]")
        for j in range(8):
            q.append(f"v_rcp_f32 v{tmp+j}, v{tmp+j}")
        for k in range(4):
            q.append(f"v_pk_mul_f32 {vr(acc+8+2*k,2)}, {vr(acc+8+2*k,2)}, {vr(tmp+2*k,2)}")
        for k in range(4):
            q.append(f"v_cvt_pk_bf16_f32 v{acc+k}, v{acc+8+2*k}, v{acc+9+2*k}")
        return q

    def hstore(self, base, n, tag):
        i, tl = n >> 1, n & 1
        return I(f"buffer_store_dwordx4 {vr(base+16*n,4)}, v{vL16}, {srd(sWS)}, s{sHst1 if i else sHst} offen offset:{tl*1024} sc1", tag=tag)

    def rec_step(self, st, ks, dst):
        P = st + 8 * (ks & 1)
        Q = st + 8 * ((ks + 1) & 1)
        c = st + 16 + (0 if ks & 1 else 1)
        q = [f"v_fmac_f32 v{P+j}, v{c}, v{Q+j}" for j in range(8)]
        return q + self.rec_pack(st, ks, dst)

    def rec_pack(self, st, ks, dst):
        P = st + 8 * (ks & 1)
        n = "-" if ks & 2 else ""
        return [f"v_cvt_pk_bf16_f32 v{dst+j}, {n}v{P+2*j}, {n}v{P+2*j+1}" for j in range(4)]

    def put_scalars(self, G, groups, g0, g1):
        g = g0
        for x in groups:
            while G.s[g] or g in G.light:
                g += 1
            G.s[g] += x if isinstance(x, list) else [x]
        assert g < g1, (g, g1)
        return g

    def build(self):
        o, p = self.o, self.p
        e = p.e
        e(self.stamp("start"))
        e([x.replace("s_memtime", "s_memrealtime") for x in self.stamp("rt0")])
        e([f"s_load_dwordx2 s[{sX}:{sX+1}], s[0:1], 0", f"s_load_dwordx2 s[{sG}:{sG+1}], s[0:1], 32",
           f"s_load_dwordx2 s[{sU}:{sU+1}], s[0:1], 40"])
        e([f"v_lshrrev_b32 v2, 6, v0", f"v_mul_u32_u24 v3, 40, v0", f"v_and_b32 v0, 63, v0"])
        sj, sidx, sr = sT0, sT1, sT2
        e([f"s_lshr_b32 s{sidx}, s2, 3", f"v_readfirstlane_b32 s{sWv}, v2", f"s_and_b32 s{sj}, s2, 7",
           f"s_cmp_lt_u32 s{sidx}, 28", "s_cbranch_scc1 L_main"])
        if o["pf"]:
            p.raw(f"s_getpc_b64 s[{sT2}:{sT3}]")
            p.raw("L_pc:")
            p.raw(f"s_and_b32 s{sCnt}, s{sidx}, 3")
            p.raw(f"s_mul_i32 s{sCnt}, s{sCnt}, 10240")
            p.raw(f"v_add_u32 v3, s{sCnt}, v3")
            p.raw(f"v_min_u32 v3, L_codeend-L_pc-4, v3")
            p.raw(f"global_load_dword v255, v3, s[{sT2}:{sT3}]")
        p.raw("L_main:")
        for s, off in ((sD, 48), (sO, 64), (sDBG, 72), (sWS, 80)):
            e(f"s_load_dwordx2 s[{s}:{s+1}], s[0:1], {off}")

        def mod7(s, t):
            return [f"s_mul_i32 s{t}, s{s}, 37", f"s_lshr_b32 s{t}, s{t}, 8", f"s_mul_i32 s{t}, s{t}, 7", f"s_sub_u32 s{s}, s{s}, s{t}"]
        sRot1 = sHst
        e([f"s_mul_i32 s{sr}, s{sidx}, 37", f"s_lshr_b32 s{sr}, s{sr}, 8",
           f"s_mul_i32 s{sCt}, s{sr}, 7", f"s_sub_u32 s{sCt}, s{sidx}, s{sCt}",
           f"s_lshr_b32 s{sT3}, s{sj}, 1", f"s_lshl2_add_u32 s{sRg}, s{sT3}, s{sr}",
           f"s_and_b32 s{sC}, s{sj}, 1", f"s_mul_i32 s{sC}, s{sC}, 7", f"s_add_u32 s{sC}, s{sC}, s{sCt}",
           ])
        norot = o["rot1"] == "0"
        if o["rot1"].startswith("full"):
            e([f"s_lshl1_add_u32 s{sRot2}, s{sr}, s{sCt}",
               f"s_cmp_ge_u32 s{sRot2}, 7", f"s_cselect_b32 s{sCnt}, 7, 0", f"s_sub_u32 s{sRot2}, s{sRot2}, s{sCnt}"])
        if norot:
            pass
        elif o["rot1"] == "full":
            e(f"s_mov_b32 s{sRot1}, s{sRot2}")
        elif o["rot1"] == "fullx":
            e([f"s_add_u32 s{sRot1}, s{sRot2}, s{sT3}", f"s_cmp_ge_u32 s{sRot1}, 7", f"s_cselect_b32 s{sCnt}, 7, 0",
               f"s_sub_u32 s{sRot1}, s{sRot1}, s{sCnt}"])
        elif o["rot1"] == "half":
            e([f"s_add_u32 s{sRot1}, s{sr}, s{sCt}", f"s_and_b32 s{sRot1}, s{sRot1}, 1", f"s_mul_i32 s{sRot1}, s{sRot1}, 3"])
        elif o["rot1"][0] == "t":
            tab = [int(c_) for c_ in o["rot1"][1:]]
            val = sum(tab[k % len(tab)] << (3 * k) for k in range(10))
            e([f"s_add_u32 s{sRot1}, s{sr}, s{sCt}", f"s_mul_i32 s{sRot1}, s{sRot1}, 3", f"s_lshr_b32 s{sRot1}, {val:#x}, s{sRot1}",
               f"s_and_b32 s{sRot1}, s{sRot1}, 7"])
        elif o["rot1"][0] == "q":
            val = sum(int(c_) << (4 * k) for k, c_ in enumerate(o["rot1"][1:]))
            e([f"s_add_u32 s{sRot1}, s{sr}, s{sCt}", f"s_xor_b32 s{sCnt}, s{sj}, s{sT3}", f"s_and_b32 s{sRot1}, s{sRot1}, 1",
               f"s_and_b32 s{sCnt}, s{sCnt}, 1", f"s_lshl1_add_u32 s{sRot1}, s{sCnt}, s{sRot1}", f"s_lshl_b32 s{sRot1}, s{sRot1}, 2",
               f"s_lshr_b32 s{sRot1}, {val:#x}, s{sRot1}", f"s_and_b32 s{sRot1}, s{sRot1}, 7"])
        elif o["rot1"] == "xcd":
            e([f"s_mov_b32 s{sRot1}, s{sj}"] + mod7(sRot1, sCnt))
        t0, t1, t2, t3, t4, t5, t6 = range(vAB + 8, vAB + 15)
        e([f"s_lshl2_add_u32 s{sCnt}, s{sT3}, s{sWv}", f"s_lshl4_add_u32 s{sCnt}, s{sCnt}, s{sr}",
           f"s_mul_i32 s{sCnt}, s{sCnt}, {8*896}",
           f"v_lshrrev_b32 v{t0}, 3, v0", f"v_mul_u32_u24 v{t0}, 896, v{t0}", f"v_add_u32 v{t0}, s{sCnt}, v{t0}",
           f"v_and_b32 v{t1}, 7, v0", f"v_lshrrev_b32 v{t2}, 4, v0", f"v_xor_b32 v{t1}, v{t1}, v{t2}",
           f"v_lshl_add_u32 v{vXd}, v{t1}, 4, v{t0}",
           f"v_xor_b32 v{t1}, 4, v{t1}", f"v_lshl_add_u32 v{vXd+1}, v{t1}, 4, v{t0}",
           f"v_add_u32 v{vXd+2}, {2*(28672-1024)}, v{vXd}", f"v_add_u32 v{vXd+3}, {3*(28672-1024)}, v{vXd+1}",
           f"v_add_u32 v{vXd+1}, {28672-1024}, v{vXd+1}"])
        e([f"v_lshrrev_b32 v{t4}, 5, v0", f"v_and_b32 v{t6}, 3, v0", f"v_lshl_add_u32 v{t2}, v{t4}, 2, v{t6}",
           f"v_lshlrev_b32 v{t2}, 4, v{t2}", f"v_bfe_u32 v{t3}, v0, 2, 3",
           f"v_lshl_add_u32 v{t0}, s{sWv}, 4, v{t3}", f"v_mul_u32_u24 v{t0}, 3584, v{t0}",
           f"s_lshl_b32 s{sCnt}, s{sC}, 8", f"v_add3_u32 v{vWd}, v{t0}, v{t2}, s{sCnt}",
           f"v_add_u32 v{vWd+1}, {8*3584-1056}, v{vWd}"])
        e([f"s_mul_i32 s{sWm}, s{sWv}, 4160", f"s_lshl_b32 s{sXm}, s{sWv}, 14", f"s_add_u32 s{sXm}, s{sXm}, {XS}"])
        for s, n in ((sX, 2048 * 896), (sG, 448 * 3584), (sU, 448 * 3584)):
            e([f"s_mov_b32 s{s+2}, {n}", f"s_mov_b32 s{s+3}, 0x20000"])

        def chunk_tab(i):
            r = [f"s_mov_b32 s{sCnt}, s{sRot1}"] if i == 0 else \
                [f"s_add_u32 s{sCnt}, s{sCnt}, 1", f"s_cmp_eq_u32 s{sCnt}, 7", f"s_cselect_b32 s{sCnt}, 0, s{sCnt}"]
            return r + [f"s_lshl_b32 s{sXo+i}, s{sCnt}, 7", f"s_mul_i32 s{sWo+i}, s{sCnt}, {64*3584}"]
        if not norot:
            e(chunk_tab(0) + chunk_tab(1))
        e([f"s_cmp_ge_u32 s{sidx}, 28", "s_cbranch_scc1 L_auxh"])
        snap_aux0 = p.snapshot()
        p.raw("s_waitcnt lgkmcnt(0)")
        e(self.stamp("kargs"))

        self.m0 = None

        def xdma(j):
            r = [dict(t=f"buffer_load_dwordx4 v{vXd+i}, {srd(sX)}, s{sXo+j} offen offset:{1024*i} lds", tag=f"x{j}",
                      m0=(sXm, 4096 * (j % 4)), ds=None) for i in range(4)]
            if norot:
                r[0]["pre"] = [f"s_movk_i32 s{sXo+j}, {128*j}"]
            return r

        def wdma(i):
            r = []
            for mat in range(2):
                for hh in range(2):
                    r.append(dict(t=f"buffer_load_dwordx4 v{vWd+hh}, {srd(sG if mat == 0 else sU)}, s{sWo+i%7} offen offset:{1056*hh} lds",
                                  tag=f"w{i}", m0=(sWm, WSLOT * (i % NWS) + 2080 * mat), ds=None))
            if i >= 7:
                r[0]["pre"] = [f"s_addk_i32 s{sWo+i%7}, 128"]
            elif norot:
                r[0]["pre"] = [f"s_mov_b32 s{sWo+i}, {i*64*3584}"]
            return r

        def ddma(sg):
            return [dict(t=f"buffer_load_dwordx4 v{vDd+i}, {srd(sD)}, s{sDo+sg} offen offset:{1024*i} lds", tag=f"d{sg}",
                         m0=(sXm, 4096 * ((sg + 3) % 4)), ds=None) for i in range(4)]

        def dma_items(d):
            s = []
            if d["m0"] and self.m0 != d["m0"]:
                self.m0 = d["m0"]
                s.append(f"s_add_u32 m0, s{d['m0'][0]}, {d['m0'][1]}")
            return s + list(d.get("pre", [])), [I(d["t"], tag=d["tag"], ds=d["ds"])]

        L, NB = 3, 4
        n1 = o["n1"]
        dks = [d if d < n1 else n1 + (d - n1) // 2 for d in range(14)]
        K0 = [16 * ks + 4 * sum(1 for x in dks if x < ks) for ks in range(15)]
        Dg = [K0[dks[d]] + 16 + 4 * (d - dks.index(dks[d])) for d in range(14)]
        NA, NBg = 280, 224
        U = [K0[f // 4] + 4 * (f % 4) for f in range(56)] + [NA + 4 * f for f in range(56)]
        bar_gap = {j: U[8 * j - L] - 1 for j in range(1, 14)}
        TE = 16 * NA
        TB = TE + 860
        TF = TB + 16 * NBg
        TG = TF + 2400

        def tg(g):
            return 16 * g if g < NA else TB + 16 * (g - NA)

        def T(spec):
            n = int(spec[1:])
            return {"A": 16 * n, "E": TE + n, "B": TB + 16 * n, "F": TF + n, "G": TG + 16 * n}[spec[0]]
        q1 = []
        for i in range(14):
            ear = -1 if i <= o["LA"] - 1 else (0 if i == o["LA"] else tg(bar_gap[i - o["LA"]] + 1))
            for d in (xdma(i) if i < 7 else []) + wdma(i):
                d["ear"] = ear
                d["dl"] = tg(bar_gap[i]) if i else 0
                if d["tag"][0] == "x" and dks[2 * i] < 2 * i:
                    d["dl"] = 16 * (K0[dks[2 * i] - 1] + 12)
                q1.append(d)

        def issue_pro(n):
            for _ in range(n):
                assert q1[0]["ear"] < 0
                s, m = dma_items(q1.pop(0))
                e(s)
                e(m)
        if o["touch"]:
            issue_pro(o["touch"])
            sQ = 64
            u0, u1, u2 = vAA, vAA + 1, vAA + 2
            e([f"s_cmp_eq_u32 s{sWv}, 2", f"s_cselect_b64 s[{sQ}:{sQ+1}], s[{sG}:{sG+1}], s[{sU}:{sU+1}]",
               f"s_lshl1_add_u32 s{sRt}, s{sC}, s{sWv}", f"v_and_b32 v{u0}, 31, v0",
               f"v_lshl_add_u32 v{u1}, s{sRt}, 5, v{u0}",
               f"v_mul_u32_u24 v{u2}, 1171, v{u1}", f"v_lshrrev_b32 v{u2}, 16, v{u2}",
               f"v_mul_u32_u24 v{u2}, {32*896-56*128}, v{u2}", f"v_lshl_add_u32 v{u1}, v{u1}, 7, v{u2}",
               f"s_lshl_b32 s{sRt}, s{sT3}, 6", f"s_add_u32 s{sRt}, s{sRt}, s{sr}", f"s_mul_i32 s{sRt}, s{sRt}, {8*896}",
               f"v_add_u32 v{u1}, s{sRt}, v{u1}",
               f"v_min_u32 v{u0}, 23, v{u0}", f"s_mul_i32 s{sRt}, s{sRg}, {24*3584}", f"s_lshl_b32 s{sKd}, s{sC}, 8",
               f"s_add_u32 s{sRt}, s{sRt}, s{sKd}", f"s_add_u32 s{sRt}, s{sRt}, {64*3584}",
               f"v_mul_u32_u24 v{u2}, 3584, v{u0}", f"v_add_u32 v{u2}, s{sRt}, v{u2}",
               f"s_cmp_lt_u32 s{sWv}, 2", f"s_cselect_b64 vcc, -1, 0",
               f"s_cselect_b64 s[{sQ}:{sQ+1}], s[{sX}:{sX+1}], s[{sQ}:{sQ+1}]",
               f"s_cselect_b32 s{sQ+2}, s{sX+2}, s{sG+2}", f"s_mov_b32 s{sQ+3}, 0x20000",
               f"v_cndmask_b32 v{u1}, v{u2}, v{u1}, vcc",
               f"buffer_load_dword v{vPr}, v{u1}, {srd(sQ)}, 0 offen"])
        issue_pro(o["npre"] - o["touch"])
        p.raw("s_branch L_main2")
        snap_main = p.snapshot()
        p.restore(snap_aux0)
        p.raw("L_auxh:")
        self.aux_head(sj, sidx)
        p.raw("s_branch L_aux")
        snap_aux = p.snapshot()
        p.restore(snap_main)
        p.raw("L_main2:")
        for i in range(2, 7):
            if not norot:
                e(chunk_tab(i))
        e([f"s_and_b32 s{sRt}, s{sj}, 1", f"s_lshl1_add_u32 s{sRt}, s{sRg}, s{sRt}", f"s_mul_i32 s{sKd}, s{sj}, 28", f"s_add_u32 s{sKd}, s{sKd}, s{sidx}",
           f"s_movk_i32 s{s7f}, 0x7f", f"v_lshlrev_b32 v{vL16}, 4, v0"])
        sq = sr
        tq_, tn = vAB + 15, t0
        e([f"v_and_b32 v{tn}, 15, v0", f"v_lshrrev_b32 v{tq_}, 4, v0", f"v_bfe_u32 v{t1}, v0, 1, 3",
           f"v_xor_b32 v{t1}, v{t1}, v{tq_}", f"v_lshlrev_b32 v{t1}, 4, v{t1}",
           f"v_lshl_add_u32 v{t1}, v{tn}, 7, v{t1}", f"v_xor_b32 v{t5}, 64, v{t1}",
           f"s_xor_b32 s{sT0}, s{sWv}, 1", f"s_lshl_b32 s{sT0}, s{sT0}, 14", f"s_add_u32 s{sT0}, s{sT0}, {XS}",
           f"v_add_u32 v{vXr}, s{sXm}, v{t1}", f"v_add_u32 v{vXr+1}, s{sXm}, v{t5}",
           f"v_add_u32 v{vXr+2}, s{sT0}, v{t1}", f"v_add_u32 v{vXr+3}, s{sT0}, v{t5}"])
        e([f"v_bfe_u32 v{t1}, v0, 4, 1", f"v_bfe_u32 v{t5}, v0, 2, 2",
           f"s_and_b32 s{sT0}, s{sWv}, 1", f"s_lshl_b32 s{sT1}, s{sT0}, 9",
           f"v_mul_u32_u24 v{vTr}, 1056, v{t1}", f"v_mul_u32_u24 v{vTr+1}, 4160, v{t4}", f"v_add3_u32 v{vTr}, v{vTr}, v{vTr+1}, s{sT1}",
           f"v_lshl_add_u32 v{vTr}, v{t5}, 6, v{vTr}", f"v_lshl_add_u32 v{vTr}, v{t6}, 3, v{vTr}",
           f"v_add_u32 v{vTr+1}, {4*WSLOT}, v{vTr}"])
        st, fbuf = vAA, [vAB, vAB + 4, vE, vE + 4]
        vA2 = vAB + 16
        ph, stp, tq, y0, y1, y2 = range(vAA + 20, vAA + 26)
        pk = vAA + 32
        e([f"s_lshl1_add_u32 s{sCnt}, s{sC}, s{sT0}", f"v_lshl_add_u32 v{y0}, s{sCnt}, 4, v{tn}",
           f"v_lshrrev_b32 v{y1}, 1, v{y0}", f"v_and_b32 v{y2}, 1, v{y0}",
           f"v_cmp_eq_u32 vcc, 1, v{y0}", f"v_mov_b32 v{tq}, 224", f"s_mov_b32 s{sCnt}, {STEP448}",
           f"v_cndmask_b32 v{y1}, v{y1}, v{tq}, vcc", f"v_cndmask_b32 v{y2}, v{y2}, 0, vcc",
           f"v_mul_lo_u32 v{stp}, v{y1}, s{sCnt}", f"s_and_b32 s{sCnt}, s{sWv}, 2", f"s_lshl2_add_u32 s{sT0}, s{sCnt}, s{sT0}"])
        if not norot:
            e(f"s_add_u32 s{sCnt}, s{sCnt}, s{sRot1}")
        e([f"s_lshl_b32 s{sCnt}, s{sCnt}, 6",
           f"v_lshl_add_u32 v{y1}, v{tq_}, 3, s{sCnt}",
           f"v_mul_lo_u32 v{ph}, v{y1}, v{stp}", f"v_lshl_add_u32 v{ph}, v{y2}, 30, v{ph}",
           f"v_lshlrev_b32 v{y1}, 5, v{stp}", f"v_add_u32 v{vFr}, {FS}, v{vL16}", f"v_lshl_add_u32 v{y2}, s{sT0}, 10, v{vFr}"])
        e(self.trig(st + 16, y1, tq))
        for ks in range(2):
            for j in range(8):
                e(self.trig(st + 8 * ks + j, ph, tq + (j & 1)))
                if ks == 0 or j < 7:
                    e(f"v_add_u32 v{ph}, v{ph}, v{stp}")
            if ks == 0:
                e([f"v_lshl_add_u32 v{ph}, v{stp}, 3, v{ph}", f"v_lshl_add_u32 v{ph}, v{stp}, 4, v{ph}",
                   f"v_mul_f32 v{st+17}, -2.0, v{st+16}", f"v_add_f32 v{st+16}, v{st+16}, v{st+16}"])
        e(self.rec_pack(st, 0, pk) + self.rec_pack(st, 1, pk + 4) + self.rec_step(st, 2, pk + 8) + self.rec_step(st, 3, pk + 12))
        e(f"s_cmp_ge_u32 s{sWv}, 2")
        for k in range(4):
            if k == 3:
                e("s_cbranch_scc1 L_f2")
            e(I(f"ds_write_b128 v{y2}, {vr(pk+4*k,4)} offset:{2048*k}", tag="fw"))
        p.raw("L_f2:")
        issue_pro(o["npro"] - o["npre"])
        lq = []
        for s, n in ((sD, 1792 * 896), (sDBG, 256), (sWS, WSEND), (sO, 2048 * 896)):
            lq += [f"s_mov_b32 s{s+2}, {n}", f"s_mov_b32 s{s+3}, 0x20000"]
        lq += [f"v_lshlrev_b32 v{vY}, 5, v{t1}", f"v_xor_b32 v{vY+1}, v{vY}, v{t2}",
               f"v_mul_u32_u24 v{vDd}, 896, v{t3}", f"s_lshl_b32 s{sCnt}, s{sCt}, 7", f"v_add3_u32 v{vDd}, v{vDd}, v{vY+1}, s{sCnt}"]
        for i in range(1, 4):
            lq += [f"v_add_u32 v{vDd+i}, {i*(8*896-1024)}, v{vDd}"]
        lq += [f"v_lshl_add_u32 v{vY}, v{t3}, 6, v{vY}", f"v_lshl_add_u32 v{vY}, v{t6}, 3, v{vY}",
               f"v_lshl_add_u32 v{vY+1}, v{t3}, 12, v{vY+1}",
               f"s_lshr_b32 s{sT1}, s{sWv}, 1", f"s_and_b32 s{sT0}, s{sWv}, 1", f"s_lshl4_add_u32 s{sT0}, s{sT1}, s{sT0}",
               f"s_lshl_b32 s{sT0}, s{sT0}, 5", f"v_lshl_add_u32 v{vDr}, v{t4}, 10, v{vY}", f"v_xor_b32 v{vDr}, s{sT0}, v{vDr}",
               f"v_xor_b32 v{vDr+1}, 32, v{vDr}", f"v_xor_b32 v{vDr+2}, 0x200, v{vDr}", f"v_xor_b32 v{vDr+3}, 0x220, v{vDr}",
               f"s_lshl_b32 s{sCnt}, s{sT1}, 15", f"s_add_u32 s{sCnt}, s{sCnt}, {XS}"]
        lq += [f"v_add_u32 v{vDr+k}, s{sCnt}, v{vDr+k}" for k in range(4)]
        lq += [f"v_bfe_u32 v{t5}, v0, 1, 1", f"v_lshlrev_b32 v{vSg}, 31, v{t5}", f"v_or_b32 v{vSg}, 1.0, v{vSg}",
               f"v_and_b32 v{vPg}, 31, v0", f"v_lshlrev_b32 v{vPg}, 3, v{vPg}"]
        lq += [f"s_lshl_b32 s{sCnt}, s{sq}, 4",
               f"v_xor_b32 v{t5}, s{sCnt}, v{t2}", f"v_lshl_add_u32 v{vX1g}, v{t3}, 14, v{t5}",
               f"s_lshl_b32 s{sCnt}, s{sC}, 8", f"s_add_u32 s{sCnt}, s{sCnt}, s{sRg}", f"s_lshl2_add_u32 s{sCnt}, s{sCnt}, s{sWv}",
               f"s_lshl_b32 s{sCnt}, s{sCnt}, 7", f"s_add_u32 s{sCnt}, s{sCnt}, {X1T}", f"v_add_u32 v{vX1g}, s{sCnt}, v{vX1g}"]
        lq += [f"s_and_b32 s{sT0}, s{sRt}, 1", f"s_lshl1_add_u32 s{sT0}, s{sT0}, s{sT1}", f"s_mul_i32 s{sPe}, s{sT0}, 7",
               f"s_and_b32 s{sT2}, s{sWv}, 1", f"s_add_u32 s{sT0}, s{sPe}, s{sT2}"]
        for sg in range(7):
            if sg == 3:
                lq += [f"s_mul_i32 s{sCnt}, s{sT2}, -6", f"s_add_i32 s{sT1}, s{sPe}, s{sCnt}", f"s_add_u32 s{sT1}, s{sT1}, 6",
                       f"s_and_b32 s{sCnt}, s{sT1}, 30", f"s_add_u32 s{sCnt}, s{sCnt}, s{sT1}", f"s_lshl1_add_u32 s{sCnt}, s{sT2}, s{sCnt}"]
            else:
                lq += [f"s_add_u32 s{sT1}, s{sT0}, {2*sg if sg < 3 else 2*sg-7}", f"s_and_b32 s{sCnt}, s{sT1}, 30",
                       f"s_add_u32 s{sCnt}, s{sCnt}, s{sT1}"] + ([f"s_add_u32 s{sCnt}, s{sCnt}, 2"] if sg > 3 else [])
            lq += [f"s_mul_i32 s{sDo+sg}, s{sCnt}, {2*16*896}"]
        lq += [f"s_lshl3_add_u32 s{sPl}, s{sRt}, s{sCt}", f"s_lshl2_add_u32 s{sPl}, s{sPl}, s{sWv}", f"s_lshl_b32 s{sPl}, s{sPl}, 11",
               f"s_xor_b32 s{sPs}, s{sPl}, 0x10000", f"s_add_u32 s{sPl}, s{sPl}, {PP}", f"s_add_u32 s{sPs}, s{sPs}, {PP}",
               f"s_movk_i32 s{s8k}, 8192"] + [f"v_mov_b32 v{vT+j}, -1" for j in range(4)]
        n_early = len(lq)
        assert HH % 2048 == 0
        lq += [f"s_lshr_b32 s{sT0}, s{sWv}, 1", f"s_lshl1_add_u32 s{sT0}, s{sRg}, s{sT0}", f"s_mul_i32 s{sHst}, s{sT0}, 229376",
               f"s_and_b32 s{sT1}, s{sWv}, 1", f"s_lshl1_add_u32 s{sT2}, s{sC}, s{sT1}", f"s_lshl_b32 s{sCnt}, s{sT2}, 11",
               f"s_add_u32 s{sHst}, s{sHst}, s{sCnt}", f"s_mul_i32 s{sT1}, s{sT1}, 57344",
               f"s_sub_u32 s{sHst1}, s{sHst}, s{sT1}", f"s_add_u32 s{sHst}, s{sHst}, s{sT1}",
               f"s_add_u32 s{sHst}, s{sHst}, {HH}", f"s_add_u32 s{sHst1}, s{sHst1}, {HH+57344}",
               f"s_mul_i32 s{sT1}, s{sT2}, 37", f"s_lshr_b32 s{sT1}, s{sT1}, 8", f"s_mul_i32 s{sT1}, s{sT1}, 25",
               f"s_add_u32 s{sT1}, s{sT1}, s{sT2}", f"s_lshl_b32 s{sT0}, s{sT0}, 9", f"s_lshl2_add_u32 s{sT0}, s{sT1}, s{sT0}",
               f"s_add_u32 s{sFh}, s{sT0}, {FH}",

               f"s_mov_b32 s{sK}, 0xbfb8aa3b", f"s_mov_b32 s{sK+1}, 0xbfb8aa3b",
               f"s_mov_b32 s{sSc}, {fbits(2.0/(2048*448))}",
               [f"s_cmp_eq_u32 s{sKd}, 0", f"s_cselect_b32 s{sSc}, {fbits(1.0/(2048*448))}, s{sSc}"],
               f"s_lshl_b32 s{sCnt}, s{sKd}, 31", f"s_or_b32 s{sSc}, s{sSc}, s{sCnt}",
               f"s_lshl4_add_u32 s{sFx}, s{sC}, s{sRg}", f"s_lshl2_add_u32 s{sFx}, s{sFx}, s{sWv}", f"s_lshl_b32 s{sFx}, s{sFx}, 7"]
        lq += [f"s_and_b32 s{sT0}, s{sRt}, 1", f"s_xor_b32 s{sT0}, s{sT0}, 1", f"s_mul_i32 s{sT0}, s{sT0}, 7", f"s_add_u32 s{sT0}, s{sT0}, s{sCt}",
               f"s_lshl4_add_u32 s{sT0}, s{sT0}, s{sRg}", f"s_lshl2_add_u32 s{sT0}, s{sT0}, s{sWv}"]
        sc, vv = self.poll1_addr(vT + 14, vT + 15, sT1, sT2, sT0)
        lq += sc + vv
        n_mid = len(lq)
        lq += self.fft_setup_regs() + self.fft_consts(vAB + 32)
        lq2 = self.fft_scalars() + self.fft_addr2()
        vH, vPh, sFp = vXd, vXd + 2, sXo + 2
        lq2 += [f"s_and_b32 s{sCnt}, s{sWv}, 1", f"s_mul_i32 s{sCnt}, s{sCnt}, 28", f"s_add_u32 s{sCnt}, s{sCnt}, s{sPe}",
                f"s_lshl_b32 s{sCnt}, s{sCnt}, 11",
                f"s_add_u32 s{sCnt}, s{sCnt}, {HH}", f"v_add_u32 v{vH}, s{sCnt}, v{vL16}",
                f"s_mul_i32 s{sFp}, s{sRt}, 229376", f"v_add_u32 v{vH+1}, s{sFp}, v{vH}",
                f"s_xor_b32 s{sCnt}, s{sRt}, 1", f"s_mul_i32 s{sFp}, s{sCnt}, 229376", f"v_add_u32 v{vH}, s{sFp}, v{vH}",
                f"v_and_b32 v{vPh}, 7, v0", f"v_min_u32 v{vPh}, 6, v{vPh}", f"v_bfe_u32 v{vPh+1}, v0, 3, 1",
                f"v_lshl_add_u32 v{vPh}, v{vPh+1}, 7, v{vPh}", f"v_lshlrev_b32 v{vPh}, 2, v{vPh}",
                f"s_mul_i32 s{sCnt}, s{sPe}, 37", f"s_lshr_b32 s{sCnt}, s{sCnt}, 8", f"s_lshl3_add_u32 s{sFp}, s{sRg}, s{sCnt}",
                f"s_lshl_b32 s{sFp}, s{sFp}, 7", f"s_add_u32 s{sFp}, s{sFp}, {FH}"]
        nx = o["npro2"] - o["npro"]
        for k in range(nx + 1):
            e(lq[o["cpro"] * k // (nx + 1):o["cpro"] * (k + 1) // (nx + 1)])
            if k < nx:
                issue_pro(1)
        for d in q1:
            d["ear"] = max(d["ear"], 0)
        n_early = max(0, n_early - o["cpro"])
        n_all_mid = n_mid
        n_mid = max(0, n_mid - o["cpro"])
        lq = lq[o["cpro"]:]
        e(self.stamp("pro"))

        def m16(d, a, b, first):
            return f"v_mfma_f32_16x16x32_bf16 {vr(d,4)}, {a}, {b}, {'0' if first else vr(d,4)}"

        def wread(f):
            i, kk, mat, tl = f // 8, (f // 4) % 2, (f // 2) % 2, f % 2
            slot = i % NWS
            base, off = (vTr, slot * WSLOT) if slot < 4 else (vTr + 1, 0)
            off += kk * 8320 + mat * 2080 + tl * 32
            b = vWF + 4 * (f % NB)
            return [I(f"ds_read_b64_tr_b16 {vr(b+2*h,2)}, v{base} offset:{off+256*h}", tag=f"wf{f}") for h in range(2)]

        def xread(ks, j):
            return I(f"ds_read_b128 {vr(aX+16*ks+4*j,4,'a')}, v{vXr+(j&2)+ks%2} offset:{4096*((ks//2)%4)+2048*(j&1)}", tag=f"xr{ks}_{j>>1}",
                     vm=(f"x{ks//2}" if j == 0 and ks % 2 == 0 else None))

        def fread(d, s_):
            return I(f"ds_read_b128 {vr(fbuf[2*(d&1)+s_],4)}, v{vFr} offset:{2048*(d%7)+1024*s_}", tag=f"fr{d}")
        mf = []
        for ph_ in range(2):
            for ks in range(14):
                for ff in range(4):
                    for j in (range(3, -1, -1) if o["snake"] and ff & 1 else range(4)):
                        mf.append(m16(vAA + 16 * j + 4 * ff, vr(vWF + 4 * ff, 4), vr(aX + 16 * ks + 4 * j, 4, "a"), ks == 0))
                for dd in range(14):
                    if ph_ == 0 and dks[dd] == ks:
                        for s_ in range(2):
                            for jj in range(2):
                                mf.append(m16((vAX if dd < 7 else vA2) + 8 * s_ + 4 * jj, vr(aX + 16 * dd + 4 * jj, 4, "a"),
                                              vr(fbuf[2 * (dd & 1) + s_], 4), dd % 7 == 0))
        G = Gaps(mf, 2)
        G.light = set(bar_gap.values())
        barW = {}
        for f in range(L, 112):
            G.m[U[f - L]] += wread(f)

        def pair(lo, its):
            while lo in G.light or G.m[lo]:
                lo += 1
            G.m[lo] += its
            return lo + 1
        for ks in range(1, 14):
            lo = K0[ks - 1] + (4 if ks % 2 == 0 else 0)
            if dks[ks] == ks:
                lo = pair(lo, [xread(ks, 0), xread(ks, 1)]) + 3
            pair(lo, [xread(ks, 2), xread(ks, 3)])
        for d in range(1, 14):
            k_ = dks[d]
            if k_ < d:
                pair(K0[k_ - 1] + 12 + 5 * (d - dks.index(k_)), [xread(d, 0), xread(d, 1)])
            pair(K0[k_] + 4 * (d - dks.index(k_)), [fread(d, 0), fread(d, 1)])
        for f in range(1, 112):
            tags = [f"wf{f}"]
            if f < 56 and f % 4 == 0:
                tags += [f"xr{f//4}_1", f"xr{f//4}_0"]
            g = U[f] - 1
            if g in G.light:
                j = [k for k, v in bar_gap.items() if v == g][0]
                barW[j] = W(vm=[f"w{j}"] + ([f"x{j}"] if j < 7 else []), ds=tags)
                G.s[g] += [barW[j], "s_barrier"]
            else:
                G.s[g].append(W(ds=tags))
        for ks in set(dks):
            G.s[K0[ks] + 15].append(W(ds=[t_ for d in range(14) if dks[d] == ks for t_ in (f"fr{d}", f"xr{d}_0")]))

        hring = 16
        hreg = [vAB + 4 * n for n in range(hring)]
        xs = o["xsp"]
        sq2 = [(0, s_) for s_ in range(7)] + [(1, s_) for s_ in range(xs)] + [(0, s_) for s_ in range(7, 14)] + \
              [(1, s_) for s_ in range(xs, 14)]
        seq = [(ph_, step, jj) for ph_, step in sq2 for jj in range(2)]
        npre_h = min(hring, 14 + 2 * xs)
        lset = [n for n in range(npre_h, 56) if seq[n][1] < 7][:o["nlds"]]
        dset = [n for n in range(56) if n not in lset]
        hr = {n: hreg[m % hring] for m, n in enumerate(dset)}
        hr.update({n: vWF + 4 * (m % 4) for m, n in enumerate(lset)})
        accp, acco, acca = vAA, vAA + 32, vAB + 48
        zreg = [vWF, vWF + 4, vWF + 8, vWF + 12, vAX, vAX + 4]
        own_fi = [vT1c + 4 * a for a in range(8)] + [vAX + 8, vAX + 12, vS32 + 24, vS32 + 28, vS32 + 18, vDd]
        vZr, vZd, vZr1, vGa, vG, vOG = vY, vY + 1, vXr, vXr + 1, vXr + 2, vWd
        vOo, vRw, vRr, vHl, vR3, vPz, vOw, vOr, vW1, vR1 = vFr, vSg, vX1g, vDr + 2, vXd + 3, vPa, vPw, vTr, vDr, vDr + 1
        mf, hu, hl_ = [], {}, {}
        split = {0: o["splp"], 1: o["splo"]}
        gU = {}

        def g2m(n, ks_):
            ph_, step, jj = seq[n]
            hu.setdefault(n, len(mf))
            for k in ks_:
                mf.append(m16((acco if ph_ else accp) + 16 * (k >> 1) + 8 * jj + 4 * (k & 1), vr(16 * step + 4 * k, 4, "a"), vr(hr[n], 4), step == 0))
            hl_[n] = len(mf) - 1
        for n, (ph_, step, jj) in enumerate(seq):
            if step < 14 - split[ph_]:
                g2m(n, (1, 0, 3, 2) if o["snake"] and jj == 0 else (2, 3, 0, 1))
                gU[ph_] = len(mf) - 2
                continue
            g2m(n, (2, 3))
            if step == 13 and jj == 1:
                gU[ph_] = len(mf)
                for n2 in range(n + 1 - 2 * split[ph_], n + 1):
                    g2m(n2, (0, 1))
        hfree = {n: (hl_[dset[m - hring]] if m >= hring else -1) for m, n in enumerate(dset)}
        NH = 224
        for ks in range(14):
            for jj in range(2):
                for tt in range(2):
                    a_ = vr(224 + 4 * (ks % 8), 4, "a") if tt else vr(own_fi[ks], 4)
                    mf.append(m16(acca + 8 * jj + 4 * tt, a_, vr(zreg[(2 * ks + jj) % 6], 4), ks == 0))
        H = Gaps(mf, o["budG"])
        LZ = 10
        gP = 8 * (14 + xs)
        gbp, gbo = gU[0] + 13, max(gU[1] + 13, NH - LZ - 1)
        zbar = {}
        acc_ = 0
        for n_ in [int(x) for x in o["zst"].split(",")]:
            zbar[NH + 4 * acc_ - LZ - 1] = acc_ + n_ - 1
            acc_ += n_
        assert acc_ == 14
        gb = NH - LZ - 1
        H.light = {gbp, gbo} | set(zbar)

        evs = {"E": [], "F": []}
        busy = {"G1": set(G.light), "G": set(H.light)}

        def at(spec, items, post=False):
            ph_, n = spec[0], int(spec[1:])
            if ph_ in "EF":
                evs[ph_].append((n, items, post))
                return
            S_, key = (H, "G") if ph_ == "G" else (G, "G1")
            g = n + (NA if ph_ == "B" else 0)
            while g in S_.light or S_.used(g) > 1:
                g += 1
            for x in items:
                if isinstance(x, I) and x.t and x.vm:
                    S_.s[g].append(W(vm=x.vm))
                    x.vm = None
                (S_.s if kind(txt(x)) == "S" else S_.m)[g].append(x)
            busy[key].add(g)

        def chk(spec, name, tag, load, reg, after=()):
            f_ = self.poll_check(name, tag, load, reg)
            ph_, n = spec[0], int(spec[1:])
            if ph_ in "EF":
                evs[ph_].append((n, [f_] + list(after), True))
                return
            S_, key = (H, "G") if ph_ == "G" else (G, "G1")
            g = n + (NA if ph_ == "B" else 0)
            assert g not in S_.light and g - 2 not in S_.light, spec
            S_.s[g - 2].append(W(vm=tag))
            S_.v[g - 2].append(f"v_cmp_ne_u32 vcc, 1, v{reg}")
            S_.s[g].append(Lab(f"s_cbranch_vccnz L_slow_{name}", f"L_back_{name}:"))
            S_.m[g] += list(after)
        for a_, b_ in (("go_ld", "go_chk"), ("go_chk", "x1flag"), ("pclr", "x1flag"), ("poll1", "chk1"), ("chk1", "pollA"), ("pollA", "chkA"),
                       ("chkA", "pollW"), ("pollW", "chkW"), ("hAflag", "hBflag"), ("chkA", "pollB"), ("pollB", "chkB"), ("chkB", "pollZ"),
                       ("pollZ", "chkZ")):
            assert T(o[a_]) < T(o[b_]), (a_, b_)
        stop1 = o["stop"] == "gemm1"
        gol = f"buffer_load_dword v{vP}, v{vPg}, {srd(sDBG)}, 0 offen sc1"
        at(o["go_ld"], [I(gol, tag="go")])
        chk(o["go_chk"], "go", "go", gol, vP)
        for hf in range(2):
            at(o["pclr"][0] + str(int(o["pclr"][1:]) + (64 if o["pclr"][0] == "E" else 4) * hf),
               [I(f"buffer_store_dwordx4 {vr(vT,4)}, v{vL16}, {srd(sWS)}, s{sPs} offen offset:{1024*hf} sc1", tag="pcl")])
        x1st = [I(f"buffer_store_dwordx4 {vr(vAX+8,4)}, v{vX1g}, {srd(sWS)}, 0 offen sc1", tag="x1s"),
                I(f"buffer_store_dwordx4 {vr(vAX+12,4)}, v{vX1g}, {srd(sWS)}, s{s8k} offen sc1", tag="x1s")]
        if o["x1st"]:
            assert o["x1st"][0] in "AE" and T(o["x1st"]) + 64 < T(o["x1flag"])
            for hf in range(2):
                at(o["x1st"][0] + str(int(o["x1st"][1:]) + (4 if o["x1st"][0] == "A" else 64) * hf), [x1st[hf]])
        at(o["x1flag"], [self.flag1(sFx, ["x1s", "pcl"])])
        pl = f"buffer_load_dword v{vPr}, v{vPa}, {srd(sWS)}, 0 offen sc1"
        pw = f"buffer_load_dword v{vPr}, v{vPw}, {srd(sWS)}, 0 offen sc1"
        pollH = f"buffer_load_dword v{vPr}, v{vPh}, {srd(sWS)}, s{sFp} offen sc1"
        pollZ = f"buffer_load_dword v{vPr}, v{vPz}, {srd(sWS)}, 0 offen sc1"
        at(o["poll1"], [I(pl, tag="p1")])
        at(o["pollW"], [I(pw, tag="pW")])
        at(o["pollA"], [I(pollH, tag="pA")])
        at(o["hAflag"], [self.flag1(sFh, "hA")])
        if not stop1:
            chk(o["chk1"], "p1", "p1", pl, vPr)
            chk(o["chkW"], "pW", "pW", pw, vPr)
            chk(o["chkA"], "pA", "pA", pollH, vPr)
        at(o["hBflag"], [f"s_add_u32 s{sFh}, s{sFh}, {128*128}", self.flag1(sFh, "hB")])
        at(o["pollB"], [f"s_add_u32 s{sFp}, s{sFp}, {128*128}"] + self.spoll_load(sFp))
        if o["chkB"][0] == "G":
            self.poll_check("pB", None, pollH, vPr)
            g = int(o["chkB"][1:])
            red = [f"s_and_b64 s[4:5], s[4:5], s[{k}:{k+1}]" for k in (6, 8, 12, 14, 16)] + [f"s_and_b32 s4, s4, s{k}" for k in (10, 18)]
            H.s[g - 3] += [Lgkm0()] + red[:2]
            H.s[g - 2] += red[2:5]
            H.post[g - 1] += red[5:7]
            H.s[g] += ["s_and_b32 s4, s4, s5", Lab("s_cbranch_scc0 L_slow_pB", "L_back_pB:")]
            busy["G"] |= {g - 3, g - 2, g - 1}
        else:
            at(o["chkB"], [self.spoll_check("pB", pollH, vPr)], True)
        sFz, sZo, sZm, sZp, sU_, sI_, sGo = sXo + 3, sXo + 4, sXo + 5, sXo + 6, sRot2, s8k, 78
        at(o["zflag"], [self.flag1(sFz, ["zre", "zim"])])
        at(o["pollZ"], [I(pollZ, tag="pZ")])
        chk(o["chkZ"], "pZ", "pZ", pollZ, vPr)
        for jj in range(2):
            at(f"G{gb+2+4*jj}", [I(f"buffer_load_dword v{vG+jj}, v{vGa}, {srd(sWS)}, s{sGo} offen offset:{64*jj} sc1", tag="g")])
        pld = [f"buffer_load_dwordx4 {vr(accp+4*hf,4)}, v{vL16}, {srd(sWS)}, s{sPl} offen offset:{1024*hf} sc1" for hf in range(2)]
        for hf in range(2):
            at("G" + str(int(o["pld"][1:]) + 2 * hf), [I(pld[hf], tag="pl")])

        busy["G"] |= {gU[k] + 2 + 2 * j for k in range(2) for j in range(4)}
        class BG:
            pass
        bg = BG()
        bg.q2 = [d for sg in range(7) for d in ddma(sg)]
        bg.nd = bg.ntr = bg.nz = 0
        bg.t_issue, bg.t_read = {}, {}
        bg.vis, bg.free = set(), set()
        bg.nxt = 0
        bg.lds_ok = False
        bg.hp = list(range(56))
        bg.log = []
        self.hc = None
        wd_at = [T(x) for x in o["wd_at"].split(",")]
        fl = self.fft_loads()
        q3 = [dict(t=fl[1].t, tag="x1", m0=(sT0, IMG), ds=None), dict(t=fl[2].t, tag="x1", m0=(sT0, IMG), ds=None),
              dict(t=fl[3].t, tag="wtre", m0=None, ds=None), dict(t=fl[5].t, tag="wtim", m0=None, ds=None, pre=[fl[4]])]
        for d in q3:
            d["ear"] = T(o["chk1"] if d["tag"] == "x1" else o["chkW"]) + 1
        for d in q3:
            d["dl"] = tg(bar_gap[13]) + 1
        q1 += q3
        q1.sort(key=lambda d: d["dl"])

        def dtr(n):
            step, k, t_ = n // 8, (n // 2) % 4, n % 2
            off = 16384 * (step & 1) + 4096 * ((step // 2 + 3) % 4) + 2048 * t_
            return I(f"ds_read_b64_tr_b16 {vr(16*step+4*k+2*t_,2,'a')}, v{vDr+k} offset:{off}", tag=f"dr{step//2}")

        def bg_barrier(j):
            t = tg(bar_gap[j])
            for sg, ti in bg.t_issue.items():
                if sg not in bg.vis and (t >= ti + o["wd_delay"] or j == 13):
                    bg.vis.add(sg)
                    barW[j].vm.append(f"d{sg}")
            for sg, tr in bg.t_read.items():
                if sg not in bg.free and t >= tr + 48:
                    bg.free.add(sg)
                    barW[j].ds.append(f"dr{sg}")

        def bg_tr(t):
            n = bg.ntr
            if n >= 112 or n // 16 not in bg.vis or t < TB + 256 * (n // 8 + 1) - 16:
                return []
            bg.ntr += 1
            if n % 16 == 15:
                bg.t_read[n // 16] = t
            return [dtr(n)]

        def hload(n):
            ph_, step, jj = seq[n]
            c = (step // 7) * 114688 + (2 * (step % 7) + jj) * 1024
            pre = []
            if self.hc is None or not 0 <= c - self.hc <= 3072 or (n in lset and 1024 * lset.index(n) < c - self.hc):
                self.hc = c
                pre.append(f"s_mov_b32 s{sHc}, {c}")
            imm = c - self.hc
            if n in lset:
                return dict(t=f"buffer_load_dwordx4 v{vH+ph_}, {srd(sWS)}, s{sHc} offen offset:{imm} sc1 lds", tag=f"h{n}",
                            m0=(sZm, 1024 * lset.index(n) - imm), ds=None, pre=pre)
            return dict(t=f"buffer_load_dwordx4 {vr(hr[n],4)}, v{vH+ph_}, {srd(sWS)}, s{sHc} offen offset:{imm} sc1", tag=f"h{n}",
                        m0=None, ds=None, pre=pre)

        def bg_dma(t, per, g2=None):
            if t < bg.nxt:
                return [], []
            d = None
            sg = bg.nd // 4
            wd_ok = bg.q2 and t >= wd_at[sg] and (t > tg(bar_gap[sg + 4]) if sg < 4 else sg - 4 in bg.free)
            if wd_ok and sg >= 4:
                pass
            elif any(t >= x["ear"] for x in q1):
                d = [x for x in q1 if t >= x["ear"]][0]
                q1.remove(d)
                wd_ok = False
            if wd_ok:
                d = bg.q2.pop(0)
                bg.nd += 1
                if bg.nd % 4 == 0:
                    bg.t_issue[sg] = t
            if d is None:
                for n in bg.hp:
                    if t > T(o["chkA"] if seq[n][1] < 7 else o["chkB"]) and \
                            (bg.lds_ok and t >= T(o["lds_at"]) if n in lset else (hfree[n] < 0 or (g2 is not None and g2 >= hfree[n]))):
                        assert g2 is None or g2 < hu[n] - (16 if n in lset else 2), ("h late", n, g2)
                        d = hload(n)
                        bg.hp.remove(n)
                        break
            if d is None and bg.nz < 14 and t > T(o["chkZ"]):
                i = bg.nz
                if i >= len(lset) or g2 >= hu[lset[i]]:
                    d = dict(t=f"buffer_load_dwordx4 v{vZd}, {srd(sWS)}, s{sZo} offen sc1 lds", tag=f"z{i}",
                             m0=(sZm, 1024 * i), ds=None, pre=[f"s_mov_b32 s{sZo}, {131072*i}"])
                    assert all(g2 < zb for zb, last in zbar.items() if last >= i), (i, g2)
                    bg.nz += 1
            if d is None:
                return [], []
            bg.log.append((d["tag"], t))
            bg.nxt = max(bg.nxt + per, t + per // 2)
            return dma_items(d)

        def run_gaps(S_, key, g0, g1, tf, per):
            lastd = g0 - 1
            for g in range(g0, g1):
                if S_ is G and g in G.light:
                    bg_barrier([k for k, v in bar_gap.items() if v == g][0])
                if g in busy[key]:
                    continue
                if S_.used(g) < 2:
                    s_, m_ = bg_dma(tf(g), per, g if S_ is H else None)
                    if m_:
                        for x in s_:
                            cand = [k for k in range(g - (1 if "m0" in x else 0), lastd, -1) if not S_.s[k]]
                            S_.s[cand[0] if cand else (g - 1 if g - 1 > lastd and g - 1 not in S_.light and S_.used(g - 1) < 2 else g)].append(x)
                        lastd = g
                    S_.m[g] += m_
                while S_ is G and S_.used(g) < 2 and (S_.m[g] or g % 4 == 2):
                    m_ = bg_tr(tf(g))
                    if not m_:
                        break
                    S_.m[g] += m_

        def merge(items, ph_, T0, per):
            out, t, prevk = [], 0, "M"
            ev = sorted(evs[ph_], key=lambda x: x[0])
            for x in items:
                if isinstance(x, Mark):
                    self.log(f"  est {ph_}{t} {x.name}")
                    if x.name in o["only"].split(",") or x.name in ("epiA", "epi"):
                        out += self.stamp(x.name)
                    if x.name == "bE":
                        bg.lds_ok = True
                    if x.name == "epi" and stop1:
                        out.append("s_branch L_fin")
                    continue
                out.append(x)
                tx = txt(x)
                k = kind(tx)
                if k == "M":
                    t += 16
                elif not tx:
                    t += 4 if x.ds == "all" or x.vm else 50
                elif tx == "s_barrier":
                    t += 30
                else:
                    t += 4 * cost(tx) + (28 if prevk == "M" and tx.startswith("v_pk") else 0)
                if k == "G":
                    bg.nxt = max(bg.nxt, T0 + t) + o["perS"]
                prevk = k
                if tx.startswith("s_cmp") or k == "D" or (not tx) or tx == "s_barrier":
                    continue
                while ev and ev[0][0] <= t:
                    its = ev.pop(0)[1]
                    out += its
                    t += 16
                    if isinstance(its[0], I) and "x4" in its[0].t:
                        bg.nxt = max(bg.nxt, T0 + t) + o["perS"]
                s_, m_ = bg_dma(T0 + t + (24 if k == "M" else 0), per) if k == "M" or not (ph_ == "F" and o["fonm"]) else ([], [])
                out += s_ + m_
                t += 0 if k == "M" or not m_ else 4 * (len(s_) + len(m_)) + 8
            for x in ev:
                out += x[1]
            self.log(f"  est {ph_}{t} end")
            return out
        run_gaps(G, "G1", 0, NA, tg, o["perA"])
        rec = Rec()
        for n in range(4):
            rec.e(self.epi_pk(vAA + 16 * n, vE))
            rec.e(self.hstore(vAA, n, "hA"))
        rec.mark("epiA")
        codeE = merge(rec.items, "E", TE, o["perE"])
        bg.nxt = min(bg.nxt, TB + 64)
        run_gaps(G, "G1", NA, NA + NBg, tg, o["perB"])
        assert not q1 and len(bg.vis) == 7, (bg.vis, bg.nd, bg.ntr)
        barW[13].vm.append("x1")
        assert T(o["chk1"]) + 400 < tg(bar_gap[13])
        rec = Rec()
        while bg.ntr < 112:
            rec.e(bg_tr(TF))
        for n in range(4):
            rec.e(self.epi_pk(vAA + 16 * n, vE))
            if n == 0:
                rec.e([W(ds="all"), "s_barrier"])
                rec.mark("bE")
            rec.e(self.hstore(vAA, n, "hB"))
            rec.mark(f"e{n}")
        rec.mark("epi")
        self.p = rec
        self.fft_body(lambda name, dt: rec.mark(name))
        self.p = p
        names = [x.name if isinstance(x, Mark) else None for x in rec.items]
        i0, i1, i2 = names.index("h0"), names.index("s1"), names.index(o["fft_head"])
        rds = [x for x in rec.items[i0:i1] if isinstance(x, I) and x.t.startswith("ds_read")]
        rec.items = rec.items[:i2 + 1] + rds + rec.items[i2 + 1:i0] + rec.items[i1:]
        codeF = merge(rec.items, "F", TF, o["perF"])
        bg.nxt = min(bg.nxt, TG + 64)
        run_gaps(H, "G", 0, H.n, lambda g: TG + 16 * g, o["perG"])
        assert not bg.hp and bg.nz == 14

        def nm(t):
            return f"A{t//16}" if t < TE else f"E{t-TE}" if t < TB else f"B{(t-TB)//16}" if t < TF else f"F{t-TF}" if t < TG else f"G{(t-TG)//16}"
        self.log("dma: " + " ".join(f"{a_}@{nm(t)}" for a_, t in bg.log))
        self.log(f"wd read done {[nm(v) for v in bg.t_read.values()]}")

        G.s[NA - 1] += self.stamp("A")
        n_set = n_mid + min(15, max(0, n_all_mid + 15 - o["cpro"]))
        ge, left = G.pour(lq[:n_set], 0, min(T(o["go_ld"]), T(o["pclr"]), wd_at[0]) // 16 - 1, budget=o["budE"])
        assert not left
        ge, cleft = G.pour(lq[n_set:], ge, max(ge, o["gapE"]), budget=o["budE"], window=40)
        dpp = "quad_perm:[2,3,0,1] row_mask:0xf bank_mask:0xf"
        xq = ["s_mov_b32 vcc_lo, 0x33333333", "s_mov_b32 vcc_hi, 0x33333333"]
        xq += [f"v_fmac_f32 v{vA2+j}, v{vSg}, v{vAX+j}" for j in range(16)]
        xq += [f"v_cvt_pk_bf16_f32 v{vAX+j}, v{vA2+2*j}, v{vA2+2*j+1}" for j in range(8)]
        xq += [f"v_permlane16_swap_b32 v{vAX+j}, v{vAX+4+j}" for j in range(4)]
        xq += [f"v_cndmask_b32_dpp v{vAX+8+j}, v{vAX+4+j}, v{vAX+j}, vcc {dpp}" for j in range(4)]
        xq += [] if o["x1st"] else [x1st[0]]
        xq += ["s_not_b64 vcc, vcc"]
        xq += [f"v_cndmask_b32_dpp v{vAX+12+j}, v{vAX+j}, v{vAX+4+j}, vcc {dpp}" for j in range(4)]
        xq += [] if o["x1st"] else [x1st[1]]
        g, left = G.pour(xq, Dg[13] + 6, NA - 1, window=2)
        self.log(f"dft ends at gap {Dg[13]+3}, x1 stored at gap {g}, mid setup done at {ge}")
        g_, left2 = G.pour([f"v_min_u32 v{vFm}, 1, v0", f"v_lshlrev_b32 v{vFm}, 30, v{vFm}"], T(o["go_chk"]) // 16 + 1, min(NA, T(o["x1flag"]) // 16))
        assert not left2
        assert not left and not (Dg[13] + 6 <= T(o["go_chk"]) / 16 <= g + 2) and 16 * g < T(o["x1st"] or o["x1flag"])
        lim = NA + (min(T(o["chk1"]), T(o["pollA"])) - TB) // 16 - 1
        g2_, left = G.pour(lq2, max(ge, o["gapL"]), lim)
        assert not left
        th8 = min(dict(bg.log)[f"h{dset[8]}"], TF)
        g, left = G.pour(cleft, max(ge, o["gapC"]), NA + (th8 - TB) // 16 - 1, window=40)
        self.log(f"{len(cleft)} constant ops left after the early gaps")
        self.log(f"fft constants end at gap {g}, left {len(left)}")
        assert not left
        x0, x1 = vT + 14, vT + 15
        bq = [f"s_add_u32 s{sHst}, s{sHst}, 114688", f"s_add_u32 s{sHst1}, s{sHst1}, 114688",
              f"s_and_b32 s{sI_}, s{sWv}, 1", f"s_lshr_b32 s{sU_}, s{sWv}, 1",
              f"s_mul_i32 s{sZm}, s{sWv}, 14336", f"s_add_u32 s{sZm}, s{sZm}, {ZS}",
              f"v_add_u32 v{vRw}, s{sXm}, v{vL16}",
              f"s_xor_b32 s{sFs}, s{sWv}, 2", f"s_lshl_b32 s{sFs}, s{sFs}, 14", f"s_add_u32 s{sFs}, s{sFs}, {XS}", f"v_add_u32 v{vRr}, s{sFs}, v{vL16}",
              f"s_xor_b32 s{sFs}, s{sWv}, 1", f"s_lshl_b32 s{sFs}, s{sFs}, 14", f"s_add_u32 s{sFs}, s{sFs}, {XS}", f"v_add_u32 v{vR3}, s{sFs}, v{vL16}",
              f"s_lshl_b32 s{sFz}, s{sWv}, 8", f"s_add_u32 s{sFs}, s{sFz}, s{sRt}", f"s_add_u32 s{sFz}, s{sFz}, s{sKd}",
              f"s_lshl_b32 s{sFz}, s{sFz}, 5", f"s_add_u32 s{sFz}, s{sFz}, {FZ}",
              f"s_lshl_b32 s{sFs}, s{sFs}, 7", f"s_add_u32 s{sFs}, s{sFs}, {ZT}", f"v_add_u32 v{vZd}, s{sFs}, v{vZd}",
              f"s_lshl_b32 s{sFs}, s{sI_}, 9", f"s_add_u32 s{sFs}, s{sFs}, {ZS}", f"v_lshrrev_b32 v{x0}, 5, v0",
              f"v_mul_u32_u24 v{x1}, 14336, v{x0}", f"v_add3_u32 v{vZr}, v{vZr}, v{x1}, s{sFs}", f"v_xor_b32 v{vZr1}, 32, v{vZr}",
              f"s_lshr_b32 s{sFs}, s{sRt}, 3", f"s_and_b32 s{sCnt}, s{sRt}, 1",
              f"s_lshl1_add_u32 s{sFs}, s{sFs}, s{sCnt}", f"s_lshl1_add_u32 s{sFs}, s{sFs}, s{sI_}",
              f"s_bfe_u32 s{sCnt}, s{sRt}, 0x20001", f"s_lshl4_add_u32 s{sFs}, s{sFs}, s{sCnt}", f"s_mul_i32 s{sFs}, s{sFs}, {8*896}",
              f"s_lshl1_add_u32 s{sU_}, s{sCt}, s{sU_}", f"s_lshl_b32 s{sCnt}, s{sU_}, 6", f"s_add_u32 s{sFs}, s{sFs}, s{sCnt}",
              f"v_bfe_u32 v{x1}, v0, 2, 3", f"v_lshl_add_u32 v{x1}, v{x0}, 5, v{x1}", f"v_mul_u32_u24 v{x1}, 896, v{x1}",
              f"v_and_b32 v{x0}, 48, v{vL16}", f"v_add3_u32 v{vOo}, v{x0}, v{x1}, s{sFs}",
              f"s_lshl1_add_u32 s{sGo}, s{sRt}, s{sI_}", f"s_lshl_b32 s{sGo}, s{sGo}, 7", f"s_add_u32 s{sGo}, s{sGo}, {GOFF}",
              f"v_and_b32 v{vGa}, 15, v0", f"v_lshlrev_b32 v{vGa}, 2, v{vGa}"]
        assert ZS % 64 == 0
        g, left = G.pour(bq, max(NA, g2_ + 1), NA + NBg)
        assert not left
        bq = [f"s_lshr_b32 s{sZp}, s{sRt}, 3", f"s_lshl_b32 s{sZp}, s{sZp}, 8", f"s_add_u32 s{sZp}, s{sZp}, {FZ//32}",
              f"s_lshl2_add_u32 s{sCnt}, s{sWv}, s{sZp}", f"s_addk_i32 s{sZp}, 224", f"s_lshl2_add_u32 s{sFs}, s{sRt}, {FG//32}",
              f"v_and_b32 v{x0}, 60, v0", f"v_mul_u32_u24 v{x0}, 3, v{x0}", f"v_add3_u32 v{vPz}, v{x0}, v0, s{sCnt}",
              f"v_subrev_u32 v{x0}, 56, v0", f"v_ashrrev_i32 v{x0}, 31, v{x0}",
              f"v_bfi_b32 v{vPz}, v{x0}, v{vPz}, s{sZp}", f"v_subrev_u32 v{x0}, 60, v0", f"v_ashrrev_i32 v{x0}, 31, v{x0}",
              f"v_bfi_b32 v{vPz}, v{x0}, v{vPz}, s{sFs}", f"v_lshlrev_b32 v{vPz}, 5, v{vPz}"]
        g, left = G.pour(bq, max(g + 1, NA + (T(o["chk1"]) - TB) // 16 + 1), NA + NBg)
        self.log(f"g2 address setup ends at gap B{g-NA}")
        assert not left

        for n in range(1, 56):
            if n in lset:
                g = hu[n] - 11
                H.m[g - (g in H.light)].append(I(f"ds_read_b128 {vr(hr[n],4)}, v{vHl} offset:{1024*lset.index(n)}", tag=f"hr{n}", vm=f"h{n}"))
                H.s[hu[n] - 1].insert(0, W(ds=f"hr{n}"))
            else:
                H.s[hu[n] - 1].insert(0, W(vm=f"h{n}"))

        def fi_loc(a, rd):
            if a < 12:
                return (vR3 if rd else vRw), 1024 * a
            return (vR1 if rd else vW1), 4096 * (a - 12)
        for zb, last in zbar.items():
            H.s[zb] += [W(vm=f"z{last}", ds="fw13" if zb == gb else None)] + ([] if zb == gbo else ["s_barrier"])
        for ks in range(14):
            r_, off = fi_loc(ks, True)
            H.m[NH + 4 * ks - LZ].append(I(f"ds_read_b128 {vr(224+4*(ks%8),4,'a')}, v{r_} offset:{off}"))
            for jj in range(2):
                for t_ in range(2):
                    g = NH + 4 * ks + 2 * jj + t_ - LZ
                    H.m[g - (g in H.light)].append(I(f"ds_read_b64_tr_b16 {vr(zreg[(2*ks+jj)%6]+2*t_,2)}, v{vZr1 if jj else vZr} "
                                                     f"offset:{t_*28672+ks*1024}", tag=f"zf{ks}"))
            H.s[NH + 4 * ks - 1].insert(0, W(ds=f"zf{ks}"))
        for j in range(4):
            H.m[gU[0] + 2 + 2 * j].append(I(f"ds_write_b128 v{vRw}, {vr(accp+16+4*j,4)} offset:{12288+1024*j}", tag="rwp"))
            H.m[gbp + 1 + j].append(I(f"ds_read_b128 {vr(accp+16+4*j,4)}, v{vRr} offset:{12288+1024*j}", tag=f"rrp{j//2}"))
        H.s[gbp] += [W(ds="rwp"), "s_barrier"]
        assert gbp + 12 < gb
        g = max(gbp + 8, gP + 3)
        for hf in range(2):
            H.s[g].append(W(ds=f"rrp{hf}"))
            pq = [f"v_add_f32 v{accp+8*hf+j}, v{accp+8*hf+j}, v{accp+16+8*hf+j}" for j in range(8)]
            pq += [f"v_cvt_pk_bf16_f32 v{accp+8*hf+j}, v{accp+8*hf+2*j}, v{accp+8*hf+2*j+1}" for j in range(4)]
            pq += [f"v_min_u32 v{accp+8*hf}, -2, v{accp+8*hf}"]
            pq += [I(f"buffer_store_dwordx4 {vr(accp+8*hf,4)}, v{vL16}, {srd(sWS)}, s{sPs} offen offset:{1024*hf} sc1", tag="ps")]
            g, left = H.pour(pq, g)
        self.log(f"partial stored at gap G{g}")
        assert int(o["pld"][1:]) > g + 2
        pchk = [f"v_max_u32 v{vPr}, v{accp}, v{accp+4}", f"v_cmp_eq_u32 vcc, -1, v{vPr}"]
        self.slow += ["L_slow_pP:", f"s_mov_b32 s{sSp}, 0", "L_spin_pP:"] + pld + ["s_waitcnt vmcnt(0)"] + pchk + \
            ["s_cbranch_vccz L_back_pP", f"s_sleep {o['sleep']}", f"s_add_u32 s{sSp}, s{sSp}, 1", f"s_cmp_lt_u32 s{sSp}, {o['spin']}",
             "s_cbranch_scc1 L_spin_pP", "s_endpgm"]
        rdo, vRo = acco + 16, vDr + 3
        for j in range(4):
            H.m[gU[1] + 2 + 2 * j].append(I(f"ds_write_b128 v{vW1}, {vr(acco+16+4*j,4)} offset:{8192+4096*j}", tag="rwo"))
            H.m[gbo + 2 + 2 * j].append(I(f"ds_read_b128 {vr(rdo+4*j,4)}, v{vRo} offset:{8192+4096*j}", tag="rro"))
        H.s[gbo] += [W(ds="rwo"), "s_barrier"]
        st = vS32
        x0, x1, x2, x3, ph, stp = range(vS32 + 18, vS32 + 24)
        vq = [f"v_add_u32 v{vHl}, s{sZm}, v{vL16}", f"s_lshl1_add_u32 s{sT0}, s{sU_}, s{sI_}", f"s_mov_b32 s{sT2}, {STEP448}",
              f"v_and_b32 v{x0}, 15, v0", f"v_mul_u32_u24 v{vOw}, 80, v{x0}",
              f"v_lshl_add_u32 v{x0}, s{sT0}, 4, v{x0}", f"v_mul_lo_u32 v{stp}, v{x0}, s{sT2}",
              f"v_lshrrev_b32 v{x1}, 4, v0", f"v_lshlrev_b32 v{x2}, 1, v{x1}",
              f"v_mul_lo_u32 v{ph}, v{x2}, v{stp}", f"v_lshlrev_b32 v{x2}, 4, v{stp}"]
        vq += self.trig(st + 16, x2, x3)
        vq += [f"v_mul_lo_u32 v{x2}, v{stp}, 7"]
        for ks in range(2):
            for jj in range(4):
                vq += [f"v_alignbit_b32 v{x3}, s{s7f}, v{ph}, 9", f"v_cos_f32 v{st+8*ks+2*jj}, v{x3}",
                       f"v_sin_f32 v{st+8*ks+2*jj+1}, -v{x3}"]
                if not (jj == 3 and ks == 1):
                    vq += [f"v_add_u32 v{ph}, v{ph}, v{x2 if jj & 1 else stp}"]
        vq += [f"v_mul_f32 v{st+17}, -2.0, v{st+16}", f"v_add_f32 v{st+16}, v{st+16}, v{st+16}"]
        vq += self.rec_pack(st, 0, own_fi[0]) + self.rec_pack(st, 1, own_fi[1])
        vq += [f"v_lshlrev_b32 v{x2}, 31, v{x0}", f"v_or_b32 v{x2}, 0x3f803f80, v{x2}", f"v_add_u32 v{x3}, -1, v{x1}",
               f"v_ashrrev_i32 v{x3}, 31, v{x3}", f"v_bfi_b32 v{own_fi[0]}, v{x3}, v{x2}, v{own_fi[0]}",
               f"v_lshl_add_u32 v{vW1}, s{sWv}, 10, v{vL16}", f"v_xor_b32 v{vR1}, 0x400, v{vW1}", f"v_xor_b32 v{vRo}, 0x800, v{vW1}",
               f"s_mul_i32 s{sT2}, s{sWv}, 2560", f"s_add_u32 s{sT2}, s{sT2}, {FS}", f"s_lshl_b32 s{sT0}, s{sI_}, 5",
               f"v_lshl_add_u32 v{vOw}, v{x1}, 3, v{vOw}", f"v_add_u32 v{vOw}, s{sT2}, v{vOw}",
               f"v_subrev_u32 v{vOr+1}, s{sT0}, v{vOw}", f"v_add_u32 v{vOw}, s{sT0}, v{vOw}",
               f"v_lshrrev_b32 v{x2}, 2, v0", f"v_mul_u32_u24 v{x2}, 80, v{x2}", f"v_and_b32 v{x3}, 48, v{vL16}",
               f"v_add3_u32 v{vOr}, v{x2}, v{x3}, s{sT2}", f"s_mov_b32 s{sT3}, {64*896}"]

        def fwr(a):
            r_, off = fi_loc(a, False)
            return I(f"ds_write_b128 v{r_}, {vr(own_fi[a],4)} offset:{off}", tag=f"fw{a}")
        g, left = H.pour(vq, 0)
        qq = [fwr(0), fwr(1)]
        for a in range(2, 14):
            qq += self.rec_step(st, a, own_fi[a]) + [fwr(a)]
        g, left = H.pour(qq, g + 1, gb - 6)
        self.log(f"finv done at gap G{g}")
        assert not left
        g = max(gbo + 15, NH + 4)
        H.s[g].append(W(ds="rro"))
        g, oleft = H.pour([f"v_add_f32 v{acco+j}, v{acco+j}, v{rdo+j}" for j in range(16)], g)
        oleft += [W(vm="g")] + [f"v_sub_f32 v{vOG+jj}, 1.0, v{vG+jj}" for jj in range(2)]

        for key, S_, off in (("st1", G, 0), ("st2", G, NA), ("st3", H, 0)):
            for x in filter(None, o[key].split(",")):
                S_.s[int(x) + off] += self.stamp("@" + x)
        if o["align"]:
            p.raw("s_branch L_body")
            if not o["slowend"]:
                p.raw("@SLOW@")
            p.raw(".p2align 12")
            p.raw("L_body:")
        e(W(vm="w0", ds="fw"))
        e("s_barrier")
        e([xread(0, 0)] + wread(0) + [xread(0, 1), xread(0, 2), xread(0, 3)] + wread(1) + wread(2) + [fread(0, 0), fread(0, 1)])
        e(self.stamp("data0"))
        e(W(ds=["wf0", "xr0_1"]))
        G.emit(p, 0, NA)
        e(codeE)
        G.emit(p, NA)
        e(self.stamp("B"))
        e(codeF)
        e(self.stamp("fft"))
        if o["stop"] == "fft":
            e("s_branch L_fin")
        H.s[NH - 1] += self.stamp("g2h")
        e(W(vm="h0"))
        H.emit(p)
        e(self.stamp("g2"))
        pu = accp + 16
        e(oleft)
        e([W(vm="pl")] + pchk + ["s_cbranch_vccnz L_slow_pP"])
        p.raw("L_back_pP:")
        for jj in range(2):
            ks_ = range(4 * jj, 4 * jj + 4)
            sel = "op_sel:[0,1] op_sel_hi:[1,1]" if jj else "op_sel_hi:[1,0]"
            sel3 = "op_sel:[0,1,0] op_sel_hi:[1,1,1]" if jj else "op_sel_hi:[1,0,1]"
            for k in ks_:
                e([f"v_lshlrev_b32 v{pu+2*k}, 16, v{accp+k}", f"v_and_b32 v{pu+2*k+1}, 0xffff0000, v{accp+k}"])
            for k in ks_:
                e(f"v_pk_add_f32 {vr(acco+2*k,2)}, {vr(acco+2*k,2)}, {vr(pu+2*k,2)}")
            for k in ks_:
                e(f"v_pk_mul_f32 {vr(acco+2*k,2)}, {vr(acco+2*k,2)}, {vr(vOG,2)} {sel}")
            for k in ks_:
                e(f"v_pk_fma_f32 {vr(acca+2*k,2)}, {vr(acca+2*k,2)}, {vr(vG,2)}, {vr(acco+2*k,2)} {sel3}")
            for k in ks_:
                e(f"v_cvt_pk_bf16_f32 v{accp+8+k}, v{acca+2*k}, v{acca+2*k+1}")
            e([f"ds_write_b64 v{vOw}, {vr(accp+8+4*jj,2)} offset:{1280*jj}",
               f"ds_write_b64 v{vOr+1}, {vr(accp+10+4*jj,2)} offset:{1280*jj+32}",
               I(f"ds_read_b128 {vr(rdo+4*jj,4)}, v{vOr} offset:{1280*jj}", tag=f"or{jj}")])
        for jj in range(2):
            e(I(f"buffer_store_dwordx4 {vr(rdo+4*jj,4)}, v{vOo}, {srd(sO)}, {'s%d' % sT3 if jj else 0} offen {o['outfl'].replace('+',' ')}".strip(),
                ds=f"or{jj}"))
        p.raw("L_fin:")
        self.dump_stamps()
        p.raw("L_end:")
        p.raw("s_endpgm")

        p.restore(snap_aux)
        self.aux(sj, sidx)
        if o["align"] and not o["slowend"]:
            i = p.out.index("@SLOW@")
            p.out[i:i + 1] = self.slow
        else:
            for l in self.slow:
                p.raw(l)
        p.raw("L_codeend:")
        return self.finish()

    def dump_stamps(self):
        if not self.o["stamps"]:
            return
        p = self.p
        p.raw("s_waitcnt vmcnt(0)")
        p.e(self.stamp("end"))
        p.raw("s_waitcnt lgkmcnt(0)")
        p.e([f"s_lshl_b32 s{sT0}, s2, 2", f"s_add_u32 s{sT0}, s{sT0}, s{sWv}", f"s_lshl_b32 s{sT0}, s{sT0}, 6",
             f"s_add_u32 s{sT0}, s{sT0}, {STAMP}", "s_mov_b64 exec, 1"])
        p.e([f"s_memrealtime s[{sT2}:{sT3}]"])
        for k in range(self.nst):
            p.e([f"v_mov_b32 v2, s{sX if k == self.nst-1 else sST+2*k}", f"buffer_store_dword v2, off, {srd(sWS)}, s{sT0} offset:{4*k}"])
        p.raw("s_waitcnt lgkmcnt(0)")
        p.e([f"v_mov_b32 v2, s{sT2}", f"buffer_store_dword v2, off, {srd(sWS)}, s{sT0} offset:60"])

    def aux_tok(self, tok):
        p = self.p
        e = p.e
        sA, vt16 = sRt, 2
        vx, vw, vd = 12, 13, 14

        def masked(lo, hi, ops):
            m = ((1 << hi) - 1) ^ ((1 << lo) - 1)
            e([f"s_mov_b32 exec_lo, {m & 0xffffffff:#x}", f"s_mov_b32 exec_hi, {m >> 32:#x}"] + ops + ["s_mov_b64 exec, -1"])
        if tok[0] == "x":
            a, b = int(tok[1]), int(tok[2])
            masked(0, 16 * (b - a + 1), [f"buffer_load_dword v15, v{vx}, {srd(sX)}, 0 offen offset:{128*a}"])
        elif tok[0] in "wv":
            a, b = int(tok[1]), int(tok[2])
            off = 128 if tok[0] == "v" else 0
            masked(8 * a, 8 * (b + 1), [f"buffer_load_dword v15, v{vw}, {srd(q)}, 0 offen offset:{off}" for q in (sG, sU)])
        elif tok[0] == "d":
            e(f"s_mov_b32 s{sT1}, {57344*int(tok[1])}")
            masked(0, 49, [f"buffer_load_dword v15, v{vd}, {srd(sD)}, s{sT1} offen"])
        elif tok == "clr":
            e([f"v_mov_b32 v{4+k}, 0" for k in range(4)] + [f"s_mul_i32 s{sT1}, s{sA}, {FEND//32}"])
            for k in range(2):
                e([I(f"buffer_store_dwordx4 v[4:7], v{vt16}, {srd(sWS)}, s{sT1} offen sc1", tag="clr"), f"s_addk_i32 s{sT1}, 4096"])
        elif tok == "go":
            e([f"s_lshl_b32 s{sT1}, s{sA}, 3", f"v_mov_b32 v8, 1", f"v_mov_b32 v9, s{sT0}", W(vm="clr"), "s_barrier",
               "s_mov_b64 exec, 1", f"buffer_store_dword v8, v9, {srd(sDBG)}, s{sT1} offen sc1", "s_mov_b64 exec, -1"])
        elif tok == "WT":
            sq, skg = sRg, sC
            e([f"s_lshr_b32 s{sq}, s{sA}, 3", f"s_and_b32 s{skg}, s{sA}, 7",
               f"s_lshl_b32 s{sT1}, s{sq}, 6", f"s_add_u32 s{sT1}, s{sT1}, s{skg}", f"s_mul_i32 s{sT1}, s{sT1}, 3600"])
            e([f"v_lshrrev_b32 v16, 5, v0", f"v_lshl_add_u32 v17, s{sWv}, 1, v16", f"v_mul_u32_u24 v17, 28, v17",
               f"v_and_b32 v18, 31, v0", f"v_add3_u32 v17, v17, v18, v16", f"v_add_u32 v17, -1, v17", f"v_max_i32 v17, 0, v17",
               f"v_lshlrev_b32 v17, 4, v17", f"s_mul_i32 s{sT2}, s{sWv}, 1120"])
            for j in range(8):
                for part in range(2):
                    e([f"s_add_u32 m0, s{sT2}, {(8*part+j)*RS}", "s_nop 0",
                       I(f"buffer_load_dwordx4 v17, {srd(sWr if part == 0 else sWi)}, s{sT1} offen lds", tag="wl")])
                e(f"s_add_u32 s{sT1}, s{sT1}, {64*450}")
        else:
            raise SystemExit(tok)

    def aux_head(self, sj, sidx):
        p, o = self.p, self.o
        e = p.e
        sA, vt16 = sRt, 2
        vx, vw, vd = 12, 13, 14
        e(["s_cmp_ge_u32 s2, 256", "s_cbranch_scc1 L_end"])
        e([f"s_lshl2_add_u32 s{sA}, s{sj}, s{sidx}", f"s_sub_u32 s{sA}, s{sA}, 28",
           f"s_lshl2_add_u32 s{sCnt}, s{sA}, s{sWv}",
           f"v_and_b32 v4, 15, v0", f"v_lshl_add_u32 v4, s{sCnt}, 4, v4", f"v_mul_u32_u24 v4, 896, v4",
           f"v_lshrrev_b32 v5, 4, v0", f"v_lshl_add_u32 v{vx}, v5, 7, v4",
           f"s_lshr_b32 s{sT2}, s{sj}, 1", f"s_and_b32 s{sT3}, s{sCnt}, 15", f"s_lshl4_add_u32 s{sT2}, s{sT2}, s{sT3}",
           f"s_mul_i32 s{sT2}, s{sT2}, 3584", f"s_and_b32 s{sT3}, s{sj}, 1", f"s_mul_i32 s{sT3}, s{sT3}, {7*256}",
           f"s_add_u32 s{sT2}, s{sT2}, s{sT3}",
           f"v_lshrrev_b32 v4, 3, v0", f"v_mul_u32_u24 v4, {64*3584}, v4", f"v_and_b32 v5, 7, v0", f"v_min_u32 v5, 6, v5",
           f"v_lshl_add_u32 v4, v5, 8, v4", f"v_add_u32 v{vw}, s{sT2}, v4"])
        p.raw("s_waitcnt lgkmcnt(0)")
        for s, off in ((sWr, 8), (sWi, 16), (sGw, 56)):
            e(f"s_load_dwordx2 s[{s}:{s+1}], s[0:1], {off}")
        self.toks = o["apf"].split(",")
        while self.toks[0][0] in "xwv":
            self.aux_tok(self.toks.pop(0))

    def aux(self, sj, sidx):
        p, o = self.p, self.o
        e = p.e
        p.raw("L_aux:")
        sA, vt16 = sRt, 2
        sq, skg = sRg, sC
        e([f"v_lshlrev_b32 v{vL16}, 4, v0", f"s_lshl_b32 s{sT0}, s{sWv}, 10", f"v_add_u32 v{vt16}, s{sT0}, v{vL16}",
           f"s_bfe_u32 s{sT1}, s{sCnt}, 0x10004", f"s_bfe_u32 s{sT2}, s{sCnt}, 0x20005", f"s_lshl2_add_u32 s{sT1}, s{sT1}, s{sT2}",
           f"s_and_b32 s{sCnt}, s{sCnt}, 15", f"s_lshl4_add_u32 s{sCnt}, s{sT1}, s{sCnt}",
           f"s_mul_i32 s{sCnt}, s{sCnt}, 49", f"v_add_u32 v4, s{sCnt}, v0", f"v_mul_u32_u24 v5, 9363, v4", f"v_lshrrev_b32 v5, 22, v5",
           f"v_mul_u32_u24 v5, 57344, v5", f"v_lshl_add_u32 v14, v4, 7, v5"])
        for s, n in ((sWr, 2048 * 450), (sWi, 2048 * 450), (sD, 1792 * 896), (sGw, 896), (sDBG, 256), (sWS, WSEND)):
            e([f"s_mov_b32 s{s+2}, {n}", f"s_mov_b32 s{s+3}, 0x20000"])
        e([f"s_mov_b32 s{sK}, 0xbfb8aa3b", f"s_movk_i32 s{s7f}, 0x7f"])
        p.raw("s_waitcnt lgkmcnt(0)")
        e(self.astamp("head"))
        late = self.toks[self.toks.index("G") + 1:]
        for t in self.toks[:self.toks.index("G")]:
            self.aux_tok(t)
            if t in ("clr", "go", "WT"):
                e(self.astamp(t))
        vo, vg = 3, 8
        xb, gb = 32, 96
        e([f"s_lshr_b32 s{sT1}, s{sA}, 3", f"s_lshl_b32 s{sT1}, s{sT1}, 1", f"s_and_b32 s{sT2}, s{sA}, 1",
           f"s_add_u32 s{sT1}, s{sT1}, s{sT2}", f"s_lshl_b32 s{sT1}, s{sT1}, 2", f"s_add_u32 s{sT1}, s{sT1}, s{sWv}",
           f"s_lshl_b32 s{sT1}, s{sT1}, 3", f"s_bfe_u32 s{sT2}, s{sA}, 0x20001", f"s_add_u32 s{sT1}, s{sT1}, s{sT2}",
           f"s_lshl_b32 s{sT1}, s{sT1}, 3",
           f"v_lshrrev_b32 v4, 5, v0", f"v_bfe_u32 v5, v0, 2, 3", f"v_lshl_add_u32 v4, v4, 5, v5", f"v_add_u32 v4, s{sT1}, v4",
           f"v_and_b32 v{vg}, 48, v{vL16}", f"v_mul_u32_u24 v4, 896, v4", f"v_add_u32 v{vo}, v4, v{vg}"])
        e([f"v_and_b32 v{vPg}, 31, v0", f"v_lshlrev_b32 v{vPg}, 3, v{vPg}"])
        gol = f"buffer_load_dword v{vP}, v{vPg}, {srd(sDBG)}, 0 offen sc1"
        vra, vwa = 9, 10
        e([f"v_and_b32 v4, 7, v0", f"v_lshrrev_b32 v5, 7, v{vt16}", f"v_lshrrev_b32 v6, 1, v4", f"v_mul_u32_u24 v{vra}, 1120, v6",
           f"v_and_b32 v6, 1, v0", f"v_mul_u32_u24 v6, 496, v6", f"v_add3_u32 v{vra}, v{vra}, v6, 16",
           f"v_add_u32 v6, v4, v5", f"v_lshl_add_u32 v{vra}, v6, 1, v{vra}", f"v_add_u32 v17, {8*RS}, v{vra}",
           f"v_lshlrev_b32 v{vwa}, 13, v5", f"v_lshl_add_u32 v{vwa}, v4, 4, v{vwa}",
           f"s_lshr_b32 s{sT1}, s{skg}, 1", f"s_lshl_b32 s{sT1}, s{sT1}, 2", f"s_add_u32 s{sT1}, s{sT1}, s{sq}",
           f"s_lshl_b32 s{sT1}, s{sT1}, 1", f"s_and_b32 s{sT2}, s{skg}, 1", f"s_add_u32 s{sT1}, s{sT1}, s{sT2}",
           f"s_lshl_b32 s{sT1}, s{sT1}, 7", f"s_add_u32 s{sT1}, s{sT1}, {WT}", f"s_add_u32 s{sT2}, s{sT1}, 4096"])
        e(W(vm="wl"))
        e("s_barrier")
        e(self.astamp("wl"))
        def rd(n):
            return [I(f"ds_read_u16 v{160+8*(n&1)+j}, v{17 if n & 1 else vra} offset:{j*RS+64*(n>>1)}", tag=f"g{n}") for j in range(8)]
        e(rd(0))
        for n in range(16):
            part = n & 1
            nx = rd(n + 1) if n < 15 else []
            e(nx[:6])
            if n == 14:
                e([f"v_cmp_gt_u32 vcc, 8192, v{vwa}", "s_nop 1", f"v_cndmask_b32 v{vwa}, 2.0, v{vwa}, vcc"])
            e(W(ds=f"g{n}"))
            e(nx[6:])
            for j in range(4):
                e(f"v_lshl_or_b32 v{176+4*part+j}, v{160+8*part+2*j+1}, 16, v{160+8*part+2*j}")
            e([f"buffer_store_dwordx4 {vr(176+4*part,4)}, v{vwa}, {srd(sWS)}, s{sT1+part} offen sc1",
               f"s_add_u32 s{sT1+part}, s{sT1+part}, {32*8192}"])
        p.reset()
        e(self.astamp("gath"))
        e(I(gol, tag="go"))
        for t in late:
            self.aux_tok(t)
        for k in range(14):
            e(I(f"buffer_load_dwordx4 {vr(xb+4*k,4)}, v{vo}, {srd(sX)}, 0 offen offset:{64*k}", tag="gx"))
            e(I(f"buffer_load_dwordx4 {vr(gb+4*k,4)}, v{vg}, {srd(sGw)}, 0 offen offset:{64*k}", tag="gx"))
            if k == 3:
                e(self.poll_check("goa", "go", gol, vP))
                e(["s_barrier", f"s_lshl_b32 s{sT3}, s{sA}, 7", f"s_add_u32 s{sT3}, s{sT3}, {FAUX}",
                   f"s_cmp_lg_u32 s{sWv}, 0", f"s_cselect_b32 s{sT2}, {OOB}, 0", f"v_mov_b32 v16, s{sT2}",
                   "s_mov_b64 exec, 1", f"buffer_store_dword v{vP}, v16, {srd(sWS)}, s{sT3} offen sc1", "s_mov_b64 exec, -1"])
                e(self.astamp("faux"))
        e(W(vm="gx"))
        for k in range(4):
            e(f"v_mov_b32 v{4+k}, 0")
        for k in range(56):
            e(f"v_dot2_f32_bf16 v{4+k%4}, v{xb+k}, v{gb+k}, v{4+k%4}")
        e([f"v_add_f32 v4, v4, v5", f"v_add_f32 v6, v6, v7", f"v_add_f32 v4, v4, v6",
           f"v_add_f32_dpp v4, v4, v4 quad_perm:[1,0,3,2] row_mask:0xf bank_mask:0xf",
           f"v_add_f32_dpp v4, v4, v4 quad_perm:[2,3,0,1] row_mask:0xf bank_mask:0xf",
           f"v_mul_f32 v4, s{sK}, v4", f"v_exp_f32 v4, v4", f"v_add_f32 v4, 1.0, v4", f"v_rcp_f32 v4, v4",
           f"v_and_b32 v5, 60, v0",
           f"s_lshl_b32 s{sT1}, s{sA}, 2", f"s_add_u32 s{sT1}, s{sT1}, s{sWv}", f"s_lshl_b32 s{sT1}, s{sT1}, 6",
           f"s_add_u32 s{sT1}, s{sT1}, {GOFF}",
           f"buffer_store_dword v4, v5, {srd(sWS)}, s{sT1} offen sc1"])
        p.raw("s_waitcnt vmcnt(0)")
        p.reset()
        e(["s_barrier", f"s_addk_i32 s{sT3}, {FG-FAUX}",
           "s_mov_b64 exec, 1", f"buffer_store_dword v{vP}, v16, {srd(sWS)}, s{sT3} offen sc1", "s_mov_b64 exec, -1"])
        if o["stamps"]:
            e(self.astamp("fg"))
            p.raw("s_waitcnt lgkmcnt(0)")
            e([f"s_lshl_b32 s{sT1}, s2, 2", f"s_add_u32 s{sT1}, s{sT1}, s{sWv}", f"s_lshl_b32 s{sT1}, s{sT1}, 6",
               f"s_add_u32 s{sT1}, s{sT1}, {STAMP}", "s_mov_b64 exec, 1"])
            for k in range(len(self.anames)):
                e([f"v_mov_b32 v2, s{sST+2*k}", f"buffer_store_dword v2, off, {srd(sWS)}, s{sT1} offset:{4*k}"])
            e("s_mov_b64 exec, -1")
        e([f"s_cmp_lg_u32 s{sA}, 4", "s_cbranch_scc1 L_end"])
        if o["stop"] == "gemm1":
            e("s_branch L_end")
        e([f"s_movk_i32 s{sKd}, 224", f"s_mov_b32 s{sSc}, {fbits(1.0/(2048*448))}"])
        e(self.fft_consts(vAB + 32))
        sc, vv = self.poll1_addr(vT + 14, vT + 15, sT1, sT2)
        e(sc)
        e(vv)
        pl = f"buffer_load_dword v{vPr}, v{vPa}, {srd(sWS)}, 0 offen sc1"
        e(I(pl, tag="p1"))
        e(self.fft_scalars())
        e(self.fft_setup_regs())
        e(self.fft_addr2())
        e(self.poll_check("p1a", "p1", pl, vPr))
        e(self.fft_loads())
        self.fft_body(lambda n, dt: None)
        e([f"s_lshl_b32 s{sT0}, s{sWv}, 13", f"s_add_u32 s{sT0}, s{sT0}, {FZ+224*32}"])
        e(self.flag_store(sT0, ["zre", "zim"]))
        p.raw("s_endpgm")

    def finish(self):
        out = self.p.out
        d = self.o["diag"].split(",")
        if "plainst" in d:
            out = [l.replace(" sc1", "") if l.startswith("buffer_store_dwordx4") else l for l in out]
        if "plainld" in d:
            out = [l.replace(" sc1", "") if l.startswith("buffer_load_dwordx4") else l for l in out]
        if "nopoll" in d:
            out = ["s_nop 0" if l.startswith("s_cbranch_vccnz L_slow") or l.startswith("s_cbranch_scc0 L_slow") else l for l in out]
        if "nowd" in d:
            out = [f"v_mov_b32 v{vDd}, 2.0" if l.startswith(f"v_add3_u32 v{vDd}, v{vDd},") else l for l in out]
        if "nohl" in d:
            out = [f"v_mov_b32 v{vXd}, 2.0" if l == f"v_add_u32 v{vXd}, s{sCnt}, v{vL16}" else l for l in out]
        if "noz" in d:
            out = [f"v_mov_b32 v{vY+1}, 2.0" if l == f"v_add_u32 v{vY+1}, s{sFs}, v{vY+1}" else l for l in out]
        if "halfm" in d:
            k_, o2 = 0, []
            for l in out:
                if l.startswith("v_mfma") and not l.endswith(", 0"):
                    k_ += 1
                    if k_ % 4 == 0:
                        continue
                o2.append(l)
            out = o2
        if "nomfma" in d:
            out = ["s_nop 7" if l.startswith("v_mfma_f32_32x32") else l for l in out]
        if "m16" in d:
            o2, cnt, i = [], {}, 0
            while i < len(out):
                l = out[i]
                m = re.match(r"v_mfma_f32_32x32x16_bf16 v\[(\d+):\d+\], (\S+), (\S+), (\S+)", l)
                if not m:
                    o2.append(l); i += 1
                    continue
                b = int(m.group(1))
                if m.group(4) == "0":
                    cnt[b] = 0
                k = cnt[b]; cnt[b] += 1
                j = i + 1
                while j < len(out) and not out[j].startswith("v_mfma") and j - i < 12:
                    j += 1
                gap = out[i + 1:j]
                if j - i >= 12:
                    gap, j = [], i + 1
                tot = sum(cost(x) for x in gap); acc = 0; cutp = 0
                for q, x in enumerate(gap):
                    if acc >= (tot + 1) // 2 and not x.startswith("s_cselect") and not x.startswith("s_cbranch") and "exec" not in x and "exec, 1" not in gap[q-1]:
                        break
                    acc += cost(x); cutp = q + 1
                def mm(blk, A, B):
                    dd = f"v[{b+4*blk}:{b+4*blk+3}]"
                    return f"v_mfma_f32_16x16x32_bf16 {dd}, {A}, {B}, {'0' if k < 2 else dd}"
                A, B = m.group(2), m.group(3)
                A0, B0 = A, B
                pa, pb = cnt.get("p", (A, B))
                if "m16b" in d:
                    mb = re.match(r"a\[(\d+):", B); ma = re.match(r"a\[(\d+):", A)
                    if mb:
                        q_ = max(int(mb.group(1)) - 8, int(mb.group(1)) & 4); B0 = f"a[{q_}:{q_+3}]"
                        if "100" and b >= vAB and b != vAB + 16 and int(mb.group(1)) < 216:
                            q_ = int(mb.group(1)) + 8; B0 = f"a[{q_}:{q_+3}]"
                    elif ma:
                        q_ = max(int(ma.group(1)) - 8, 0); A0 = f"a[{q_}:{q_+3}]"
                    else:
                        A0 = pa
                cnt["p"] = (A, B)
                o2 += [mm(k & 1, A0, B0)] + gap[:cutp] + [mm(2 + (k & 1), A, B)] + gap[cutp:]
                i = j
            out = o2
        if "nobar" in d:
            out = ["s_nop 0" if l.startswith("s_barrier") else l for l in out]
        if "novm" in d:
            out = [(re.sub(r" vmcnt\(\d+\)", " vmcnt(63)", l) if l.startswith("s_waitcnt") and "vmcnt(0)" not in l else l) for l in out]
        lines, nfix = check_hazards(out)
        self.log(f"{len(lines)} lines, {nfix} hazard nops inserted, {getattr(self.p,'n_sat',0)} lgkm saturation waits")
        ref = open("gated_mix__spectral_gfnet__swiglu_ffn__prompt.s.ref").read().split("\n")
        head = [l for l in ref if l.startswith(";") and "@launch" not in l and "Override" not in l and "grid=ceil" not in l]
        s = "\n".join(head) + "\n"
        s += f"; @launch grid=(256,1,1) block=(256,1,1) lds={LDS_BYTES}\n"
        s += '.amdgcn_target "amdgcn-amd-amdhsa--gfx950"\n.text\n'
        if self.o["align"]:
            s += ".p2align 12\n"
        s += f".globl {NAME}\n.p2align 8\n.type {NAME},@function\n{NAME}:\n"
        s += "\n".join(lines) + "\n"
        s += f"""s_endpgm
.section .rodata,"a"
.p2align 6
.amdhsa_kernel {NAME}
  .amdhsa_next_free_vgpr 512
  .amdhsa_next_free_sgpr 102
  .amdhsa_accum_offset 256
  .amdhsa_group_segment_fixed_size 0
  .amdhsa_kernarg_size 88
  .amdhsa_user_sgpr_count 2
  .amdhsa_user_sgpr_kernarg_segment_ptr 1
  .amdhsa_system_sgpr_workgroup_id_x 1
  .amdhsa_float_denorm_mode_32 3
.end_amdhsa_kernel
"""
        return s


def parse_opts(args):
    kw = {}
    for a in args:
        k, v = a.split("=")
        assert k in DEF, k
        if isinstance(DEF[k], bool):
            v = v not in ("0", "False")
        elif isinstance(DEF[k], int):
            v = int(v)
        kw[k] = v
    return kw


if __name__ == "__main__":
    out = sys.argv[1]
    g = Gen(**parse_opts(sys.argv[2:]))
    s = g.build()
    open(out, "w").write(s)
    print("; stamps:", g.stamp_names, file=sys.stderr)
```

```python
import re


class I:
    __slots__ = ("t", "tag", "vm", "ds")

    def __init__(self, t, tag=None, vm=None, ds=None):
        self.t = t
        self.tag = tag
        self.vm = vm
        self.ds = ds


def W(vm=None, ds=None):
    return I("", vm=vm, ds=ds)


def kind(t):
    op = t.split()[0] if t else "s_waitcnt"
    if op.startswith("v_mfma"):
        return "M"
    if op.startswith("ds_"):
        return "D"
    if op.startswith("buffer_") or op.startswith("global_"):
        return "G"
    if op.startswith("v_"):
        return "V"
    return "S"


TRANS = ("v_exp_f32", "v_rcp_f32", "v_cos_f32", "v_sin_f32", "v_log_f32", "v_rsq_f32", "v_sqrt_f32")


VM2 = [0]


def cost(t):
    op = t.split()[0] if t else ""
    return 2 if op in TRANS or op == "ds_write_b128" or (VM2[0] and op.startswith("buffer_")) else 1


class Prog:
    def __init__(self):
        self.out = []
        self.reset()

    def reset(self):
        self.vm_n = 0
        self.vm_done = 0
        self.vm_tag = {}
        self.ds_n = 0
        self.ds_done = 0
        self.ds_tag = {}

    def snapshot(self):
        return (self.vm_n, self.vm_done, dict(self.vm_tag), self.ds_n, self.ds_done, dict(self.ds_tag))

    def restore(self, s):
        self.vm_n, self.vm_done, vt, self.ds_n, self.ds_done, dt = s
        self.vm_tag = dict(vt)
        self.ds_tag = dict(dt)

    def raw(self, t):
        self.out.append(t)

    def _idx(self, tags, table, n):
        if tags is None:
            return 0
        if tags == "all":
            return n
        if not isinstance(tags, (list, tuple)):
            tags = [tags]
        return max([table[t] for t in tags], default=0)

    def wait(self, vm=None, ds=None):
        a = self._idx(vm, self.vm_tag, self.vm_n)
        b = self._idx(ds, self.ds_tag, self.ds_n)
        s = ""
        if a > self.vm_done:
            n = min(self.vm_n - a, 63)
            s += f" vmcnt({n})"
            self.vm_done = self.vm_n - n
        if b > self.ds_done:
            n = min(self.ds_n - b, 15)
            s += f" lgkmcnt({n})"
            self.ds_done = self.ds_n - n
        if s:
            self.out.append("s_waitcnt" + s)
        return bool(s)

    def e(self, it, tag=None, vm=None, ds=None):
        if isinstance(it, (list, tuple)):
            for x in it:
                self.e(x)
            return
        if callable(it):
            it(self)
            return
        if isinstance(it, str):
            if "\n" in it:
                for l in it.split("\n"):
                    if l.strip():
                        self.e(l.strip())
                return
            it = I(it, tag, vm, ds)
        self.wait(it.vm, it.ds)
        if not it.t:
            return
        k = kind(it.t)
        if k == "G":
            self.vm_n += 1
            assert self.vm_n - self.vm_done <= 63, "too many vmem outstanding"
            if it.tag:
                self.vm_tag[it.tag] = self.vm_n
        elif k == "D":
            if self.ds_n - self.ds_done >= 15:
                self.out.append("s_waitcnt lgkmcnt(10)")
                self.ds_done = self.ds_n - 10
                self.n_sat = getattr(self, "n_sat", 0) + 1
            self.ds_n += 1
            if it.tag:
                self.ds_tag[it.tag] = self.ds_n
        self.out.append(it.t)


class Lab:
    def __init__(self, br, lab):
        self.br, self.lab = br, lab

    def __call__(self, p):
        p.e(self.br)
        p.raw(self.lab)


class Lgkm0:
    def __call__(self, p):
        p.raw("s_waitcnt lgkmcnt(0)")
        p.ds_done = p.ds_n


class Mark:
    def __init__(self, name):
        self.name = name


class Rec:
    def __init__(self):
        self.items = []

    def e(self, it):
        if isinstance(it, (list, tuple)):
            for x in it:
                self.e(x)
        else:
            self.items.append(it)

    def mark(self, name):
        self.items.append(Mark(name))


class Gaps:
    def __init__(self, mf, budget=6):
        self.mf = mf
        self.n = len(mf)
        self.s = [[] for _ in mf]
        self.m = [[] for _ in mf]
        self.v = [[] for _ in mf]
        self.post = [[] for _ in mf]
        self.budget = budget
        self.light = set()
        self.quiet = set()
        self._wrote, self._read = set(), set()

    def used(self, g):
        def c(x):
            if isinstance(x, I):
                return cost(x.t) + (1 if (x.t and (x.vm or x.ds)) else 0)
            if isinstance(x, str):
                return cost(x)
            if isinstance(x, list):
                return sum(map(c, x))
            if isinstance(x, (Lab, Lgkm0)):
                return 1
            return 4
        return (max(0, sum(map(c, self.s[g])) - 1) + sum(map(c, self.m[g])) + sum(map(c, self.v[g]))
                + sum(map(c, self.post[g])))

    def pour(self, seq, g0, g1=None, budget=None, window=14, sonly=False):
        budget = budget or self.budget
        g1 = self.n if g1 is None else g1
        g = g0
        items = []
        for x in seq:
            if isinstance(x, list):
                ps = [parse(y) for y in x]
                items.append((x, len(x), "grp", "S", set().union(*[q[2] for q in ps]), set().union(*[q[3] for q in ps])))
                continue
            t = x.t if isinstance(x, I) else x
            op, k, w, r, _ = parse(t)
            items.append((x, cost(t), op, k, w, r))
        last = g0
        wrote, read = self._wrote, self._read
        while items and g < g1:
            if g in self.light or g in self.quiet:
                g += 1
                continue
            placed = False
            lastv = self.v[g][-1] if self.v[g] else None
            lw = set()
            if lastv is not None and not isinstance(lastv, list):
                lt = lastv.t if isinstance(lastv, I) else lastv
                lop, _, lw_, _, _ = parse(lt)
                if lop in TRANS:
                    lw = lw_
            want2 = False
            if budget - self.used(g) == 2:
                sw, sr = set(), set()
                for (x, t, op, k, w, r) in items[:window]:
                    if op in TRANS and not ((w & sw) or (w & sr) or (r & sw)):
                        want2 = True
                        break
                    sw |= w
                    sr |= r
            sw, sr = set(), set()
            for j, (x, t, op, k, w, r) in enumerate(items[:window]):
                dep = (w & sw) or (w & sr) or (r & sw) or (want2 and op not in TRANS)
                if not dep:
                    early = not any((z, g) in wrote for z in (r | w)) and not any((z, g) in read for z in w)
                    if k in "DG":
                        if early and self.used(g) + t <= budget + (budget > 3) \
                                and not any(kk in "DG" for (_, _, _, kk, _, _) in items[:j]):
                            self.m[g].append(x)
                            for z in r:
                                read.add((z, g))
                            placed = True
                    elif k == "S" and early and not self.s[g] and self.used(g) + t - 1 <= max(budget, t - 1):
                        self.s[g].append(x)
                        placed = True
                    elif self.used(g) + t <= budget and not (lw & r and op not in TRANS) and not (sonly and k == "S"):
                        self.v[g].append(x)
                        for z in w:
                            wrote.add((z, g))
                        for z in r:
                            read.add((z, g))
                        placed = True
                if placed:
                    items.pop(j)
                    last = g
                    break
                sw |= w
                sr |= r
            if not placed:
                g += 1
        return last, [it[0] for it in items]

    def emit(self, p, g0=0, g1=None):
        for g in range(g0, self.n if g1 is None else g1):
            p.e(self.mf[g])
            p.e(self.s[g])
            p.e(self.m[g])
            p.e(self.v[g])
            p.e(self.post[g])


_REG = re.compile(r"(?<![\w.])([vas])(\d+)(?!\w)|(?<![\w.])([vas])\[(\d+):(\d+)\]")


def regs(op):
    r = set()
    for m in _REG.finditer(op):
        if m.group(1):
            r.add((m.group(1), int(m.group(2))))
        else:
            for i in range(int(m.group(4)), int(m.group(5)) + 1):
                r.add((m.group(3), i))
    if re.search(r"\bvcc(_lo|_hi)?\b", op):
        r.add(("s", "vcc"))
    if re.search(r"\bm0\b", op):
        r.add(("s", "m0"))
    if re.search(r"\bexec(_lo|_hi)?\b", op):
        r.add(("s", "exec"))
    return r


def parse(t):
    t = t.split(";")[0].strip()
    sp = t.split(None, 1)
    op = sp[0]
    ops = [o.strip() for o in sp[1].split(",")] if len(sp) > 1 else []
    k = kind(t)
    w, r = set(), set()
    allr = [regs(o) for o in ops]
    U = lambda l: set().union(*l) if l else set()
    if k == "M":
        w = allr[0]
        r = U(allr[1:])
    elif k == "D":
        if op.startswith("ds_read") or op.startswith("ds_bpermute"):
            w = allr[0]
            r = U(allr[1:])
        else:
            r = U(allr)
    elif k == "G":
        if " lds" in t:
            r = U(allr) | {("s", "m0")}
        elif "_load" in op:
            w = allr[0]
            r = U(allr[1:])
        else:
            r = U(allr)
    elif k == "V":
        w = allr[0]
        r = U(allr[1:])
        if op.startswith("v_fmac") or op.startswith("v_dot2c") or "permlane" in op or op.startswith("v_writelane"):
            r |= w
        if "permlane" in op and "swap" in op:
            w = w | allr[1]
        if op.startswith("v_cmpx"):
            w = w | {("s", "exec")}
    else:
        if op.startswith("s_cmp") or op.startswith("s_cbranch") or op.startswith("s_bitcmp") or op in (
                "s_waitcnt", "s_nop", "s_barrier", "s_branch", "s_sleep", "s_endpgm", "s_setprio"):
            r = U(allr)
        elif allr:
            w = allr[0]
            r = U(allr[1:])
            if "saveexec" in op:
                w = w | {("s", "exec")}
            if op in ("s_addk_i32", "s_mulk_i32", "s_bitset1_b32", "s_bitset0_b32"):
                r = r | w
    return op, k, w, r, allr


def check_hazards(lines, fix=True):
    out = []
    hist = []
    nfix = 0
    for t in lines:
        s = t.strip()
        if not s or s.startswith(";") or s.startswith(".") or s.endswith(":"):
            out.append(t)
            continue
        op, k, w, r, allr = parse(s)
        need = 0
        dist = 0
        for (pop, pk, pw, pr, pall, pst) in reversed(hist):
            req = 0
            vw = {x for x in pw if x[0] in "va"}
            sw = {x for x in pw if x[0] == "s"}
            if pk == "M":
                passes = 8 if "32x32x16" in pop else 4
                big = 12 if passes == 8 else 8
                if k == "M":
                    if pw & (allr[1] | allr[2]):
                        req = big
                    elif pw & allr[3] and not (pw == allr[3] and pop == op):
                        req = 10 if passes == 8 else 6
                    elif pw & w and not (pw == allr[3]):
                        req = big
                elif pw & (r | w):
                    req = big
                if k == "V" and (pall[3] & w):
                    req = max(req, 7 if passes == 8 else 3)
            elif pk == "V":
                if k == "M" and vw & r:
                    req = 2
                if k == "M" and ("s", "exec") in pw:
                    req = 4
                if pop in TRANS and k != "S" and op not in TRANS and vw & r:
                    req = max(req, 1)
                if pop.startswith("v_dot") and vw & (r | w) and not (op == pop and not (vw & (allr[1] | allr[2]))):
                    req = max(req, 3)
                if (op.startswith("v_readlane") or op.startswith("v_readfirstlane")) and vw & r:
                    req = max(req, 1)
                if ("permlane" in op or "dpp" in s) and vw & r:
                    req = max(req, 2)
                if k == "G" and sw & r:
                    req = max(req, 5)
                if k == "V" and sw & r:
                    req = max(req, 2)
                if k == "S" and sw & r and not op.startswith("s_cbranch"):
                    req = max(req, 1)
            elif pk == "G":
                if "store" in pop and ("x4" in pop or "x3" in pop) and (pall[0] & w):
                    req = 2
            elif pk == "S":
                if ("s", "m0") in pw and k == "G" and " lds" in s:
                    req = 1
                if ("s", "exec") in pw and "dpp" in s:
                    req = 5
            if req > dist:
                need = max(need, req - dist)
            dist += pst
            if dist > 20:
                break
        if need:
            nfix += 1
            if not fix:
                raise SystemExit(f"hazard before: {s} need {need}")
            out.append(f"s_nop {need-1}")
            hist.append(("s_nop", "S", set(), set(), [], need))
        st = 1
        if op == "s_nop":
            st = int(s.split()[1]) + 1
        hist.append((op, k, w, r, allr, st))
        hist = hist[-24:]
        out.append(t)
    return out, nfix
```

```python
import sys, struct, re
from asmlib import *

NAME = "gated_mix__spectral_gfnet__swiglu_ffn__prompt_kernel"

FX1 = 0
FAUX = FX1 + 896 * 128
FG = FAUX + 32 * 128
FH = 1024 * 128
FZ = 1280 * 128
FEND = 2048 * 128
GOFF = FEND
STAMP = FEND + 65536
X1T = 1 << 20
ZT = X1T + 448 * 4096
WT = ZT + 448 * 4096
HH = WT + 225 * 8192
PP = HH + 64 * 114688
WSEND = PP + 1024 * 2048
OOB = 0x40000000

WSLOT = 16640
NWS = 5
XS = NWS * WSLOT
FS = XS + 65536
IMG = FS
EXC = 8192
ZS = XS - 57344
RED = XS
LDS_BYTES = 163840

sFx, s8k, sHst1 = 0, 1, 3
sX, sG, sU, sD, sWS, sO, sDBG = 4, 8, 12, 16, 20, 24, 28
sWv, sRg, sC, sRt, sCt, sKd = 32, 33, 34, 35, 36, 37
sWm, sXm = 38, 39
sT0, sT1, sT2, sT3 = 40, 41, 42, 43
sK = 44
s7f = 46
sCnt = 47
sXo, sWo, sDo = 48, 55, 62
sPe, sHc, sPs, sPl, sFs, sSp = 72, 73, 74, 75, 76, 77
sHst, sRot2 = 69, 70
sSc = 71
sFh = 79
sWr, sWi, sGw = 48, 52, 56
RS = 4480
sZs, sSw = 48, 49
sST = 80

vL16 = 1
vXd, vXr, vDr, vWd, vTr, vDd, vY = 2, 6, 10, 14, 16, 18, 22
vFr, vSg, vX1g, vPa, vP, vPr, vPg, vPw = 24, 25, 26, 27, 28, 29, 30, 31
vFm = vPg
vWF = 32
vT1c, vT1s, vT2c, vT2s = 48, 56, 64, 72
vAX, vAA, vAB, vS32, vT = 80, 96, 160, 224, 232
aX, aC64, aS64, aN64, aC32 = 0, 224, 232, 240, 248
STEP448 = 9586981
fA = vAA
fDr, fDi, fTm = vAA + 32, vAA + 40, vAA + 48
fBr, fBi, fBn = vAX, vAX + 4, vAX + 8
fWraw = vT
fWr, fWi = vWF, vWF + 8
fa0, fim, fx = vT + 8, vT + 12, vT + 13
vE = vT + 16


def srd(s):
    return f"s[{s}:{s+3}]"


def vr(b, n, c="v"):
    return f"{c}[{b}:{b+n-1}]"


def fbits(x):
    return "0x%08x" % struct.unpack("<I", struct.pack("<f", x))[0]


def txt(x):
    return x.t if isinstance(x, I) else (x if isinstance(x, str) else "s_nop 0")


DEF = dict(rot1="q0325", LA=3, npre=12, npro=16, slowend=0, cpro=60, n1=4, align=1, pf=1,
           perA=64, perA0=64, gap0=100, perE=64, perB=64, perF=64, perG=48, perS=64,
           wd_at='A180,A254,B0,B34,B0,B0,B0', wd_delay=1000,
           go_ld='A190', go_chk='A250', pclr='A100', x1st='', x1flag='E150', poll1='B44', chk1='B96', pollW='B156', chkW='B200',
           hAflag='B56', pollA='B98', chkA='B138', hBflag='F1750', pollB='G18', chkB='G62',
           zflag='G56', pollZ='G120', chkZ='G152', zst='7,7', xsp=7, nlds=0, pld='G242', splp=3, splo=0, gbo=241, pchk=279, pads=1, bodyoff=0, lds_at='F0', fonm=0,
           fft_head='e1', budE=4, gapE=140, gapC=280, gapL=240, snake=1, budG=2,
           apf='clr,WT,go,v06,d0,d1,G', spin=200000, sleep=4, outfl="",
           stop=None, stamps=False, rt=False, st1='', st2='', st3='', only='', diag='')


class Gen:
    def __init__(self, **kw):
        self.o = dict(DEF)
        self.o.update(kw)
        self.p = Prog()
        self.slow = []
        self.nst = 0
        self.stamp_names = []
        self.anames = ['start', 'rt0']

    def log(self, s):
        print("; " + s, file=sys.stderr)

    def stamp(self, name):
        if not self.o["stamps"]:
            return []
        if self.o["only"] and name not in ("start", "rt0", "end") and name not in self.o["only"].split(",") and name[0] != "@":
            return []
        i = self.nst
        self.nst += 1
        r = sX if name == "end" else sST + 2 * i
        assert r + 1 <= 101
        self.stamp_names.append(name)
        return [f"{'s_memrealtime' if self.o['rt'] else 's_memtime'} s[{r}:{r+1}]"]

    def astamp(self, name):
        if not self.o["stamps"]:
            return []
        self.anames.append(name)
        r = sST + 2 * (len(self.anames) - 1)
        assert r <= 100
        return [f"{'s_memrealtime' if self.o['rt'] else 's_memtime'} s[{r}:{r+1}]"]

    def poll_check(self, name, tags, load, reg):
        def f(p):
            p.wait(vm=tags)
            p.e(f"v_cmp_ne_u32 vcc, 1, v{reg}")
            p.e(f"s_cbranch_vccnz L_slow_{name}")
            p.raw(f"L_back_{name}:")
        s = [f"L_slow_{name}:", f"s_mov_b32 s{sSp}, 0", f"L_spin_{name}:", load, "s_waitcnt vmcnt(0)",
             f"v_cmp_ne_u32 vcc, 1, v{reg}", f"s_cbranch_vccz L_back_{name}", f"s_sleep {32 if name == 'p1a' else self.o['sleep']}",
             f"s_add_u32 s{sSp}, s{sSp}, 1", f"s_cmp_lt_u32 s{sSp}, {self.o['spin']}",
             f"s_cbranch_scc1 L_spin_{name}", "s_endpgm"]
        self.slow += s
        return f

    def spoll_load(self, soff):
        return [f"s_load_dwordx8 s[56:63], s[{sWS}:{sWS+1}], s{soff} glc", f"s_load_dwordx8 s[64:71], s[{sWS}:{sWS+1}], s{soff} offset:512 glc"]

    def spoll_check(self, name, load, reg):
        self.poll_check(name, None, load, reg)

        def f(p):
            p.raw("s_waitcnt lgkmcnt(0)")
            p.ds_done = p.ds_n
            p.e([f"s_and_b64 s[56:57], s[56:57], s[{k}:{k+1}]" for k in (58, 60, 64, 66, 68)])
            p.e([f"s_and_b32 s56, s56, s{k}" for k in (62, 70, 57)])
            p.e(f"s_cbranch_scc0 L_slow_{name}")
            p.raw(f"L_back_{name}:")
        return f

    def flag1(self, soff, tags):
        return I(f"buffer_store_dword v{vP}, v{vFm}, {srd(sWS)}, s{soff} offen sc1", vm=tags)

    def flag_store(self, soff, tags):
        def f(p):
            p.wait(vm=tags)
            p.e("s_mov_b64 exec, 1")
            p.e(f"buffer_store_dword v{vP}, off, {srd(sWS)}, s{soff} sc1")
            p.e("s_mov_b64 exec, -1")
        return f

    def trig(self, dst, phase, tmp, fn="cos"):
        return [f"v_alignbit_b32 v{tmp}, s{s7f}, v{phase}, 9", f"v_{fn}_f32 v{dst}, v{tmp}"]

    def fft_consts(self, t):
        vn, vq, vcol, vidx, va, vb, vk, vsg = range(t, t + 8)
        c0, s0 = t + 8, t + 16
        pk = t + 24
        q = [f"v_lshrrev_b32 v{vq}, 4, v0", f"v_and_b32 v{vn}, 15, v0",
             f"v_lshl_add_u32 v{vcol}, s{sWv}, 4, v{vn}",
             f"v_lshrrev_b32 v{va}, 2, v{vn}", f"v_and_b32 v{vb}, 3, v{vn}", f"v_lshl_add_u32 v{vidx}, v{va}, 3, v{vb}",
             f"v_bfe_i32 v{vsg}, v0, 0, 1", f"v_and_b32 v{vsg}, 0x80008000, v{vsg}",
             f"v_cvt_f32_u32 v{vcol}, v{vcol}", f"v_cvt_f32_u32 v{vidx}, v{vidx}", f"v_cvt_f32_u32 v{vq}, v{vq}"]

        def coef():
            return [f"v_cos_f32 v{vn}, v{va}", f"v_add_f32 v{vn}, v{vn}, v{vn}"]

        def run(c, s, n, scale=False):
            r = [f"v_add_f32 v{s+1}, v{vb}, v{va}", f"v_cos_f32 v{c}, v{vb}", f"v_sin_f32 v{s}, v{vb}",
                 f"v_cos_f32 v{c+1}, v{s+1}", f"v_sin_f32 v{s+1}, v{s+1}"]
            if scale:
                r += [f"v_mul_f32 v{x}, s{sSc}, v{x}" for x in (c, s, c + 1, s + 1)]
            for j in range(2, n):
                r += [f"v_fma_f32 v{x+j}, v{vn}, v{x+j-1}, -v{x+j-2}" for x in (c, s)]
            return r

        def pack(dst, src):
            return [f"v_cvt_pk_bf16_f32 v{dst+j}, v{src+2*j}, v{src+2*j+1}" for j in range(4)]

        def acc(dst, src):
            return [f"v_accvgpr_write_b32 a{dst+j}, v{src+j}" for j in range(4)]

        def xr(dst, m):
            return [f"v_xor_b32 v{dst+j}, {m}, v{dst+j}" for j in range(4)]
        q += [f"v_mul_f32 v{va}, {fbits(1/64)}, v{vcol}", f"v_mul_f32 v{vb}, 4.0, v{vq}", f"v_mul_f32 v{vb}, v{vb}, v{va}"]
        q += coef() + run(c0, s0, 4) + [f"v_mul_f32 v{vk}, {fbits(1/16)}, v{vb}", f"v_fmamk_f32 v{vb}, v{va}, {fbits(16.0)}, v{vb}"]
        q += run(c0 + 4, s0 + 4, 4)
        q += pack(pk, c0) + pack(pk + 4, s0)
        q += acc(aC64, pk) + acc(aS64, pk + 4) + xr(pk, f"v{vsg}") + xr(pk + 4, f"v{vsg}")
        q += acc(aC64 + 4, pk) + acc(aS64 + 4, pk + 4) + xr(pk + 4, "0x80008000") + acc(aN64 + 4, pk + 4)
        q += xr(pk + 4, f"v{vsg}") + acc(aN64, pk + 4)
        q += [f"v_mul_f32 v{va}, {fbits(1/32)}, v{va}", f"v_mov_b32 v{vb}, v{vk}"]
        q += coef() + run(vT1c, vT1s, 8)
        q += [f"v_cvt_f32_u32 v{vk}, s{sWv}", f"v_fma_f32 v{vk}, v{vk}, 4.0, v{vq}", f"v_mul_f32 v{vk}, 4.0, v{vk}",
              f"v_mul_f32 v{vq}, {fbits(8.0)}, v{vq}"]
        for tt in range(2):
            if tt:
                q.append(f"v_add_f32 v{vidx}, 4.0, v{vidx}")
            q += [f"v_mul_f32 v{va}, {fbits(1/32)}, v{vidx}", f"v_mul_f32 v{vb}, v{vq}, v{va}"]
            q += coef() + run(c0, s0, 8)
            q += pack(pk, c0) + pack(vS32 + 4 * tt, s0) + acc(aC32 + 4 * tt, pk)
            q += [f"v_mul_f32 v{va}, {fbits(1/64)}, v{va}", f"v_mul_f32 v{vb}, v{vk}, v{va}"]
            q += coef() + run(vT2c + 4 * tt, vT2s + 4 * tt, 4, True)
        return q

    def fft_setup_regs(self):
        t0, t1 = vT + 14, vT + 15
        return [f"v_and_b32 v{t1}, 3, v0", f"v_mul_u32_u24 v{fa0}, 528, v{t1}",
                f"v_lshrrev_b32 v{t0}, 4, v0", f"v_lshl_add_u32 v{fa0}, v{t0}, 7, v{fa0}",
                f"v_bfe_u32 v{t0}, v0, 2, 1", f"v_lshl_add_u32 v{fa0}, v{t0}, 6, v{fa0}",
                f"v_and_b32 v{t0}, 8, v0", f"v_add_u32 v{fa0}, v{t0}, v{fa0}", f"v_add_u32 v{fa0}, {IMG}, v{fa0}",
                f"v_xor_b32 v{fa0+1}, 16, v{fa0}", f"v_xor_b32 v{fa0+2}, 32, v{fa0}", f"v_xor_b32 v{fa0+3}, 48, v{fa0}",
                f"v_lshrrev_b32 v{t0}, 5, v0", f"v_xor_b32 v{t0}, v{t0}, v0", f"v_bfe_i32 v{fx}, v{t0}, 0, 1"]

    def fft_scalars(self):
        return [[f"s_lshl_b32 s{sT1}, s{sKd}, 13"], [f"s_lshl_b32 s{sT0}, s{sWv}, 10"],
                [f"s_add_u32 s{sT2}, s{sT1}, s{sT0}"],
                [f"s_cmp_eq_u32 s{sKd}, 224", f"s_cselect_b32 s{sZs}, 4096, s{sT1}", f"s_cselect_b32 s{sT1}, 0, s{sT1}",
                 f"s_cselect_b32 s{sSw}, 16, 0"],
                [f"s_cmp_eq_u32 s{sT1}, 0", f"s_cselect_b32 s{sT3}, {OOB}, 0"],
                [f"s_add_u32 s{sZs}, s{sZs}, s{sT0}"], [f"s_lshl_b32 s{sT0}, s{sT0}, 1"], [f"s_add_u32 s{sT1}, s{sT1}, s{sT0}"],
                [f"s_add_u32 s{sT1}, s{sT1}, {X1T}"], [f"s_add_u32 s{sT2}, s{sT2}, {WT}"], [f"s_add_u32 s{sZs}, s{sZs}, {ZT}"]]

    def fft_addr2(self):
        return [f"v_xor_b32 v{fim}, s{sSw}, v{vL16}", f"v_and_or_b32 v{fx}, v{fx}, s{sT3}, v{fim}",
                f"v_or_b32 v{fim}, s{sT3}, v{vL16}", f"v_add_u32 v{fim}, 0x1000, v{fim}"]

    def poll1_addr(self, t0, t1, sa, sb, extra=None):
        sc = [[f"s_lshr_b32 s{sa}, s{sKd}, 4", f"s_cmp_eq_u32 s{sa}, 14", f"s_cselect_b32 s{sa}, 0, s{sa}"],
              [f"s_lshl2_add_u32 s{sa}, s{sa}, s{sWv}"], [f"s_lshl_b32 s{sa}, s{sa}, 4"],
              [f"s_lshl_b32 s{sb}, s{sWv}, 1"]]
        v = [f"v_add_u32 v{vPa}, s{sa}, v0",
             f"v_bfe_u32 v{t0}, v0, 1, 2", f"v_and_b32 v{t1}, 1, v0", f"v_lshl_add_u32 v{t0}, v{t0}, 3, v{t1}",
             f"v_add_u32 v{t0}, s{sb}, v{t0}",
             f"v_add_u32 v{t0}, {FAUX//128}, v{t0}"]
        if extra is not None:
            v += [f"v_lshlrev_b32 v{vPw}, 7, v{t0}", f"v_mov_b32 v{t0}, s{extra}"]
        v += [
             f"v_subrev_u32 v{t1}, 16, v0", f"v_ashrrev_i32 v{t1}, 31, v{t1}",
             f"v_bfi_b32 v{vPa}, v{t1}, v{vPa}, v{t0}", f"v_lshlrev_b32 v{vPa}, 7, v{vPa}"]
        return sc, v

    def fft_loads(self):
        return [f"s_add_u32 m0, s{sT0}, {IMG}",
                I(f"buffer_load_dwordx4 v{fx}, {srd(sWS)}, s{sT1} offen sc1 lds", tag="x1"),
                I(f"buffer_load_dwordx4 v{fx}, {srd(sWS)}, s{sT1} offen offset:1024 sc1 lds", tag="x1"),
                I(f"buffer_load_dwordx4 {vr(fWraw,4)}, v{vL16}, {srd(sWS)}, s{sT2} offen sc1", tag="wtre"),
                f"s_add_u32 s{sT2}, s{sT2}, 4096",
                I(f"buffer_load_dwordx4 {vr(fWraw+4,4)}, v{vL16}, {srd(sWS)}, s{sT2} offen sc1", tag="wtim")]

    def fft_body(self, hook):
        p = self.p
        Dr, Di, tm, Br, Bi, Bn = fDr, fDi, fTm, fBr, fBi, fBn

        def af(part, t, ks):
            return fA + 4 * (4 * part + 2 * t + ks)

        def mf(d, a, b, first):
            return f"v_mfma_f32_16x16x32_bf16 {vr(d,4)}, {a}, {b}, {'0' if first else vr(d,4)}"

        def cmul(c, s, sign, neg=None):
            q = []
            n1 = " neg_lo:[0,0,1] neg_hi:[0,0,1]"
            for j in range(0, 8, 2):
                q += [f"v_pk_mul_f32 {vr(tm+8+j,2)}, {vr(Dr+j,2)}, {vr(s+j,2)}",
                      f"v_pk_mul_f32 {vr(tm+j,2)}, {vr(Di+j,2)}, {vr(s+j,2)}"]
            for j in range(0, 8, 2):
                q += [f"v_pk_fma_f32 {vr(tm+j,2)}, {vr(Dr+j,2)}, {vr(c+j,2)}, {vr(tm+j,2)}" + (n1 if sign > 0 else ""),
                      f"v_pk_fma_f32 {vr(tm+8+j,2)}, {vr(Di+j,2)}, {vr(c+j,2)}, {vr(tm+8+j,2)}" + ("" if sign > 0 else n1)]
            for j in range(4):
                q += [f"v_cvt_pk_bf16_f32 v{Br+j}, v{tm+2*j}, v{tm+2*j+1}"]
            for j in range(4):
                q += [f"v_cvt_pk_bf16_f32 v{Bi+j}, v{tm+8+2*j}, v{tm+8+2*j+1}"]
            return q

        def negs(src):
            return [f"v_xor_b32 v{Bn+j}, 0x80008000, v{src+j}" for j in range(4)]

        def big(sgn, pre):
            Sre, Sim = (aS64, aN64) if sgn < 0 else (aN64, aS64)
            n = 0
            for ks in range(2):
                for part in range(2):
                    for t in range(2):
                        a = vr(af(part, t, ks), 4)
                        first = ks == 0 and part == 0
                        bre = (aC64 if part == 0 else Sre) + 4 * ks
                        bim = (Sim if part == 0 else aC64) + 4 * ks
                        p.e(I(mf(Dr + 4 * t, a, vr(bre, 4, "a"), first), ds=f"{pre}{part}{t}{ks}"))
                        p.e(mf(Di + 4 * t, a, vr(bim, 4, "a"), first))
                        n += 1
                        if n in (2, 4, 6):
                            hook(f"{pre}m{n}", 64)

        hook("h0", 0)
        p.e(W(vm="x1"))
        p.e("s_barrier")
        for ks in range(2):
            for part in range(2):
                for t in range(2):
                    for h in range(2):
                        p.e(I(f"ds_read_b64_tr_b16 {vr(af(part,t,ks)+2*h,2)}, v{fa0+2*t+part} "
                              f"offset:{2048*(2*ks+h)}", tag=f"a{part}{t}{ks}"))
        hook("s1", 100)
        big(-1, "a")
        p.e(W(vm=["wtre", "wtim"]))
        for j in range(4):
            p.e([f"v_lshlrev_b32 v{fWr+2*j}, 16, v{fWraw+j}", f"v_and_b32 v{fWr+2*j+1}, 0xffff0000, v{fWraw+j}"])
        p.e(cmul(vT1c, vT1s, -1))
        hook("tw1", 200)
        ng = negs(Br)
        for t in range(2):
            p.e(mf(Dr + 4 * t, vr(aC32 + 4 * t, 4, "a"), vr(Br, 4), True))
            p.e(ng[2 * t:2 * t + 2])
        for t in range(2):
            p.e(mf(Di + 4 * t, vr(aC32 + 4 * t, 4, "a"), vr(Bi, 4), True))
        for t in range(2):
            p.e(mf(Dr + 4 * t, vr(vS32 + 4 * t, 4), vr(Bi, 4), False))
        for t in range(2):
            p.e(mf(Di + 4 * t, vr(vS32 + 4 * t, 4), vr(Bn, 4), False))
        hook("s3", 128)
        for j in range(4):
            p.e([f"v_lshlrev_b32 v{fWi+2*j}, 16, v{fWraw+4+j}", f"v_and_b32 v{fWi+2*j+1}, 0xffff0000, v{fWraw+4+j}"])
        p.e(cmul(fWr, fWi, +1))
        hook("wm", 140)
        ng = negs(Bi)
        for t in range(2):
            p.e(mf(Dr + 4 * t, vr(Br, 4), vr(aC32 + 4 * t, 4, "a"), True))
            p.e(ng[2 * t:2 * t + 2])
        for t in range(2):
            p.e(mf(Di + 4 * t, vr(Br, 4), vr(vS32 + 4 * t, 4), True))
        for t in range(2):
            p.e(mf(Dr + 4 * t, vr(Bn, 4), vr(vS32 + 4 * t, 4), False))
        for t in range(2):
            p.e(mf(Di + 4 * t, vr(Bi, 4), vr(aC32 + 4 * t, 4, "a"), False))
        hook("s3i", 128)
        p.e([f"s_lshr_b32 s{sT0}, s{sWv}, 1", f"s_lshl_b32 s{sT0}, s{sT0}, 10", f"s_and_b32 s{sT2}, s{sWv}, 1",
             f"s_lshl3_add_u32 s{sT0}, s{sT2}, s{sT0}", f"v_add_u32 v{fa0}, s{sT0}, v{vL16}"])
        p.e(cmul(vT2c, vT2s, +1))
        for part in range(2):
            for t in range(2):
                p.e(I(f"ds_write_b64 v{fa0}, {vr((Br if part == 0 else Bi)+2*t,2)} offset:{EXC + (4*part+2*t)*1024}", tag="exw"))
        hook("h2", 0)
        p.e(W(ds="exw"))
        p.e("s_barrier")
        for ks in range(2):
            for part in range(2):
                for t in range(2):
                    p.e(I(f"ds_read_b128 {vr(af(part,t,ks),4)}, v{vL16} offset:{EXC + (4*part+2*t+ks)*1024}", tag=f"b{part}{t}{ks}"))
        hook("tw2", 300)
        big(+1, "b")
        hook("s1i", 64)
        for j in range(4):
            p.e(f"v_cvt_pk_bf16_f32 v{Br+j}, v{Dr+2*j}, v{Dr+2*j+1}")
        p.e(I(f"buffer_store_dwordx4 {vr(Br,4)}, v{vL16}, {srd(sWS)}, s{sZs} offen sc1", tag="zre"))
        for j in range(4):
            p.e(f"v_cvt_pk_bf16_f32 v{Bi+j}, v{Di+2*j}, v{Di+2*j+1}")
        p.e(I(f"buffer_store_dwordx4 {vr(Bi,4)}, v{fim}, {srd(sWS)}, s{sZs} offen sc1", tag="zim"))

    def epi(self, acc, tmp):
        q = []
        for k in range(4):
            g0, g1, u0, u1 = acc + 2 * k, acc + 2 * k + 1, acc + 8 + 2 * k, acc + 9 + 2 * k
            t0, t1 = tmp + 2 * (k & 1), tmp + 2 * (k & 1) + 1
            q += [f"v_mul_f32 v{t0}, s{sK}, v{g0}", f"v_mul_f32 v{t1}, s{sK}, v{g1}",
                  f"v_exp_f32 v{t0}, v{t0}", f"v_exp_f32 v{t1}, v{t1}",
                  f"v_mul_f32 v{u0}, v{g0}, v{u0}", f"v_mul_f32 v{u1}, v{g1}, v{u1}",
                  f"v_add_f32 v{t0}, 1.0, v{t0}", f"v_add_f32 v{t1}, 1.0, v{t1}",
                  f"v_rcp_f32 v{t0}, v{t0}", f"v_rcp_f32 v{t1}, v{t1}",
                  f"v_mul_f32 v{u0}, v{u0}, v{t0}", f"v_mul_f32 v{u1}, v{u1}, v{t1}",
                  f"v_cvt_pk_bf16_f32 v{acc+k}, v{u0}, v{u1}"]
        return q

    def epi_pk(self, acc, tmp):
        q = []
        for k in range(4):
            q.append(f"v_pk_mul_f32 {vr(tmp+2*k,2)}, {vr(acc+2*k,2)}, s[{sK}:{sK+1}]")
        for j in range(8):
            q.append(f"v_exp_f32 v{tmp+j}, v{tmp+j}")
        for k in range(4):
            q.append(f"v_pk_mul_f32 {vr(acc+8+2*k,2)}, {vr(acc+2*k,2)}, {vr(acc+8+2*k,2)}")
        for k in range(4):
            q.append(f"v_pk_add_f32 {vr(tmp+2*k,2)}, {vr(tmp+2*k,2)}, 1.0 op_sel_hi:[1,0]")
        for j in range(8):
            q.append(f"v_rcp_f32 v{tmp+j}, v{tmp+j}")
        for k in range(4):
            q.append(f"v_pk_mul_f32 {vr(acc+8+2*k,2)}, {vr(acc+8+2*k,2)}, {vr(tmp+2*k,2)}")
        for k in range(4):
            q.append(f"v_cvt_pk_bf16_f32 v{acc+k}, v{acc+8+2*k}, v{acc+9+2*k}")
        return q

    def hstore(self, base, n, tag):
        i, tl = n >> 1, n & 1
        return I(f"buffer_store_dwordx4 {vr(base+16*n,4)}, v{vL16}, {srd(sWS)}, s{sHst1 if i else sHst} offen offset:{tl*1024} sc1", tag=tag)

    def rec_step(self, st, ks, dst):
        P = st + 8 * (ks & 1)
        Q = st + 8 * ((ks + 1) & 1)
        c = st + 16 + (0 if ks & 1 else 1)
        q = [f"v_fmac_f32 v{P+j}, v{c}, v{Q+j}" for j in range(8)]
        return q + self.rec_pack(st, ks, dst)

    def rec_pack(self, st, ks, dst):
        P = st + 8 * (ks & 1)
        n = "-" if ks & 2 else ""
        return [f"v_cvt_pk_bf16_f32 v{dst+j}, {n}v{P+2*j}, {n}v{P+2*j+1}" for j in range(4)]

    def put_scalars(self, G, groups, g0, g1):
        g = g0
        for x in groups:
            while G.s[g] or g in G.light:
                g += 1
            G.s[g] += x if isinstance(x, list) else [x]
        assert g < g1, (g, g1)
        return g

    def build(self):
        o, p = self.o, self.p
        e = p.e
        e(self.stamp("start"))
        e([x.replace("s_memtime", "s_memrealtime") for x in self.stamp("rt0")])
        e([f"s_load_dwordx2 s[{sX}:{sX+1}], s[0:1], 0", f"s_load_dwordx2 s[{sG}:{sG+1}], s[0:1], 32",
           f"s_load_dwordx2 s[{sU}:{sU+1}], s[0:1], 40"])
        e([f"v_lshrrev_b32 v2, 6, v0", f"v_mul_u32_u24 v3, 40, v0", f"v_and_b32 v0, 63, v0"])
        sj, sidx, sr = sT0, sT1, sT2
        e([f"s_lshr_b32 s{sidx}, s2, 3", f"v_readfirstlane_b32 s{sWv}, v2", f"s_and_b32 s{sj}, s2, 7",
           f"s_cmp_lt_u32 s{sidx}, 28", "s_cbranch_scc1 L_main"])
        if o["pf"]:
            p.raw(f"s_getpc_b64 s[{sT2}:{sT3}]")
            p.raw("L_pc:")
            p.raw(f"s_and_b32 s{sCnt}, s{sidx}, 3")
            p.raw(f"s_mul_i32 s{sCnt}, s{sCnt}, 10240")
            p.raw(f"v_add_u32 v3, s{sCnt}, v3")
            p.raw(f"v_min_u32 v3, L_codeend-L_pc-4, v3")
            p.raw(f"global_load_dword v255, v3, s[{sT2}:{sT3}]")
        p.raw("s_branch L_aux")
        snap_aux = p.snapshot()
        p.raw("L_main:")
        sRot1 = sHst
        norot = False
        val = sum(int(c_) << (4 * k) for k, c_ in enumerate(o["rot1"][1:]))
        t0, t1, t2, t3, t4, t5, t6 = range(vAB + 8, vAB + 15)
        e([f"s_and_b32 s{sr}, s{sidx}, 3", f"s_lshr_b32 s{sCt}, s{sidx}, 2", f"s_lshr_b32 s{sT3}, s{sj}, 1",
           f"s_xor_b32 s{sRot1}, s{sr}, s{sCt}", f"s_xor_b32 s{sCnt}, s{sj}, s{sT3}", f"s_and_b32 s{sRot1}, s{sRot1}, 1",
           f"s_and_b32 s{sCnt}, s{sCnt}, 1", f"s_lshl1_add_u32 s{sRot1}, s{sCnt}, s{sRot1}", f"s_lshl_b32 s{sRot1}, s{sRot1}, 2",
           f"s_lshr_b32 s{sRot1}, {val:#x}, s{sRot1}", f"s_and_b32 s{sRot1}, s{sRot1}, 7", f"s_lshl_b32 s{sXo}, s{sRot1}, 7",
           f"s_lshl2_add_u32 s{sCnt}, s{sT3}, s{sWv}", f"s_lshl4_add_u32 s{sCnt}, s{sCnt}, s{sr}", f"s_mulk_i32 s{sCnt}, {8*896}",
           f"v_lshrrev_b32 v{t0}, 3, v0", f"v_mul_u32_u24 v{t0}, 896, v{t0}", f"v_add_u32 v{t0}, s{sCnt}, v{t0}",
           f"v_and_b32 v{t1}, 7, v0", f"v_lshrrev_b32 v{t2}, 4, v0", f"v_xor_b32 v{t1}, v{t1}, v{t2}",
           f"v_lshl_add_u32 v{vXd}, v{t1}, 4, v{t0}", f"v_xor_b32 v{vXd+1}, 64, v{vXd}",
           f"v_add_u32 v{vXd+2}, {2*(28672-1024)}, v{vXd}", f"v_add_u32 v{vXd+3}, {3*(28672-1024)}, v{vXd+1}",
           f"v_add_u32 v{vXd+1}, {28672-1024}, v{vXd+1}",
           f"s_lshl_b32 s{sXm}, s{sWv}, 14", f"s_add_u32 s{sXm}, s{sXm}, {XS}",
           f"s_mov_b32 s{sX+2}, {2048*896}", f"s_mov_b32 s{sX+3}, 0x20000", f"s_mov_b32 m0, s{sXm}"])

        def chunk_tab(i):
            return [f"s_add_u32 s{sCnt}, s{sCnt if i > 1 else sRot1}, 1", f"s_cmp_eq_u32 s{sCnt}, 7", f"s_cselect_b32 s{sCnt}, 0, s{sCnt}",
                    f"s_lshl_b32 s{sXo+i}, s{sCnt}, 7", f"s_mul_i32 s{sWo+i}, s{sCnt}, {64*3584}"]
        p.raw("s_waitcnt lgkmcnt(0)")
        e(self.stamp("kargs"))

        self.m0 = (sXm, 0)

        def xdma(j):
            r = [dict(t=f"buffer_load_dwordx4 v{vXd+i}, {srd(sX)}, s{sXo+j} offen offset:{1024*i} lds", tag=f"x{j}",
                      m0=(sXm, 4096 * (j % 4)), ds=None) for i in range(4)]
            if norot:
                r[0]["pre"] = [f"s_movk_i32 s{sXo+j}, {128*j}"]
            return r

        def wdma(i):
            r = []
            for mat in range(2):
                for hh in range(2):
                    r.append(dict(t=f"buffer_load_dwordx4 v{vWd+hh}, {srd(sG if mat == 0 else sU)}, s{sWo+i%7} offen offset:{1056*hh} lds",
                                  tag=f"w{i}", m0=(sWm, WSLOT * (i % NWS) + 2080 * mat), ds=None))
            if i >= 7:
                r[0]["pre"] = [f"s_addk_i32 s{sWo+i%7}, 128"]
            elif norot:
                r[0]["pre"] = [f"s_mov_b32 s{sWo+i}, {i*64*3584}"]
            return r

        def ddma(sg):
            return [dict(t=f"buffer_load_dwordx4 v{vDd+i}, {srd(sD)}, s{sDo+sg} offen offset:{1024*i} lds", tag=f"d{sg}",
                         m0=(sXm, 4096 * ((sg + 3) % 4)), ds=None) for i in range(4)]

        def dma_items(d):
            s = []
            if d["m0"] and self.m0 != d["m0"]:
                self.m0 = d["m0"]
                s.append(f"s_add_u32 m0, s{d['m0'][0]}, {d['m0'][1]}")
            return s + list(d.get("pre", [])), [I(d["t"], tag=d["tag"], ds=d["ds"])]

        L, NB = 3, 4
        n1 = o["n1"]
        dks = [d if d < n1 else n1 + (d - n1) // 2 for d in range(14)]
        K0 = [16 * ks + 4 * sum(1 for x in dks if x < ks) for ks in range(15)]
        Dg = [K0[dks[d]] + 16 + 4 * (d - dks.index(dks[d])) for d in range(14)]
        NA, NBg = 280, 224
        U = [K0[f // 4] + 4 * (f % 4) for f in range(56)] + [NA + 4 * f for f in range(56)]
        bar_gap = {j: U[8 * j - L] - 1 for j in range(1, 14)}
        TE = 16 * NA
        TB = TE + 860
        TF = TB + 16 * NBg
        TG = TF + 2400

        def tg(g):
            return 16 * g if g < NA else TB + 16 * (g - NA)

        def T(spec):
            n = int(spec[1:])
            return {"A": 16 * n, "E": TE + n, "B": TB + 16 * n, "F": TF + n, "G": TG + 16 * n}[spec[0]]
        q1 = []
        for i in range(14):
            ear = -1 if i <= o["LA"] - 1 else (0 if i == o["LA"] else tg(bar_gap[i - o["LA"]] + 1))
            for d in (xdma(i) if i < 7 else []) + wdma(i):
                d["ear"] = ear
                d["dl"] = tg(bar_gap[i]) if i else 0
                if d["tag"][0] == "x" and dks[2 * i] < 2 * i:
                    d["dl"] = 16 * (K0[dks[2 * i] - 1] + 12)
                q1.append(d)

        def issue_pro(n):
            for _ in range(n):
                assert q1[0]["ear"] < 0
                s, m = dma_items(q1.pop(0))
                e(s)
                e(m)
        issue_pro(4)
        e([f"s_and_b32 s{sC}, s{sj}, 1", f"s_mulk_i32 s{sC}, 7", f"s_add_u32 s{sC}, s{sC}, s{sCt}",
           f"v_lshrrev_b32 v{t4}, 5, v0", f"v_and_b32 v{t6}, 3, v0", f"v_lshl_add_u32 v{t2}, v{t4}, 2, v{t6}",
           f"v_lshlrev_b32 v{t2}, 4, v{t2}", f"v_bfe_u32 v{t3}, v0, 2, 3",
           f"v_lshl_add_u32 v{t0}, s{sWv}, 4, v{t3}", f"v_mul_u32_u24 v{t0}, 3584, v{t0}",
           f"s_lshl_b32 s{sCnt}, s{sC}, 8", f"v_add3_u32 v{vWd}, v{t0}, v{t2}, s{sCnt}",
           f"v_add_u32 v{vWd+1}, {8*3584-1056}, v{vWd}",
           f"s_mul_i32 s{sWm}, s{sWv}, 4160", f"s_mul_i32 s{sWo}, s{sRot1}, {64*3584}",
           f"s_mov_b32 s{sG+2}, {448*3584}", f"s_mov_b32 s{sG+3}, 0x20000", f"s_mov_b64 s[{sU+2}:{sU+3}], s[{sG+2}:{sG+3}]"])
        issue_pro(4)
        e(chunk_tab(1))
        issue_pro(o["npre"] - 8)
        for s, off in ((sD, 48), (sO, 64), (sDBG, 72), (sWS, 80)):
            e(f"s_load_dwordx2 s[{s}:{s+1}], s[0:1], {off}")
        e(f"s_lshl2_add_u32 s{sRg}, s{sT3}, s{sr}")
        for i in range(2, 7):
            if not norot:
                e(chunk_tab(i))
        e([f"s_and_b32 s{sRt}, s{sj}, 1", f"s_lshl1_add_u32 s{sRt}, s{sRg}, s{sRt}", f"s_mul_i32 s{sKd}, s{sj}, 28", f"s_add_u32 s{sKd}, s{sKd}, s{sidx}",
           f"s_movk_i32 s{s7f}, 0x7f", f"v_lshlrev_b32 v{vL16}, 4, v0"])
        sq = sr
        tq_, tn = vAB + 15, t0
        e([f"v_and_b32 v{tn}, 15, v0", f"v_lshrrev_b32 v{tq_}, 4, v0", f"v_bfe_u32 v{t1}, v0, 1, 3",
           f"v_xor_b32 v{t1}, v{t1}, v{tq_}", f"v_lshlrev_b32 v{t1}, 4, v{t1}",
           f"v_lshl_add_u32 v{t1}, v{tn}, 7, v{t1}", f"v_xor_b32 v{t5}, 64, v{t1}",
           f"s_xor_b32 s{sT0}, s{sWv}, 1", f"s_lshl_b32 s{sT0}, s{sT0}, 14", f"s_add_u32 s{sT0}, s{sT0}, {XS}",
           f"v_add_u32 v{vXr}, s{sXm}, v{t1}", f"v_add_u32 v{vXr+1}, s{sXm}, v{t5}",
           f"v_add_u32 v{vXr+2}, s{sT0}, v{t1}", f"v_add_u32 v{vXr+3}, s{sT0}, v{t5}"])
        e([f"v_bfe_u32 v{t1}, v0, 4, 1", f"v_bfe_u32 v{t5}, v0, 2, 2",
           f"s_and_b32 s{sT0}, s{sWv}, 1", f"s_lshl_b32 s{sT1}, s{sT0}, 9",
           f"v_mul_u32_u24 v{vTr}, 1056, v{t1}", f"v_mul_u32_u24 v{vTr+1}, 4160, v{t4}", f"v_add3_u32 v{vTr}, v{vTr}, v{vTr+1}, s{sT1}",
           f"v_lshl_add_u32 v{vTr}, v{t5}, 6, v{vTr}", f"v_lshl_add_u32 v{vTr}, v{t6}, 3, v{vTr}",
           f"v_add_u32 v{vTr+1}, {4*WSLOT}, v{vTr}"])
        st, fbuf = vAA, [vAB, vAB + 4, vE, vE + 4]
        vA2 = vAB + 16
        ph, stp, tq, y0, y1, y2 = range(vAA + 20, vAA + 26)
        pk = vAA + 32
        e([f"s_lshl1_add_u32 s{sCnt}, s{sC}, s{sT0}", f"v_lshl_add_u32 v{y0}, s{sCnt}, 4, v{tn}",
           f"v_lshrrev_b32 v{y1}, 1, v{y0}", f"v_and_b32 v{y2}, 1, v{y0}",
           f"v_cmp_eq_u32 vcc, 1, v{y0}", f"v_mov_b32 v{tq}, 224", f"s_mov_b32 s{sCnt}, {STEP448}",
           f"v_cndmask_b32 v{y1}, v{y1}, v{tq}, vcc", f"v_cndmask_b32 v{y2}, v{y2}, 0, vcc",
           f"v_mul_lo_u32 v{stp}, v{y1}, s{sCnt}", f"s_and_b32 s{sCnt}, s{sWv}, 2", f"s_lshl2_add_u32 s{sT0}, s{sCnt}, s{sT0}"])
        if not norot:
            e(f"s_add_u32 s{sCnt}, s{sCnt}, s{sRot1}")
        e([f"s_lshl_b32 s{sCnt}, s{sCnt}, 6",
           f"v_lshl_add_u32 v{y1}, v{tq_}, 3, s{sCnt}",
           f"v_mul_lo_u32 v{ph}, v{y1}, v{stp}", f"v_lshl_add_u32 v{ph}, v{y2}, 30, v{ph}",
           f"v_lshlrev_b32 v{y1}, 5, v{stp}", f"v_add_u32 v{vFr}, {FS}, v{vL16}", f"v_lshl_add_u32 v{y2}, s{sT0}, 10, v{vFr}"])
        e(self.trig(st + 16, y1, tq))
        for ks in range(2):
            for j in range(8):
                e(self.trig(st + 8 * ks + j, ph, tq + (j & 1)))
                if ks == 0 or j < 7:
                    e(f"v_add_u32 v{ph}, v{ph}, v{stp}")
            if ks == 0:
                e([f"v_lshl_add_u32 v{ph}, v{stp}, 3, v{ph}", f"v_lshl_add_u32 v{ph}, v{stp}, 4, v{ph}",
                   f"v_mul_f32 v{st+17}, -2.0, v{st+16}", f"v_add_f32 v{st+16}, v{st+16}, v{st+16}"])
        e(self.rec_pack(st, 0, pk) + self.rec_pack(st, 1, pk + 4) + self.rec_step(st, 2, pk + 8) + self.rec_step(st, 3, pk + 12))
        lq = []
        for s, n in ((sD, 1792 * 896), (sDBG, 256), (sWS, WSEND), (sO, 2048 * 896)):
            lq += [f"s_mov_b32 s{s+2}, {n}", f"s_mov_b32 s{s+3}, 0x20000"]
        lq += [f"v_lshlrev_b32 v{vY}, 5, v{t1}", f"v_xor_b32 v{vY+1}, v{vY}, v{t2}",
               f"v_mul_u32_u24 v{vDd}, 896, v{t3}", f"s_lshl_b32 s{sCnt}, s{sCt}, 7", f"v_add3_u32 v{vDd}, v{vDd}, v{vY+1}, s{sCnt}"]
        for i in range(1, 4):
            lq += [f"v_add_u32 v{vDd+i}, {i*(8*896-1024)}, v{vDd}"]
        lq += [f"v_lshl_add_u32 v{vY}, v{t3}, 6, v{vY}", f"v_lshl_add_u32 v{vY}, v{t6}, 3, v{vY}",
               f"v_lshl_add_u32 v{vY+1}, v{t3}, 12, v{vY+1}",
               f"s_lshr_b32 s{sT1}, s{sWv}, 1", f"s_and_b32 s{sT0}, s{sWv}, 1", f"s_lshl4_add_u32 s{sT0}, s{sT1}, s{sT0}",
               f"s_lshl_b32 s{sT0}, s{sT0}, 5", f"v_lshl_add_u32 v{vDr}, v{t4}, 10, v{vY}", f"v_xor_b32 v{vDr}, s{sT0}, v{vDr}",
               f"v_xor_b32 v{vDr+1}, 32, v{vDr}", f"v_xor_b32 v{vDr+2}, 0x200, v{vDr}", f"v_xor_b32 v{vDr+3}, 0x220, v{vDr}",
               f"s_lshl_b32 s{sCnt}, s{sT1}, 15", f"s_add_u32 s{sCnt}, s{sCnt}, {XS}"]
        lq += [f"v_add_u32 v{vDr+k}, s{sCnt}, v{vDr+k}" for k in range(4)]
        lq += [f"v_bfe_u32 v{t5}, v0, 1, 1", f"v_lshlrev_b32 v{vSg}, 31, v{t5}", f"v_or_b32 v{vSg}, 1.0, v{vSg}",
               f"v_and_b32 v{vPg}, 31, v0", f"v_lshlrev_b32 v{vPg}, 3, v{vPg}"]
        lq += [f"s_lshl_b32 s{sCnt}, s{sq}, 4",
               f"v_xor_b32 v{t5}, s{sCnt}, v{t2}", f"v_lshl_add_u32 v{vX1g}, v{t3}, 14, v{t5}",
               f"s_lshl_b32 s{sCnt}, s{sC}, 8", f"s_add_u32 s{sCnt}, s{sCnt}, s{sRg}", f"s_lshl2_add_u32 s{sCnt}, s{sCnt}, s{sWv}",
               f"s_lshl_b32 s{sCnt}, s{sCnt}, 7", f"s_add_u32 s{sCnt}, s{sCnt}, {X1T}", f"v_add_u32 v{vX1g}, s{sCnt}, v{vX1g}"]
        lq += [f"s_and_b32 s{sT0}, s{sRt}, 1", f"s_lshl1_add_u32 s{sT0}, s{sT0}, s{sT1}", f"s_mul_i32 s{sPe}, s{sT0}, 7",
               f"s_and_b32 s{sT2}, s{sWv}, 1", f"s_add_u32 s{sT0}, s{sPe}, s{sT2}"]
        for sg in range(7):
            if sg == 3:
                lq += [f"s_mul_i32 s{sCnt}, s{sT2}, -6", f"s_add_i32 s{sT1}, s{sPe}, s{sCnt}", f"s_add_u32 s{sT1}, s{sT1}, 6",
                       f"s_and_b32 s{sCnt}, s{sT1}, 30", f"s_add_u32 s{sCnt}, s{sCnt}, s{sT1}", f"s_lshl1_add_u32 s{sCnt}, s{sT2}, s{sCnt}"]
            else:
                lq += [f"s_add_u32 s{sT1}, s{sT0}, {2*sg if sg < 3 else 2*sg-7}", f"s_and_b32 s{sCnt}, s{sT1}, 30",
                       f"s_add_u32 s{sCnt}, s{sCnt}, s{sT1}"] + ([f"s_add_u32 s{sCnt}, s{sCnt}, 2"] if sg > 3 else [])
            lq += [f"s_mul_i32 s{sDo+sg}, s{sCnt}, {2*16*896}"]
        lq += [f"s_lshl3_add_u32 s{sPl}, s{sRt}, s{sCt}", f"s_lshl2_add_u32 s{sPl}, s{sPl}, s{sWv}", f"s_lshl_b32 s{sPl}, s{sPl}, 11",
               f"s_xor_b32 s{sPs}, s{sPl}, 0x10000", f"s_add_u32 s{sPl}, s{sPl}, {PP}", f"s_add_u32 s{sPs}, s{sPs}, {PP}",
               f"s_movk_i32 s{s8k}, 8192"] + [f"v_mov_b32 v{vT+j}, -1" for j in range(4)]
        n_early = len(lq)
        assert HH % 2048 == 0
        lq += [f"s_lshr_b32 s{sT0}, s{sWv}, 1", f"s_lshl1_add_u32 s{sT0}, s{sRg}, s{sT0}", f"s_mul_i32 s{sHst}, s{sT0}, 229376",
               f"s_and_b32 s{sT1}, s{sWv}, 1", f"s_lshl1_add_u32 s{sT2}, s{sC}, s{sT1}", f"s_lshl_b32 s{sCnt}, s{sT2}, 11",
               f"s_add_u32 s{sHst}, s{sHst}, s{sCnt}", f"s_mul_i32 s{sT1}, s{sT1}, 57344",
               f"s_sub_u32 s{sHst1}, s{sHst}, s{sT1}", f"s_add_u32 s{sHst}, s{sHst}, s{sT1}",
               f"s_add_u32 s{sHst}, s{sHst}, {HH}", f"s_add_u32 s{sHst1}, s{sHst1}, {HH+57344}",
               f"s_mul_i32 s{sT1}, s{sT2}, 37", f"s_lshr_b32 s{sT1}, s{sT1}, 8", f"s_mul_i32 s{sT1}, s{sT1}, 25",
               f"s_add_u32 s{sT1}, s{sT1}, s{sT2}", f"s_lshl_b32 s{sT0}, s{sT0}, 9", f"s_lshl2_add_u32 s{sT0}, s{sT1}, s{sT0}",
               f"s_add_u32 s{sFh}, s{sT0}, {FH}",

               f"s_mov_b32 s{sK}, 0xbfb8aa3b", f"s_mov_b32 s{sK+1}, 0xbfb8aa3b",
               f"s_mov_b32 s{sSc}, {fbits(2.0/(2048*448))}",
               [f"s_cmp_eq_u32 s{sKd}, 0", f"s_cselect_b32 s{sSc}, {fbits(1.0/(2048*448))}, s{sSc}"],
               f"s_lshl_b32 s{sCnt}, s{sKd}, 31", f"s_or_b32 s{sSc}, s{sSc}, s{sCnt}",
               f"s_lshl4_add_u32 s{sFx}, s{sC}, s{sRg}", f"s_lshl2_add_u32 s{sFx}, s{sFx}, s{sWv}", f"s_lshl_b32 s{sFx}, s{sFx}, 7"]
        lq += [f"s_and_b32 s{sT0}, s{sRt}, 1", f"s_xor_b32 s{sT0}, s{sT0}, 1", f"s_mul_i32 s{sT0}, s{sT0}, 7", f"s_add_u32 s{sT0}, s{sT0}, s{sCt}",
               f"s_lshl4_add_u32 s{sT0}, s{sT0}, s{sRg}", f"s_lshl2_add_u32 s{sT0}, s{sT0}, s{sWv}"]
        sc, vv = self.poll1_addr(vT + 14, vT + 15, sT1, sT2, sT0)
        lq += sc + vv
        n_mid = len(lq)
        lq += self.fft_setup_regs() + self.fft_consts(vAB + 32)
        lq2 = self.fft_scalars() + self.fft_addr2()
        vH, vPh, sFp = vXd, vXd + 2, sXo + 2
        lq2 += [f"s_and_b32 s{sCnt}, s{sWv}, 1", f"s_mul_i32 s{sCnt}, s{sCnt}, 28", f"s_add_u32 s{sCnt}, s{sCnt}, s{sPe}",
                f"s_lshl_b32 s{sCnt}, s{sCnt}, 11",
                f"s_add_u32 s{sCnt}, s{sCnt}, {HH}", f"v_add_u32 v{vH}, s{sCnt}, v{vL16}",
                f"s_mul_i32 s{sFp}, s{sRt}, 229376", f"v_add_u32 v{vH+1}, s{sFp}, v{vH}",
                f"s_xor_b32 s{sCnt}, s{sRt}, 1", f"s_mul_i32 s{sFp}, s{sCnt}, 229376", f"v_add_u32 v{vH}, s{sFp}, v{vH}",
                f"v_and_b32 v{vPh}, 7, v0", f"v_min_u32 v{vPh}, 6, v{vPh}", f"v_bfe_u32 v{vPh+1}, v0, 3, 1",
                f"v_lshl_add_u32 v{vPh}, v{vPh+1}, 7, v{vPh}", f"v_lshlrev_b32 v{vPh}, 2, v{vPh}",
                f"s_mul_i32 s{sCnt}, s{sPe}, 37", f"s_lshr_b32 s{sCnt}, s{sCnt}, 8", f"s_lshl3_add_u32 s{sFp}, s{sRg}, s{sCnt}",
                f"s_lshl_b32 s{sFp}, s{sFp}, 7", f"s_add_u32 s{sFp}, s{sFp}, {FH}"]
        e(lq[:o["cpro"]])
        if o["pads"]:
            p.raw("s_mov_b64 exec, 0")
            for w_ in range(3):
                p.raw(f"s_cmp_eq_u32 s{sWv}, {w_}")
                p.raw(f"s_cbranch_scc1 L_pad{w_}")
            p.raw("s_branch L_pad3")
            p.raw("L_padret:")
            p.raw("s_mov_b64 exec, -1")
        if o["align"]:
            p.raw("s_branch L_body")
            if not o["slowend"]:
                p.raw("@SLOW@")
            p.raw(".p2align 12")
            if o["bodyoff"]:
                p.raw(f".fill {o['bodyoff']//4}, 4, 0xbf800000")
            p.raw("L_body:")
        e(f"s_cmp_ge_u32 s{sWv}, 2")
        for k in range(4):
            if k == 3:
                e("s_cbranch_scc1 L_f2")
            e(I(f"ds_write_b128 v{y2}, {vr(pk+4*k,4)} offset:{2048*k}", tag="fw"))
        p.raw("L_f2:")
        issue_pro(o["npro"] - o["npre"])
        for d in q1:
            d["ear"] = max(d["ear"], 0)
        n_early = max(0, n_early - o["cpro"])
        n_all_mid = n_mid
        n_mid = max(0, n_mid - o["cpro"])
        lq = lq[o["cpro"]:]
        e(self.stamp("pro"))

        def m16(d, a, b, first):
            return f"v_mfma_f32_16x16x32_bf16 {vr(d,4)}, {a}, {b}, {'0' if first else vr(d,4)}"

        def wread(f):
            i, kk, mat, tl = f // 8, (f // 4) % 2, (f // 2) % 2, f % 2
            slot = i % NWS
            base, off = (vTr, slot * WSLOT) if slot < 4 else (vTr + 1, 0)
            off += kk * 8320 + mat * 2080 + tl * 32
            b = vWF + 4 * (f % NB)
            return [I(f"ds_read_b64_tr_b16 {vr(b+2*h,2)}, v{base} offset:{off+256*h}", tag=f"wf{f}") for h in range(2)]

        def xread(ks, j):
            return I(f"ds_read_b128 {vr(aX+16*ks+4*j,4,'a')}, v{vXr+(j&2)+ks%2} offset:{4096*((ks//2)%4)+2048*(j&1)}", tag=f"xr{ks}_{j>>1}",
                     vm=(f"x{ks//2}" if j == 0 and ks % 2 == 0 else None))

        def fread(d, s_):
            return I(f"ds_read_b128 {vr(fbuf[2*(d&1)+s_],4)}, v{vFr} offset:{2048*(d%7)+1024*s_}", tag=f"fr{d}")
        mf = []
        for ph_ in range(2):
            for ks in range(14):
                for ff in range(4):
                    for j in (range(3, -1, -1) if o["snake"] and ff & 1 else range(4)):
                        mf.append(m16(vAA + 16 * j + 4 * ff, vr(vWF + 4 * ff, 4), vr(aX + 16 * ks + 4 * j, 4, "a"), ks == 0))
                for dd in range(14):
                    if ph_ == 0 and dks[dd] == ks:
                        for s_ in range(2):
                            for jj in range(2):
                                mf.append(m16((vAX if dd < 7 else vA2) + 8 * s_ + 4 * jj, vr(aX + 16 * dd + 4 * jj, 4, "a"),
                                              vr(fbuf[2 * (dd & 1) + s_], 4), dd % 7 == 0))
        G = Gaps(mf, 2)
        G.light = set(bar_gap.values())
        G.quiet = {g + k for g in G.light for k in (-1, 1) if g > o["gapE"]}
        barW = {}
        for f in range(L, 112):
            G.m[U[f - L]] += wread(f)

        def pair(lo, its):
            while lo in G.light or G.m[lo]:
                lo += 1
            G.m[lo] += its
            return lo + 1
        for ks in range(1, 14):
            lo = K0[ks - 1] + (4 if ks % 2 == 0 else 0)
            if dks[ks] == ks:
                lo = pair(lo, [xread(ks, 0), xread(ks, 1)]) + 3
            pair(lo, [xread(ks, 2), xread(ks, 3)])
        for d in range(1, 14):
            k_ = dks[d]
            if k_ < d:
                pair(K0[k_ - 1] + 12 + 5 * (d - dks.index(k_)), [xread(d, 0), xread(d, 1)])
            pair(K0[k_] + 4 * (d - dks.index(k_)), [fread(d, 0), fread(d, 1)])
        for f in range(1, 112):
            tags = [f"wf{f}"]
            if f < 56 and f % 4 == 0:
                tags += [f"xr{f//4}_1", f"xr{f//4}_0"]
            g = U[f] - 1
            if g in G.light:
                j = [k for k, v in bar_gap.items() if v == g][0]
                barW[j] = W(vm=[f"w{j}"] + ([f"x{j}"] if j < 7 else []), ds=tags)
                G.s[g] += [barW[j], "s_barrier"]
            else:
                G.s[g].append(W(ds=tags))
        for ks in set(dks):
            G.s[K0[ks] + 15].append(W(ds=[t_ for d in range(14) if dks[d] == ks for t_ in (f"fr{d}", f"xr{d}_0")]))

        hring = 16
        hreg = [vAB + 4 * n for n in range(hring)]
        xs = o["xsp"]
        sq2 = [(0, s_) for s_ in range(7)] + [(1, s_) for s_ in range(xs)] + [(0, s_) for s_ in range(7, 14)] + \
              [(1, s_) for s_ in range(xs, 14)]
        seq = [(ph_, step, jj) for ph_, step in sq2 for jj in range(2)]
        npre_h = min(hring, 14 + 2 * xs)
        lset = [n for n in range(npre_h, 56) if seq[n][1] < 7][:o["nlds"]]
        dset = [n for n in range(56) if n not in lset]
        hr = {n: hreg[m % hring] for m, n in enumerate(dset)}
        hr.update({n: vWF + 4 * (m % 4) for m, n in enumerate(lset)})
        accp, acco, acca = vAA, vAA + 32, vAB + 48
        zreg = [vWF, vWF + 4, vWF + 8, vWF + 12, vAX, vAX + 4]
        own_fi = [vT1c + 4 * a for a in range(8)] + [vAX + 8, vAX + 12, vS32 + 24, vS32 + 28, vS32 + 18, vDd]
        vZr, vZd, vZr1, vGa, vG, vOG = vY, vY + 1, vXr, vXr + 1, vXr + 2, vWd
        vOo, vRw, vRr, vHl, vR3, vPz, vOw, vOr, vW1, vR1 = vFr, vSg, vX1g, vDr + 2, vXd + 3, vPa, vPw, vTr, vDr, vDr + 1
        mf, hu, hl_ = [], {}, {}
        split = {0: o["splp"], 1: o["splo"]}
        gU = {}

        def g2m(n, ks_):
            ph_, step, jj = seq[n]
            hu.setdefault(n, len(mf))
            for k in ks_:
                mf.append(m16((acco if ph_ else accp) + 16 * (k >> 1) + 8 * jj + 4 * (k & 1), vr(16 * step + 4 * k, 4, "a"), vr(hr[n], 4), step == 0))
            hl_[n] = len(mf) - 1
        for n, (ph_, step, jj) in enumerate(seq):
            if step < 14 - split[ph_]:
                g2m(n, (1, 0, 3, 2) if o["snake"] and jj == 0 else (2, 3, 0, 1))
                gU[ph_] = len(mf) - 2
                continue
            g2m(n, (2, 3))
            if step == 13 and jj == 1:
                gU[ph_] = len(mf)
                for n2 in range(n + 1 - 2 * split[ph_], n + 1):
                    g2m(n2, (0, 1))
        hfree = {n: (hl_[dset[m - hring]] if m >= hring else -1) for m, n in enumerate(dset)}
        NH = 224
        for ks in range(14):
            for jj in range(2):
                for tt in range(2):
                    a_ = vr(224 + 4 * (ks % 8), 4, "a") if tt else vr(own_fi[ks], 4)
                    mf.append(m16(acca + 8 * jj + 4 * tt, a_, vr(8 * ks + 4 * jj, 4, "a"), ks == 0))
        H = Gaps(mf, o["budG"])
        LZ = 10
        gP = 8 * (14 + xs)
        gbp, gbo = gU[0] + 13, o["gbo"]
        zbar = {}
        acc_ = 0
        for n_ in [int(x) for x in o["zst"].split(",")]:
            zbar[NH + 4 * acc_ - LZ - 1] = acc_ + n_ - 1
            acc_ += n_
        assert acc_ == 14
        gb = NH - LZ - 1
        H.light = {gbp, gbo} | set(zbar)
        H.quiet = {g + k for g in H.light for k in (-1, 1)}

        evs = {"E": [], "F": []}
        busy = {"G1": set(G.light), "G": set(H.light)}

        def at(spec, items, post=False):
            ph_, n = spec[0], int(spec[1:])
            if ph_ in "EF":
                evs[ph_].append((n, items, post))
                return
            S_, key = (H, "G") if ph_ == "G" else (G, "G1")
            g = n + (NA if ph_ == "B" else 0)
            while g in S_.light or S_.used(g) > 1:
                g += 1
            for x in items:
                if isinstance(x, I) and x.t and x.vm:
                    S_.s[g].append(W(vm=x.vm))
                    x.vm = None
                (S_.s if kind(txt(x)) == "S" else S_.m)[g].append(x)
            busy[key].add(g)

        def chk(spec, name, tag, load, reg, after=()):
            f_ = self.poll_check(name, tag, load, reg)
            ph_, n = spec[0], int(spec[1:])
            if ph_ in "EF":
                evs[ph_].append((n, [f_] + list(after), True))
                return
            S_, key = (H, "G") if ph_ == "G" else (G, "G1")
            g = n + (NA if ph_ == "B" else 0)
            assert g not in S_.light and g - 2 not in S_.light, spec
            S_.s[g - 2].append(W(vm=tag))
            S_.v[g - 2].append(f"v_cmp_ne_u32 vcc, 1, v{reg}")
            S_.s[g].append(Lab(f"s_cbranch_vccnz L_slow_{name}", f"L_back_{name}:"))
            S_.m[g] += list(after)
        for a_, b_ in (("go_ld", "go_chk"), ("go_chk", "x1flag"), ("pclr", "x1flag"), ("poll1", "chk1"), ("chk1", "pollA"), ("pollA", "chkA"),
                       ("chkA", "pollW"), ("pollW", "chkW"), ("hAflag", "hBflag"), ("chkA", "pollB"), ("pollB", "chkB"), ("chkB", "pollZ"),
                       ("pollZ", "chkZ")):
            assert T(o[a_]) < T(o[b_]), (a_, b_)
        stop1 = o["stop"] == "gemm1"
        gol = f"buffer_load_dword v{vP}, v{vPg}, {srd(sDBG)}, 0 offen sc1"
        at(o["go_ld"], [I(gol, tag="go")])
        chk(o["go_chk"], "go", "go", gol, vP)
        for hf in range(2):
            at(o["pclr"][0] + str(int(o["pclr"][1:]) + (64 if o["pclr"][0] == "E" else 4) * hf),
               [I(f"buffer_store_dwordx4 {vr(vT,4)}, v{vL16}, {srd(sWS)}, s{sPs} offen offset:{1024*hf} sc1", tag="pcl")])
        x1st = [I(f"buffer_store_dwordx4 {vr(vAX+8,4)}, v{vX1g}, {srd(sWS)}, 0 offen sc1", tag="x1s"),
                I(f"buffer_store_dwordx4 {vr(vAX+12,4)}, v{vX1g}, {srd(sWS)}, s{s8k} offen sc1", tag="x1s")]
        if o["x1st"]:
            assert o["x1st"][0] in "AE" and T(o["x1st"]) + 64 < T(o["x1flag"])
            for hf in range(2):
                at(o["x1st"][0] + str(int(o["x1st"][1:]) + (4 if o["x1st"][0] == "A" else 64) * hf), [x1st[hf]])
        at(o["x1flag"], [self.flag1(sFx, ["x1s", "pcl"])])
        pl = f"buffer_load_dword v{vPr}, v{vPa}, {srd(sWS)}, 0 offen sc1"
        pw = f"buffer_load_dword v{vPr}, v{vPw}, {srd(sWS)}, 0 offen sc1"
        pollH = f"buffer_load_dword v{vPr}, v{vPh}, {srd(sWS)}, s{sFp} offen sc1"
        pollZ = f"buffer_load_dword v{vPr}, v{vPz}, {srd(sWS)}, 0 offen sc1"
        at(o["poll1"], [I(pl, tag="p1")])
        at(o["pollW"], [I(pw, tag="pW")])
        at(o["pollA"], [I(pollH, tag="pA")])
        at(o["hAflag"], [self.flag1(sFh, "hA")])
        if not stop1:
            chk(o["chk1"], "p1", "p1", pl, vPr)
            chk(o["chkW"], "pW", "pW", pw, vPr)
            chk(o["chkA"], "pA", "pA", pollH, vPr)
        at(o["hBflag"], [f"s_add_u32 s{sFh}, s{sFh}, {128*128}", self.flag1(sFh, "hB")])
        at(o["pollB"], [f"s_add_u32 s{sFp}, s{sFp}, {128*128}"] + self.spoll_load(sFp))
        if o["chkB"][0] == "G":
            self.poll_check("pB", None, pollH, vPr)
            g = int(o["chkB"][1:])
            red = [f"s_and_b64 s[56:57], s[56:57], s[{k}:{k+1}]" for k in (58, 60, 64, 66, 68)] + [f"s_and_b32 s56, s56, s{k}" for k in (62, 70)]
            H.s[g - 3] += [Lgkm0()] + red[:2]
            H.s[g - 2] += red[2:5]
            H.post[g - 1] += red[5:7]
            H.s[g] += ["s_and_b32 s56, s56, s57", Lab("s_cbranch_scc0 L_slow_pB", "L_back_pB:")]
            busy["G"] |= {g - 3, g - 2, g - 1}
        else:
            at(o["chkB"], [self.spoll_check("pB", pollH, vPr)], True)
        sFz, sZo, sZm, sZp, sU_, sI_, sGo = sXo + 3, sXo + 4, sXo + 5, sXo + 6, sSw, s8k, 78
        at(o["zflag"], [self.flag1(sFz, ["zre", "zim"])])
        at(o["pollZ"], [I(pollZ, tag="pZ")])
        chk(o["chkZ"], "pZ", "pZ", pollZ, vPr)
        for jj in range(2):
            at(f"G{gb-3+jj}", [I(f"buffer_load_dword v{vG+jj}, v{vGa}, {srd(sWS)}, s{sGo} offen offset:{64*jj} sc1", tag="g")])
        pld = [f"buffer_load_dwordx4 {vr(accp+4*hf,4)}, v{vL16}, {srd(sWS)}, s{sPl} offen offset:{1024*hf} sc1" for hf in range(2)]
        for hf in range(2):
            at("G" + str(int(o["pld"][1:]) + 2 * hf), [I(pld[hf], tag="pl")])

        busy["G"] |= {gU[0] + 2 + 2 * j for j in range(4)} | {gbo - 9 + 2 * j for j in range(4)}
        class BG:
            pass
        bg = BG()
        bg.q2 = [d for sg in range(7) for d in ddma(sg)]
        bg.nd = bg.ntr = bg.nz = 0
        bg.t_issue, bg.t_read = {}, {}
        bg.vis, bg.free = set(), set()
        bg.nxt = 0
        bg.lds_ok = False
        bg.hp = list(range(56))
        bg.log = []
        self.hc = None
        wd_at = [T(x) for x in o["wd_at"].split(",")]
        fl = self.fft_loads()
        q3 = [dict(t=fl[1].t, tag="x1", m0=(sT0, IMG), ds=None), dict(t=fl[2].t, tag="x1", m0=(sT0, IMG), ds=None),
              dict(t=fl[3].t, tag="wtre", m0=None, ds=None), dict(t=fl[5].t, tag="wtim", m0=None, ds=None, pre=[fl[4]])]
        for d in q3:
            d["ear"] = T(o["chk1"] if d["tag"] == "x1" else o["chkW"]) + 1
        for d in q3:
            d["dl"] = tg(bar_gap[13]) + 1
        q1 += q3
        q1.sort(key=lambda d: d["dl"])

        def dtr(n):
            step, k, t_ = n // 8, (n // 2) % 4, n % 2
            off = 16384 * (step & 1) + 4096 * ((step // 2 + 3) % 4) + 2048 * t_
            return I(f"ds_read_b64_tr_b16 {vr(16*step+4*k+2*t_,2,'a')}, v{vDr+k} offset:{off}", tag=f"dr{step//2}")

        def bg_barrier(j):
            t = tg(bar_gap[j])
            for sg, ti in bg.t_issue.items():
                if sg not in bg.vis and (t >= ti + o["wd_delay"] or j == 13):
                    bg.vis.add(sg)
                    barW[j].vm.append(f"d{sg}")
            for sg, tr in bg.t_read.items():
                if sg not in bg.free and t >= tr + 48:
                    bg.free.add(sg)
                    barW[j].ds.append(f"dr{sg}")

        def bg_tr(t):
            n = bg.ntr
            if n >= 112 or n // 16 not in bg.vis or t < TB + 256 * (n // 8 + 1) - 16:
                return []
            bg.ntr += 1
            if n % 16 == 15:
                bg.t_read[n // 16] = t
            return [dtr(n)]

        def hload(n):
            ph_, step, jj = seq[n]
            c = (step // 7) * 114688 + (2 * (step % 7) + jj) * 1024
            pre = []
            if self.hc is None or not 0 <= c - self.hc <= 3072 or (n in lset and 1024 * lset.index(n) < c - self.hc):
                self.hc = c
                pre.append(f"s_mov_b32 s{sHc}, {c}")
            imm = c - self.hc
            if n in lset:
                return dict(t=f"buffer_load_dwordx4 v{vH+ph_}, {srd(sWS)}, s{sHc} offen offset:{imm} sc1 lds", tag=f"h{n}",
                            m0=(sZm, 1024 * lset.index(n) - imm), ds=None, pre=pre)
            return dict(t=f"buffer_load_dwordx4 {vr(hr[n],4)}, v{vH+ph_}, {srd(sWS)}, s{sHc} offen offset:{imm} sc1", tag=f"h{n}",
                        m0=None, ds=None, pre=pre)

        def bg_dma(t, per, g2=None):
            if t < bg.nxt:
                return [], []
            d = None
            sg = bg.nd // 4
            wd_ok = bg.q2 and t >= wd_at[sg] and (t > tg(bar_gap[sg + 4]) if sg < 4 else sg - 4 in bg.free)
            if wd_ok and sg >= 4:
                pass
            elif any(t >= x["ear"] for x in q1):
                d = [x for x in q1 if t >= x["ear"]][0]
                q1.remove(d)
                wd_ok = False
            if wd_ok:
                d = bg.q2.pop(0)
                bg.nd += 1
                if bg.nd % 4 == 0:
                    bg.t_issue[sg] = t
            if d is None:
                for n in bg.hp:
                    if t > T(o["chkA"] if seq[n][1] < 7 else o["chkB"]) and \
                            (bg.lds_ok and t >= T(o["lds_at"]) if n in lset else (hfree[n] < 0 or (g2 is not None and g2 >= hfree[n]))):
                        assert g2 is None or g2 < hu[n] - (16 if n in lset else 2), ("h late", n, g2)
                        d = hload(n)
                        bg.hp.remove(n)
                        break
            if d is None and bg.nz < 14 and t > T(o["chkZ"]):
                i = bg.nz
                if i >= len(lset) or g2 >= hu[lset[i]]:
                    d = dict(t=f"buffer_load_dwordx4 v{vZd}, {srd(sWS)}, s{sZo} offen sc1 lds", tag=f"z{i}",
                             m0=(sZm, 1024 * i), ds=None, pre=[f"s_mov_b32 s{sZo}, {131072*i}"])
                    assert all(g2 < zb for zb, last in zbar.items() if last >= i), (i, g2)
                    bg.nz += 1
            if d is None:
                return [], []
            bg.log.append((d["tag"], t))
            bg.nxt = max(bg.nxt + per, t + per // 2)
            return dma_items(d)

        def run_gaps(S_, key, g0, g1, tf, per):
            lastd = g0 - 1
            for g in range(g0, g1):
                if S_ is G and g in G.light:
                    bg_barrier([k for k, v in bar_gap.items() if v == g][0])
                if g in busy[key]:
                    continue
                if S_.used(g) < 2:
                    s_, m_ = bg_dma(tf(g), per, g if S_ is H else None)
                    if m_:
                        for x in s_:
                            cand = [k for k in range(g - (1 if "m0" in x else 0), lastd, -1) if not S_.s[k]]
                            S_.s[cand[0] if cand else (g - 1 if g - 1 > lastd and g - 1 not in S_.light and S_.used(g - 1) < 2 else g)].append(x)
                        lastd = g
                    S_.m[g] += m_
                while S_ is G and S_.used(g) < 2 and (S_.m[g] or g % 4 == 2):
                    m_ = bg_tr(tf(g))
                    if not m_:
                        break
                    S_.m[g] += m_

        def merge(items, ph_, T0, per):
            out, t, prevk = [], 0, "M"
            ev = sorted(evs[ph_], key=lambda x: x[0])
            for x in items:
                if isinstance(x, Mark):
                    self.log(f"  est {ph_}{t} {x.name}")
                    if x.name in o["only"].split(",") or x.name in ("epiA", "epi"):
                        out += self.stamp(x.name)
                    if x.name == "bE":
                        bg.lds_ok = True
                    if x.name == "epi" and stop1:
                        out.append("s_branch L_fin")
                    continue
                out.append(x)
                tx = txt(x)
                k = kind(tx)
                if k == "M":
                    t += 16
                elif not tx:
                    t += 4 if x.ds == "all" or x.vm else 50
                elif tx == "s_barrier":
                    t += 30
                else:
                    t += 4 * cost(tx) + (28 if prevk == "M" and tx.startswith("v_pk") else 0)
                if k == "G":
                    bg.nxt = max(bg.nxt, T0 + t) + o["perS"]
                prevk = k
                if tx.startswith("s_cmp") or k == "D" or (not tx) or tx == "s_barrier":
                    continue
                while ev and ev[0][0] <= t:
                    its = ev.pop(0)[1]
                    out += its
                    t += 16
                    if isinstance(its[0], I) and "x4" in its[0].t:
                        bg.nxt = max(bg.nxt, T0 + t) + o["perS"]
                s_, m_ = bg_dma(T0 + t + (24 if k == "M" else 0), per) if k == "M" or not (ph_ == "F" and o["fonm"]) else ([], [])
                out += s_ + m_
                t += 0 if k == "M" or not m_ else 4 * (len(s_) + len(m_)) + 8
            for x in ev:
                out += x[1]
            self.log(f"  est {ph_}{t} end")
            return out
        run_gaps(G, "G1", 0, o["gap0"], tg, o["perA0"])
        run_gaps(G, "G1", o["gap0"], NA, tg, o["perA"])
        rec = Rec()
        for n in range(4):
            rec.e(self.epi_pk(vAA + 16 * n, vE))
            rec.e(self.hstore(vAA, n, "hA"))
        rec.mark("epiA")
        codeE = merge(rec.items, "E", TE, o["perE"])
        bg.nxt = min(bg.nxt, TB + 64)
        run_gaps(G, "G1", NA, NA + NBg, tg, o["perB"])
        assert not q1 and len(bg.vis) == 7, (bg.vis, bg.nd, bg.ntr)
        barW[13].vm.append("x1")
        assert T(o["chk1"]) + 400 < tg(bar_gap[13])
        rec = Rec()
        while bg.ntr < 112:
            rec.e(bg_tr(TF))
        for n in range(4):
            rec.e(self.epi_pk(vAA + 16 * n, vE))
            if n == 0:
                rec.e([W(ds="all"), "s_barrier"])
                rec.mark("bE")
            rec.e(self.hstore(vAA, n, "hB"))
            rec.mark(f"e{n}")
        rec.mark("epi")
        self.p = rec
        self.fft_body(lambda name, dt: rec.mark(name))
        self.p = p
        names = [x.name if isinstance(x, Mark) else None for x in rec.items]
        i0, i1, i2 = names.index("h0"), names.index("s1"), names.index(o["fft_head"])
        rds = [x for x in rec.items[i0:i1] if isinstance(x, I) and x.t.startswith("ds_read")]
        rec.items = rec.items[:i2 + 1] + rds + rec.items[i2 + 1:i0] + rec.items[i1:]
        codeF = merge(rec.items, "F", TF, o["perF"])
        bg.nxt = min(bg.nxt, TG + 64)
        run_gaps(H, "G", 0, H.n, lambda g: TG + 16 * g, o["perG"])
        assert not bg.hp and bg.nz == 14

        def nm(t):
            return f"A{t//16}" if t < TE else f"E{t-TE}" if t < TB else f"B{(t-TB)//16}" if t < TF else f"F{t-TF}" if t < TG else f"G{(t-TG)//16}"
        self.log("dma: " + " ".join(f"{a_}@{nm(t)}" for a_, t in bg.log))
        self.log(f"wd read done {[nm(v) for v in bg.t_read.values()]}")

        G.s[NA - 1] += self.stamp("A")
        n_set = n_mid + min(15, max(0, n_all_mid + 15 - o["cpro"]))
        ge, left = G.pour(lq[:n_set], 0, min(T(o["go_ld"]), T(o["pclr"]), wd_at[0]) // 16 - 1, budget=o["budE"])
        assert not left
        ge, cleft = G.pour(lq[n_set:], ge, max(ge, o["gapE"]), budget=o["budE"], window=40)
        dpp = "quad_perm:[2,3,0,1] row_mask:0xf bank_mask:0xf"
        xq = ["s_mov_b32 vcc_lo, 0x33333333", "s_mov_b32 vcc_hi, 0x33333333"]
        xq += [f"v_fmac_f32 v{vA2+j}, v{vSg}, v{vAX+j}" for j in range(16)]
        xq += [f"v_cvt_pk_bf16_f32 v{vAX+j}, v{vA2+2*j}, v{vA2+2*j+1}" for j in range(8)]
        xq += [f"v_permlane16_swap_b32 v{vAX+j}, v{vAX+4+j}" for j in range(4)]
        xq += [f"v_cndmask_b32_dpp v{vAX+8+j}, v{vAX+4+j}, v{vAX+j}, vcc {dpp}" for j in range(4)]
        xq += [] if o["x1st"] else [x1st[0]]
        xq += ["s_not_b64 vcc, vcc"]
        xq += [f"v_cndmask_b32_dpp v{vAX+12+j}, v{vAX+j}, v{vAX+4+j}, vcc {dpp}" for j in range(4)]
        xq += [] if o["x1st"] else [x1st[1]]
        g, left = G.pour(xq, Dg[13] + 6, NA - 1, window=2)
        self.log(f"dft ends at gap {Dg[13]+3}, x1 stored at gap {g}, mid setup done at {ge}")
        g_, left2 = G.pour([f"v_min_u32 v{vFm}, 1, v0", f"v_lshlrev_b32 v{vFm}, 30, v{vFm}"], T(o["go_chk"]) // 16 + 1, min(NA, T(o["x1flag"]) // 16))
        assert not left2
        assert not left and not (Dg[13] + 6 <= T(o["go_chk"]) / 16 <= g + 2) and 16 * g < T(o["x1st"] or o["x1flag"])
        lim = NA + (min(T(o["chk1"]), T(o["pollA"])) - TB) // 16 - 1
        g2_, left = G.pour(lq2, max(ge, o["gapL"]), lim)
        assert not left
        th8 = min(dict(bg.log)[f"h{dset[8]}"], TF)
        g, left = G.pour(cleft, max(ge, o["gapC"]), NA + (th8 - TB) // 16 - 1, window=40)
        self.log(f"{len(cleft)} constant ops left after the early gaps")
        self.log(f"fft constants end at gap {g}, left {len(left)}")
        assert not left
        x0, x1 = vT + 14, vT + 15
        bq = [f"s_add_u32 s{sHst}, s{sHst}, 114688", f"s_add_u32 s{sHst1}, s{sHst1}, 114688",
              f"s_and_b32 s{sI_}, s{sWv}, 1", f"s_lshr_b32 s{sU_}, s{sWv}, 1",
              f"s_mul_i32 s{sZm}, s{sWv}, 14336", f"s_add_u32 s{sZm}, s{sZm}, {ZS}",
              f"v_add_u32 v{vRw}, s{sXm}, v{vL16}",
              f"s_xor_b32 s{sFs}, s{sWv}, 2", f"s_lshl_b32 s{sFs}, s{sFs}, 14", f"s_add_u32 s{sFs}, s{sFs}, {XS}", f"v_add_u32 v{vRr}, s{sFs}, v{vL16}",
              f"s_xor_b32 s{sFs}, s{sWv}, 1", f"s_lshl_b32 s{sFs}, s{sFs}, 14", f"s_add_u32 s{sFs}, s{sFs}, {XS}", f"v_add_u32 v{vR3}, s{sFs}, v{vL16}",
              f"s_lshl_b32 s{sFz}, s{sWv}, 8", f"s_add_u32 s{sFs}, s{sFz}, s{sRt}", f"s_add_u32 s{sFz}, s{sFz}, s{sKd}",
              f"s_lshl_b32 s{sFz}, s{sFz}, 5", f"s_add_u32 s{sFz}, s{sFz}, {FZ}",
              f"s_lshl_b32 s{sFs}, s{sFs}, 7", f"s_add_u32 s{sFs}, s{sFs}, {ZT}", f"v_add_u32 v{vZd}, s{sFs}, v{vZd}",
              f"s_lshl_b32 s{sFs}, s{sI_}, 9", f"s_add_u32 s{sFs}, s{sFs}, {ZS}", f"v_lshrrev_b32 v{x0}, 5, v0",
              f"v_mul_u32_u24 v{x1}, 14336, v{x0}", f"v_add3_u32 v{vZr}, v{vZr}, v{x1}, s{sFs}", f"v_xor_b32 v{vZr1}, 32, v{vZr}",
              f"s_lshr_b32 s{sFs}, s{sRt}, 3", f"s_and_b32 s{sCnt}, s{sRt}, 1",
              f"s_lshl1_add_u32 s{sFs}, s{sFs}, s{sCnt}", f"s_lshl1_add_u32 s{sFs}, s{sFs}, s{sI_}",
              f"s_bfe_u32 s{sCnt}, s{sRt}, 0x20001", f"s_lshl4_add_u32 s{sFs}, s{sFs}, s{sCnt}", f"s_mul_i32 s{sFs}, s{sFs}, {8*896}",
              f"s_lshl1_add_u32 s{sU_}, s{sCt}, s{sU_}", f"s_lshl_b32 s{sCnt}, s{sU_}, 6", f"s_add_u32 s{sFs}, s{sFs}, s{sCnt}",
              f"v_bfe_u32 v{x1}, v0, 2, 3", f"v_lshl_add_u32 v{x1}, v{x0}, 5, v{x1}", f"v_mul_u32_u24 v{x1}, 896, v{x1}",
              f"v_and_b32 v{x0}, 48, v{vL16}", f"v_add3_u32 v{vOo}, v{x0}, v{x1}, s{sFs}",
              f"s_lshl1_add_u32 s{sGo}, s{sRt}, s{sI_}", f"s_lshl_b32 s{sGo}, s{sGo}, 7", f"s_add_u32 s{sGo}, s{sGo}, {GOFF}",
              f"v_and_b32 v{vGa}, 15, v0", f"v_lshlrev_b32 v{vGa}, 2, v{vGa}"]
        assert ZS % 64 == 0
        g, left = G.pour(bq, max(NA, g2_ + 1), NA + NBg)
        assert not left
        bq = [f"s_lshr_b32 s{sZp}, s{sRt}, 3", f"s_lshl_b32 s{sZp}, s{sZp}, 8", f"s_add_u32 s{sZp}, s{sZp}, {FZ//32}",
              f"s_lshl2_add_u32 s{sCnt}, s{sWv}, s{sZp}", f"s_addk_i32 s{sZp}, 224", f"s_lshl2_add_u32 s{sFs}, s{sRt}, {FG//32}",
              f"v_and_b32 v{x0}, 60, v0", f"v_mul_u32_u24 v{x0}, 3, v{x0}", f"v_add3_u32 v{vPz}, v{x0}, v0, s{sCnt}",
              f"v_subrev_u32 v{x0}, 56, v0", f"v_ashrrev_i32 v{x0}, 31, v{x0}",
              f"v_bfi_b32 v{vPz}, v{x0}, v{vPz}, s{sZp}", f"v_subrev_u32 v{x0}, 60, v0", f"v_ashrrev_i32 v{x0}, 31, v{x0}",
              f"v_bfi_b32 v{vPz}, v{x0}, v{vPz}, s{sFs}", f"v_lshlrev_b32 v{vPz}, 5, v{vPz}"]
        g, left = G.pour(bq, max(g + 1, NA + (T(o["chk1"]) - TB) // 16 + 1), NA + NBg)
        self.log(f"g2 address setup ends at gap B{g-NA}")
        assert not left

        for n in range(1, 56):
            if n in lset:
                g = hu[n] - 11
                H.m[g - (g in H.light)].append(I(f"ds_read_b128 {vr(hr[n],4)}, v{vHl} offset:{1024*lset.index(n)}", tag=f"hr{n}", vm=f"h{n}"))
                H.s[hu[n] - 1].insert(0, W(ds=f"hr{n}"))
            else:
                H.s[hu[n] - 1].insert(0, W(vm=f"h{n}"))

        def fi_loc(a, rd):
            if a < 12:
                return (vR3 if rd else vRw), 1024 * a
            return (vR1 if rd else vW1), 4096 * (a - 12)
        for zb, last in zbar.items():
            H.s[zb] += [W(vm=f"z{last}", ds="fw13" if zb == gb else None)] + ([] if zb == gbo else ["s_barrier"])
        g = gb + 1
        for ks in range(14):
            g = max(g, max(zb for zb, last in zbar.items() if zb < NH + 4 * ks - LZ) + 1, NH + 4 * (ks - 8) + 4)
            r_, off = fi_loc(ks, True)
            rr = [I(f"ds_read_b128 {vr(224+4*(ks%8),4,'a')}, v{r_} offset:{off}")]
            rr += [I(f"ds_read_b64_tr_b16 {vr(8*ks+4*jj+2*t_,2,'a')}, v{vZr1 if jj else vZr} offset:{t_*28672+ks*1024}", tag=f"zf{ks}")
                   for jj in range(2) for t_ in range(2)]
            for x in rr:
                while H.used(g) >= 2 or g in H.light or gbo - 9 <= g < gbo:
                    g += 1
                H.m[g].append(x)
            assert g < NH + 4 * ks - 4, (ks, g)
            H.s[NH + 4 * ks - 1].insert(0, W(ds=f"zf{ks}"))
        gzr = g
        for j in range(4):
            H.m[gU[0] + 2 + 2 * j].append(I(f"ds_write_b128 v{vRw}, {vr(accp+16+4*j,4)} offset:{12288+1024*j}", tag="rwp"))
            H.m[gbp + 1 + j].append(I(f"ds_read_b128 {vr(accp+16+4*j,4)}, v{vRr} offset:{12288+1024*j}", tag=f"rrp{j//2}"))
        H.s[gbp] += [W(ds="rwp"), "s_barrier"]
        assert gbp + 12 < gb
        g = max(gbp + 8, gP + 3)
        for hf in range(2):
            H.s[g].append(W(ds=f"rrp{hf}"))
            pq = [f"v_add_f32 v{accp+8*hf+j}, v{accp+8*hf+j}, v{accp+16+8*hf+j}" for j in range(8)]
            pq += [f"v_cvt_pk_bf16_f32 v{accp+8*hf+j}, v{accp+8*hf+2*j}, v{accp+8*hf+2*j+1}" for j in range(4)]
            pq += [f"v_min_u32 v{accp+8*hf}, -2, v{accp+8*hf}"]
            pq += [I(f"buffer_store_dwordx4 {vr(accp+8*hf,4)}, v{vL16}, {srd(sWS)}, s{sPs} offen offset:{1024*hf} sc1", tag="ps")]
            g, left = H.pour(pq, g)
        self.log(f"partial stored at gap G{g}")
        assert int(o["pld"][1:]) > g + 2
        pchk = [f"v_max_u32 v{vPr}, v{accp}, v{accp+4}", f"v_cmp_eq_u32 vcc, -1, v{vPr}"]
        self.slow += ["L_slow_pP:", f"s_mov_b32 s{sSp}, 0", "L_spin_pP:"] + pld + ["s_waitcnt vmcnt(0)"] + pchk + \
            ["s_cbranch_vccz L_back_pP", f"s_sleep {o['sleep']}", f"s_add_u32 s{sSp}, s{sSp}, 1", f"s_cmp_lt_u32 s{sSp}, {o['spin']}",
             "s_cbranch_scc1 L_spin_pP", "s_endpgm"]
        rdo, vRo = acco + 16, vDr + 3
        for j in range(4):
            H.m[gbo - 9 + 2 * j].append(I(f"ds_write_b128 v{vW1}, {vr(acco+16+4*j,4)} offset:{8192+4096*j}", tag="rwo"))
            H.m[max(gzr, gbo) + 1 + j // 2].append(I(f"ds_read_b128 {vr(rdo+4*j,4)}, v{vRo} offset:{8192+4096*j}", tag="rro"))
        assert gbo - 9 >= gU[1] + 2
        H.s[gbo] += [W(ds="rwo"), "s_barrier"]
        st = vS32
        x0, x1, x2, x3, ph, stp = range(vS32 + 18, vS32 + 24)
        vq = [f"v_add_u32 v{vHl}, s{sZm}, v{vL16}", f"s_lshl1_add_u32 s{sT0}, s{sU_}, s{sI_}", f"s_mov_b32 s{sT2}, {STEP448}",
              f"v_and_b32 v{x0}, 15, v0", f"v_mul_u32_u24 v{vOw}, 80, v{x0}",
              f"v_lshl_add_u32 v{x0}, s{sT0}, 4, v{x0}", f"v_mul_lo_u32 v{stp}, v{x0}, s{sT2}",
              f"v_lshrrev_b32 v{x1}, 4, v0", f"v_lshlrev_b32 v{x2}, 1, v{x1}",
              f"v_mul_lo_u32 v{ph}, v{x2}, v{stp}", f"v_lshlrev_b32 v{x2}, 4, v{stp}"]
        vq += self.trig(st + 16, x2, x3)
        vq += [f"v_mul_lo_u32 v{x2}, v{stp}, 7"]
        for ks in range(2):
            for jj in range(4):
                vq += [f"v_alignbit_b32 v{x3}, s{s7f}, v{ph}, 9", f"v_cos_f32 v{st+8*ks+2*jj}, v{x3}",
                       f"v_sin_f32 v{st+8*ks+2*jj+1}, -v{x3}"]
                if not (jj == 3 and ks == 1):
                    vq += [f"v_add_u32 v{ph}, v{ph}, v{x2 if jj & 1 else stp}"]
        vq += [f"v_mul_f32 v{st+17}, -2.0, v{st+16}", f"v_add_f32 v{st+16}, v{st+16}, v{st+16}"]
        vq += self.rec_pack(st, 0, own_fi[0]) + self.rec_pack(st, 1, own_fi[1])
        vq += [f"v_lshlrev_b32 v{x2}, 31, v{x0}", f"v_or_b32 v{x2}, 0x3f803f80, v{x2}", f"v_add_u32 v{x3}, -1, v{x1}",
               f"v_ashrrev_i32 v{x3}, 31, v{x3}", f"v_bfi_b32 v{own_fi[0]}, v{x3}, v{x2}, v{own_fi[0]}",
               f"v_lshl_add_u32 v{vW1}, s{sWv}, 10, v{vL16}", f"v_xor_b32 v{vR1}, 0x400, v{vW1}", f"v_xor_b32 v{vRo}, 0x800, v{vW1}",
               f"s_mul_i32 s{sT2}, s{sWv}, 2560", f"s_add_u32 s{sT2}, s{sT2}, {FS}", f"s_lshl_b32 s{sT0}, s{sI_}, 5",
               f"v_lshl_add_u32 v{vOw}, v{x1}, 3, v{vOw}", f"v_add_u32 v{vOw}, s{sT2}, v{vOw}",
               f"v_subrev_u32 v{vOr+1}, s{sT0}, v{vOw}", f"v_add_u32 v{vOw}, s{sT0}, v{vOw}",
               f"v_lshrrev_b32 v{x2}, 2, v0", f"v_mul_u32_u24 v{x2}, 80, v{x2}", f"v_and_b32 v{x3}, 48, v{vL16}",
               f"v_add3_u32 v{vOr}, v{x2}, v{x3}, s{sT2}", f"s_mov_b32 s{sT3}, {64*896}"]

        def fwr(a):
            r_, off = fi_loc(a, False)
            return I(f"ds_write_b128 v{r_}, {vr(own_fi[a],4)} offset:{off}", tag=f"fw{a}")
        g, left = H.pour(vq, 0)
        qq = [fwr(0), fwr(1)]
        for a in range(2, 14):
            qq += self.rec_step(st, a, own_fi[a]) + [fwr(a)]
        g, left = H.pour(qq, g + 1, gb - 6)
        self.log(f"finv done at gap G{g}")
        assert not left
        g = max(gzr, gbo) + 7
        H.s[g].append(W(vm="g", ds="rro"))
        g, oleft = H.pour([f"v_sub_f32 v{vOG+jj}, 1.0, v{vG+jj}" for jj in range(2)] +
                          [f"v_add_f32 v{acco+j}, v{acco+j}, v{rdo+j}" for j in range(16)], g)
        self.log(f"own reduction done at G{g}, left {len(oleft)}")
        gc_ = o["pchk"]
        H.s[gc_ - 2].append(W(vm="pl"))
        H.v[gc_ - 2] += pchk
        H.s[gc_].append(Lab("s_cbranch_vccnz L_slow_pP", "L_back_pP:"))

        for key, S_, off in (("st1", G, 0), ("st2", G, NA), ("st3", H, 0)):
            for x in filter(None, o[key].split(",")):
                S_.s[int(x) + off] += self.stamp("@" + x)
        e(W(vm="w0", ds="fw"))
        e("s_barrier")
        e([xread(0, 0)] + wread(0) + [xread(0, 1), xread(0, 2), xread(0, 3)] + wread(1) + wread(2) + [fread(0, 0), fread(0, 1)])
        e(self.stamp("data0"))
        e(W(ds=["wf0", "xr0_1"]))
        G.emit(p, 0, NA)
        e(codeE)
        G.emit(p, NA)
        e(self.stamp("B"))
        e(codeF)
        e(self.stamp("fft"))
        if o["stop"] == "fft":
            e("s_branch L_fin")
        H.s[NH - 1] += self.stamp("g2h")
        e(W(vm="h0"))
        H.emit(p)
        e(self.stamp("g2"))
        pu = accp + 16
        e(oleft)
        for k in range(8):
            e([f"v_lshlrev_b32 v{pu+2*k}, 16, v{accp+k}", f"v_and_b32 v{pu+2*k+1}, 0xffff0000, v{accp+k}"])
        for jj in range(2):
            ks_ = range(4 * jj, 4 * jj + 4)
            sel = "op_sel:[0,1] op_sel_hi:[1,1]" if jj else "op_sel_hi:[1,0]"
            sel3 = "op_sel:[0,1,0] op_sel_hi:[1,1,1]" if jj else "op_sel_hi:[1,0,1]"
            for k in ks_:
                e(f"v_pk_add_f32 {vr(acco+2*k,2)}, {vr(acco+2*k,2)}, {vr(pu+2*k,2)}")
            for k in ks_:
                e(f"v_pk_mul_f32 {vr(acco+2*k,2)}, {vr(acco+2*k,2)}, {vr(vOG,2)} {sel}")
            for k in ks_:
                e(f"v_pk_fma_f32 {vr(acca+2*k,2)}, {vr(acca+2*k,2)}, {vr(vG,2)}, {vr(acco+2*k,2)} {sel3}")
            for k in ks_:
                e(f"v_cvt_pk_bf16_f32 v{accp+8+k}, v{acca+2*k}, v{acca+2*k+1}")
            e([f"ds_write_b64 v{vOw}, {vr(accp+8+4*jj,2)} offset:{1280*jj}",
               f"ds_write_b64 v{vOr+1}, {vr(accp+10+4*jj,2)} offset:{1280*jj+32}",
               I(f"ds_read_b128 {vr(rdo+4*jj,4)}, v{vOr} offset:{1280*jj}", tag=f"or{jj}")])
        for jj in range(2):
            e(I(f"buffer_store_dwordx4 {vr(rdo+4*jj,4)}, v{vOo}, {srd(sO)}, {'s%d' % sT3 if jj else 0} offen {o['outfl'].replace('+',' ')}".strip(),
                ds=f"or{jj}"))
        p.raw("L_fin:")
        self.dump_stamps()
        p.raw("L_end:")
        p.raw("s_endpgm")

        p.restore(snap_aux)
        self.aux(sj, sidx)
        if o["align"] and not o["slowend"]:
            i = p.out.index("@SLOW@")
            p.out[i:i + 1] = self.slow
        else:
            for l in self.slow:
                p.raw(l)
        p.raw("L_codeend:")
        return self.finish()

    def dump_stamps(self):
        if not self.o["stamps"]:
            return
        p = self.p
        p.raw("s_waitcnt vmcnt(0)")
        p.e(self.stamp("end"))
        p.raw("s_waitcnt lgkmcnt(0)")
        p.e([f"s_lshl_b32 s{sT0}, s2, 2", f"s_add_u32 s{sT0}, s{sT0}, s{sWv}", f"s_lshl_b32 s{sT0}, s{sT0}, 6",
             f"s_add_u32 s{sT0}, s{sT0}, {STAMP}", "s_mov_b64 exec, 1"])
        p.e([f"s_memrealtime s[{sT2}:{sT3}]"])
        for k in range(self.nst):
            p.e([f"v_mov_b32 v2, s{sX if k == self.nst-1 else sST+2*k}", f"buffer_store_dword v2, off, {srd(sWS)}, s{sT0} offset:{4*k}"])
        p.raw("s_waitcnt lgkmcnt(0)")
        p.e([f"v_mov_b32 v2, s{sT2}", f"buffer_store_dword v2, off, {srd(sWS)}, s{sT0} offset:60"])

    def aux_tok(self, tok):
        p = self.p
        e = p.e
        sA, vt16 = sRt, 2
        vx, vw, vd = 12, 13, 14

        def masked(lo, hi, ops):
            m = ((1 << hi) - 1) ^ ((1 << lo) - 1)
            e([f"s_mov_b32 exec_lo, {m & 0xffffffff:#x}", f"s_mov_b32 exec_hi, {m >> 32:#x}"] + ops + ["s_mov_b64 exec, -1"])
        if tok[0] == "x":
            a, b = int(tok[1]), int(tok[2])
            masked(0, 16 * (b - a + 1), [f"buffer_load_dword v15, v{vx}, {srd(sX)}, 0 offen offset:{128*a}"])
        elif tok[0] in "wv":
            a, b = int(tok[1]), int(tok[2])
            off = 128 if tok[0] == "v" else 0
            masked(8 * a, 8 * (b + 1), [f"buffer_load_dword v15, v{vw}, {srd(q)}, 0 offen offset:{off}" for q in (sG, sU)])
        elif tok[0] == "d":
            e(f"s_mov_b32 s{sT1}, {57344*int(tok[1])}")
            masked(0, 49, [f"buffer_load_dword v15, v{vd}, {srd(sD)}, s{sT1} offen"])
        elif tok == "clr":
            e([f"v_mov_b32 v{4+k}, 0" for k in range(4)] + [f"s_mul_i32 s{sT1}, s{sA}, {FEND//32}"])
            for k in range(2):
                e([I(f"buffer_store_dwordx4 v[4:7], v{vt16}, {srd(sWS)}, s{sT1} offen sc1", tag="clr"), f"s_addk_i32 s{sT1}, 4096"])
        elif tok == "go":
            e([f"s_lshl_b32 s{sT1}, s{sA}, 3", f"v_mov_b32 v8, 1", f"v_mov_b32 v9, s{sT0}", W(vm="clr"), "s_barrier",
               "s_mov_b64 exec, 1", f"buffer_store_dword v8, v9, {srd(sDBG)}, s{sT1} offen sc1", "s_mov_b64 exec, -1"])
        elif tok == "WT":
            sq, skg = sRg, sC
            e([f"s_lshr_b32 s{sq}, s{sA}, 3", f"s_and_b32 s{skg}, s{sA}, 7",
               f"s_lshl_b32 s{sT1}, s{sq}, 6", f"s_add_u32 s{sT1}, s{sT1}, s{skg}", f"s_mul_i32 s{sT1}, s{sT1}, 3600"])
            e([f"v_lshrrev_b32 v16, 5, v0", f"v_lshl_add_u32 v17, s{sWv}, 1, v16", f"v_mul_u32_u24 v17, 28, v17",
               f"v_and_b32 v18, 31, v0", f"v_add3_u32 v17, v17, v18, v16", f"v_add_u32 v17, -1, v17", f"v_max_i32 v17, 0, v17",
               f"v_lshlrev_b32 v17, 4, v17", f"s_mul_i32 s{sT2}, s{sWv}, 1120"])
            for j in range(8):
                for part in range(2):
                    e([f"s_add_u32 m0, s{sT2}, {(8*part+j)*RS}", "s_nop 0",
                       I(f"buffer_load_dwordx4 v17, {srd(sWr if part == 0 else sWi)}, s{sT1} offen lds", tag="wl")])
                e(f"s_add_u32 s{sT1}, s{sT1}, {64*450}")
        else:
            raise SystemExit(tok)

    def aux_head(self, sj, sidx):
        p, o = self.p, self.o
        e = p.e
        sA, vt16 = sRt, 2
        vx, vw, vd = 12, 13, 14
        e(["s_cmp_ge_u32 s2, 256", "s_cbranch_scc1 L_end"])
        e([f"s_lshl2_add_u32 s{sA}, s{sj}, s{sidx}", f"s_sub_u32 s{sA}, s{sA}, 28",
           f"s_lshl2_add_u32 s{sCnt}, s{sA}, s{sWv}",
           f"v_and_b32 v4, 15, v0", f"v_lshl_add_u32 v4, s{sCnt}, 4, v4", f"v_mul_u32_u24 v4, 896, v4",
           f"v_lshrrev_b32 v5, 4, v0", f"v_lshl_add_u32 v{vx}, v5, 7, v4",
           f"s_lshr_b32 s{sT2}, s{sj}, 1", f"s_and_b32 s{sT3}, s{sCnt}, 15", f"s_lshl4_add_u32 s{sT2}, s{sT2}, s{sT3}",
           f"s_mul_i32 s{sT2}, s{sT2}, 3584", f"s_and_b32 s{sT3}, s{sj}, 1", f"s_mul_i32 s{sT3}, s{sT3}, {7*256}",
           f"s_add_u32 s{sT2}, s{sT2}, s{sT3}",
           f"v_lshrrev_b32 v4, 3, v0", f"v_mul_u32_u24 v4, {64*3584}, v4", f"v_and_b32 v5, 7, v0", f"v_min_u32 v5, 6, v5",
           f"v_lshl_add_u32 v4, v5, 8, v4", f"v_add_u32 v{vw}, s{sT2}, v4"])
        for s, n in ((sX, 2048 * 896), (sG, 448 * 3584), (sU, 448 * 3584)):
            e([f"s_mov_b32 s{s+2}, {n}", f"s_mov_b32 s{s+3}, 0x20000"])
        p.raw("s_waitcnt lgkmcnt(0)")
        for s, off in ((sWS, 80), (sWr, 8), (sWi, 16), (sD, 48), (sGw, 56), (sDBG, 72)):
            e(f"s_load_dwordx2 s[{s}:{s+1}], s[0:1], {off}")
        self.toks = o["apf"].split(",")
        while self.toks[0][0] in "xwv":
            self.aux_tok(self.toks.pop(0))

    def aux(self, sj, sidx):
        p, o = self.p, self.o
        e = p.e
        p.raw("L_aux:")
        self.aux_head(sj, sidx)
        sA, vt16 = sRt, 2
        sq, skg = sRg, sC
        e([f"v_lshlrev_b32 v{vL16}, 4, v0", f"s_lshl_b32 s{sT0}, s{sWv}, 10", f"v_add_u32 v{vt16}, s{sT0}, v{vL16}",
           f"s_bfe_u32 s{sT1}, s{sCnt}, 0x10004", f"s_bfe_u32 s{sT2}, s{sCnt}, 0x20005", f"s_lshl2_add_u32 s{sT1}, s{sT1}, s{sT2}",
           f"s_and_b32 s{sCnt}, s{sCnt}, 15", f"s_lshl4_add_u32 s{sCnt}, s{sT1}, s{sCnt}",
           f"s_mul_i32 s{sCnt}, s{sCnt}, 49", f"v_add_u32 v4, s{sCnt}, v0", f"v_mul_u32_u24 v5, 9363, v4", f"v_lshrrev_b32 v5, 22, v5",
           f"v_mul_u32_u24 v5, 57344, v5", f"v_lshl_add_u32 v14, v4, 7, v5"])
        for s, n in ((sWr, 2048 * 450), (sWi, 2048 * 450), (sD, 1792 * 896), (sGw, 896), (sDBG, 256), (sWS, WSEND)):
            e([f"s_mov_b32 s{s+2}, {n}", f"s_mov_b32 s{s+3}, 0x20000"])
        e([f"s_mov_b32 s{sK}, 0xbfb8aa3b", f"s_movk_i32 s{s7f}, 0x7f"])
        p.raw("s_waitcnt lgkmcnt(0)")
        e(self.astamp("head"))
        late = self.toks[self.toks.index("G") + 1:]
        for t in self.toks[:self.toks.index("G")]:
            self.aux_tok(t)
            if t in ("clr", "go", "WT"):
                e(self.astamp(t))
        vo, vg = 3, 8
        xb, gb = 32, 96
        e([f"s_lshr_b32 s{sT1}, s{sA}, 3", f"s_lshl_b32 s{sT1}, s{sT1}, 1", f"s_and_b32 s{sT2}, s{sA}, 1",
           f"s_add_u32 s{sT1}, s{sT1}, s{sT2}", f"s_lshl_b32 s{sT1}, s{sT1}, 2", f"s_add_u32 s{sT1}, s{sT1}, s{sWv}",
           f"s_lshl_b32 s{sT1}, s{sT1}, 3", f"s_bfe_u32 s{sT2}, s{sA}, 0x20001", f"s_add_u32 s{sT1}, s{sT1}, s{sT2}",
           f"s_lshl_b32 s{sT1}, s{sT1}, 3",
           f"v_lshrrev_b32 v4, 5, v0", f"v_bfe_u32 v5, v0, 2, 3", f"v_lshl_add_u32 v4, v4, 5, v5", f"v_add_u32 v4, s{sT1}, v4",
           f"v_and_b32 v{vg}, 48, v{vL16}", f"v_mul_u32_u24 v4, 896, v4", f"v_add_u32 v{vo}, v4, v{vg}"])
        e([f"v_and_b32 v{vPg}, 31, v0", f"v_lshlrev_b32 v{vPg}, 3, v{vPg}"])
        gol = f"buffer_load_dword v{vP}, v{vPg}, {srd(sDBG)}, 0 offen sc1"
        vra, vwa = 9, 10
        e([f"v_and_b32 v4, 7, v0", f"v_lshrrev_b32 v5, 7, v{vt16}", f"v_lshrrev_b32 v6, 1, v4", f"v_mul_u32_u24 v{vra}, 1120, v6",
           f"v_and_b32 v6, 1, v0", f"v_mul_u32_u24 v6, 496, v6", f"v_add3_u32 v{vra}, v{vra}, v6, 16",
           f"v_add_u32 v6, v4, v5", f"v_lshl_add_u32 v{vra}, v6, 1, v{vra}", f"v_add_u32 v17, {8*RS}, v{vra}",
           f"v_lshlrev_b32 v{vwa}, 13, v5", f"v_lshl_add_u32 v{vwa}, v4, 4, v{vwa}",
           f"s_lshr_b32 s{sT1}, s{skg}, 1", f"s_lshl_b32 s{sT1}, s{sT1}, 2", f"s_add_u32 s{sT1}, s{sT1}, s{sq}",
           f"s_lshl_b32 s{sT1}, s{sT1}, 1", f"s_and_b32 s{sT2}, s{skg}, 1", f"s_add_u32 s{sT1}, s{sT1}, s{sT2}",
           f"s_lshl_b32 s{sT1}, s{sT1}, 7", f"s_add_u32 s{sT1}, s{sT1}, {WT}", f"s_add_u32 s{sT2}, s{sT1}, 4096"])
        e(W(vm="wl"))
        e("s_barrier")
        e(self.astamp("wl"))
        def rd(n):
            return [I(f"ds_read_u16 v{160+8*(n&1)+j}, v{17 if n & 1 else vra} offset:{j*RS+64*(n>>1)}", tag=f"g{n}") for j in range(8)]
        e(rd(0))
        for n in range(16):
            part = n & 1
            nx = rd(n + 1) if n < 15 else []
            e(nx[:6])
            if n == 14:
                e([f"v_cmp_gt_u32 vcc, 8192, v{vwa}", "s_nop 1", f"v_cndmask_b32 v{vwa}, 2.0, v{vwa}, vcc"])
            e(W(ds=f"g{n}"))
            e(nx[6:])
            for j in range(4):
                e(f"v_lshl_or_b32 v{176+4*part+j}, v{160+8*part+2*j+1}, 16, v{160+8*part+2*j}")
            e([f"buffer_store_dwordx4 {vr(176+4*part,4)}, v{vwa}, {srd(sWS)}, s{sT1+part} offen sc1",
               f"s_add_u32 s{sT1+part}, s{sT1+part}, {32*8192}"])
        p.reset()
        e(self.astamp("gath"))
        e(I(gol, tag="go"))
        for t in late:
            self.aux_tok(t)
        for k in range(14):
            e(I(f"buffer_load_dwordx4 {vr(xb+4*k,4)}, v{vo}, {srd(sX)}, 0 offen offset:{64*k}", tag="gx"))
            e(I(f"buffer_load_dwordx4 {vr(gb+4*k,4)}, v{vg}, {srd(sGw)}, 0 offen offset:{64*k}", tag="gx"))
            if k == 3:
                e(self.poll_check("goa", "go", gol, vP))
                e(["s_barrier", f"s_lshl_b32 s{sT3}, s{sA}, 7", f"s_add_u32 s{sT3}, s{sT3}, {FAUX}",
                   f"s_cmp_lg_u32 s{sWv}, 0", f"s_cselect_b32 s{sT2}, {OOB}, 0", f"v_mov_b32 v16, s{sT2}",
                   "s_mov_b64 exec, 1", f"buffer_store_dword v{vP}, v16, {srd(sWS)}, s{sT3} offen sc1", "s_mov_b64 exec, -1"])
                e(self.astamp("faux"))
        e(W(vm="gx"))
        for k in range(4):
            e(f"v_mov_b32 v{4+k}, 0")
        for k in range(56):
            e(f"v_dot2_f32_bf16 v{4+k%4}, v{xb+k}, v{gb+k}, v{4+k%4}")
        e([f"v_add_f32 v4, v4, v5", f"v_add_f32 v6, v6, v7", f"v_add_f32 v4, v4, v6",
           f"v_add_f32_dpp v4, v4, v4 quad_perm:[1,0,3,2] row_mask:0xf bank_mask:0xf",
           f"v_add_f32_dpp v4, v4, v4 quad_perm:[2,3,0,1] row_mask:0xf bank_mask:0xf",
           f"v_mul_f32 v4, s{sK}, v4", f"v_exp_f32 v4, v4", f"v_add_f32 v4, 1.0, v4", f"v_rcp_f32 v4, v4",
           f"v_and_b32 v5, 60, v0",
           f"s_lshl_b32 s{sT1}, s{sA}, 2", f"s_add_u32 s{sT1}, s{sT1}, s{sWv}", f"s_lshl_b32 s{sT1}, s{sT1}, 6",
           f"s_add_u32 s{sT1}, s{sT1}, {GOFF}",
           f"buffer_store_dword v4, v5, {srd(sWS)}, s{sT1} offen sc1"])
        p.raw("s_waitcnt vmcnt(0)")
        p.reset()
        e(["s_barrier", f"s_addk_i32 s{sT3}, {FG-FAUX}",
           "s_mov_b64 exec, 1", f"buffer_store_dword v{vP}, v16, {srd(sWS)}, s{sT3} offen sc1", "s_mov_b64 exec, -1"])
        if o["stamps"]:
            e(self.astamp("fg"))
            p.raw("s_waitcnt lgkmcnt(0)")
            e([f"s_lshl_b32 s{sT1}, s2, 2", f"s_add_u32 s{sT1}, s{sT1}, s{sWv}", f"s_lshl_b32 s{sT1}, s{sT1}, 6",
               f"s_add_u32 s{sT1}, s{sT1}, {STAMP}", "s_mov_b64 exec, 1"])
            for k in range(len(self.anames)):
                e([f"v_mov_b32 v2, s{sST+2*k}", f"buffer_store_dword v2, off, {srd(sWS)}, s{sT1} offset:{4*k}"])
            e("s_mov_b64 exec, -1")
        e([f"s_cmp_lg_u32 s{sA}, 4", "s_cbranch_scc1 L_end"])
        if o["stop"] == "gemm1":
            e("s_branch L_end")
        e([f"s_movk_i32 s{sKd}, 224", f"s_mov_b32 s{sSc}, {fbits(1.0/(2048*448))}"])
        e(self.fft_consts(vAB + 32))
        sc, vv = self.poll1_addr(vT + 14, vT + 15, sT1, sT2)
        e(sc)
        e(vv)
        pl = f"buffer_load_dword v{vPr}, v{vPa}, {srd(sWS)}, 0 offen sc1"
        e(I(pl, tag="p1"))
        e(self.fft_scalars())
        e(self.fft_setup_regs())
        e(self.fft_addr2())
        e(self.poll_check("p1a", "p1", pl, vPr))
        e(self.fft_loads())
        self.fft_body(lambda n, dt: None)
        e([f"s_lshl_b32 s{sT0}, s{sWv}, 13", f"s_add_u32 s{sT0}, s{sT0}, {FZ+224*32}"])
        e(self.flag_store(sT0, ["zre", "zim"]))
        p.raw("s_endpgm")

    def pages(self, lines):
        import subprocess
        i0, i1 = lines.index("L_body:"), lines.index("L_fin:")
        body = [l for l in lines[i0:i1]]
        src = '.amdgcn_target "amdgcn-amd-amdhsa--gfx950"\n.text\nL_x:\n' + "\n".join(re.sub(r"L_slow_\w+|L_fin", "L_x", l) for l in body) + "\n"
        r = subprocess.run(["llvm-mc", "-triple", "amdgcn-amd-amdhsa", "-mcpu=gfx950", "-show-encoding"],
                           input=src, capture_output=True, text=True)
        sizes = [l.count(",", l.index("encoding:")) + 1 for l in r.stdout.split("\n") if "encoding:" in l]
        out, a, k, nm, npad, rep_ = [], self.o["bodyoff"], 0, 0, 0, []
        total = a + sum(sizes)
        npg = (total + 24) // 4096
        first = self.o["pads"]
        page, pend = 0, False
        for l in body:
            out.append(l)
            if l.endswith(":"):
                continue
            a += sizes[k]
            k += 1
            nm += l.startswith("v_mfma")
            if a // 4096 > page:
                page = a // 4096
                rep_.append(nm)
                pend = self.o["pads"] and page >= first
            if pend and (l.startswith("v_mfma") or a % 4096 >= 40) and "exec" not in l:
                out += [f"L_pad{npad}:", f"s_cbranch_execz {'L_padret' if page + 4 > npg else 'L_pad%d' % (npad + 4)}"]
                a += 4
                npad += 1
                pend = False
        assert k == len(sizes) and (not self.o["pads"] or npad == npg - first + 1 >= 4), (k, len(sizes), npad)
        self.log(f"body bytes {a - self.o['bodyoff']}, page starts after mfma # {rep_}")
        return lines[:i0] + out + lines[i1:]

    def finish(self):
        out = self.p.out
        d = self.o["diag"].split(",")
        if "plainst" in d:
            out = [l.replace(" sc1", "") if l.startswith("buffer_store_dwordx4") else l for l in out]
        if "plainld" in d:
            out = [l.replace(" sc1", "") if l.startswith("buffer_load_dwordx4") else l for l in out]
        if "nopoll" in d:
            out = ["s_nop 0" if l.startswith("s_cbranch_vccnz L_slow") or l.startswith("s_cbranch_scc0 L_slow") else l for l in out]
        if "nowd" in d:
            out = [f"v_mov_b32 v{vDd}, 2.0" if l.startswith(f"v_add3_u32 v{vDd}, v{vDd},") else l for l in out]
        if "nohl" in d:
            out = [f"v_mov_b32 v{vXd}, 2.0" if l == f"v_add_u32 v{vXd}, s{sCnt}, v{vL16}" else l for l in out]
        if "noz" in d:
            out = [f"v_mov_b32 v{vY+1}, 2.0" if l == f"v_add_u32 v{vY+1}, s{sFs}, v{vY+1}" else l for l in out]
        if "halfm" in d:
            k_, o2 = 0, []
            for l in out:
                if l.startswith("v_mfma") and not l.endswith(", 0"):
                    k_ += 1
                    if k_ % 4 == 0:
                        continue
                o2.append(l)
            out = o2
        if "nomfma" in d:
            out = ["s_nop 7" if l.startswith("v_mfma_f32_32x32") else l for l in out]
        if "m16" in d:
            o2, cnt, i = [], {}, 0
            while i < len(out):
                l = out[i]
                m = re.match(r"v_mfma_f32_32x32x16_bf16 v\[(\d+):\d+\], (\S+), (\S+), (\S+)", l)
                if not m:
                    o2.append(l); i += 1
                    continue
                b = int(m.group(1))
                if m.group(4) == "0":
                    cnt[b] = 0
                k = cnt[b]; cnt[b] += 1
                j = i + 1
                while j < len(out) and not out[j].startswith("v_mfma") and j - i < 12:
                    j += 1
                gap = out[i + 1:j]
                if j - i >= 12:
                    gap, j = [], i + 1
                tot = sum(cost(x) for x in gap); acc = 0; cutp = 0
                for q, x in enumerate(gap):
                    if acc >= (tot + 1) // 2 and not x.startswith("s_cselect") and not x.startswith("s_cbranch") and "exec" not in x and "exec, 1" not in gap[q-1]:
                        break
                    acc += cost(x); cutp = q + 1
                def mm(blk, A, B):
                    dd = f"v[{b+4*blk}:{b+4*blk+3}]"
                    return f"v_mfma_f32_16x16x32_bf16 {dd}, {A}, {B}, {'0' if k < 2 else dd}"
                A, B = m.group(2), m.group(3)
                A0, B0 = A, B
                pa, pb = cnt.get("p", (A, B))
                if "m16b" in d:
                    mb = re.match(r"a\[(\d+):", B); ma = re.match(r"a\[(\d+):", A)
                    if mb:
                        q_ = max(int(mb.group(1)) - 8, int(mb.group(1)) & 4); B0 = f"a[{q_}:{q_+3}]"
                        if "100" and b >= vAB and b != vAB + 16 and int(mb.group(1)) < 216:
                            q_ = int(mb.group(1)) + 8; B0 = f"a[{q_}:{q_+3}]"
                    elif ma:
                        q_ = max(int(ma.group(1)) - 8, 0); A0 = f"a[{q_}:{q_+3}]"
                    else:
                        A0 = pa
                cnt["p"] = (A, B)
                o2 += [mm(k & 1, A0, B0)] + gap[:cutp] + [mm(2 + (k & 1), A, B)] + gap[cutp:]
                i = j
            out = o2
        if "nobar" in d:
            out = ["s_nop 0" if l.startswith("s_barrier") else l for l in out]
        if "novm" in d:
            out = [(re.sub(r" vmcnt\(\d+\)", " vmcnt(63)", l) if l.startswith("s_waitcnt") and "vmcnt(0)" not in l else l) for l in out]
        lines, nfix = check_hazards(out)
        lines = self.pages(lines)
        self.log(f"{len(lines)} lines, {nfix} hazard nops inserted, {getattr(self.p,'n_sat',0)} lgkm saturation waits")
        ref = open("gated_mix__spectral_gfnet__swiglu_ffn__prompt.s.ref").read().split("\n")
        head = [l for l in ref if l.startswith(";") and "@launch" not in l and "Override" not in l and "grid=ceil" not in l]
        s = "\n".join(head) + "\n"
        s += f"; @launch grid=(256,1,1) block=(256,1,1) lds={LDS_BYTES}\n"
        s += '.amdgcn_target "amdgcn-amd-amdhsa--gfx950"\n.text\n'
        if self.o["align"]:
            s += ".p2align 12\n"
        s += f".globl {NAME}\n.p2align 8\n.type {NAME},@function\n{NAME}:\n"
        s += "\n".join(lines) + "\n"
        s += f"""s_endpgm
.section .rodata,"a"
.p2align 6
.amdhsa_kernel {NAME}
  .amdhsa_next_free_vgpr 512
  .amdhsa_next_free_sgpr 102
  .amdhsa_accum_offset 256
  .amdhsa_group_segment_fixed_size 0
  .amdhsa_kernarg_size 88
  .amdhsa_user_sgpr_count 2
  .amdhsa_user_sgpr_kernarg_segment_ptr 1
  .amdhsa_system_sgpr_workgroup_id_x 1
  .amdhsa_float_denorm_mode_32 3
.end_amdhsa_kernel
"""
        return s


def parse_opts(args):
    kw = {}
    for a in args:
        k, v = a.split("=")
        assert k in DEF, k
        if isinstance(DEF[k], bool):
            v = v not in ("0", "False")
        elif isinstance(DEF[k], int):
            v = int(v)
        kw[k] = v
    return kw


if __name__ == "__main__":
    out = sys.argv[1]
    g = Gen(**parse_opts(sys.argv[2:]))
    s = g.build()
    open(out, "w").write(s)
    print("; stamps:", g.stamp_names, file=sys.stderr)
```

```python
import sys, struct, re
from asmlib import *

NAME = "gated_mix__spectral_gfnet__swiglu_ffn__prompt_kernel"

FX1 = 0
FAUX = FX1 + 896 * 128
FG = FAUX + 32 * 128
FH = 1024 * 128
FZ = 1280 * 128
FEND = 2048 * 128
GOFF = FEND
STAMP = FEND + 65536
X1T = 1 << 20
ZT = X1T + 448 * 4096
WT = ZT + 448 * 4096
HH = WT + 225 * 8192
PP = HH + 64 * 114688
WSEND = PP + 1024 * 2048
OOB = 0x40000000

WSLOT = 16640
NWS = 5
XS = NWS * WSLOT
FS = XS + 65536
IMG = FS
EXC = 8192
ZS = XS - 57344
RED = XS
LDS_BYTES = 163840

sFx, s8k, sHst1 = 0, 1, 3
sX, sG, sU, sD, sWS, sO, sDBG = 4, 8, 12, 16, 20, 24, 28
sWv, sRg, sC, sRt, sCt, sKd = 32, 33, 34, 35, 36, 37
sWm, sXm = 38, 39
sT0, sT1, sT2, sT3 = 40, 41, 42, 43
sK = 44
s7f = 46
sCnt = 47
sXo, sWo, sDo = 48, 55, 62
sPe, sHc, sPs, sPl, sFs, sSp = 72, 73, 74, 75, 76, 77
sHst, sRot2 = 69, 70
sSc = 71
sFh = 79
sWr, sWi, sGw = 60, 64, 56
RS = 4480
sZs, sSw = 48, 49
sST = 80

vL16 = 1
vXd, vXr, vDr, vWd, vTr, vDd, vY = 2, 6, 10, 14, 16, 18, 22
vFr, vSg, vX1g, vPa, vP, vPr, vPg, vPw = 24, 25, 26, 27, 28, 29, 30, 31
vFm = vPg
vWF = 32
vT1c, vT1s, vT2c, vT2s = 48, 56, 64, 72
vAX, vAA, vAB, vS32, vT = 80, 96, 160, 224, 232
aX, aC64, aS64, aN64, aC32 = 0, 224, 232, 240, 248
STEP448 = 9586981
fA = vAA
fDr, fDi, fTm = vAA + 32, vAA + 40, vAA + 48
fBr, fBi, fBn = vAX, vAX + 4, vAX + 8
fWraw = vT
fWr, fWi = vWF, vWF + 8
fa0, fim, fx = vT + 8, vT + 12, vT + 13
vE = vT + 16


def srd(s):
    return f"s[{s}:{s+3}]"


def vr(b, n, c="v"):
    return f"{c}[{b}:{b+n-1}]"


def fbits(x):
    return "0x%08x" % struct.unpack("<I", struct.pack("<f", x))[0]


def txt(x):
    return x.t if isinstance(x, I) else (x if isinstance(x, str) else "s_nop 0")


DEF = dict(rot1="q0325", LA=3, npre=12, npro=16, slowend=0, cpro=0, n1=4, align=1, pf=1,
           perA=64, perA0=48, gap0=100, hstart=14, fgap=0, tlb=0, tV='', tD0='', tD1='', vm2=0, fpro=0, budF=8, perE=64, perB=64, perF=48, perG=48, perS=64,
           wd_at='A180,A254,B0,B34,B0,B0,B0', wd_delay=1000,
           go_ld='A190', go_chk='A250', pclr='A100', x1st='', x1flag='B8', poll1='B60', chk1='B106', pollW='B162', chkW='B206',
           hAflag='B56', pollA='B118', chkA='B160', hBflag='F1750', pollB='G18', chkB='G62',
           zflag='G56', pollZ='G110', chkZ='G152', zst='7,7', xsp=7, nlds=0, pld='G242', splp=3, splo=0, gbo=241, rwo=9, pchk=279, pads=1, bodyoff=0, lds_at='F0', fonm=1,
           fft_head='B', budE=4, gapE=200, gapC=280, gapL=0, gapS=0, sonly=0, snake=1, budG=2,
           apf='clr,WT,go,v06,d0,d1,G,F', spin=200000, sleep=4, outfl="",
           stop=None, stamps=False, rt=False, st1='', st2='', st3='', only='', diag='')


class Gen:
    def __init__(self, **kw):
        self.o = dict(DEF)
        self.o.update(kw)
        self.p = Prog()
        self.slow = []
        self.nst = 0
        self.stamp_names = []
        self.anames = ['start', 'rt0']
        self.headB = False

    def log(self, s):
        print("; " + s, file=sys.stderr)

    def stamp(self, name):
        if not self.o["stamps"]:
            return []
        if self.o["only"] and name not in ("start", "rt0", "end") and name not in self.o["only"].split(",") and name[0] != "@":
            return []
        i = self.nst
        self.nst += 1
        r = sX if name == "end" else sST + 2 * i
        assert r + 1 <= 101
        self.stamp_names.append(name)
        return [f"{'s_memrealtime' if self.o['rt'] else 's_memtime'} s[{r}:{r+1}]"]

    def astamp(self, name):
        if not self.o["stamps"]:
            return []
        self.anames.append(name)
        r = sST + 2 * (len(self.anames) - 1)
        assert r <= 100
        return [f"{'s_memrealtime' if self.o['rt'] else 's_memtime'} s[{r}:{r+1}]"]

    def poll_check(self, name, tags, load, reg):
        def f(p):
            p.wait(vm=tags)
            p.e(f"v_cmp_ne_u32 vcc, 1, v{reg}")
            p.e(f"s_cbranch_vccnz L_slow_{name}")
            p.raw(f"L_back_{name}:")
        s = [f"L_slow_{name}:", f"s_mov_b32 s{sSp}, 0", f"L_spin_{name}:", load, "s_waitcnt vmcnt(0)",
             f"v_cmp_ne_u32 vcc, 1, v{reg}", f"s_cbranch_vccz L_back_{name}", f"s_sleep {12 if name == 'p1a' else self.o['sleep']}",
             f"s_add_u32 s{sSp}, s{sSp}, 1", f"s_cmp_lt_u32 s{sSp}, {self.o['spin']}",
             f"s_cbranch_scc1 L_spin_{name}", "s_endpgm"]
        self.slow += s
        return f

    def spoll_load(self, soff):
        return [f"s_load_dwordx8 s[56:63], s[{sWS}:{sWS+1}], s{soff} glc", f"s_load_dwordx8 s[64:71], s[{sWS}:{sWS+1}], s{soff} offset:512 glc"]

    def spoll_check(self, name, load, reg):
        self.poll_check(name, None, load, reg)

        def f(p):
            p.raw("s_waitcnt lgkmcnt(0)")
            p.ds_done = p.ds_n
            p.e([f"s_and_b64 s[56:57], s[56:57], s[{k}:{k+1}]" for k in (58, 60, 64, 66, 68)])
            p.e([f"s_and_b32 s56, s56, s{k}" for k in (62, 70, 57)])
            p.e(f"s_cbranch_scc0 L_slow_{name}")
            p.raw(f"L_back_{name}:")
        return f

    def flag1(self, soff, tags):
        return I(f"buffer_store_dword v{vP}, v{vFm}, {srd(sWS)}, s{soff} offen sc1", vm=tags)

    def flag_store(self, soff, tags):
        def f(p):
            p.wait(vm=tags)
            p.e("s_mov_b64 exec, 1")
            p.e(f"buffer_store_dword v{vP}, off, {srd(sWS)}, s{soff} sc1")
            p.e("s_mov_b64 exec, -1")
        return f

    def trig(self, dst, phase, tmp, fn="cos"):
        return [f"v_alignbit_b32 v{tmp}, s{s7f}, v{phase}, 9", f"v_{fn}_f32 v{dst}, v{tmp}"]

    def fft_consts(self, t):
        vn, vq, vcol, vidx, va, vb, vk, vsg = range(t, t + 8)
        c0, s0 = t + 8, t + 16
        pk = t + 24
        q = [f"v_lshrrev_b32 v{vq}, 4, v0", f"v_and_b32 v{vn}, 15, v0",
             f"v_lshl_add_u32 v{vcol}, s{sWv}, 4, v{vn}",
             f"v_lshrrev_b32 v{va}, 2, v{vn}", f"v_and_b32 v{vb}, 3, v{vn}", f"v_lshl_add_u32 v{vidx}, v{va}, 3, v{vb}",
             f"v_bfe_i32 v{vsg}, v0, 0, 1", f"v_and_b32 v{vsg}, 0x80008000, v{vsg}",
             f"v_cvt_f32_u32 v{vcol}, v{vcol}", f"v_cvt_f32_u32 v{vidx}, v{vidx}", f"v_cvt_f32_u32 v{vq}, v{vq}"]

        def coef():
            return [f"v_cos_f32 v{vn}, v{va}", f"v_add_f32 v{vn}, v{vn}, v{vn}"]

        def run(c, s, n, scale=False):
            r = [f"v_add_f32 v{s+1}, v{vb}, v{va}", f"v_cos_f32 v{c}, v{vb}", f"v_sin_f32 v{s}, v{vb}",
                 f"v_cos_f32 v{c+1}, v{s+1}", f"v_sin_f32 v{s+1}, v{s+1}"]
            if scale:
                r += [f"v_mul_f32 v{x}, s{sSc}, v{x}" for x in (c, s, c + 1, s + 1)]
            for j in range(2, n):
                r += [f"v_fma_f32 v{x+j}, v{vn}, v{x+j-1}, -v{x+j-2}" for x in (c, s)]
            return r

        def pack(dst, src):
            return [f"v_cvt_pk_bf16_f32 v{dst+j}, v{src+2*j}, v{src+2*j+1}" for j in range(4)]

        def acc(dst, src):
            return [f"v_accvgpr_write_b32 a{dst+j}, v{src+j}" for j in range(4)]

        def xr(dst, m):
            return [f"v_xor_b32 v{dst+j}, {m}, v{dst+j}" for j in range(4)]
        q += [f"v_mul_f32 v{va}, {fbits(1/64)}, v{vcol}", f"v_mul_f32 v{vb}, 4.0, v{vq}", f"v_mul_f32 v{vb}, v{vb}, v{va}"]
        q += coef() + run(c0, s0, 4) + [f"v_mul_f32 v{vk}, {fbits(1/16)}, v{vb}", f"v_fmamk_f32 v{vb}, v{va}, {fbits(16.0)}, v{vb}"]
        q += run(c0 + 4, s0 + 4, 4)
        q += pack(pk, c0) + pack(pk + 4, s0)
        q += acc(aC64, pk) + acc(aS64, pk + 4) + xr(pk, f"v{vsg}") + xr(pk + 4, f"v{vsg}")
        q += acc(aC64 + 4, pk) + acc(aS64 + 4, pk + 4) + xr(pk + 4, "0x80008000") + acc(aN64 + 4, pk + 4)
        q += xr(pk + 4, f"v{vsg}") + acc(aN64, pk + 4)
        q += [f"v_mul_f32 v{va}, {fbits(1/32)}, v{va}", f"v_mov_b32 v{vb}, v{vk}"]
        q += coef() + run(vT1c, vT1s, 8)
        q += [f"v_cvt_f32_u32 v{vk}, s{sWv}", f"v_fma_f32 v{vk}, v{vk}, 4.0, v{vq}", f"v_mul_f32 v{vk}, 4.0, v{vk}",
              f"v_mul_f32 v{vq}, {fbits(8.0)}, v{vq}"]
        for tt in range(2):
            if tt:
                q.append(f"v_add_f32 v{vidx}, 4.0, v{vidx}")
            q += [f"v_mul_f32 v{va}, {fbits(1/32)}, v{vidx}", f"v_mul_f32 v{vb}, v{vq}, v{va}"]
            q += coef() + run(c0, s0, 8)
            q += pack(pk, c0) + pack(vS32 + 4 * tt, s0) + acc(aC32 + 4 * tt, pk)
            q += [f"v_mul_f32 v{va}, {fbits(1/64)}, v{va}", f"v_mul_f32 v{vb}, v{vk}, v{va}"]
            q += coef() + run(vT2c + 4 * tt, vT2s + 4 * tt, 4, True)
        return q

    def fft_setup_regs(self):
        t0, t1 = vT + 14, vT + 15
        return [f"v_and_b32 v{t1}, 3, v0", f"v_mul_u32_u24 v{fa0}, 528, v{t1}",
                f"v_lshrrev_b32 v{t0}, 4, v0", f"v_lshl_add_u32 v{fa0}, v{t0}, 7, v{fa0}",
                f"v_bfe_u32 v{t0}, v0, 2, 1", f"v_lshl_add_u32 v{fa0}, v{t0}, 6, v{fa0}",
                f"v_and_b32 v{t0}, 8, v0", f"v_add_u32 v{fa0}, v{t0}, v{fa0}", f"v_add_u32 v{fa0}, {IMG}, v{fa0}",
                f"v_xor_b32 v{fa0+1}, 16, v{fa0}", f"v_xor_b32 v{fa0+2}, 32, v{fa0}", f"v_xor_b32 v{fa0+3}, 48, v{fa0}",
                f"v_lshrrev_b32 v{t0}, 5, v0", f"v_xor_b32 v{t0}, v{t0}, v0", f"v_bfe_i32 v{fx}, v{t0}, 0, 1"]

    def fft_scalars(self):
        return [[f"s_lshl_b32 s{sT1}, s{sKd}, 13"], [f"s_lshl_b32 s{sT0}, s{sWv}, 10"],
                [f"s_add_u32 s{sT2}, s{sT1}, s{sT0}"],
                [f"s_cmp_eq_u32 s{sKd}, 224", f"s_cselect_b32 s{sZs}, 4096, s{sT1}", f"s_cselect_b32 s{sT1}, 0, s{sT1}",
                 f"s_cselect_b32 s{sSw}, 16, 0"],
                [f"s_cmp_eq_u32 s{sT1}, 0", f"s_cselect_b32 s{sT3}, {OOB}, 0"],
                [f"s_add_u32 s{sZs}, s{sZs}, s{sT0}"], [f"s_lshl_b32 s{sT0}, s{sT0}, 1"], [f"s_add_u32 s{sT1}, s{sT1}, s{sT0}"],
                [f"s_add_u32 s{sT1}, s{sT1}, {X1T}"], [f"s_add_u32 s{sT2}, s{sT2}, {WT}"], [f"s_add_u32 s{sZs}, s{sZs}, {ZT}"]]

    def fft_addr2(self):
        return [f"v_xor_b32 v{fim}, s{sSw}, v{vL16}", f"v_and_or_b32 v{fx}, v{fx}, s{sT3}, v{fim}",
                f"v_or_b32 v{fim}, s{sT3}, v{vL16}", f"v_add_u32 v{fim}, 0x1000, v{fim}"]

    def poll1_addr(self, t0, t1, sa, sb, extra=None):
        sc = [[f"s_lshr_b32 s{sa}, s{sKd}, 4", f"s_cmp_eq_u32 s{sa}, 14", f"s_cselect_b32 s{sa}, 0, s{sa}"],
              [f"s_lshl2_add_u32 s{sa}, s{sa}, s{sWv}"], [f"s_lshl_b32 s{sa}, s{sa}, 4"],
              [f"s_lshl_b32 s{sb}, s{sWv}, 1"]]
        v = [f"v_add_u32 v{vPa}, s{sa}, v0",
             f"v_bfe_u32 v{t0}, v0, 1, 2", f"v_and_b32 v{t1}, 1, v0", f"v_lshl_add_u32 v{t0}, v{t0}, 3, v{t1}",
             f"v_add_u32 v{t0}, s{sb}, v{t0}",
             f"v_add_u32 v{t0}, {FAUX//128}, v{t0}"]
        if extra is not None:
            v += [f"v_lshlrev_b32 v{vPw}, 7, v{t0}", f"v_mov_b32 v{t0}, s{extra}"]
        v += [
             f"v_subrev_u32 v{t1}, 16, v0", f"v_ashrrev_i32 v{t1}, 31, v{t1}",
             f"v_bfi_b32 v{vPa}, v{t1}, v{vPa}, v{t0}", f"v_lshlrev_b32 v{vPa}, 7, v{vPa}"]
        return sc, v

    def fft_loads(self):
        return [f"s_add_u32 m0, s{sT0}, {IMG}",
                I(f"buffer_load_dwordx4 v{fx}, {srd(sWS)}, s{sT1} offen sc1 lds", tag="x1"),
                I(f"buffer_load_dwordx4 v{fx}, {srd(sWS)}, s{sT1} offen offset:1024 sc1 lds", tag="x1"),
                I(f"buffer_load_dwordx4 {vr(fWraw,4)}, v{vL16}, {srd(sWS)}, s{sT2} offen sc1", tag="wtre"),
                f"s_add_u32 s{sT2}, s{sT2}, 4096",
                I(f"buffer_load_dwordx4 {vr(fWraw+4,4)}, v{vL16}, {srd(sWS)}, s{sT2} offen sc1", tag="wtim")]

    def fft_body(self, hook):
        p = self.p
        Dr, Di, tm, Br, Bi, Bn = fDr, fDi, fTm, fBr, fBi, fBn

        def af(part, t, ks, pre="b"):
            if pre == "a" and self.headB:
                return (vAX if ks == 0 else vAB + 48) + 4 * (2 * part + t)
            return fA + 4 * (4 * part + 2 * t + ks)

        def mf(d, a, b, first):
            return f"v_mfma_f32_16x16x32_bf16 {vr(d,4)}, {a}, {b}, {'0' if first else vr(d,4)}"

        def cmul(c, s, sign, neg=None):
            q = []
            n1 = " neg_lo:[0,0,1] neg_hi:[0,0,1]"
            for j in range(0, 8, 2):
                q += [f"v_pk_mul_f32 {vr(tm+8+j,2)}, {vr(Dr+j,2)}, {vr(s+j,2)}",
                      f"v_pk_mul_f32 {vr(tm+j,2)}, {vr(Di+j,2)}, {vr(s+j,2)}"]
            for j in range(0, 8, 2):
                q += [f"v_pk_fma_f32 {vr(tm+j,2)}, {vr(Dr+j,2)}, {vr(c+j,2)}, {vr(tm+j,2)}" + (n1 if sign > 0 else ""),
                      f"v_pk_fma_f32 {vr(tm+8+j,2)}, {vr(Di+j,2)}, {vr(c+j,2)}, {vr(tm+8+j,2)}" + ("" if sign > 0 else n1)]
            for j in range(4):
                q += [f"v_cvt_pk_bf16_f32 v{Br+j}, v{tm+2*j}, v{tm+2*j+1}"]
            for j in range(4):
                q += [f"v_cvt_pk_bf16_f32 v{Bi+j}, v{tm+8+2*j}, v{tm+8+2*j+1}"]
            return q

        def negs(src):
            return [f"v_xor_b32 v{Bn+j}, 0x80008000, v{src+j}" for j in range(4)]

        def big(sgn, pre):
            Sre, Sim = (aS64, aN64) if sgn < 0 else (aN64, aS64)
            n = 0
            for ks in range(2):
                for part in range(2):
                    for t in range(2):
                        a = vr(af(part, t, ks, pre), 4)
                        first = ks == 0 and part == 0
                        bre = (aC64 if part == 0 else Sre) + 4 * ks
                        bim = (Sim if part == 0 else aC64) + 4 * ks
                        p.e(I(mf(Dr + 4 * t, a, vr(bre, 4, "a"), first), ds=f"{pre}{part}{t}{ks}"))
                        p.e(mf(Di + 4 * t, a, vr(bim, 4, "a"), first))
                        n += 1
                        if n in (2, 4, 6):
                            hook(f"{pre}m{n}", 64)

        hook("h0", 0)
        p.e(W(vm="x1"))
        p.e("s_barrier")
        for ks in range(2):
            for part in range(2):
                for t in range(2):
                    for h in range(2):
                        p.e(I(f"ds_read_b64_tr_b16 {vr(af(part,t,ks,'a')+2*h,2)}, v{fa0+2*t+part} "
                              f"offset:{2048*(2*ks+h)}", tag=f"a{part}{t}{ks}"))
        hook("s1", 100)
        big(-1, "a")
        hook("s1e", 0)
        p.e(W(vm=["wtre", "wtim"]))
        for j in range(4):
            p.e([f"v_lshlrev_b32 v{fWr+2*j}, 16, v{fWraw+j}", f"v_and_b32 v{fWr+2*j+1}, 0xffff0000, v{fWraw+j}"])
        p.e(cmul(vT1c, vT1s, -1))
        hook("tw1", 200)
        ng = negs(Br)
        for t in range(2):
            p.e(mf(Dr + 4 * t, vr(aC32 + 4 * t, 4, "a"), vr(Br, 4), True))
            p.e(ng[2 * t:2 * t + 2])
        for t in range(2):
            p.e(mf(Di + 4 * t, vr(aC32 + 4 * t, 4, "a"), vr(Bi, 4), True))
        for t in range(2):
            p.e(mf(Dr + 4 * t, vr(vS32 + 4 * t, 4), vr(Bi, 4), False))
        for t in range(2):
            p.e(mf(Di + 4 * t, vr(vS32 + 4 * t, 4), vr(Bn, 4), False))
        hook("s3", 128)
        for j in range(4):
            p.e([f"v_lshlrev_b32 v{fWi+2*j}, 16, v{fWraw+4+j}", f"v_and_b32 v{fWi+2*j+1}, 0xffff0000, v{fWraw+4+j}"])
        p.e(cmul(fWr, fWi, +1))
        hook("wm", 140)
        ng = negs(Bi)
        for t in range(2):
            p.e(mf(Dr + 4 * t, vr(Br, 4), vr(aC32 + 4 * t, 4, "a"), True))
            p.e(ng[2 * t:2 * t + 2])
        for t in range(2):
            p.e(mf(Di + 4 * t, vr(Br, 4), vr(vS32 + 4 * t, 4), True))
        for t in range(2):
            p.e(mf(Dr + 4 * t, vr(Bn, 4), vr(vS32 + 4 * t, 4), False))
        for t in range(2):
            p.e(mf(Di + 4 * t, vr(Bi, 4), vr(aC32 + 4 * t, 4, "a"), False))
        hook("s3i", 128)
        p.e([f"s_lshr_b32 s{sT0}, s{sWv}, 1", f"s_lshl_b32 s{sT0}, s{sT0}, 10", f"s_and_b32 s{sT2}, s{sWv}, 1",
             f"s_lshl3_add_u32 s{sT0}, s{sT2}, s{sT0}", f"v_add_u32 v{fa0}, s{sT0}, v{vL16}"])
        p.e(cmul(vT2c, vT2s, +1))
        for part in range(2):
            for t in range(2):
                p.e(I(f"ds_write_b64 v{fa0}, {vr((Br if part == 0 else Bi)+2*t,2)} offset:{EXC + (4*part+2*t)*1024}", tag="exw"))
        hook("h2", 0)
        p.e(W(ds="exw"))
        p.e("s_barrier")
        for ks in range(2):
            for part in range(2):
                for t in range(2):
                    p.e(I(f"ds_read_b128 {vr(af(part,t,ks),4)}, v{vL16} offset:{EXC + (4*part+2*t+ks)*1024}", tag=f"b{part}{t}{ks}"))
        hook("tw2", 300)
        big(+1, "b")
        hook("s1i", 64)
        for j in range(4):
            p.e(f"v_cvt_pk_bf16_f32 v{Br+j}, v{Dr+2*j}, v{Dr+2*j+1}")
        p.e(I(f"buffer_store_dwordx4 {vr(Br,4)}, v{vL16}, {srd(sWS)}, s{sZs} offen sc1", tag="zre"))
        for j in range(4):
            p.e(f"v_cvt_pk_bf16_f32 v{Bi+j}, v{Di+2*j}, v{Di+2*j+1}")
        p.e(I(f"buffer_store_dwordx4 {vr(Bi,4)}, v{fim}, {srd(sWS)}, s{sZs} offen sc1", tag="zim"))

    def epi(self, acc, tmp):
        q = []
        for k in range(4):
            g0, g1, u0, u1 = acc + 2 * k, acc + 2 * k + 1, acc + 8 + 2 * k, acc + 9 + 2 * k
            t0, t1 = tmp + 2 * (k & 1), tmp + 2 * (k & 1) + 1
            q += [f"v_mul_f32 v{t0}, s{sK}, v{g0}", f"v_mul_f32 v{t1}, s{sK}, v{g1}",
                  f"v_exp_f32 v{t0}, v{t0}", f"v_exp_f32 v{t1}, v{t1}",
                  f"v_mul_f32 v{u0}, v{g0}, v{u0}", f"v_mul_f32 v{u1}, v{g1}, v{u1}",
                  f"v_add_f32 v{t0}, 1.0, v{t0}", f"v_add_f32 v{t1}, 1.0, v{t1}",
                  f"v_rcp_f32 v{t0}, v{t0}", f"v_rcp_f32 v{t1}, v{t1}",
                  f"v_mul_f32 v{u0}, v{u0}, v{t0}", f"v_mul_f32 v{u1}, v{u1}, v{t1}",
                  f"v_cvt_pk_bf16_f32 v{acc+k}, v{u0}, v{u1}"]
        return q

    def epi_pk(self, acc, tmp):
        q = []
        for k in range(4):
            q.append(f"v_pk_mul_f32 {vr(tmp+2*k,2)}, {vr(acc+2*k,2)}, s[{sK}:{sK+1}]")
        for j in range(8):
            q.append(f"v_exp_f32 v{tmp+j}, v{tmp+j}")
        for k in range(4):
            q.append(f"v_pk_mul_f32 {vr(acc+8+2*k,2)}, {vr(acc+2*k,2)}, {vr(acc+8+2*k,2)}")
        for k in range(4):
            q.append(f"v_pk_add_f32 {vr(tmp+2*k,2)}, {vr(tmp+2*k,2)}, 1.0 op_sel_hi:[1,0]")
        for j in range(8):
            q.append(f"v_rcp_f32 v{tmp+j}, v{tmp+j}")
        for k in range(4):
            q.append(f"v_pk_mul_f32 {vr(acc+8+2*k,2)}, {vr(acc+8+2*k,2)}, {vr(tmp+2*k,2)}")
        for k in range(4):
            q.append(f"v_cvt_pk_bf16_f32 v{acc+k}, v{acc+8+2*k}, v{acc+9+2*k}")
        return q

    def hstore(self, base, n, tag):
        i, tl = n >> 1, n & 1
        return I(f"buffer_store_dwordx4 {vr(base+16*n,4)}, v{vL16}, {srd(sWS)}, s{sHst1 if i else sHst} offen offset:{tl*1024} sc1", tag=tag)

    def rec_step(self, st, ks, dst):
        P = st + 8 * (ks & 1)
        Q = st + 8 * ((ks + 1) & 1)
        c = st + 16 + (0 if ks & 1 else 1)
        q = [f"v_fmac_f32 v{P+j}, v{c}, v{Q+j}" for j in range(8)]
        return q + self.rec_pack(st, ks, dst)

    def rec_pack(self, st, ks, dst):
        P = st + 8 * (ks & 1)
        n = "-" if ks & 2 else ""
        return [f"v_cvt_pk_bf16_f32 v{dst+j}, {n}v{P+2*j}, {n}v{P+2*j+1}" for j in range(4)]

    def put_scalars(self, G, groups, g0, g1):
        g = g0
        for x in groups:
            while G.s[g] or g in G.light:
                g += 1
            G.s[g] += x if isinstance(x, list) else [x]
        assert g < g1, (g, g1)
        return g

    def build(self):
        o, p = self.o, self.p
        e = p.e
        VM2[0] = o["vm2"]
        e(self.stamp("start"))
        e([x.replace("s_memtime", "s_memrealtime") for x in self.stamp("rt0")])
        e([f"s_load_dwordx2 s[{sX}:{sX+1}], s[0:1], 0", f"s_load_dwordx2 s[{sG}:{sG+1}], s[0:1], 32",
           f"s_load_dwordx2 s[{sU}:{sU+1}], s[0:1], 40"])
        e([f"v_lshrrev_b32 v2, 6, v0", f"v_mul_u32_u24 v3, 40, v0", f"v_and_b32 v0, 63, v0"])
        sj, sidx, sr = sT0, sT1, sT2
        e([f"s_lshr_b32 s{sidx}, s2, 3", f"v_readfirstlane_b32 s{sWv}, v2", f"s_and_b32 s{sj}, s2, 7",
           f"s_cmp_lt_u32 s{sidx}, 28", "s_cbranch_scc1 L_main"])
        if o["pf"]:
            p.raw(f"s_getpc_b64 s[{sT2}:{sT3}]")
            p.raw("L_pc:")
            p.raw(f"s_and_b32 s{sCnt}, s{sidx}, 3")
            p.raw(f"s_mul_i32 s{sCnt}, s{sCnt}, 10240")
            p.raw(f"v_add_u32 v3, s{sCnt}, v3")
            p.raw(f"v_min_u32 v3, L_codeend-L_pc-4, v3")
            p.raw(f"global_load_dword v255, v3, s[{sT2}:{sT3}]")
        p.raw("L_main:")
        e([f"s_load_dwordx4 s[{sWr}:{sWr+3}], s[0:1], 8", f"s_load_dwordx4 s[{sD}:{sD+3}], s[0:1], 48",
           f"s_load_dwordx4 s[{sDBG}:{sDBG+3}], s[0:1], 72", f"s_load_dwordx2 s[{sO}:{sO+1}], s[0:1], 64"])
        sRot1 = sHst
        norot = False
        val = sum(int(c_) << (4 * k) for k, c_ in enumerate(o["rot1"][1:]))
        t0, t1, t2, t3, t4, t5, t6 = range(vAB + 8, vAB + 15)
        e([f"s_and_b32 s{sr}, s{sidx}, 3", f"s_lshr_b32 s{sCt}, s{sidx}, 2", f"s_lshr_b32 s{sT3}, s{sj}, 1",
           f"s_xor_b32 s{sRot1}, s{sr}, s{sCt}", f"s_xor_b32 s{sCnt}, s{sj}, s{sT3}", f"s_and_b32 s{sRot1}, s{sRot1}, 1",
           f"s_and_b32 s{sCnt}, s{sCnt}, 1", f"s_lshl1_add_u32 s{sRot1}, s{sCnt}, s{sRot1}", f"s_lshl_b32 s{sRot1}, s{sRot1}, 2",
           f"s_lshr_b32 s{sRot1}, {val:#x}, s{sRot1}", f"s_and_b32 s{sRot1}, s{sRot1}, 7", f"s_lshl_b32 s{sXo}, s{sRot1}, 7",
           f"s_lshl2_add_u32 s{sCnt}, s{sT3}, s{sWv}", f"s_lshl4_add_u32 s{sCnt}, s{sCnt}, s{sr}", f"s_mulk_i32 s{sCnt}, {8*896}",
           f"v_lshrrev_b32 v{t0}, 3, v0", f"v_mul_u32_u24 v{t0}, 896, v{t0}", f"v_add_u32 v{t0}, s{sCnt}, v{t0}",
           f"v_and_b32 v{t1}, 7, v0", f"v_lshrrev_b32 v{t2}, 4, v0", f"v_xor_b32 v{t1}, v{t1}, v{t2}",
           f"v_lshl_add_u32 v{vXd}, v{t1}, 4, v{t0}", f"v_xor_b32 v{vXd+1}, 64, v{vXd}",
           f"v_add_u32 v{vXd+2}, {2*(28672-1024)}, v{vXd}", f"v_add_u32 v{vXd+3}, {3*(28672-1024)}, v{vXd+1}",
           f"v_add_u32 v{vXd+1}, {28672-1024}, v{vXd+1}",
           f"s_lshl_b32 s{sXm}, s{sWv}, 14", f"s_add_u32 s{sXm}, s{sXm}, {XS}",
           f"s_mov_b32 s{sX+2}, {2048*896}", f"s_mov_b32 s{sX+3}, 0x20000", f"s_mov_b32 m0, s{sXm}"])

        e([f"s_and_b32 s{sC}, s{sj}, 1", f"s_mulk_i32 s{sC}, 7", f"s_add_u32 s{sC}, s{sC}, s{sCt}",
           f"v_lshrrev_b32 v{t4}, 5, v0", f"v_and_b32 v{t6}, 3, v0", f"v_lshl_add_u32 v{t2}, v{t4}, 2, v{t6}",
           f"v_lshlrev_b32 v{t2}, 4, v{t2}", f"v_bfe_u32 v{t3}, v0, 2, 3",
           f"v_lshl_add_u32 v{t0}, s{sWv}, 3, v{t3}", f"v_mul_u32_u24 v{t0}, 3584, v{t0}",
           f"s_lshl_b32 s{sCnt}, s{sC}, 8", f"v_add3_u32 v{vWd}, v{t0}, v{t2}, s{sCnt}",
           f"v_add_u32 v{vWd+1}, {32*3584}, v{vWd}",
           f"s_and_b32 s{sCnt}, s{sWv}, 2", f"s_mul_i32 s{sWm}, s{sWv}, 1056", f"s_lshl_b32 s{sCnt}, s{sCnt}, 10", f"s_add_u32 s{sWm}, s{sWm}, s{sCnt}",
           f"s_mul_i32 s{sWo}, s{sRot1}, {64*3584}",
           f"s_mov_b32 s{sG+2}, {448*3584}", f"s_mov_b32 s{sG+3}, 0x20000", f"s_mov_b32 s{sU+2}, {448*3584+2080}", f"s_mov_b32 s{sU+3}, 0x20000"])

        def chunk_tab(i):
            return [f"s_add_u32 s{sRot2}, s{sRot2 if i > 1 else sRot1}, 1", [f"s_cmp_eq_u32 s{sRot2}, 7", f"s_cselect_b32 s{sRot2}, 0, s{sRot2}"],
                    f"s_lshl_b32 s{sXo+i}, s{sRot2}, 7", f"s_mul_i32 s{sWo+i}, s{sRot2}, {64*3584}"]
        e([f"s_cmp_ge_u32 s{sidx}, 28", "s_cbranch_scc1 L_auxh"])
        snap_aux0 = p.snapshot()
        p.raw("s_waitcnt lgkmcnt(0)")
        e(self.stamp("kargs"))
        if o["tlb"]:
            e([f"s_load_dword s{sHc}, s[{sG}:{sG+1}], 0", f"s_load_dword s{sFs}, s[{sU}:{sU+1}], 0"])

        self.m0 = (sXm, 0)

        def xdma(j):
            r = [dict(t=f"buffer_load_dwordx4 v{vXd+i}, {srd(sX)}, s{sXo+j} offen offset:{1024*i} lds", tag=f"x{j}",
                      m0=(sXm, 4096 * (j % 4)), ds=None) for i in range(4)]
            if norot:
                r[0]["pre"] = [f"s_movk_i32 s{sXo+j}, {128*j}"]
            return r

        def wdma(i):
            r = []
            for kk in range(2):
                for mat in range(2):
                    r.append(dict(t=f"buffer_load_dwordx4 v{vWd+kk}, {srd(sG if mat == 0 else sU)}, s{sWo+i%7} offen offset:{2080*mat} lds",
                                  tag="w0a" if (i, kk) == (0, 0) else f"w{i}", m0=(sWm, WSLOT * (i % NWS) + 8320 * kk), ds=None))
            if i >= 7:
                r[0]["pre"] = [f"s_addk_i32 s{sWo+i%7}, 128"]
            elif norot:
                r[0]["pre"] = [f"s_mov_b32 s{sWo+i}, {i*64*3584}"]
            return r

        def ddma(sg):
            return [dict(t=f"buffer_load_dwordx4 v{vDd+i}, {srd(sD)}, s{sDo+sg} offen offset:{1024*i} lds", tag=f"d{sg}",
                         m0=(sXm, 4096 * ((sg + 3) % 4)), ds=None) for i in range(4)]

        def dma_items(d):
            s = []
            if d["m0"] and self.m0 != d["m0"]:
                self.m0 = d["m0"]
                s.append(f"s_add_u32 m0, s{d['m0'][0]}, {d['m0'][1]}")
            return s + list(d.get("pre", [])), [I(d["t"], tag=d["tag"], ds=d["ds"])]

        L, NB = 3, 4
        n1 = o["n1"]
        dks = [d if d < n1 else n1 + (d - n1) // 2 for d in range(14)]
        if o["fgap"]:
            dks[0] = 1
        K0 = [16 * ks + 4 * sum(1 for x in dks if x < ks) for ks in range(15)]
        Dg = [K0[dks[d]] + 16 + 4 * (d - dks.index(dks[d])) for d in range(14)]
        NA, NBg = 280, 224
        U = [K0[f // 4] + 4 * (f % 4) for f in range(56)] + [NA + 4 * f for f in range(56)]
        bar_gap = {j: U[8 * j - L] - 1 for j in range(1, 14)}
        TE = 16 * NA
        TB = TE + 860
        TF = TB + 16 * NBg
        TG = TF + 2400

        def tg(g):
            return 16 * g if g < NA else TB + 16 * (g - NA)

        def T(spec):
            n = int(spec[1:])
            return {"A": 16 * n, "E": TE + n, "B": TB + 16 * n, "F": TF + n, "G": TG + 16 * n}[spec[0]]
        q1 = []
        for i in range(14):
            ear = -1 if i <= o["LA"] - 1 else (0 if i == o["LA"] else tg(bar_gap[i - o["LA"]] + 1))
            for d in (xdma(i) if i < 7 else []) + wdma(i):
                d["ear"] = ear
                d["dl"] = tg(bar_gap[i]) if i else 0
                if d["tag"][0] == "x" and dks[2 * i] < 2 * i:
                    d["dl"] = 16 * (K0[dks[2 * i] - 1] + 12)
                q1.append(d)

        def issue_pro(n):
            for _ in range(n):
                assert q1[0]["ear"] < 0
                s, m = dma_items(q1.pop(0))
                e(s)
                e(m)
        issue_pro(4)
        e([f"s_sub_u32 s{sU}, s{sU}, 2080", f"s_subb_u32 s{sU+1}, s{sU+1}, 0"])
        e(self.stamp("i4"))
        issue_pro(4)
        e(self.stamp("i8"))
        if "w4" in o["only"]:
            e([W(vm="x0")] + self.stamp("w4") + [W(vm="w0a")] + self.stamp("w6") + [W(vm="w0")] + self.stamp("w8"))
        e(chunk_tab(1))
        issue_pro(o["npre"] - 8)
        e(f"s_mov_b64 s[{sWS}:{sWS+1}], s[{sDBG+2}:{sDBG+3}]")
        p.raw("s_branch L_main2")
        snap_main = p.snapshot()
        p.restore(snap_aux0)
        self.aux1(sj, sidx)
        p.raw("s_branch L_aux")
        snap_aux = p.snapshot()
        p.restore(snap_main)
        p.raw("L_main2:")
        e(f"s_lshl2_add_u32 s{sRg}, s{sT3}, s{sr}")
        fg = o["fgap"]
        e(chunk_tab(2))
        tabq = [x for i in range(3, 7) for x in chunk_tab(i)]
        if not fg:
            e(tabq)
        e([f"s_and_b32 s{sRt}, s{sj}, 1", f"s_lshl1_add_u32 s{sRt}, s{sRg}, s{sRt}", f"s_mul_i32 s{sKd}, s{sj}, 28", f"s_add_u32 s{sKd}, s{sKd}, s{sidx}",
           f"s_movk_i32 s{s7f}, 0x7f", f"v_lshlrev_b32 v{vL16}, 4, v0"])
        sq = sr
        tq_, tn = vAB + 15, t0
        e([f"v_and_b32 v{tn}, 15, v0", f"v_lshrrev_b32 v{tq_}, 4, v0", f"v_bfe_u32 v{t1}, v0, 1, 3",
           f"v_xor_b32 v{t1}, v{t1}, v{tq_}", f"v_lshlrev_b32 v{t1}, 4, v{t1}",
           f"v_lshl_add_u32 v{t1}, v{tn}, 7, v{t1}", f"v_xor_b32 v{t5}, 64, v{t1}",
           f"s_xor_b32 s{sT0}, s{sWv}, 1", f"s_lshl_b32 s{sT0}, s{sT0}, 14", f"s_add_u32 s{sT0}, s{sT0}, {XS}",
           f"v_add_u32 v{vXr}, s{sXm}, v{t1}", f"v_add_u32 v{vXr+1}, s{sXm}, v{t5}",
           f"v_add_u32 v{vXr+2}, s{sT0}, v{t1}", f"v_add_u32 v{vXr+3}, s{sT0}, v{t5}"])
        e([f"v_bfe_u32 v{t1}, v0, 4, 1", f"v_bfe_u32 v{t5}, v0, 2, 2",
           f"s_and_b32 s{sT0}, s{sWv}, 1", f"s_lshl_b32 s{sT1}, s{sT0}, 9",
           f"v_mul_u32_u24 v{vTr}, 1056, v{t1}", f"v_mul_u32_u24 v{vTr+1}, 4160, v{t4}", f"v_add3_u32 v{vTr}, v{vTr}, v{vTr+1}, s{sT1}",
           f"v_lshl_add_u32 v{vTr}, v{t5}, 6, v{vTr}", f"v_lshl_add_u32 v{vTr}, v{t6}, 3, v{vTr}",
           f"v_add_u32 v{vTr+1}, {4*WSLOT}, v{vTr}"])
        st, fbuf = vAB + 32, [vAB, vAB + 4, vE, vE + 4]
        vA2 = vAB + 16
        ph, stp, tq, y0, y1, y2, cj = range(vAB + 52, vAB + 59)
        pk = vT1c
        fq = [f"s_lshl1_add_u32 s{sCnt}, s{sC}, s{sT0}", f"v_lshl_add_u32 v{y0}, s{sCnt}, 4, v{tn}",
              f"v_lshrrev_b32 v{y1}, 1, v{y0}", f"v_and_b32 v{y2}, 1, v{y0}",
              f"v_cmp_eq_u32 vcc, 1, v{y0}", f"v_mov_b32 v{tq}, 224", f"s_mov_b32 s{sCnt}, {STEP448}",
              f"v_cndmask_b32 v{y1}, v{y1}, v{tq}, vcc", f"v_cndmask_b32 v{y2}, v{y2}, 0, vcc",
              f"v_mul_lo_u32 v{stp}, v{y1}, s{sCnt}", f"s_and_b32 s{sCnt}, s{sWv}, 2", f"s_lshl2_add_u32 s{sT0}, s{sCnt}, s{sT0}",
              f"s_add_u32 s{sCnt}, s{sCnt}, s{sRot1}", f"s_lshl_b32 s{sCnt}, s{sCnt}, 6",
              f"v_lshl_add_u32 v{y1}, v{tq_}, 3, s{sCnt}",
              f"v_mul_lo_u32 v{ph}, v{y1}, v{stp}", f"v_lshl_add_u32 v{ph}, v{y2}, 30, v{ph}",
              f"v_lshlrev_b32 v{y1}, 5, v{stp}", f"v_add_u32 v{vFr}, {FS}, v{vL16}", f"v_lshl_add_u32 v{y2}, s{sT0}, 10, v{vFr}"]
        fq += self.trig(st + 16, y1, tq) + self.trig(cj, stp, y0)
        for ks in range(2):
            fq += self.trig(st + 8 * ks, ph, tq) + [f"v_add_u32 v{y0}, v{ph}, v{stp}"] + self.trig(st + 8 * ks + 1, y0, y0)
            if ks == 0:
                fq += [f"v_add_u32 v{ph}, v{ph}, v{y1}", f"v_add_f32 v{cj}, v{cj}, v{cj}",
                       f"v_mul_f32 v{st+17}, -2.0, v{st+16}", f"v_add_f32 v{st+16}, v{st+16}, v{st+16}"]
        fq += [f"v_fma_f32 v{st+8*ks+j}, v{cj}, v{st+8*ks+j-1}, -v{st+8*ks+j-2}" for j in range(2, 8) for ks in range(2)]
        fq += self.rec_pack(st, 0, pk) + self.rec_pack(st, 1, pk + 4) + self.rec_step(st, 2, pk + 8) + self.rec_step(st, 3, pk + 12)

        def fwrite(p):
            p.e(f"s_cmp_ge_u32 s{sWv}, 2")
            for k in range(4):
                if k == 3:
                    p.e("s_cbranch_scc1 L_f2")
                p.e(I(f"ds_write_b128 v{y2}, {vr(pk+4*k,4)} offset:{2048*k}", tag="fw"))
            p.raw("L_f2:")
            p.raw("s_waitcnt lgkmcnt(0)")
            p.ds_done = p.ds_n
        e(fq[:o["fpro"]] if fg else fq)
        fq = fq[o["fpro"]:]
        L0 = [f"s_mov_b32 s{sSc}, {fbits(2.0/(2048*448))}",
              [f"s_cmp_eq_u32 s{sKd}, 0", f"s_cselect_b32 s{sSc}, {fbits(1.0/(2048*448))}, s{sSc}"],
              f"s_lshl_b32 s{sPl}, s{sKd}, 31", f"s_or_b32 s{sSc}, s{sSc}, s{sPl}",
              f"s_mov_b32 s{sWS+2}, {WSEND}", f"s_mov_b32 s{sWS+3}, 0x20000",
              f"s_lshl3_add_u32 s{sPl}, s{sRt}, s{sCt}", f"s_lshl2_add_u32 s{sPl}, s{sPl}, s{sWv}", f"s_lshl_b32 s{sPl}, s{sPl}, 11",
              f"s_xor_b32 s{sPs}, s{sPl}, 0x10000", f"s_add_u32 s{sPl}, s{sPl}, {PP}", f"s_add_u32 s{sPs}, s{sPs}, {PP}"]
        L0 += [f"v_mov_b32 v{vT+j}, -1" for j in range(4)]
        vTd, vTv, sTd = vT + 4, vT + 5, 78
        if o["tD0"] or o["tD1"] or o["tV"]:
            L0 += [f"v_min_u32 v{vTv}, 6, v0", f"v_lshlrev_b32 v{vTd}, 7, v{vTv}",
                   f"s_mul_i32 s{sTd}, s{sRg}, 7", f"s_add_u32 s{sHc}, s{sTd}, s{sCt}", f"s_lshl2_add_u32 s{sHc}, s{sHc}, s{sWv}",
                   f"s_and_b32 s{sFs}, s{sHc}, 0x1c0", f"s_add_u32 s{sHc}, s{sHc}, s{sFs}",
                   f"s_sub_u32 s{sFs}, s{sC}, s{sCt}", f"s_lshl_b32 s{sFs}, s{sFs}, 7", f"s_add_u32 s{sHc}, s{sHc}, s{sFs}",
                   f"s_mulk_i32 s{sHc}, 896", f"v_add_u32 v{vTd}, s{sHc}, v{vTd}",
                   f"s_mul_i32 s{sFs}, s{sWv}, 7", f"s_lshl2_add_u32 s{sTd}, s{sTd}, s{sFs}", f"v_add_u32 v{vTv}, s{sTd}, v{vTv}",
                   f"v_mul_u32_u24 v{vTv}, 3584, v{vTv}", f"v_lshl_add_u32 v{vTv}, s{sC}, 8, v{vTv}",
                   f"s_mov_b32 s{sTd}, 57344", f"s_mov_b32 s{sD+2}, {1792*896}", f"s_mov_b32 s{sD+3}, 0x20000"]
        lq = []
        for s, n in ((sD, 1792 * 896), (sDBG, 256)):
            lq += [f"s_mov_b32 s{s+2}, {n}", f"s_mov_b32 s{s+3}, 0x20000"]
        lq += [f"v_lshlrev_b32 v{vY}, 5, v{t1}", f"v_xor_b32 v{vY+1}, v{vY}, v{t2}",
               f"v_mul_u32_u24 v{vDd}, 896, v{t3}", f"s_lshl_b32 s{sCnt}, s{sCt}, 7", f"v_add3_u32 v{vDd}, v{vDd}, v{vY+1}, s{sCnt}"]
        for i in range(1, 4):
            lq += [f"v_add_u32 v{vDd+i}, {i*(8*896-1024)}, v{vDd}"]
        lq += [f"v_lshl_add_u32 v{vY}, v{t3}, 6, v{vY}", f"v_lshl_add_u32 v{vY}, v{t6}, 3, v{vY}",
               f"v_lshl_add_u32 v{vY+1}, v{t3}, 12, v{vY+1}",
               f"s_lshr_b32 s{sT1}, s{sWv}, 1", f"s_and_b32 s{sT0}, s{sWv}, 1", f"s_lshl4_add_u32 s{sT0}, s{sT1}, s{sT0}",
               f"s_lshl_b32 s{sT0}, s{sT0}, 5", f"v_lshl_add_u32 v{vDr}, v{t4}, 10, v{vY}", f"v_xor_b32 v{vDr}, s{sT0}, v{vDr}",
               f"v_xor_b32 v{vDr+1}, 32, v{vDr}", f"v_xor_b32 v{vDr+2}, 0x200, v{vDr}", f"v_xor_b32 v{vDr+3}, 0x220, v{vDr}",
               f"s_lshl_b32 s{sCnt}, s{sT1}, 15", f"s_add_u32 s{sCnt}, s{sCnt}, {XS}"]
        lq += [f"v_add_u32 v{vDr+k}, s{sCnt}, v{vDr+k}" for k in range(4)]
        lq += [f"v_bfe_u32 v{t5}, v0, 1, 1", f"v_lshlrev_b32 v{vSg}, 31, v{t5}", f"v_or_b32 v{vSg}, 1.0, v{vSg}",
               f"v_and_b32 v{vPg}, 31, v0", f"v_lshlrev_b32 v{vPg}, 3, v{vPg}"]
        lq += [f"s_lshl_b32 s{sCnt}, s{sq}, 4",
               f"v_xor_b32 v{t5}, s{sCnt}, v{t2}", f"v_lshl_add_u32 v{vX1g}, v{t3}, 14, v{t5}",
               f"s_lshl_b32 s{sCnt}, s{sC}, 8", f"s_add_u32 s{sCnt}, s{sCnt}, s{sRg}", f"s_lshl2_add_u32 s{sCnt}, s{sCnt}, s{sWv}",
               f"s_lshl_b32 s{sCnt}, s{sCnt}, 7", f"s_add_u32 s{sCnt}, s{sCnt}, {X1T}", f"v_add_u32 v{vX1g}, s{sCnt}, v{vX1g}"]
        lq += [f"s_and_b32 s{sT0}, s{sRt}, 1", f"s_lshl1_add_u32 s{sT0}, s{sT0}, s{sT1}", f"s_mul_i32 s{sPe}, s{sT0}, 7",
               f"s_and_b32 s{sT2}, s{sWv}, 1", f"s_add_u32 s{sT0}, s{sPe}, s{sT2}"]
        lq += [f"s_and_b32 s{sCnt}, s{sT0}, 30", f"s_add_u32 s{sCnt}, s{sCnt}, s{sT0}", f"s_mul_i32 s{sDo}, s{sCnt}, 28672",
               f"s_add_u32 s{sDo+1}, s{sDo}, 114688", f"s_add_u32 s{sDo+2}, s{sDo}, {2*114688}", f"s_add_u32 s{sDo+3}, s{sDo}, {3*114688}",
               f"s_add_u32 s{sT0}, s{sT0}, 1", f"s_and_b32 s{sCnt}, s{sT0}, 30", f"s_add_u32 s{sCnt}, s{sCnt}, s{sT0}",
               f"s_mul_i32 s{sCnt}, s{sCnt}, 28672", f"s_add_u32 s{sDo+4}, s{sCnt}, 57344", f"s_add_u32 s{sDo+5}, s{sCnt}, {57344+114688}",
               f"s_add_u32 s{sDo+6}, s{sCnt}, {57344+2*114688}", f"s_sub_u32 s{sCnt}, s{sCnt}, 57344",
               [f"s_cmp_eq_u32 s{sT2}, 1", f"s_cselect_b32 s{sDo+3}, s{sCnt}, s{sDo+3}"], f"s_movk_i32 s{s8k}, 8192"]
        L1, lq = lq, []
        assert HH % 2048 == 0
        lq += [f"s_lshr_b32 s{sT0}, s{sWv}, 1", f"s_lshl1_add_u32 s{sT0}, s{sRg}, s{sT0}", f"s_mul_i32 s{sHst}, s{sT0}, 229376",
               f"s_and_b32 s{sT1}, s{sWv}, 1", f"s_lshl1_add_u32 s{sT2}, s{sC}, s{sT1}", f"s_lshl_b32 s{sCnt}, s{sT2}, 11",
               f"s_add_u32 s{sHst}, s{sHst}, s{sCnt}", f"s_mul_i32 s{sT1}, s{sT1}, 57344",
               f"s_sub_u32 s{sHst1}, s{sHst}, s{sT1}", f"s_add_u32 s{sHst}, s{sHst}, s{sT1}",
               f"s_add_u32 s{sHst}, s{sHst}, {HH}", f"s_add_u32 s{sHst1}, s{sHst1}, {HH+57344}",
               f"s_mul_i32 s{sT1}, s{sT2}, 37", f"s_lshr_b32 s{sT1}, s{sT1}, 8", f"s_mul_i32 s{sT1}, s{sT1}, 25",
               f"s_add_u32 s{sT1}, s{sT1}, s{sT2}", f"s_lshl_b32 s{sT0}, s{sT0}, 9", f"s_lshl2_add_u32 s{sT0}, s{sT1}, s{sT0}",
               f"s_add_u32 s{sFh}, s{sT0}, {FH}",

               f"s_mov_b32 s{sK}, 0xbfb8aa3b", f"s_mov_b32 s{sK+1}, 0xbfb8aa3b",
               f"s_lshl4_add_u32 s{sFx}, s{sC}, s{sRg}", f"s_lshl2_add_u32 s{sFx}, s{sFx}, s{sWv}", f"s_lshl_b32 s{sFx}, s{sFx}, 7"]
        L2, lq = lq, [f"s_mov_b32 s{sO+2}, {2048*896}", f"s_mov_b32 s{sO+3}, 0x20000"]
        lq += [f"s_and_b32 s{sT0}, s{sRt}, 1", f"s_xor_b32 s{sT0}, s{sT0}, 1", f"s_mul_i32 s{sT0}, s{sT0}, 7", f"s_add_u32 s{sT0}, s{sT0}, s{sCt}",
               f"s_lshl4_add_u32 s{sT0}, s{sT0}, s{sRg}", f"s_lshl2_add_u32 s{sT0}, s{sT0}, s{sWv}"]
        sc, vv = self.poll1_addr(vT + 14, vT + 15, sT1, sT2, sT0)
        L3 = lq + sc + vv + self.fft_setup_regs()
        cq = self.fft_consts(vAB + 32)
        lq2 = self.fft_scalars() + self.fft_addr2()
        vH, vPh, sFp = vXd, vXd + 2, sXo + 2
        lq2 += [f"s_and_b32 s{sCnt}, s{sWv}, 1", f"s_mul_i32 s{sCnt}, s{sCnt}, 28", f"s_add_u32 s{sCnt}, s{sCnt}, s{sPe}",
                f"s_lshl_b32 s{sCnt}, s{sCnt}, 11",
                f"s_add_u32 s{sCnt}, s{sCnt}, {HH}", f"v_add_u32 v{vH}, s{sCnt}, v{vL16}",
                f"s_mul_i32 s{sFp}, s{sRt}, 229376", f"v_add_u32 v{vH+1}, s{sFp}, v{vH}",
                f"s_xor_b32 s{sCnt}, s{sRt}, 1", f"s_mul_i32 s{sFp}, s{sCnt}, 229376", f"v_add_u32 v{vH}, s{sFp}, v{vH}",
                f"v_and_b32 v{vPh}, 7, v0", f"v_min_u32 v{vPh}, 6, v{vPh}", f"v_bfe_u32 v{vPh+1}, v0, 3, 1",
                f"v_lshl_add_u32 v{vPh}, v{vPh+1}, 7, v{vPh}", f"v_lshlrev_b32 v{vPh}, 2, v{vPh}",
                f"s_mul_i32 s{sCnt}, s{sPe}, 37", f"s_lshr_b32 s{sCnt}, s{sCnt}, 8", f"s_lshl3_add_u32 s{sFp}, s{sRg}, s{sCnt}",
                f"s_lshl_b32 s{sFp}, s{sFp}, 7", f"s_add_u32 s{sFp}, s{sFp}, {FH}"]
        ncp = o["cpro"]
        for L_ in (L0, L1, L2):
            assert not (fg and ncp and L_ is not L0)
            k = min(ncp, len(L_))
            e(L_[:k])
            del L_[:k]
            ncp -= k
        if o["pads"]:
            p.raw("s_mov_b64 exec, 0")
            for w_ in range(3):
                p.raw(f"s_cmp_eq_u32 s{sWv}, {w_}")
                p.raw(f"s_cbranch_scc1 L_pad{w_}")
            p.raw("s_branch L_pad3")
            p.raw("L_padret:")
            p.raw("s_mov_b64 exec, -1")
        if o["align"]:
            p.raw("s_branch L_body")
            if not o["slowend"]:
                p.raw("@SLOW@")
            p.raw(".p2align 12")
            if o["bodyoff"]:
                p.raw(f".fill {o['bodyoff']//4}, 4, 0xbf800000")
            p.raw("L_body:")
        if not fg:
            e(fwrite)
        issue_pro(o["npro"] - o["npre"])
        for d in q1:
            d["ear"] = max(d["ear"], 0)
        e(self.stamp("pro"))

        def m16(d, a, b, first):
            return f"v_mfma_f32_16x16x32_bf16 {vr(d,4)}, {a}, {b}, {'0' if first else vr(d,4)}"

        def wread(f):
            i, kk, mat, tl = f // 8, (f // 4) % 2, (f // 2) % 2, f % 2
            slot = i % NWS
            base, off = (vTr, slot * WSLOT) if slot < 4 else (vTr + 1, 0)
            off += kk * 8320 + mat * 2080 + tl * 32
            b = vWF + 4 * (f % NB)
            return [I(f"ds_read_b64_tr_b16 {vr(b+2*h,2)}, v{base} offset:{off+256*h}", tag=f"wf{f}") for h in range(2)]

        def xread(ks, j):
            return I(f"ds_read_b128 {vr(aX+16*ks+4*j,4,'a')}, v{vXr+(j&2)+ks%2} offset:{4096*((ks//2)%4)+2048*(j&1)}", tag=f"xr{ks}_{j>>1}",
                     vm=(f"x{ks//2}" if j == 0 and ks % 2 == 0 else None))

        def fread(d, s_):
            return I(f"ds_read_b128 {vr(fbuf[2*(d&1)+s_],4)}, v{vFr} offset:{2048*(d%7)+1024*s_}", tag=f"fr{d}")
        mf = []
        for ph_ in range(2):
            for ks in range(14):
                for ff in range(4):
                    for j in (range(3, -1, -1) if o["snake"] and ff & 1 else range(4)):
                        mf.append(m16(vAA + 16 * j + 4 * ff, vr(vWF + 4 * ff, 4), vr(aX + 16 * ks + 4 * j, 4, "a"), ks == 0))
                for dd in range(14):
                    if ph_ == 0 and dks[dd] == ks:
                        for s_ in range(2):
                            for jj in range(2):
                                mf.append(m16((vAX if dd < 7 else vA2) + 8 * s_ + 4 * jj, vr(aX + 16 * dd + 4 * jj, 4, "a"),
                                              vr(fbuf[2 * (dd & 1) + s_], 4), dd % 7 == 0))
        G = Gaps(mf, 2)
        G.light = set(bar_gap.values())
        hs = o["hstart"]
        if hs:
            G.light.add(hs)
            G.s[hs] += [W(vm="w0"), "s_barrier"]
        G.quiet = {g + k for g in G.light for k in (-1, 1) if g > 150}
        barW = {}
        for f in range(L, 112):
            G.m[hs + f - 3 if hs and 4 <= f <= 6 else U[f - L]] += wread(f)

        def pair(lo, its):
            while lo in G.light or G.m[lo]:
                lo += 1
            G.m[lo] += its
            return lo + 1
        for ks in range(1, 14):
            lo = K0[ks - 1] + (4 if ks % 2 == 0 else 0)
            if dks[ks] == ks:
                lo = pair(lo, [xread(ks, 0), xread(ks, 1)]) + 3
            pair(lo, [xread(ks, 2), xread(ks, 3)])
        for d in range(0 if fg else 1, 14):
            k_ = dks[d]
            if k_ < d:
                pair(K0[k_ - 1] + 12 + 5 * (d - dks.index(k_)), [xread(d, 0), xread(d, 1)])
            pair(K0[k_] + 4 * (d - dks.index(k_)) + (4 if fg and k_ == 1 else 0), [fread(d, 0), fread(d, 1)])
        for f in range(1, 112):
            tags = [f"wf{f}"]
            if f < 56 and f % 4 == 0:
                tags += [f"xr{f//4}_1", f"xr{f//4}_0"]
            g = U[f] - 1
            if g in bar_gap.values():
                j = [k for k, v in bar_gap.items() if v == g][0]
                barW[j] = W(vm=[f"w{j}"] + ([f"x{j}"] if j < 7 else []), ds=tags)
                G.s[g] += [barW[j], "s_barrier"]
            else:
                G.s[g].append(W(ds=tags))
        for ks in set(dks):
            G.s[K0[ks] + 15].append(W(ds=[t_ for d in range(14) if dks[d] == ks for t_ in (f"fr{d}", f"xr{d}_0")]))

        hring = 16
        hreg = [vAB + 4 * n for n in range(hring)]
        xs = o["xsp"]
        sq2 = [(0, s_) for s_ in range(7)] + [(1, s_) for s_ in range(xs)] + [(0, s_) for s_ in range(7, 14)] + \
              [(1, s_) for s_ in range(xs, 14)]
        seq = [(ph_, step, jj) for ph_, step in sq2 for jj in range(2)]
        npre_h = min(hring, 14 + 2 * xs)
        lset = [n for n in range(npre_h, 56) if seq[n][1] < 7][:o["nlds"]]
        dset = [n for n in range(56) if n not in lset]
        hr = {n: hreg[m % hring] for m, n in enumerate(dset)}
        hr.update({n: vWF + 4 * (m % 4) for m, n in enumerate(lset)})
        accp, acco, acca = vAA, vAA + 32, vAB + 48
        zreg = [vWF, vWF + 4, vWF + 8, vWF + 12, vAX, vAX + 4]
        own_fi = [vT1c + 4 * a for a in range(8)] + [vAX + 8, vAX + 12, vS32 + 24, vS32 + 28, vS32 + 18, vDd]
        vZr, vZd, vZr1, vGa, vG, vOG = vY, vY + 1, vXr, vXr + 1, vXr + 2, vWd
        vOo, vRw, vRr, vHl, vR3, vPz, vOw, vOr, vW1, vR1 = vFr, vSg, vX1g, vDr + 2, vXd + 3, vPa, vPw, vTr, vDr, vDr + 1
        mf, hu, hl_ = [], {}, {}
        split = {0: o["splp"], 1: o["splo"]}
        gU = {}

        def g2m(n, ks_):
            ph_, step, jj = seq[n]
            hu.setdefault(n, len(mf))
            for k in ks_:
                mf.append(m16((acco if ph_ else accp) + 16 * (k >> 1) + 8 * jj + 4 * (k & 1), vr(16 * step + 4 * k, 4, "a"), vr(hr[n], 4), step == 0))
            hl_[n] = len(mf) - 1
        for n, (ph_, step, jj) in enumerate(seq):
            if step < 14 - split[ph_]:
                g2m(n, (1, 0, 3, 2) if o["snake"] and jj == 0 else (2, 3, 0, 1))
                gU[ph_] = len(mf) - 2
                continue
            g2m(n, (2, 3))
            if step == 13 and jj == 1:
                gU[ph_] = len(mf)
                for n2 in range(n + 1 - 2 * split[ph_], n + 1):
                    g2m(n2, (0, 1))
        hfree = {n: (hl_[dset[m - hring]] if m >= hring else -1) for m, n in enumerate(dset)}
        NH = 224
        for ks in range(14):
            for jj in range(2):
                for tt in range(2):
                    a_ = vr(224 + 4 * (ks % 8), 4, "a") if tt else vr(own_fi[ks], 4)
                    mf.append(m16(acca + 8 * jj + 4 * tt, a_, vr(8 * ks + 4 * jj, 4, "a"), ks == 0))
        H = Gaps(mf, o["budG"])
        LZ = 10
        gP = 8 * (14 + xs)
        gbp, gbo = gU[0] + 13, o["gbo"]
        zbar = {}
        acc_ = 0
        for n_ in [int(x) for x in o["zst"].split(",")]:
            zbar[NH + 4 * acc_ - LZ - 1] = acc_ + n_ - 1
            acc_ += n_
        assert acc_ == 14
        gb = NH - LZ - 1
        H.light = {gbp, gbo} | set(zbar)
        H.quiet = {g + k for g in H.light for k in (-1, 1)}

        evs = {"E": [], "F": []}
        busy = {"G1": set(G.light), "G": set(H.light)}

        def at(spec, items, post=False):
            ph_, n = spec[0], int(spec[1:])
            if ph_ in "EF":
                evs[ph_].append((n, items, post))
                return
            S_, key = (H, "G") if ph_ == "G" else (G, "G1")
            g = n + (NA if ph_ == "B" else 0)
            while g in S_.light or S_.used(g) > 1 - o["vm2"]:
                g += 1
            for x in items:
                if isinstance(x, I) and x.t and x.vm:
                    S_.s[g].append(W(vm=x.vm))
                    x.vm = None
                (S_.s if kind(txt(x)) == "S" else S_.m)[g].append(x)
            busy[key].add(g)

        def chk(spec, name, tag, load, reg, after=()):
            f_ = self.poll_check(name, tag, load, reg)
            ph_, n = spec[0], int(spec[1:])
            if ph_ in "EF":
                evs[ph_].append((n, [f_] + list(after), True))
                return
            S_, key = (H, "G") if ph_ == "G" else (G, "G1")
            g = n + (NA if ph_ == "B" else 0)
            assert g not in S_.light and g - 2 not in S_.light, spec
            S_.s[g - 2].append(W(vm=tag))
            S_.v[g - 2].append(f"v_cmp_ne_u32 vcc, 1, v{reg}")
            S_.s[g].append(Lab(f"s_cbranch_vccnz L_slow_{name}", f"L_back_{name}:"))
            S_.m[g] += list(after)
        for a_, b_ in (("go_ld", "go_chk"), ("go_chk", "x1flag"), ("pclr", "x1flag"), ("poll1", "chk1"), ("chk1", "pollA"), ("pollA", "chkA"),
                       ("chkA", "pollW"), ("pollW", "chkW"), ("hAflag", "hBflag"), ("chkA", "pollB"), ("pollB", "chkB"), ("chkB", "pollZ"),
                       ("pollZ", "chkZ")):
            assert T(o[a_]) < T(o[b_]), (a_, b_)
        stop1 = o["stop"] == "gemm1"
        gol = f"buffer_load_dword v{vP}, v{vPg}, {srd(sDBG)}, 0 offen sc1"
        at(o["go_ld"], [I(gol, tag="go")])
        chk(o["go_chk"], "go", "go", gol, vP)
        for hf in range(2):
            at(o["pclr"][0] + str(int(o["pclr"][1:]) + (64 if o["pclr"][0] == "E" else 4) * hf),
               [I(f"buffer_store_dwordx4 {vr(vT,4)}, v{vL16}, {srd(sWS)}, s{sPs} offen offset:{1024*hf} sc1", tag="pcl")])
        if o["tV"]:
            at(o["tV"], [f"buffer_load_dword v{vT+6}, v{vTv}, {srd(sG)}, 0 offen offset:128"])
            at(o["tV"], [f"buffer_load_dword v{vT+6}, v{vTv}, {srd(sU)}, 0 offen offset:{128+2080}"])
        if o["tD0"]:
            at(o["tD0"], [f"buffer_load_dword v{vT+6}, v{vTd}, {srd(sD)}, 0 offen"])
        if o["tD1"]:
            at(o["tD1"], [f"buffer_load_dword v{vT+6}, v{vTd}, {srd(sD)}, s{sTd} offen"])
            assert T(o["tD1"]) < TB
        x1st = [I(f"buffer_store_dwordx4 {vr(vAX+8,4)}, v{vX1g}, {srd(sWS)}, 0 offen sc1", tag="x1s"),
                I(f"buffer_store_dwordx4 {vr(vAX+12,4)}, v{vX1g}, {srd(sWS)}, s{s8k} offen sc1", tag="x1s")]
        if o["x1st"]:
            assert o["x1st"][0] in "AE" and T(o["x1st"]) + 64 < T(o["x1flag"])
            for hf in range(2):
                at(o["x1st"][0] + str(int(o["x1st"][1:]) + (4 if o["x1st"][0] == "A" else 64) * hf), [x1st[hf]])
        at(o["x1flag"], [self.flag1(sFx, ["x1s", "pcl"])])
        pl = f"buffer_load_dword v{vPr}, v{vPa}, {srd(sWS)}, 0 offen sc1"
        pw = f"buffer_load_dword v{vPr}, v{vPw}, {srd(sWS)}, 0 offen sc1"
        pollH = f"buffer_load_dword v{vPr}, v{vPh}, {srd(sWS)}, s{sFp} offen sc1"
        pollZ = f"buffer_load_dword v{vPr}, v{vPz}, {srd(sWS)}, 0 offen sc1"
        at(o["poll1"], [I(pl, tag="p1")])
        at(o["pollW"], [I(pw, tag="pW")])
        at(o["pollA"], [I(pollH, tag="pA")])
        at(o["hAflag"], [self.flag1(sFh, "hA")])
        if not stop1:
            chk(o["chk1"], "p1", "p1", pl, vPr)
            chk(o["chkW"], "pW", "pW", pw, vPr)
            chk(o["chkA"], "pA", "pA", pollH, vPr)
        at(o["hBflag"], [f"s_add_u32 s{sFh}, s{sFh}, {128*128}", self.flag1(sFh, "hB")])
        at(o["pollB"], [f"s_add_u32 s{sFp}, s{sFp}, {128*128}"] + self.spoll_load(sFp))
        if o["chkB"][0] == "G":
            self.poll_check("pB", None, pollH, vPr)
            g = int(o["chkB"][1:])
            red = [f"s_and_b64 s[56:57], s[56:57], s[{k}:{k+1}]" for k in (58, 60, 64, 66, 68)] + [f"s_and_b32 s56, s56, s{k}" for k in (62, 70)]
            H.s[g - 3] += [Lgkm0()] + red[:2]
            H.s[g - 2] += red[2:5]
            H.post[g - 1] += red[5:7]
            H.s[g] += ["s_and_b32 s56, s56, s57", Lab("s_cbranch_scc0 L_slow_pB", "L_back_pB:")]
            busy["G"] |= {g - 3, g - 2, g - 1}
        else:
            at(o["chkB"], [self.spoll_check("pB", pollH, vPr)], True)
        sFz, sZo, sZm, sZp, sU_, sI_, sGo = sXo + 3, sXo + 4, sXo + 5, sXo + 6, sSw, s8k, 78
        at(o["zflag"], [self.flag1(sFz, ["zre", "zim"])])
        at(o["pollZ"], [I(pollZ, tag="pZ")])
        chk(o["chkZ"], "pZ", "pZ", pollZ, vPr)
        for jj in range(2):
            at(f"G{gb-3+jj}", [I(f"buffer_load_dword v{vG+jj}, v{vGa}, {srd(sWS)}, s{sGo} offen offset:{64*jj} sc1", tag="g")])
        pld = [f"buffer_load_dwordx4 {vr(accp+4*hf,4)}, v{vL16}, {srd(sWS)}, s{sPl} offen offset:{1024*hf} sc1" for hf in range(2)]
        for hf in range(2):
            at("G" + str(int(o["pld"][1:]) + 2 * hf), [I(pld[hf], tag="pl")])

        busy["G"] |= {gU[0] + 2 + 2 * j for j in range(4)} | {gbo - o["rwo"] + 2 * j for j in range(4)}
        class BG:
            pass
        bg = BG()
        bg.q2 = [d for sg in range(7) for d in ddma(sg)]
        bg.nd = bg.ntr = bg.nz = 0
        bg.t_issue, bg.t_read = {}, {}
        bg.vis, bg.free = set(), set()
        bg.nxt = 0
        bg.lds_ok = False
        bg.s1e = o["fft_head"] != "B"
        bg.hp = list(range(56))
        bg.log = []
        self.hc = None
        wd_at = [T(x) for x in o["wd_at"].split(",")]
        fl = self.fft_loads()
        q3 = [dict(t=fl[1].t, tag="x1", m0=(sT0, IMG), ds=None), dict(t=fl[2].t, tag="x1", m0=(sT0, IMG), ds=None),
              dict(t=fl[3].t, tag="wtre", m0=None, ds=None), dict(t=fl[5].t, tag="wtim", m0=None, ds=None, pre=[fl[4]])]
        for d in q3:
            d["ear"] = T(o["chk1"] if d["tag"] == "x1" else o["chkW"]) + 1
        for d in q3:
            d["dl"] = tg(bar_gap[13]) - (1 if d["tag"] == "x1" and o["fft_head"] == "B" else -1)
        q1 += q3
        q1.sort(key=lambda d: d["dl"])

        def dtr(n):
            step, k, t_ = n // 8, (n // 2) % 4, n % 2
            off = 16384 * (step & 1) + 4096 * ((step // 2 + 3) % 4) + 2048 * t_
            return I(f"ds_read_b64_tr_b16 {vr(16*step+4*k+2*t_,2,'a')}, v{vDr+k} offset:{off}", tag=f"dr{step//2}")

        def bg_barrier(j):
            t = tg(bar_gap[j])
            for sg, ti in bg.t_issue.items():
                if sg not in bg.vis and (t >= ti + o["wd_delay"] or j == 13):
                    bg.vis.add(sg)
                    barW[j].vm.append(f"d{sg}")
            for sg, tr in bg.t_read.items():
                if sg not in bg.free and t >= tr + 48:
                    bg.free.add(sg)
                    barW[j].ds.append(f"dr{sg}")

        def bg_tr(t):
            n = bg.ntr
            if n >= 112 or n // 16 not in bg.vis or t < TB + 256 * (n // 8 + 1) - 16:
                return []
            bg.ntr += 1
            if n % 16 == 15:
                bg.t_read[n // 16] = t
            return [dtr(n)]

        def hload(n):
            ph_, step, jj = seq[n]
            c = (step // 7) * 114688 + (2 * (step % 7) + jj) * 1024
            pre = []
            if self.hc is None or not 0 <= c - self.hc <= 3072 or (n in lset and 1024 * lset.index(n) < c - self.hc):
                self.hc = c
                pre.append(f"s_mov_b32 s{sHc}, {c}")
            imm = c - self.hc
            if n in lset:
                return dict(t=f"buffer_load_dwordx4 v{vH+ph_}, {srd(sWS)}, s{sHc} offen offset:{imm} sc1 lds", tag=f"h{n}",
                            m0=(sZm, 1024 * lset.index(n) - imm), ds=None, pre=pre)
            return dict(t=f"buffer_load_dwordx4 {vr(hr[n],4)}, v{vH+ph_}, {srd(sWS)}, s{sHc} offen offset:{imm} sc1", tag=f"h{n}",
                        m0=None, ds=None, pre=pre)

        def bg_dma(t, per, g2=None):
            if t < bg.nxt:
                return [], []
            d = None
            sg = bg.nd // 4
            wd_ok = bg.q2 and t >= wd_at[sg] and (t > tg(bar_gap[sg + 4]) if sg < 4 else sg - 4 in bg.free)
            if wd_ok and sg >= 4:
                pass
            elif any(t >= x["ear"] for x in q1):
                d = [x for x in q1 if t >= x["ear"]][0]
                q1.remove(d)
                wd_ok = False
            if wd_ok:
                d = bg.q2.pop(0)
                bg.nd += 1
                if bg.nd % 4 == 0:
                    bg.t_issue[sg] = t
            if d is None:
                for n in bg.hp:
                    if t > T(o["chkA"] if seq[n][1] < 7 else o["chkB"]) and \
                            (bg.lds_ok and t >= T(o["lds_at"]) if n in lset else ((hfree[n] < 0 and (n < 12 or bg.s1e)) or (g2 is not None and g2 >= hfree[n]))):
                        assert g2 is None or g2 < hu[n] - (16 if n in lset else 2), ("h late", n, g2)
                        d = hload(n)
                        bg.hp.remove(n)
                        break
            if d is None and bg.nz < 14 and t > T(o["chkZ"]):
                i = bg.nz
                if i >= len(lset) or g2 >= hu[lset[i]]:
                    d = dict(t=f"buffer_load_dwordx4 v{vZd}, {srd(sWS)}, s{sZo} offen sc1 lds", tag=f"z{i}",
                             m0=(sZm, 1024 * i), ds=None, pre=[f"s_mov_b32 s{sZo}, {131072*i}"])
                    assert all(g2 < zb for zb, last in zbar.items() if last >= i), (i, g2)
                    bg.nz += 1
            if d is None:
                return [], []
            bg.log.append((d["tag"], t))
            bg.nxt = max(bg.nxt + per, t + per // 2)
            return dma_items(d)

        def run_gaps(S_, key, g0, g1, tf, per):
            lastd = g0 - 1
            for g in range(g0, g1):
                if S_ is G and g in bar_gap.values():
                    bg_barrier([k for k, v in bar_gap.items() if v == g][0])
                if g in busy[key]:
                    continue
                if S_.used(g) < 2 - o["vm2"]:
                    s_, m_ = bg_dma(tf(g), per, g if S_ is H else None)
                    if m_:
                        for x in s_:
                            cand = [k for k in range(g - (1 if "m0" in x else 0), lastd, -1) if not S_.s[k]]
                            S_.s[cand[0] if cand else (g - 1 if g - 1 > lastd and g - 1 not in S_.light and S_.used(g - 1) < 2 else g)].append(x)
                        lastd = g
                    S_.m[g] += m_
                while S_ is G and S_.used(g) < 2 and (S_.m[g] or g % 4 == 2 or (g % 4 == 3 and kind(txt((S_.m[g - 1] or ["s_nop"])[0])) == "G")):
                    m_ = bg_tr(tf(g))
                    if not m_:
                        break
                    S_.m[g] += m_

        def merge(items, ph_, T0, per):
            out, t, prevk = [], 0, "M"
            ev = sorted(evs[ph_], key=lambda x: x[0])
            for x in items:
                if isinstance(x, Mark):
                    self.log(f"  est {ph_}{t} {x.name}")
                    if x.name in o["only"].split(",") or x.name in ("epiA", "epi"):
                        out += self.stamp(x.name)
                    if x.name == "s1e":
                        bg.s1e = True
                    if x.name == "bE":
                        bg.lds_ok = True
                    if x.name == "epi" and stop1:
                        out.append("s_branch L_fin")
                    continue
                out.append(x)
                tx = txt(x)
                k = kind(tx)
                if k == "M":
                    t += 16
                elif not tx:
                    t += 4 if x.ds == "all" or x.vm else 50
                elif tx == "s_barrier":
                    t += 30
                else:
                    t += 4 * cost(tx) + (28 if prevk == "M" and tx.startswith("v_pk") else 0)
                if k == "G":
                    bg.nxt = max(bg.nxt, T0 + t) + o["perS"]
                prevk = k
                if tx.startswith("s_cmp") or k == "D" or (not tx) or tx == "s_barrier":
                    continue
                while ev and ev[0][0] <= t:
                    its = ev.pop(0)[1]
                    out += its
                    t += 16
                    if isinstance(its[0], I) and "x4" in its[0].t:
                        bg.nxt = max(bg.nxt, T0 + t) + o["perS"]
                s_, m_ = bg_dma(T0 + t + (24 if k == "M" else 0), per) if k == "M" or not (ph_ == "F" and o["fonm"]) else ([], [])
                out += s_ + m_
                t += 0 if k == "M" or not m_ else 4 * (len(s_) + len(m_)) + 8
            for x in ev:
                out += x[1]
            self.log(f"  est {ph_}{t} end")
            return out
        run_gaps(G, "G1", 0, o["gap0"], tg, o["perA0"])
        run_gaps(G, "G1", o["gap0"], NA, tg, o["perA"])
        rec = Rec()
        for n in range(4):
            rec.e(self.epi_pk(vAA + 16 * n, vE))
            rec.e(self.hstore(vAA, n, "hA"))
        rec.mark("epiA")
        codeE = merge(rec.items, "E", TE, o["perE"])
        bg.nxt = min(bg.nxt, TB + 64)
        run_gaps(G, "G1", NA, NA + NBg, tg, o["perB"])
        assert not q1 and len(bg.vis) == 7, (bg.vis, bg.nd, bg.ntr)
        if o["fft_head"] == "B":
            barW[13].vm.append("x1")
        rec = Rec()
        while bg.ntr < 112:
            rec.e(bg_tr(TF))
        for n in range(4):
            rec.e(self.epi_pk(vAA + 16 * n, vE))
            if n == 0:
                rec.e([W(vm="x1", ds="all"), "s_barrier"])
                rec.mark("bE")
            rec.e(self.hstore(vAA, n, "hB"))
            rec.mark(f"e{n}")
        rec.mark("epi")
        self.p = rec
        self.headB = o["fft_head"] == "B"
        self.fft_body(lambda name, dt: rec.mark(name))
        self.headB = False
        self.p = p
        names = [x.name if isinstance(x, Mark) else None for x in rec.items]
        i0, i1 = names.index("h0"), names.index("s1")
        rds = [x for x in rec.items[i0:i1] if isinstance(x, I) and x.t.startswith("ds_read")]
        if o["fft_head"] == "B":
            rec.items = rec.items[:i0] + rec.items[i1:]
            g = bar_gap[13] + 2
            for x in rds:
                while G.used(g) >= 2:
                    g += 1
                G.m[g].append(x)
        else:
            i2 = names.index(o["fft_head"])
            rec.items = rec.items[:i2 + 1] + rds + rec.items[i2 + 1:i0] + rec.items[i1:]
        codeF = merge(rec.items, "F", TF, o["perF"])
        bg.nxt = min(bg.nxt, TG + 64)
        run_gaps(H, "G", 0, H.n, lambda g: TG + 16 * g, o["perG"])
        assert not bg.hp and bg.nz == 14

        def nm(t):
            return f"A{t//16}" if t < TE else f"E{t-TE}" if t < TB else f"B{(t-TB)//16}" if t < TF else f"F{t-TF}" if t < TG else f"G{(t-TG)//16}"
        self.log("dma: " + " ".join(f"{a_}@{nm(t)}" for a_, t in bg.log))
        self.log(f"wd read done {[nm(v) for v in bg.t_read.values()]}")

        G.s[NA - 1] += self.stamp("A")
        ge = 0
        if fg:
            g, left = G.pour(tabq, 0, min(t for a_, t in bg.log if a_ == "x3") // 16 - 1, budget=o["budE"])
            assert len(left) <= 12
            tabq = left
            ge, left = G.pour(fq, 0, bar_gap[1], budget=o["budF"])
            assert not left, len(left)
            G.post[ge].append(fwrite)
            ge, left = G.pour(tabq, ge + 1, min(t for a_, t in bg.log if a_ == "x4") // 16 - 1, budget=o["budE"])
            assert not left
        kw_ = dict(sonly=True) if o["sonly"] else dict(budget=o["budE"])
        g0_, left = G.pour(L0, ge, min([T(o[k]) // 16 - 1 for k in ("pclr", "tV", "tD0", "tD1") if o[k]] + [ge + 60]), **kw_)
        assert not left
        g, left = G.pour(L1, g0_, min(T(o["go_ld"]), wd_at[0], 16 * Dg[13]) // 16 - 4, **kw_)
        assert not left
        gl_, left = G.pour(L2 + ([] if o["sonly"] else L3), g, NA - 1, **kw_)
        self.log(f"setup lists end at {g0_} {g} {gl_}")
        assert not left
        ge = max(ge, o["gapS"])
        ge, cleft = G.pour(cq[:100], ge, max(ge, o["gapE"]), budget=o["budE"], window=40)
        if not cleft:
            ge, cleft = G.pour(cq[100:], max(ge, g0_ + 1), max(ge, o["gapE"]), budget=o["budE"], window=40)
        else:
            cleft += cq[100:]
        dpp = "quad_perm:[2,3,0,1] row_mask:0xf bank_mask:0xf"
        xq = ["s_mov_b32 vcc_lo, 0x33333333", "s_mov_b32 vcc_hi, 0x33333333"]
        xq += [f"v_fmac_f32 v{vA2+j}, v{vSg}, v{vAX+j}" for j in range(16)]
        xq += [f"v_cvt_pk_bf16_f32 v{vAX+j}, v{vA2+2*j}, v{vA2+2*j+1}" for j in range(8)]
        xq += [f"v_permlane16_swap_b32 v{vAX+j}, v{vAX+4+j}" for j in range(4)]
        xq += [f"v_cndmask_b32_dpp v{vAX+8+j}, v{vAX+4+j}, v{vAX+j}, vcc {dpp}" for j in range(4)]
        xq += [] if o["x1st"] else [x1st[0]]
        xq += ["s_not_b64 vcc, vcc"]
        xq += [f"v_cndmask_b32_dpp v{vAX+12+j}, v{vAX+j}, v{vAX+4+j}, vcc {dpp}" for j in range(4)]
        xq += [] if o["x1st"] else [x1st[1]]
        g, left = G.pour(xq, Dg[13] + 6, NA - 1, window=2)
        self.log(f"dft ends at gap {Dg[13]+3}, x1 stored at gap {g}, mid setup done at {ge}")
        g_, left2 = G.pour([f"v_min_u32 v{vFm}, 1, v0", f"v_lshlrev_b32 v{vFm}, 30, v{vFm}"], T(o["go_chk"]) // 16 + 1, min(NA, T(o["x1flag"]) // 16))
        assert not left2
        assert not left and not (Dg[13] + 6 <= T(o["go_chk"]) / 16 <= g + 2) and 16 * g < T(o["x1st"] or o["x1flag"])
        g, left = G.pour(L3 if o["sonly"] else [], max(gl_, o["gapL"]), NA + (T(o["poll1"]) - TB) // 16 - 1, sonly=True)
        assert not left
        lim = NA + (min(T(o["chk1"]), T(o["pollA"])) - TB) // 16 - 4
        g2_, left = G.pour(lq2, max(g, 150), lim, sonly=True)
        assert not left
        th8 = min(dict(bg.log)[f"h{dset[8]}"], tg(bar_gap[13]) if o["fft_head"] == "B" else TF)
        g, left = G.pour(cleft, max(ge, o["gapC"]), NA + (th8 - TB) // 16 - 1, window=40)
        self.log(f"{len(cleft)} constant ops left after the early gaps")
        self.log(f"fft constants end at gap {g}, left {len(left)}")
        assert not left
        x0, x1 = vT + 14, vT + 15
        bq = [f"s_add_u32 s{sHst}, s{sHst}, 114688", f"s_add_u32 s{sHst1}, s{sHst1}, 114688",
              f"s_and_b32 s{sI_}, s{sWv}, 1", f"s_lshr_b32 s{sU_}, s{sWv}, 1",
              f"s_mul_i32 s{sZm}, s{sWv}, 14336", f"s_add_u32 s{sZm}, s{sZm}, {ZS}",
              f"v_add_u32 v{vRw}, s{sXm}, v{vL16}",
              f"s_xor_b32 s{sFs}, s{sWv}, 2", f"s_lshl_b32 s{sFs}, s{sFs}, 14", f"s_add_u32 s{sFs}, s{sFs}, {XS}", f"v_add_u32 v{vRr}, s{sFs}, v{vL16}",
              f"s_xor_b32 s{sFs}, s{sWv}, 1", f"s_lshl_b32 s{sFs}, s{sFs}, 14", f"s_add_u32 s{sFs}, s{sFs}, {XS}", f"v_add_u32 v{vR3}, s{sFs}, v{vL16}",
              f"s_lshl_b32 s{sFz}, s{sWv}, 8", f"s_add_u32 s{sFs}, s{sFz}, s{sRt}", f"s_add_u32 s{sFz}, s{sFz}, s{sKd}",
              f"s_lshl_b32 s{sFz}, s{sFz}, 5", f"s_add_u32 s{sFz}, s{sFz}, {FZ}",
              f"s_lshl_b32 s{sFs}, s{sFs}, 7", f"s_add_u32 s{sFs}, s{sFs}, {ZT}", f"v_add_u32 v{vZd}, s{sFs}, v{vZd}",
              f"s_lshl_b32 s{sFs}, s{sI_}, 9", f"s_add_u32 s{sFs}, s{sFs}, {ZS}", f"v_lshrrev_b32 v{x0}, 5, v0",
              f"v_mul_u32_u24 v{x1}, 14336, v{x0}", f"v_add3_u32 v{vZr}, v{vZr}, v{x1}, s{sFs}", f"v_xor_b32 v{vZr1}, 32, v{vZr}",
              f"s_lshr_b32 s{sFs}, s{sRt}, 3", f"s_and_b32 s{sCnt}, s{sRt}, 1",
              f"s_lshl1_add_u32 s{sFs}, s{sFs}, s{sCnt}", f"s_lshl1_add_u32 s{sFs}, s{sFs}, s{sI_}",
              f"s_bfe_u32 s{sCnt}, s{sRt}, 0x20001", f"s_lshl4_add_u32 s{sFs}, s{sFs}, s{sCnt}", f"s_mul_i32 s{sFs}, s{sFs}, {8*896}",
              f"s_lshl1_add_u32 s{sU_}, s{sCt}, s{sU_}", f"s_lshl_b32 s{sCnt}, s{sU_}, 6", f"s_add_u32 s{sFs}, s{sFs}, s{sCnt}",
              f"v_bfe_u32 v{x1}, v0, 2, 3", f"v_lshl_add_u32 v{x1}, v{x0}, 5, v{x1}", f"v_mul_u32_u24 v{x1}, 896, v{x1}",
              f"v_and_b32 v{x0}, 48, v{vL16}", f"v_add3_u32 v{vOo}, v{x0}, v{x1}, s{sFs}",
              f"s_lshl1_add_u32 s{sGo}, s{sRt}, s{sI_}", f"s_lshl_b32 s{sGo}, s{sGo}, 7", f"s_add_u32 s{sGo}, s{sGo}, {GOFF}",
              f"v_and_b32 v{vGa}, 15, v0", f"v_lshlrev_b32 v{vGa}, 2, v{vGa}"]
        assert ZS % 64 == 0
        g, left = G.pour(bq, max(NA, g2_ + 1), NA + NBg)
        assert not left
        bq = [f"s_lshr_b32 s{sZp}, s{sRt}, 3", f"s_lshl_b32 s{sZp}, s{sZp}, 8", f"s_add_u32 s{sZp}, s{sZp}, {FZ//32}",
              f"s_lshl2_add_u32 s{sCnt}, s{sWv}, s{sZp}", f"s_addk_i32 s{sZp}, 224", f"s_lshl2_add_u32 s{sFs}, s{sRt}, {FG//32}",
              f"v_and_b32 v{x0}, 60, v0", f"v_mul_u32_u24 v{x0}, 3, v{x0}", f"v_add3_u32 v{vPz}, v{x0}, v0, s{sCnt}",
              f"v_subrev_u32 v{x0}, 56, v0", f"v_ashrrev_i32 v{x0}, 31, v{x0}",
              f"v_bfi_b32 v{vPz}, v{x0}, v{vPz}, s{sZp}", f"v_subrev_u32 v{x0}, 60, v0", f"v_ashrrev_i32 v{x0}, 31, v{x0}",
              f"v_bfi_b32 v{vPz}, v{x0}, v{vPz}, s{sFs}", f"v_lshlrev_b32 v{vPz}, 5, v{vPz}"]
        g, left = G.pour(bq, max(g + 1, NA + (T(o["chk1"]) - TB) // 16 + 1), NA + NBg)
        self.log(f"g2 address setup ends at gap B{g-NA}")
        assert not left

        for n in range(1, 56):
            if n in lset:
                g = hu[n] - 11
                H.m[g - (g in H.light)].append(I(f"ds_read_b128 {vr(hr[n],4)}, v{vHl} offset:{1024*lset.index(n)}", tag=f"hr{n}", vm=f"h{n}"))
                H.s[hu[n] - 1].insert(0, W(ds=f"hr{n}"))
            else:
                H.s[hu[n] - 1].insert(0, W(vm=f"h{n}"))

        def fi_loc(a, rd):
            if a < 12:
                return (vR3 if rd else vRw), 1024 * a
            return (vR1 if rd else vW1), 4096 * (a - 12)
        for zb, last in zbar.items():
            H.s[zb] += [W(vm=f"z{last}", ds="fw13" if zb == gb else None)] + ([] if zb == gbo else ["s_barrier"])
        g = gb + 1
        for ks in range(14):
            g = max(g, max(zb for zb, last in zbar.items() if zb < NH + 4 * ks - LZ) + 1, NH + 4 * (ks - 8) + 4)
            r_, off = fi_loc(ks, True)
            rr = [I(f"ds_read_b128 {vr(224+4*(ks%8),4,'a')}, v{r_} offset:{off}")]
            rr += [I(f"ds_read_b64_tr_b16 {vr(8*ks+4*jj+2*t_,2,'a')}, v{vZr1 if jj else vZr} offset:{t_*28672+ks*1024}", tag=f"zf{ks}")
                   for jj in range(2) for t_ in range(2)]
            for x in rr:
                while H.used(g) >= 2 or g in H.light or gbo - o["rwo"] <= g < gbo:
                    g += 1
                H.m[g].append(x)
            assert g < NH + 4 * ks - 4, (ks, g)
            H.s[NH + 4 * ks - 1].insert(0, W(ds=f"zf{ks}"))
        gzr = g
        for j in range(4):
            H.m[gU[0] + 2 + 2 * j].append(I(f"ds_write_b128 v{vRw}, {vr(accp+16+4*j,4)} offset:{12288+1024*j}", tag="rwp"))
            H.m[gbp + 1 + j].append(I(f"ds_read_b128 {vr(accp+16+4*j,4)}, v{vRr} offset:{12288+1024*j}", tag=f"rrp{j//2}"))
        H.s[gbp] += [W(ds="rwp"), "s_barrier"]
        assert gbp + 12 < gb
        g = max(gbp + 8, gP + 3)
        for hf in range(2):
            H.s[g].append(W(ds=f"rrp{hf}"))
            pq = [f"v_add_f32 v{accp+8*hf+j}, v{accp+8*hf+j}, v{accp+16+8*hf+j}" for j in range(8)]
            pq += [f"v_cvt_pk_bf16_f32 v{accp+8*hf+j}, v{accp+8*hf+2*j}, v{accp+8*hf+2*j+1}" for j in range(4)]
            pq += [f"v_min_u32 v{accp+8*hf}, -2, v{accp+8*hf}"]
            pq += [I(f"buffer_store_dwordx4 {vr(accp+8*hf,4)}, v{vL16}, {srd(sWS)}, s{sPs} offen offset:{1024*hf} sc1", tag="ps")]
            g, left = H.pour(pq, g)
        self.log(f"partial stored at gap G{g}")
        assert int(o["pld"][1:]) > g + 2
        pchk = [f"v_max_u32 v{vPr}, v{accp}, v{accp+4}", f"v_cmp_eq_u32 vcc, -1, v{vPr}"]
        self.slow += ["L_slow_pP:", f"s_mov_b32 s{sSp}, 0", "L_spin_pP:"] + pld + ["s_waitcnt vmcnt(0)"] + pchk + \
            ["s_cbranch_vccz L_back_pP", f"s_sleep {o['sleep']}", f"s_add_u32 s{sSp}, s{sSp}, 1", f"s_cmp_lt_u32 s{sSp}, {o['spin']}",
             "s_cbranch_scc1 L_spin_pP", "s_endpgm"]
        rdo, vRo = acco + 16, vDr + 3
        for j in range(4):
            H.m[gbo - o["rwo"] + 2 * j].append(I(f"ds_write_b128 v{vW1}, {vr(acco+16+4*j,4)} offset:{8192+4096*j}", tag="rwo"))
            H.m[max(gzr, gbo) + 1 + j // 2].append(I(f"ds_read_b128 {vr(rdo+4*j,4)}, v{vRo} offset:{8192+4096*j}", tag="rro"))
        assert gbo - o["rwo"] >= gU[1] + 2
        H.s[gbo] += [W(ds="rwo"), "s_barrier"]
        st = vS32
        x0, x1, x2, x3, ph, stp = range(vS32 + 18, vS32 + 24)
        vq = [f"v_add_u32 v{vHl}, s{sZm}, v{vL16}", f"s_lshl1_add_u32 s{sT0}, s{sU_}, s{sI_}", f"s_mov_b32 s{sT2}, {STEP448}",
              f"v_and_b32 v{x0}, 15, v0", f"v_mul_u32_u24 v{vOw}, 80, v{x0}",
              f"v_lshl_add_u32 v{x0}, s{sT0}, 4, v{x0}", f"v_mul_lo_u32 v{stp}, v{x0}, s{sT2}",
              f"v_lshrrev_b32 v{x1}, 4, v0", f"v_lshlrev_b32 v{x2}, 1, v{x1}",
              f"v_mul_lo_u32 v{ph}, v{x2}, v{stp}", f"v_lshlrev_b32 v{x2}, 4, v{stp}"]
        vq += self.trig(st + 16, x2, x3)
        vq += [f"v_mul_lo_u32 v{x2}, v{stp}, 7"]
        for ks in range(2):
            for jj in range(4):
                vq += [f"v_alignbit_b32 v{x3}, s{s7f}, v{ph}, 9", f"v_cos_f32 v{st+8*ks+2*jj}, v{x3}",
                       f"v_sin_f32 v{st+8*ks+2*jj+1}, -v{x3}"]
                if not (jj == 3 and ks == 1):
                    vq += [f"v_add_u32 v{ph}, v{ph}, v{x2 if jj & 1 else stp}"]
        vq += [f"v_mul_f32 v{st+17}, -2.0, v{st+16}", f"v_add_f32 v{st+16}, v{st+16}, v{st+16}"]
        vq += self.rec_pack(st, 0, own_fi[0]) + self.rec_pack(st, 1, own_fi[1])
        vq += [f"v_lshlrev_b32 v{x2}, 31, v{x0}", f"v_or_b32 v{x2}, 0x3f803f80, v{x2}", f"v_add_u32 v{x3}, -1, v{x1}",
               f"v_ashrrev_i32 v{x3}, 31, v{x3}", f"v_bfi_b32 v{own_fi[0]}, v{x3}, v{x2}, v{own_fi[0]}",
               f"v_lshl_add_u32 v{vW1}, s{sWv}, 10, v{vL16}", f"v_xor_b32 v{vR1}, 0x400, v{vW1}", f"v_xor_b32 v{vRo}, 0x800, v{vW1}",
               f"s_mul_i32 s{sT2}, s{sWv}, 2560", f"s_add_u32 s{sT2}, s{sT2}, {FS}", f"s_lshl_b32 s{sT0}, s{sI_}, 5",
               f"v_lshl_add_u32 v{vOw}, v{x1}, 3, v{vOw}", f"v_add_u32 v{vOw}, s{sT2}, v{vOw}",
               f"v_subrev_u32 v{vOr+1}, s{sT0}, v{vOw}", f"v_add_u32 v{vOw}, s{sT0}, v{vOw}",
               f"v_lshrrev_b32 v{x2}, 2, v0", f"v_mul_u32_u24 v{x2}, 80, v{x2}", f"v_and_b32 v{x3}, 48, v{vL16}",
               f"v_add3_u32 v{vOr}, v{x2}, v{x3}, s{sT2}", f"s_mov_b32 s{sT3}, {64*896}"]

        def fwr(a):
            r_, off = fi_loc(a, False)
            return I(f"ds_write_b128 v{r_}, {vr(own_fi[a],4)} offset:{off}", tag=f"fw{a}")
        g, left = H.pour(vq, 0)
        qq = [fwr(0), fwr(1)]
        for a in range(2, 14):
            qq += self.rec_step(st, a, own_fi[a]) + [fwr(a)]
        g, left = H.pour(qq, g + 1, gb - 6)
        self.log(f"finv done at gap G{g}")
        assert not left
        g = max(gzr, gbo) + 7
        H.s[g].append(W(vm="g", ds="rro"))
        g, oleft = H.pour([f"v_sub_f32 v{vOG+jj}, 1.0, v{vG+jj}" for jj in range(2)] +
                          [f"v_add_f32 v{acco+j}, v{acco+j}, v{rdo+j}" for j in range(16)], g)
        self.log(f"own reduction done at G{g}, left {len(oleft)}")
        gc_ = o["pchk"]
        H.s[gc_ - 2].append(W(vm="pl"))
        H.v[gc_ - 2] += pchk
        H.s[gc_].append(Lab("s_cbranch_vccnz L_slow_pP", "L_back_pP:"))

        for key, S_, off in (("st1", G, 0), ("st2", G, NA), ("st3", H, 0)):
            for x in filter(None, o[key].split(",")):
                S_.s[int(x) + off] += self.stamp("@" + x)
        p.raw("s_waitcnt lgkmcnt(0)")
        e(W(vm="w0a" if hs else "w0"))
        e("s_barrier")
        e([xread(0, 0)] + wread(0) + [xread(0, 1), xread(0, 2), xread(0, 3)] + wread(1) + wread(2) + ([] if fg else [fread(0, 0), fread(0, 1)]))
        e(self.stamp("data0"))
        e(W(ds=["wf0", "xr0_1"]))
        G.emit(p, 0, NA)
        e(codeE)
        G.emit(p, NA)
        e(self.stamp("B"))
        e(codeF)
        e(self.stamp("fft"))
        if o["stop"] == "fft":
            e("s_branch L_fin")
        H.s[NH - 1] += self.stamp("g2h")
        e(W(vm="h0"))
        H.emit(p)
        e(self.stamp("g2"))
        pu = accp + 16
        e(oleft)
        for k in range(8):
            e([f"v_lshlrev_b32 v{pu+2*k}, 16, v{accp+k}", f"v_and_b32 v{pu+2*k+1}, 0xffff0000, v{accp+k}"])
        for jj in range(2):
            ks_ = range(4 * jj, 4 * jj + 4)
            sel = "op_sel:[0,1] op_sel_hi:[1,1]" if jj else "op_sel_hi:[1,0]"
            sel3 = "op_sel:[0,1,0] op_sel_hi:[1,1,1]" if jj else "op_sel_hi:[1,0,1]"
            for k in ks_:
                e(f"v_pk_add_f32 {vr(acco+2*k,2)}, {vr(acco+2*k,2)}, {vr(pu+2*k,2)}")
            for k in ks_:
                e(f"v_pk_mul_f32 {vr(acco+2*k,2)}, {vr(acco+2*k,2)}, {vr(vOG,2)} {sel}")
            for k in ks_:
                e(f"v_pk_fma_f32 {vr(acca+2*k,2)}, {vr(acca+2*k,2)}, {vr(vG,2)}, {vr(acco+2*k,2)} {sel3}")
            for k in ks_:
                e(f"v_cvt_pk_bf16_f32 v{accp+8+k}, v{acca+2*k}, v{acca+2*k+1}")
            e([f"ds_write_b64 v{vOw}, {vr(accp+8+4*jj,2)} offset:{1280*jj}",
               f"ds_write_b64 v{vOr+1}, {vr(accp+10+4*jj,2)} offset:{1280*jj+32}",
               I(f"ds_read_b128 {vr(rdo+4*jj,4)}, v{vOr} offset:{1280*jj}", tag=f"or{jj}")])
        for jj in range(2):
            e(I(f"buffer_store_dwordx4 {vr(rdo+4*jj,4)}, v{vOo}, {srd(sO)}, {'s%d' % sT3 if jj else 0} offen {o['outfl'].replace('+',' ')}".strip(),
                ds=f"or{jj}"))
        p.raw("L_fin:")
        self.dump_stamps()
        p.raw("L_end:")
        p.raw("s_endpgm")

        p.restore(snap_aux)
        self.aux(sj, sidx)
        if o["align"] and not o["slowend"]:
            i = p.out.index("@SLOW@")
            p.out[i:i + 1] = self.slow
        else:
            for l in self.slow:
                p.raw(l)
        p.raw("L_codeend:")
        return self.finish()

    def dump_stamps(self):
        if not self.o["stamps"]:
            return
        p = self.p
        p.raw("s_waitcnt vmcnt(0)")
        p.e(self.stamp("end"))
        p.raw("s_waitcnt lgkmcnt(0)")
        p.e([f"s_lshl_b32 s{sT0}, s2, 2", f"s_add_u32 s{sT0}, s{sT0}, s{sWv}", f"s_lshl_b32 s{sT0}, s{sT0}, 6",
             f"s_add_u32 s{sT0}, s{sT0}, {STAMP}", "s_mov_b64 exec, 1"])
        p.e([f"s_memrealtime s[{sT2}:{sT3}]"])
        for k in range(self.nst):
            p.e([f"v_mov_b32 v2, s{sX if k == self.nst-1 else sST+2*k}", f"buffer_store_dword v2, off, {srd(sWS)}, s{sT0} offset:{4*k}"])
        p.raw("s_waitcnt lgkmcnt(0)")
        p.e([f"v_mov_b32 v2, s{sT2}", f"buffer_store_dword v2, off, {srd(sWS)}, s{sT0} offset:60"])

    def aux_tok(self, tok):
        p = self.p
        e = p.e
        sA, vt16 = sRt, 2
        vx, vw, vd = 12, 13, 14

        def masked(lo, hi, ops):
            m = ((1 << hi) - 1) ^ ((1 << lo) - 1)
            e([f"s_mov_b32 exec_lo, {m & 0xffffffff:#x}", f"s_mov_b32 exec_hi, {m >> 32:#x}"] + ops + ["s_mov_b64 exec, -1"])
        if tok[0] == "x":
            a, b = int(tok[1]), int(tok[2])
            masked(0, 16 * (b - a + 1), [f"buffer_load_dword v15, v{vx}, {srd(sX)}, 0 offen offset:{128*a}"])
        elif tok[0] in "wv":
            a, b = int(tok[1]), int(tok[2])
            off = 128 if tok[0] == "v" else 0
            masked(8 * a, 8 * (b + 1), [f"buffer_load_dword v15, v{vw}, {srd(q)}, 0 offen offset:{off}" for q in (sG, sU)])
        elif tok[0] == "d":
            e(f"s_mov_b32 s{sT1}, {57344*int(tok[1])}")
            masked(0, 49, [f"buffer_load_dword v15, v{vd}, {srd(sD)}, s{sT1} offen"])
        elif tok == "clr":
            e([f"v_mov_b32 v{4+k}, 0" for k in range(4)] + [f"s_mul_i32 s{sT1}, s{sA}, {FEND//32}"])
            for k in range(2):
                e([I(f"buffer_store_dwordx4 v[4:7], v{vt16}, {srd(sWS)}, s{sT1} offen sc1", tag="clr"), f"s_addk_i32 s{sT1}, 4096"])
        elif tok == "go":
            e([f"s_lshl_b32 s{sT1}, s{sA}, 3", f"v_mov_b32 v8, 1", f"v_mov_b32 v9, s{sT0}", W(vm="clr"), "s_barrier",
               "s_mov_b64 exec, 1", f"buffer_store_dword v8, v9, {srd(sDBG)}, s{sT1} offen sc1", "s_mov_b64 exec, -1"])
        elif tok == "WT":
            sq, skg = sRg, sC
            e([f"s_lshr_b32 s{sq}, s{sA}, 3", f"s_and_b32 s{skg}, s{sA}, 7",
               f"s_lshl_b32 s{sT1}, s{sq}, 6", f"s_add_u32 s{sT1}, s{sT1}, s{skg}", f"s_mul_i32 s{sT1}, s{sT1}, 3600"])
            e([f"v_lshrrev_b32 v16, 5, v0", f"v_lshl_add_u32 v17, s{sWv}, 1, v16", f"v_mul_u32_u24 v17, 28, v17",
               f"v_and_b32 v18, 31, v0", f"v_add3_u32 v17, v17, v18, v16", f"v_add_u32 v17, -1, v17", f"v_max_i32 v17, 0, v17",
               f"v_lshlrev_b32 v17, 4, v17", f"s_mul_i32 s{sT2}, s{sWv}, 1120"])
            for j in range(8):
                for part in range(2):
                    e([f"s_add_u32 m0, s{sT2}, {(8*part+j)*RS}", "s_nop 0",
                       I(f"buffer_load_dwordx4 v17, {srd(sWr if part == 0 else sWi)}, s{sT1} offen lds", tag="wl")])
                e(f"s_add_u32 s{sT1}, s{sT1}, {64*450}")
        else:
            raise SystemExit(tok)

    def aux1(self, sj, sidx):
        p, o = self.p, self.o
        e = p.e
        sA, vt16 = sRt, 2
        vx, vw, vd = 12, 13, 14
        p.raw("L_auxh:")
        e(["s_cmp_ge_u32 s2, 256", "s_cbranch_scc1 L_end"])
        e([f"s_lshl2_add_u32 s{sA}, s{sj}, s{sidx}", f"s_sub_u32 s{sA}, s{sA}, 28", f"s_mov_b32 s{sCt}, s{sj}",
           f"v_lshlrev_b32 v{vL16}, 4, v0", f"s_lshl_b32 s{sT0}, s{sWv}, 10", f"v_add_u32 v{vt16}, s{sT0}, v{vL16}"])
        p.raw("s_waitcnt lgkmcnt(0)")
        for d_, s_ in ((sWi, sWr), (sGw, sD), (sWS, sDBG)):
            e(f"s_mov_b64 s[{d_}:{d_+1}], s[{s_+2}:{s_+3}]")
        for s, n in ((sWS, WSEND), (sWr, 2048 * 450), (sWi, 2048 * 450)):
            e([f"s_mov_b32 s{s+2}, {n}", f"s_mov_b32 s{s+3}, 0x20000"])
        e(self.astamp("head"))
        toks = o["apf"].split(",")
        self.late = toks[toks.index("G") + 1:]
        toks = toks[:toks.index("G")]
        rest = [f"s_lshl2_add_u32 s{sCnt}, s{sA}, s{sWv}"]
        if any(t[0] == "x" for t in toks):
            rest += [f"v_and_b32 v4, 15, v0", f"v_lshl_add_u32 v4, s{sCnt}, 4, v4", f"v_mul_u32_u24 v4, 896, v4",
                     f"v_lshrrev_b32 v5, 4, v0", f"v_lshl_add_u32 v{vx}, v5, 7, v4"]
        rest += [f"s_lshr_b32 s{sT2}, s{sCt}, 1", f"s_and_b32 s{sCnt}, s{sCnt}, 15", f"s_lshl4_add_u32 s{sCnt}, s{sT2}, s{sCnt}",
                 f"s_mul_i32 s{sT2}, s{sCnt}, 3584", f"s_and_b32 s{sT3}, s{sCt}, 1", f"s_mul_i32 s{sT1}, s{sT3}, {7*256}",
                 f"s_add_u32 s{sT2}, s{sT2}, s{sT1}",
                 f"v_lshrrev_b32 v4, 3, v0", f"v_mul_u32_u24 v4, {64*3584}, v4", f"v_and_b32 v5, 7, v0", f"v_min_u32 v5, 6, v5",
                 f"v_lshl_add_u32 v4, v5, 8, v4", f"v_add_u32 v{vw}, s{sT2}, v4",
                 f"s_lshl_b32 s{sT3}, s{sT3}, 6", f"s_add_u32 s{sCnt}, s{sCnt}, s{sT3}",
                 f"s_mul_i32 s{sCnt}, s{sCnt}, 49", f"v_add_u32 v4, s{sCnt}, v0", f"v_mul_u32_u24 v5, 9363, v4", f"v_lshrrev_b32 v5, 22, v5",
                 f"v_mul_u32_u24 v5, 57344, v5", f"v_lshl_add_u32 v{vd}, v4, 7, v5", f"s_mov_b32 s{sU+2}, {448*3584}"]
        for s, n in ((sD, 1792 * 896), (sGw, 896), (sDBG, 256)):
            rest += [f"s_mov_b32 s{s+2}, {n}", f"s_mov_b32 s{s+3}, 0x20000"]
        for t in toks:
            if t not in ("clr", "WT"):
                e(rest)
                rest = []
            self.aux_tok(t)
            if t in ("clr", "go", "WT"):
                e(self.astamp(t))
        e(rest)

    def aux(self, sj, sidx):
        p, o = self.p, self.o
        e = p.e
        p.raw("L_aux:")
        sA, vt16 = sRt, 2
        sq, skg = sRg, sC
        late = self.late
        e([f"s_mov_b32 s{sK}, 0xbfb8aa3b", f"s_movk_i32 s{s7f}, 0x7f"])
        vo, vg = 3, 8
        xb, gb = 32, 96
        e([f"s_lshr_b32 s{sT1}, s{sA}, 3", f"s_lshl_b32 s{sT1}, s{sT1}, 1", f"s_and_b32 s{sT2}, s{sA}, 1",
           f"s_add_u32 s{sT1}, s{sT1}, s{sT2}", f"s_lshl_b32 s{sT1}, s{sT1}, 2", f"s_add_u32 s{sT1}, s{sT1}, s{sWv}",
           f"s_lshl_b32 s{sT1}, s{sT1}, 3", f"s_bfe_u32 s{sT2}, s{sA}, 0x20001", f"s_add_u32 s{sT1}, s{sT1}, s{sT2}",
           f"s_lshl_b32 s{sT1}, s{sT1}, 3",
           f"v_lshrrev_b32 v4, 5, v0", f"v_bfe_u32 v5, v0, 2, 3", f"v_lshl_add_u32 v4, v4, 5, v5", f"v_add_u32 v4, s{sT1}, v4",
           f"v_and_b32 v{vg}, 48, v{vL16}", f"v_mul_u32_u24 v4, 896, v4", f"v_add_u32 v{vo}, v4, v{vg}"])
        e([f"v_and_b32 v{vPg}, 31, v0", f"v_lshlrev_b32 v{vPg}, 3, v{vPg}"])
        gol = f"buffer_load_dword v{vP}, v{vPg}, {srd(sDBG)}, 0 offen sc1"
        vra, vwa = 9, 10
        e([f"v_and_b32 v4, 7, v0", f"v_lshrrev_b32 v5, 7, v{vt16}", f"v_lshrrev_b32 v6, 1, v4", f"v_mul_u32_u24 v{vra}, 1120, v6",
           f"v_and_b32 v6, 1, v0", f"v_mul_u32_u24 v6, 496, v6", f"v_add3_u32 v{vra}, v{vra}, v6, 16",
           f"v_add_u32 v6, v4, v5", f"v_lshl_add_u32 v{vra}, v6, 1, v{vra}", f"v_add_u32 v17, {8*RS}, v{vra}",
           f"v_lshlrev_b32 v{vwa}, 13, v5", f"v_lshl_add_u32 v{vwa}, v4, 4, v{vwa}",
           f"s_lshr_b32 s{sT1}, s{skg}, 1", f"s_lshl_b32 s{sT1}, s{sT1}, 2", f"s_add_u32 s{sT1}, s{sT1}, s{sq}",
           f"s_lshl_b32 s{sT1}, s{sT1}, 1", f"s_and_b32 s{sT2}, s{skg}, 1", f"s_add_u32 s{sT1}, s{sT1}, s{sT2}",
           f"s_lshl_b32 s{sT1}, s{sT1}, 7", f"s_add_u32 s{sT1}, s{sT1}, {WT}", f"s_add_u32 s{sT2}, s{sT1}, 4096"])
        sc, vv = self.poll1_addr(vT + 14, vT + 15, sHc, sFs)
        e([f"s_movk_i32 s{sKd}, 224", f"s_mov_b32 s{sSc}, {fbits(1.0/(2048*448))}", sc, vv, self.fft_setup_regs()])
        e([f"s_cmp_lg_u32 s{sA}, 4", "s_cbranch_scc1 L_aux1", self.fft_consts(vAB + 32)])
        p.raw("L_aux1:")
        e(W(vm="wl"))
        e("s_barrier")
        e(self.astamp("wl"))
        def rd(n):
            return [I(f"ds_read_u16 v{160+8*(n&1)+j}, v{17 if n & 1 else vra} offset:{j*RS+64*(n>>1)}", tag=f"g{n}") for j in range(8)]
        e(rd(0))
        for n in range(16):
            part = n & 1
            nx = rd(n + 1) if n < 15 else []
            e(nx[:6])
            if n == 14:
                e([f"v_cmp_gt_u32 vcc, 8192, v{vwa}", "s_nop 1", f"v_cndmask_b32 v{vwa}, 2.0, v{vwa}, vcc"])
            e(W(ds=f"g{n}"))
            e(nx[6:])
            for j in range(4):
                e(f"v_lshl_or_b32 v{176+4*part+j}, v{160+8*part+2*j+1}, 16, v{160+8*part+2*j}")
            e([f"buffer_store_dwordx4 {vr(176+4*part,4)}, v{vwa}, {srd(sWS)}, s{sT1+part} offen sc1",
               f"s_add_u32 s{sT1+part}, s{sT1+part}, {32*8192}"])
        p.reset()
        e(self.astamp("gath"))
        e(I(gol, tag="go"))
        for t in late:
            if t != "F":
                self.aux_tok(t)
                continue
            e(self.poll_check("goa", "go", gol, vP))
            e(["s_barrier", f"s_lshl_b32 s{sFh}, s{sA}, 7", f"s_add_u32 s{sFh}, s{sFh}, {FAUX}",
               f"s_cmp_lg_u32 s{sWv}, 0", f"s_cselect_b32 s{sT2}, {OOB}, 0", f"v_mov_b32 v16, s{sT2}",
               "s_mov_b64 exec, 1", f"buffer_store_dword v{vP}, v16, {srd(sWS)}, s{sFh} offen sc1", "s_mov_b64 exec, -1"])
            e(self.astamp("faux"))
        e([f"s_cmp_lg_u32 s{sA}, 4", "s_cbranch_scc1 L_aux2"])
        if o["stop"] == "gemm1":
            e("s_branch L_aux2")
        pl = f"buffer_load_dword v{vPr}, v{vPa}, {srd(sWS)}, 0 offen sc1"
        e([I(pl, tag="p1"), self.fft_scalars(), self.fft_addr2(), self.poll_check("p1a", "p1", pl, vPr), self.fft_loads()])
        self.fft_body(lambda n, dt: None)
        p.raw("L_aux2:")
        p.reset()
        for k in range(14):
            e(I(f"buffer_load_dwordx4 {vr(xb+4*k,4)}, v{vo}, {srd(sX)}, 0 offen offset:{64*k}", tag=f"gx{k}"))
            e(I(f"buffer_load_dwordx4 {vr(gb+4*k,4)}, v{vg}, {srd(sGw)}, 0 offen offset:{64*k}", tag="gx"))
            if k == 3:
                e([f"s_cmp_lg_u32 s{sA}, 4", "s_cbranch_scc1 L_aux3",
                   f"s_lshl_b32 s{sT0}, s{sWv}, 13", f"s_add_u32 s{sT0}, s{sT0}, {FZ+224*32}"])
                if o["stop"] != "gemm1":
                    e(self.flag_store(sT0, "gx0"))
                p.raw("L_aux3:")
        e(W(vm="gx"))
        for k in range(4):
            e(f"v_mov_b32 v{4+k}, 0")
        for k in range(56):
            e(f"v_dot2_f32_bf16 v{4+k%4}, v{xb+k}, v{gb+k}, v{4+k%4}")
        e([f"v_add_f32 v4, v4, v5", f"v_add_f32 v6, v6, v7", f"v_add_f32 v4, v4, v6",
           f"v_add_f32_dpp v4, v4, v4 quad_perm:[1,0,3,2] row_mask:0xf bank_mask:0xf",
           f"v_add_f32_dpp v4, v4, v4 quad_perm:[2,3,0,1] row_mask:0xf bank_mask:0xf",
           f"v_mul_f32 v4, s{sK}, v4", f"v_exp_f32 v4, v4", f"v_add_f32 v4, 1.0, v4", f"v_rcp_f32 v4, v4",
           f"v_and_b32 v5, 60, v0",
           f"s_lshl_b32 s{sT1}, s{sA}, 2", f"s_add_u32 s{sT1}, s{sT1}, s{sWv}", f"s_lshl_b32 s{sT1}, s{sT1}, 6",
           f"s_add_u32 s{sT1}, s{sT1}, {GOFF}",
           f"buffer_store_dword v4, v5, {srd(sWS)}, s{sT1} offen sc1"])
        p.raw("s_waitcnt vmcnt(0)")
        p.reset()
        e(["s_barrier", f"s_addk_i32 s{sFh}, {FG-FAUX}",
           "s_mov_b64 exec, 1", f"buffer_store_dword v{vP}, v16, {srd(sWS)}, s{sFh} offen sc1", "s_mov_b64 exec, -1"])
        if o["stamps"]:
            e(self.astamp("fg"))
            p.raw("s_waitcnt lgkmcnt(0)")
            e([f"s_lshl_b32 s{sT1}, s2, 2", f"s_add_u32 s{sT1}, s{sT1}, s{sWv}", f"s_lshl_b32 s{sT1}, s{sT1}, 6",
               f"s_add_u32 s{sT1}, s{sT1}, {STAMP}", "s_mov_b64 exec, 1"])
            for k in range(len(self.anames)):
                e([f"v_mov_b32 v2, s{sST+2*k}", f"buffer_store_dword v2, off, {srd(sWS)}, s{sT1} offset:{4*k}"])
            e("s_mov_b64 exec, -1")
        p.raw("s_endpgm")

    def pages(self, lines):
        import subprocess
        i0, i1 = lines.index("L_body:"), lines.index("L_fin:")
        body = [l for l in lines[i0:i1]]
        src = '.amdgcn_target "amdgcn-amd-amdhsa--gfx950"\n.text\nL_x:\n' + "\n".join(re.sub(r"L_slow_\w+|L_fin", "L_x", l) for l in body) + "\n"
        r = subprocess.run(["llvm-mc", "-triple", "amdgcn-amd-amdhsa", "-mcpu=gfx950", "-show-encoding"],
                           input=src, capture_output=True, text=True)
        sizes = [l.count(",", l.index("encoding:")) + 1 for l in r.stdout.split("\n") if "encoding:" in l]
        out, a, k, nm, npad, rep_ = [], self.o["bodyoff"], 0, 0, 0, []
        total = a + sum(sizes)
        npg = (total + 24) // 4096
        first = self.o["pads"]
        page, pend = 0, False
        for l in body:
            out.append(l)
            if l.endswith(":"):
                continue
            a += sizes[k]
            k += 1
            nm += l.startswith("v_mfma")
            if a // 4096 > page:
                page = a // 4096
                rep_.append(nm)
                pend = self.o["pads"] and page >= first
            if pend and (l.startswith("v_mfma") or a % 4096 >= 40) and "exec" not in l:
                out += [f"L_pad{npad}:", f"s_cbranch_execz {'L_padret' if page + 4 > npg else 'L_pad%d' % (npad + 4)}"]
                a += 4
                npad += 1
                pend = False
        assert k == len(sizes) and (not self.o["pads"] or npad == npg - first + 1 >= 4), (k, len(sizes), npad)
        self.log(f"body bytes {a - self.o['bodyoff']}, page starts after mfma # {rep_}")
        return lines[:i0] + out + lines[i1:]

    def finish(self):
        out = self.p.out
        d = self.o["diag"].split(",")
        if "plainst" in d:
            out = [l.replace(" sc1", "") if l.startswith("buffer_store_dwordx4") else l for l in out]
        if "plainld" in d:
            out = [l.replace(" sc1", "") if l.startswith("buffer_load_dwordx4") else l for l in out]
        if "nopoll" in d:
            out = ["s_nop 0" if l.startswith("s_cbranch_vccnz L_slow") or l.startswith("s_cbranch_scc0 L_slow") else l for l in out]
        if "nowd" in d:
            out = [f"v_mov_b32 v{vDd}, 2.0" if l.startswith(f"v_add3_u32 v{vDd}, v{vDd},") else l for l in out]
        if "nohl" in d:
            out = [f"v_mov_b32 v{vXd}, 2.0" if l == f"v_add_u32 v{vXd}, s{sCnt}, v{vL16}" else l for l in out]
        if "noz" in d:
            out = [f"v_mov_b32 v{vY+1}, 2.0" if l == f"v_add_u32 v{vY+1}, s{sFs}, v{vY+1}" else l for l in out]
        for x in d:
            if x.startswith("pre"):
                it_, np_ = x[3:].split("_")
                pr = ["s_mov_b32 s4, 0x9e3779b1", "v_add_u32 v10, s2, v0"]
                for j in range(32):
                    pr += [f"v_add_u32 v10, {0x6a09e667+j*77777}, v10", "v_mul_lo_u32 v10, v10, s4", "v_lshrrev_b32 v11, 15, v10", "v_xor_b32 v10, v10, v11",
                           f"v_and_b32 v{32+j}, 0x81ff81ff, v10", f"v_or_b32 v{32+j}, 0x3c003c00, v{32+j}"]
                pr += [f"v_mov_b32 v{96+j}, 0" for j in range(64)] + ["s_mov_b32 s4, 0", "L_pre:"]
                for m_ in range(16):
                    pr += [f"v_mfma_f32_16x16x32_bf16 v[{96+4*m_}:{99+4*m_}], v[{32+4*(m_>>2)}:{35+4*(m_>>2)}], v[{48+4*(m_&3)}:{51+4*(m_&3)}], v[{96+4*m_}:{99+4*m_}]", f"s_nop {np_}"]
                pr += ["s_add_u32 s4, s4, 1", f"s_cmp_lt_u32 s4, {it_}", "s_cbranch_scc1 L_pre"]
                out = pr + out
        if "halfm" in d:
            k_, o2 = 0, []
            for l in out:
                if l.startswith("v_mfma") and not l.endswith(", 0"):
                    k_ += 1
                    if k_ % 4 == 0:
                        continue
                o2.append(l)
            out = o2
        if "nomfma" in d:
            out = ["s_nop 7" if l.startswith("v_mfma_f32_32x32") else l for l in out]
        if "m16" in d:
            o2, cnt, i = [], {}, 0
            while i < len(out):
                l = out[i]
                m = re.match(r"v_mfma_f32_32x32x16_bf16 v\[(\d+):\d+\], (\S+), (\S+), (\S+)", l)
                if not m:
                    o2.append(l); i += 1
                    continue
                b = int(m.group(1))
                if m.group(4) == "0":
                    cnt[b] = 0
                k = cnt[b]; cnt[b] += 1
                j = i + 1
                while j < len(out) and not out[j].startswith("v_mfma") and j - i < 12:
                    j += 1
                gap = out[i + 1:j]
                if j - i >= 12:
                    gap, j = [], i + 1
                tot = sum(cost(x) for x in gap); acc = 0; cutp = 0
                for q, x in enumerate(gap):
                    if acc >= (tot + 1) // 2 and not x.startswith("s_cselect") and not x.startswith("s_cbranch") and "exec" not in x and "exec, 1" not in gap[q-1]:
                        break
                    acc += cost(x); cutp = q + 1
                def mm(blk, A, B):
                    dd = f"v[{b+4*blk}:{b+4*blk+3}]"
                    return f"v_mfma_f32_16x16x32_bf16 {dd}, {A}, {B}, {'0' if k < 2 else dd}"
                A, B = m.group(2), m.group(3)
                A0, B0 = A, B
                pa, pb = cnt.get("p", (A, B))
                if "m16b" in d:
                    mb = re.match(r"a\[(\d+):", B); ma = re.match(r"a\[(\d+):", A)
                    if mb:
                        q_ = max(int(mb.group(1)) - 8, int(mb.group(1)) & 4); B0 = f"a[{q_}:{q_+3}]"
                        if "100" and b >= vAB and b != vAB + 16 and int(mb.group(1)) < 216:
                            q_ = int(mb.group(1)) + 8; B0 = f"a[{q_}:{q_+3}]"
                    elif ma:
                        q_ = max(int(ma.group(1)) - 8, 0); A0 = f"a[{q_}:{q_+3}]"
                    else:
                        A0 = pa
                cnt["p"] = (A, B)
                o2 += [mm(k & 1, A0, B0)] + gap[:cutp] + [mm(2 + (k & 1), A, B)] + gap[cutp:]
                i = j
            out = o2
        if "nobar" in d:
            out = ["s_nop 0" if l.startswith("s_barrier") else l for l in out]
        if "novm" in d:
            out = [(re.sub(r" vmcnt\(\d+\)", " vmcnt(63)", l) if l.startswith("s_waitcnt") and "vmcnt(0)" not in l else l) for l in out]
        lines, nfix = check_hazards(out)
        lines = self.pages(lines)
        self.log(f"{len(lines)} lines, {nfix} hazard nops inserted, {getattr(self.p,'n_sat',0)} lgkm saturation waits")
        ref = open("gated_mix__spectral_gfnet__swiglu_ffn__prompt.s.ref").read().split("\n")
        head = [l for l in ref if l.startswith(";") and "@launch" not in l and "Override" not in l and "grid=ceil" not in l]
        s = "\n".join(head) + "\n"
        s += f"; @launch grid=(256,1,1) block=(256,1,1) lds={LDS_BYTES}\n"
        s += '.amdgcn_target "amdgcn-amd-amdhsa--gfx950"\n.text\n'
        if self.o["align"]:
            s += ".p2align 12\n"
        s += f".globl {NAME}\n.p2align 8\n.type {NAME},@function\n{NAME}:\n"
        s += "\n".join(lines) + "\n"
        s += f"""s_endpgm
.section .rodata,"a"
.p2align 6
.amdhsa_kernel {NAME}
  .amdhsa_next_free_vgpr 512
  .amdhsa_next_free_sgpr 102
  .amdhsa_accum_offset 256
  .amdhsa_group_segment_fixed_size 0
  .amdhsa_kernarg_size 88
  .amdhsa_user_sgpr_count 2
  .amdhsa_user_sgpr_kernarg_segment_ptr 1
  .amdhsa_system_sgpr_workgroup_id_x 1
  .amdhsa_float_denorm_mode_32 3
.end_amdhsa_kernel
"""
        return s


def parse_opts(args):
    kw = {}
    for a in args:
        k, v = a.split("=")
        assert k in DEF, k
        if isinstance(DEF[k], bool):
            v = v not in ("0", "False")
        elif isinstance(DEF[k], int):
            v = int(v)
        kw[k] = v
    return kw


if __name__ == "__main__":
    out = sys.argv[1]
    g = Gen(**parse_opts(sys.argv[2:]))
    s = g.build()
    open(out, "w").write(s)
    print("; stamps:", g.stamp_names, file=sys.stderr)
```

```python
import re


class I:
    __slots__ = ("t", "tag", "vm", "ds")

    def __init__(self, t, tag=None, vm=None, ds=None):
        self.t = t
        self.tag = tag
        self.vm = vm
        self.ds = ds


def W(vm=None, ds=None):
    return I("", vm=vm, ds=ds)


def kind(t):
    op = t.split()[0] if t else "s_waitcnt"
    if op.startswith("v_mfma"):
        return "M"
    if op.startswith("ds_"):
        return "D"
    if op.startswith("buffer_") or op.startswith("global_"):
        return "G"
    if op.startswith("v_"):
        return "V"
    return "S"


TRANS = ("v_exp_f32", "v_rcp_f32", "v_cos_f32", "v_sin_f32", "v_log_f32", "v_rsq_f32", "v_sqrt_f32")


VM2 = [0]


def cost(t):
    op = t.split()[0] if t else ""
    return 2 if op in TRANS or op == "ds_write_b128" or (VM2[0] and op.startswith("buffer_")) else 1


class Prog:
    def __init__(self):
        self.out = []
        self.reset()

    def reset(self):
        self.vm_n = 0
        self.vm_done = 0
        self.vm_tag = {}
        self.ds_n = 0
        self.ds_done = 0
        self.ds_tag = {}

    def snapshot(self):
        return (self.vm_n, self.vm_done, dict(self.vm_tag), self.ds_n, self.ds_done, dict(self.ds_tag))

    def restore(self, s):
        self.vm_n, self.vm_done, vt, self.ds_n, self.ds_done, dt = s
        self.vm_tag = dict(vt)
        self.ds_tag = dict(dt)

    def raw(self, t):
        self.out.append(t)

    def _idx(self, tags, table, n):
        if tags is None:
            return 0
        if tags == "all":
            return n
        if not isinstance(tags, (list, tuple)):
            tags = [tags]
        return max([table[t] for t in tags], default=0)

    def wait(self, vm=None, ds=None):
        a = self._idx(vm, self.vm_tag, self.vm_n)
        b = self._idx(ds, self.ds_tag, self.ds_n)
        s = ""
        if a > self.vm_done:
            n = min(self.vm_n - a, 63)
            s += f" vmcnt({n})"
            self.vm_done = self.vm_n - n
        if b > self.ds_done:
            n = min(self.ds_n - b, 15)
            s += f" lgkmcnt({n})"
            self.ds_done = self.ds_n - n
        if s:
            self.out.append("s_waitcnt" + s)
        return bool(s)

    def e(self, it, tag=None, vm=None, ds=None):
        if isinstance(it, (list, tuple)):
            for x in it:
                self.e(x)
            return
        if callable(it):
            it(self)
            return
        if isinstance(it, str):
            if "\n" in it:
                for l in it.split("\n"):
                    if l.strip():
                        self.e(l.strip())
                return
            it = I(it, tag, vm, ds)
        self.wait(it.vm, it.ds)
        if not it.t:
            return
        k = kind(it.t)
        if k == "G":
            self.vm_n += 1
            assert self.vm_n - self.vm_done <= 63, "too many vmem outstanding"
            if it.tag:
                self.vm_tag[it.tag] = self.vm_n
        elif k == "D":
            if self.ds_n - self.ds_done >= 15:
                self.out.append("s_waitcnt lgkmcnt(10)")
                self.ds_done = self.ds_n - 10
                self.n_sat = getattr(self, "n_sat", 0) + 1
            self.ds_n += 1
            if it.tag:
                self.ds_tag[it.tag] = self.ds_n
        self.out.append(it.t)


class Lab:
    def __init__(self, br, lab):
        self.br, self.lab = br, lab

    def __call__(self, p):
        p.e(self.br)
        p.raw(self.lab)


class Lgkm0:
    def __call__(self, p):
        p.raw("s_waitcnt lgkmcnt(0)")
        p.ds_done = p.ds_n


class Mark:
    def __init__(self, name):
        self.name = name


class Rec:
    def __init__(self):
        self.items = []

    def e(self, it):
        if isinstance(it, (list, tuple)):
            for x in it:
                self.e(x)
        else:
            self.items.append(it)

    def mark(self, name):
        self.items.append(Mark(name))


class Gaps:
    def __init__(self, mf, budget=6):
        self.mf = mf
        self.n = len(mf)
        self.s = [[] for _ in mf]
        self.m = [[] for _ in mf]
        self.v = [[] for _ in mf]
        self.post = [[] for _ in mf]
        self.budget = budget
        self.light = set()
        self.quiet = set()
        self._wrote, self._read = set(), set()

    def used(self, g):
        def c(x):
            if isinstance(x, I):
                return cost(x.t) + (1 if (x.t and (x.vm or x.ds)) else 0)
            if isinstance(x, str):
                return cost(x)
            if isinstance(x, list):
                return sum(map(c, x))
            if isinstance(x, (Lab, Lgkm0)):
                return 1
            return 4
        return (max(0, sum(map(c, self.s[g])) - 1) + sum(map(c, self.m[g])) + sum(map(c, self.v[g]))
                + sum(map(c, self.post[g])))

    def pour(self, seq, g0, g1=None, budget=None, window=14, sonly=False):
        budget = budget or self.budget
        g1 = self.n if g1 is None else g1
        g = g0
        items = []
        for x in seq:
            if isinstance(x, list):
                ps = [parse(y) for y in x]
                items.append((x, len(x), "grp", "S", set().union(*[q[2] for q in ps]), set().union(*[q[3] for q in ps])))
                continue
            t = x.t if isinstance(x, I) else x
            op, k, w, r, _ = parse(t)
            items.append((x, cost(t), op, k, w, r))
        last = g0
        wrote, read = self._wrote, self._read
        while items and g < g1:
            if g in self.light or g in self.quiet:
                g += 1
                continue
            placed = False
            lastv = self.v[g][-1] if self.v[g] else None
            lw = set()
            if lastv is not None and not isinstance(lastv, list):
                lt = lastv.t if isinstance(lastv, I) else lastv
                lop, _, lw_, _, _ = parse(lt)
                if lop in TRANS:
                    lw = lw_
            want2 = False
            if budget - self.used(g) == 2:
                sw, sr = set(), set()
                for (x, t, op, k, w, r) in items[:window]:
                    if op in TRANS and not ((w & sw) or (w & sr) or (r & sw)):
                        want2 = True
                        break
                    sw |= w
                    sr |= r
            sw, sr = set(), set()
            for j, (x, t, op, k, w, r) in enumerate(items[:window]):
                dep = (w & sw) or (w & sr) or (r & sw) or (want2 and op not in TRANS)
                if not dep:
                    early = not any((z, g) in wrote for z in (r | w)) and not any((z, g) in read for z in w)
                    if k in "DG":
                        if early and self.used(g) + t <= budget + (budget > 3) \
                                and not any(kk in "DG" for (_, _, _, kk, _, _) in items[:j]):
                            self.m[g].append(x)
                            for z in r:
                                read.add((z, g))
                            placed = True
                    elif k == "S" and early and not self.s[g] and self.used(g) + t - 1 <= max(budget, t - 1):
                        self.s[g].append(x)
                        placed = True
                    elif self.used(g) + t <= budget and not (lw & r and op not in TRANS) and not (sonly and k == "S"):
                        self.v[g].append(x)
                        for z in w:
                            wrote.add((z, g))
                        for z in r:
                            read.add((z, g))
                        placed = True
                if placed:
                    items.pop(j)
                    last = g
                    break
                sw |= w
                sr |= r
            if not placed:
                g += 1
        return last, [it[0] for it in items]

    def emit(self, p, g0=0, g1=None, fix=0):
        g1 = self.n if g1 is None else g1

        def isd(x):
            return isinstance(x, I) and x.t.startswith("ds_read")

        def needs(x, tag):
            if not isinstance(x, I):
                return callable(x)
            return x.ds == "all" or tag == x.ds or (isinstance(x.ds, (list, tuple)) and tag in x.ds)
        for g in range(g0, g1):
            p.e(self.mf[g])
            n0 = len(p.out)
            p.e(self.s[g])
            m = self.m[g]
            if fix and len(p.out) == n0 and len(m) >= 2 and isd(m[0]) and isd(m[1]) and not self.v[g]:
                h = g + 1
                if len(m) == 2 and h < g1 - 1 and h not in self.light and h + 1 not in self.light and self.used(h) < 2 \
                        and not any(isd(x) for x in self.m[h]) and not self.post[g] \
                        and not any(needs(x, m[1].tag) for k in (h, h + 1, h + 2) if k < g1 for x in self.s[k]):
                    self.m[h].insert(0, m.pop())
                elif not (m[0].vm or m[0].ds):
                    p.e("s_nop 0")
            p.e(m)
            p.e(self.v[g])
            p.e(self.post[g])


_REG = re.compile(r"(?<![\w.])([vas])(\d+)(?!\w)|(?<![\w.])([vas])\[(\d+):(\d+)\]")


def regs(op):
    r = set()
    for m in _REG.finditer(op):
        if m.group(1):
            r.add((m.group(1), int(m.group(2))))
        else:
            for i in range(int(m.group(4)), int(m.group(5)) + 1):
                r.add((m.group(3), i))
    if re.search(r"\bvcc(_lo|_hi)?\b", op):
        r.add(("s", "vcc"))
    if re.search(r"\bm0\b", op):
        r.add(("s", "m0"))
    if re.search(r"\bexec(_lo|_hi)?\b", op):
        r.add(("s", "exec"))
    return r


def parse(t):
    t = t.split(";")[0].strip()
    sp = t.split(None, 1)
    op = sp[0]
    ops = [o.strip() for o in sp[1].split(",")] if len(sp) > 1 else []
    k = kind(t)
    w, r = set(), set()
    allr = [regs(o) for o in ops]
    U = lambda l: set().union(*l) if l else set()
    if k == "M":
        w = allr[0]
        r = U(allr[1:])
    elif k == "D":
        if op.startswith("ds_read") or op.startswith("ds_bpermute"):
            w = allr[0]
            r = U(allr[1:])
        else:
            r = U(allr)
    elif k == "G":
        if " lds" in t:
            r = U(allr) | {("s", "m0")}
        elif "_load" in op:
            w = allr[0]
            r = U(allr[1:])
        else:
            r = U(allr)
    elif k == "V":
        w = allr[0]
        r = U(allr[1:])
        if op.startswith("v_fmac") or op.startswith("v_dot2c") or "permlane" in op or op.startswith("v_writelane"):
            r |= w
        if "permlane" in op and "swap" in op:
            w = w | allr[1]
        if op.startswith("v_cmpx"):
            w = w | {("s", "exec")}
    else:
        if op.startswith("s_cmp") or op.startswith("s_cbranch") or op.startswith("s_bitcmp") or op in (
                "s_waitcnt", "s_nop", "s_barrier", "s_branch", "s_sleep", "s_endpgm", "s_setprio"):
            r = U(allr)
        elif allr:
            w = allr[0]
            r = U(allr[1:])
            if "saveexec" in op:
                w = w | {("s", "exec")}
            if op in ("s_addk_i32", "s_mulk_i32", "s_bitset1_b32", "s_bitset0_b32"):
                r = r | w
    return op, k, w, r, allr


def check_hazards(lines, fix=True):
    out = []
    hist = []
    nfix = 0
    for t in lines:
        s = t.strip()
        if not s or s.startswith(";") or s.startswith(".") or s.endswith(":"):
            out.append(t)
            continue
        op, k, w, r, allr = parse(s)
        need = 0
        dist = 0
        for (pop, pk, pw, pr, pall, pst) in reversed(hist):
            req = 0
            vw = {x for x in pw if x[0] in "va"}
            sw = {x for x in pw if x[0] == "s"}
            if pk == "M":
                passes = 8 if "32x32x16" in pop else 4
                big = 12 if passes == 8 else 8
                if k == "M":
                    if pw & (allr[1] | allr[2]):
                        req = big
                    elif pw & allr[3] and not (pw == allr[3] and pop == op):
                        req = 10 if passes == 8 else 6
                    elif pw & w and not (pw == allr[3]):
                        req = big
                elif pw & (r | w):
                    req = big
                if k == "V" and (pall[3] & w):
                    req = max(req, 7 if passes == 8 else 3)
            elif pk == "V":
                if k == "M" and vw & r:
                    req = 2
                if k == "M" and ("s", "exec") in pw:
                    req = 4
                if pop in TRANS and k != "S" and op not in TRANS and vw & r:
                    req = max(req, 1)
                if pop.startswith("v_dot") and vw & (r | w) and not (op == pop and not (vw & (allr[1] | allr[2]))):
                    req = max(req, 3)
                if (op.startswith("v_readlane") or op.startswith("v_readfirstlane")) and vw & r:
                    req = max(req, 1)
                if ("permlane" in op or "dpp" in s) and vw & r:
                    req = max(req, 2)
                if k == "G" and sw & r:
                    req = max(req, 5)
                if k == "V" and sw & r:
                    req = max(req, 2)
                if k == "S" and sw & r and not op.startswith("s_cbranch"):
                    req = max(req, 1)
            elif pk == "G":
                if "store" in pop and ("x4" in pop or "x3" in pop) and (pall[0] & w):
                    req = 2
            elif pk == "S":
                if ("s", "m0") in pw and k == "G" and " lds" in s:
                    req = 1
                if ("s", "exec") in pw and "dpp" in s:
                    req = 5
            if req > dist:
                need = max(need, req - dist)
            dist += pst
            if dist > 20:
                break
        if need:
            nfix += 1
            if not fix:
                raise SystemExit(f"hazard before: {s} need {need}")
            out.append(f"s_nop {need-1}")
            hist.append(("s_nop", "S", set(), set(), [], need))
        st = 1
        if op == "s_nop":
            st = int(s.split()[1]) + 1
        hist.append((op, k, w, r, allr, st))
        hist = hist[-24:]
        out.append(t)
    return out, nfix
```

```python
import sys, struct, re
from asmlib import *

NAME = "gated_mix__spectral_gfnet__swiglu_ffn__prompt_kernel"

FX1 = 0
FAUX = FX1 + 896 * 128
FG = FAUX + 32 * 128
FH = 1024 * 128
FZ = 1280 * 128
FEND = 2048 * 128
GOFF = FEND - 8192
STAMP = FEND + 65536
X1T = 1 << 20
ZT = X1T + 448 * 4096
WT = ZT + 448 * 4096
HH = WT + 225 * 8192
PP = HH + 64 * 114688
WSEND = PP + 1024 * 2048
OOB = 0x40000000

WSLOT = 16640
NWS = 5
XS = NWS * WSLOT
FS = XS + 65536
IMG = FS
EXC = 8192
ZS = XS - 57344
RED = XS
LDS_BYTES = 163840

sFx, s8k, sHst1 = 0, 1, 3
sX, sG, sU, sD, sWS, sO, sDBG = 4, 8, 12, 16, 20, 24, 28
sWv, sRg, sC, sRt, sCt, sKd = 32, 33, 34, 35, 36, 37
sWm, sXm = 38, 39
sT0, sT1, sT2, sT3 = 40, 41, 42, 43
sK = 44
s7f = 46
sCnt = 47
sXo, sWo, sDo = 48, 55, 62
sPe, sHc, sPs, sPl, sFs, sSp = 72, 73, 74, 75, 76, 77
sHst, sRot2 = 69, 70
sSc = 71
sFh = 79
sWr, sWi, sGw = 60, 64, 56
RS = 4480
sZs, sSw = 48, 49
sST = 80

vL16 = 1
vXd, vXr, vDr, vWd, vTr, vDd, vY = 2, 6, 10, 14, 16, 18, 22
vFr, vSg, vX1g, vPa, vP, vPr, vPg, vPw = 24, 25, 26, 27, 28, 29, 30, 31
vFm = vPg
vWF = 32
vT1c, vT1s, vT2c, vT2s = 48, 56, 64, 72
vAX, vAA, vAB, vS32, vT = 80, 96, 160, 224, 232
aX, aC64, aS64, aN64, aC32 = 0, 224, 232, 240, 248
STEP448 = 9586981
fA = vAA + 32
fDr, fDi, fTm = vAA, vAA + 8, vAA + 16
fBr, fBi, fBn = vAX, vAX + 4, vAX + 8
fWraw = vT
fWr, fWi = vWF, vWF + 8
fa0, fim, fx = vT + 8, vT + 12, vT + 13
vE = vT + 16


def srd(s):
    return f"s[{s}:{s+3}]"


def vr(b, n, c="v"):
    return f"{c}[{b}:{b+n-1}]"


def fbits(x):
    return "0x%08x" % struct.unpack("<I", struct.pack("<f", x))[0]


def txt(x):
    return x.t if isinstance(x, I) else (x if isinstance(x, str) else "s_nop 0")


DEF = dict(rot1="q0325", LA=3, npre=12, npro=16, slowend=0, cpro=0, n1=4, align=1, pf=1,
           perA=64, perA0=48, gap0=100, hstart=14, fgap=0, tlb=0, tV='', tD0='', tD1='', vm2=0, fpro=0, budF=8, perE=64, perB=64, perF=64, perG=48, perS=64,
           wd_at='A180,A254,B0,B34,B0,B0,B0', wd_delay=1000,
           go_ld='A190', go_chk='A250', pclr='A100', x1st='', x1flag='B8', poll1='B76', chk1='B118', pollW='B168', chkW='B210',
           hAflag='B56', pollA='B126', chkA='B166', hBflag='F1750', pollB='G28', chkB='G68',
           zflag='G48', pollZ='G122', chkZ='G160', zst='7,7', xsp=6, nlds=0, pld='G242', splp=4, splo=0, gbo=241, rwo=9, catch=32, fmix=0, rotB=0, rbp=12, budP=2, sleepP=1, hpre=1, pchk=279, pads=1, bodyoff=0, lds_at='F0', fonm=1,
           fft_head='B', budE=4, gapE=200, gapC=280, gapL=0, gapS=100, sonly=0, fix=1, budL=8, snake=1, budG=2,
           apf='clr,WT,go,v06,d0,d1,G,F', spin=200000, sleep=8, outfl="",
           stop=None, stamps=False, rt=False, st1='', st2='', st3='', only='', diag='')


class Gen:
    def __init__(self, **kw):
        self.o = dict(DEF)
        self.o.update(kw)
        self.p = Prog()
        self.slow = []
        self.nst = 0
        self.stamp_names = []
        self.anames = ['start', 'rt0']
        self.headB = False

    def log(self, s):
        print("; " + s, file=sys.stderr)

    def stamp(self, name):
        if not self.o["stamps"]:
            return []
        if self.o["only"] and name not in ("start", "rt0", "end") and name not in self.o["only"].split(",") and name[0] != "@":
            return []
        i = self.nst
        self.nst += 1
        r = sX if name == "end" else sST + 2 * i
        assert r + 1 <= 101
        self.stamp_names.append(name)
        return [f"{'s_memrealtime' if self.o['rt'] else 's_memtime'} s[{r}:{r+1}]"]

    def astamp(self, name):
        if not self.o["stamps"]:
            return []
        self.anames.append(name)
        r = sST + 2 * (len(self.anames) - 1)
        assert r <= 100
        return [f"{'s_memrealtime' if self.o['rt'] else 's_memtime'} s[{r}:{r+1}]"]

    def poll_check(self, name, tags, load, reg):
        def f(p):
            p.wait(vm=tags)
            p.e(f"v_cmp_ne_u32 vcc, 1, v{reg}")
            p.e(f"s_cbranch_vccnz L_slow_{name}")
            p.raw(f"L_back_{name}:")
        s = [f"L_slow_{name}:", f"s_mov_b32 s{sSp}, 0", f"L_spin_{name}:", load, "s_waitcnt vmcnt(0)",
             f"v_cmp_ne_u32 vcc, 1, v{reg}", f"s_cbranch_vccz L_back_{name}", f"s_sleep {12 if name == 'p1a' else self.o['sleep']}",
             f"s_add_u32 s{sSp}, s{sSp}, 1", f"s_cmp_lt_u32 s{sSp}, {self.o['spin']}",
             f"s_cbranch_scc1 L_spin_{name}", "s_endpgm"]
        self.slow += s
        return f

    def spoll_load(self, soff):
        return [f"s_load_dwordx8 s[56:63], s[{sWS}:{sWS+1}], s{soff} glc", f"s_load_dwordx8 s[64:71], s[{sWS}:{sWS+1}], s{soff} offset:512 glc"]

    def spoll_check(self, name, load, reg):
        self.poll_check(name, None, load, reg)

        def f(p):
            p.raw("s_waitcnt lgkmcnt(0)")
            p.ds_done = p.ds_n
            p.e([f"s_and_b64 s[56:57], s[56:57], s[{k}:{k+1}]" for k in (58, 60, 64, 66, 68)])
            p.e([f"s_and_b32 s56, s56, s{k}" for k in (62, 70, 57)])
            p.e(f"s_cbranch_scc0 L_slow_{name}")
            p.raw(f"L_back_{name}:")
        return f

    def flag1(self, soff, tags):
        return I(f"buffer_store_dword v{vP}, v{vFm}, {srd(sWS)}, s{soff} offen sc1", vm=tags)

    def flag_store(self, soff, tags):
        def f(p):
            p.wait(vm=tags)
            p.e("s_mov_b64 exec, 1")
            p.e(f"buffer_store_dword v{vP}, off, {srd(sWS)}, s{soff} sc1")
            p.e("s_mov_b64 exec, -1")
        return f

    def trig(self, dst, phase, tmp, fn="cos"):
        return [f"v_alignbit_b32 v{tmp}, s{s7f}, v{phase}, 9", f"v_{fn}_f32 v{dst}, v{tmp}"]

    def fft_consts(self, t):
        vn, vq, vcol, vidx, va, vb, vk, vsg = range(t, t + 8)
        c0, s0 = t + 8, t + 16
        pk = t + 24
        q = [f"v_lshrrev_b32 v{vq}, 4, v0", f"v_and_b32 v{vn}, 15, v0",
             f"v_lshl_add_u32 v{vcol}, s{sWv}, 4, v{vn}",
             f"v_lshrrev_b32 v{va}, 2, v{vn}", f"v_and_b32 v{vb}, 3, v{vn}", f"v_lshl_add_u32 v{vidx}, v{va}, 3, v{vb}",
             f"v_bfe_i32 v{vsg}, v0, 0, 1", f"v_and_b32 v{vsg}, 0x80008000, v{vsg}",
             f"v_cvt_f32_u32 v{vcol}, v{vcol}", f"v_cvt_f32_u32 v{vidx}, v{vidx}", f"v_cvt_f32_u32 v{vq}, v{vq}"]

        def coef():
            return [f"v_cos_f32 v{vn}, v{va}", f"v_add_f32 v{vn}, v{vn}, v{vn}"]

        def run(c, s, n, scale=False):
            r = [f"v_add_f32 v{s+1}, v{vb}, v{va}", f"v_cos_f32 v{c}, v{vb}", f"v_sin_f32 v{s}, v{vb}",
                 f"v_cos_f32 v{c+1}, v{s+1}", f"v_sin_f32 v{s+1}, v{s+1}"]
            if scale:
                r += [f"v_mul_f32 v{x}, s{sSc}, v{x}" for x in (c, s, c + 1, s + 1)]
            for j in range(2, n):
                r += [f"v_fma_f32 v{x+j}, v{vn}, v{x+j-1}, -v{x+j-2}" for x in (c, s)]
            return r

        def pack(dst, src):
            return [f"v_cvt_pk_bf16_f32 v{dst+j}, v{src+2*j}, v{src+2*j+1}" for j in range(4)]

        def acc(dst, src):
            return [f"v_accvgpr_write_b32 a{dst+j}, v{src+j}" for j in range(4)]

        def xr(dst, m):
            return [f"v_xor_b32 v{dst+j}, {m}, v{dst+j}" for j in range(4)]
        q += [f"v_mul_f32 v{va}, {fbits(1/64)}, v{vcol}", f"v_mul_f32 v{vb}, 4.0, v{vq}", f"v_mul_f32 v{vb}, v{vb}, v{va}"]
        q += coef() + run(c0, s0, 4) + [f"v_mul_f32 v{vk}, {fbits(1/16)}, v{vb}", f"v_fmamk_f32 v{vb}, v{va}, {fbits(16.0)}, v{vb}"]
        q += run(c0 + 4, s0 + 4, 4)
        q += pack(pk, c0) + pack(pk + 4, s0)
        q += acc(aC64, pk) + acc(aS64, pk + 4) + xr(pk, f"v{vsg}") + xr(pk + 4, f"v{vsg}")
        q += acc(aC64 + 4, pk) + acc(aS64 + 4, pk + 4) + xr(pk + 4, "0x80008000") + acc(aN64 + 4, pk + 4)
        q += xr(pk + 4, f"v{vsg}") + acc(aN64, pk + 4)
        q += [f"v_mul_f32 v{va}, {fbits(1/32)}, v{va}", f"v_mov_b32 v{vb}, v{vk}"]
        q += coef() + run(vT1c, vT1s, 8)
        q += [f"v_cvt_f32_u32 v{vk}, s{sWv}", f"v_fma_f32 v{vk}, v{vk}, 4.0, v{vq}", f"v_mul_f32 v{vk}, 4.0, v{vk}",
              f"v_mul_f32 v{vq}, {fbits(8.0)}, v{vq}"]
        for tt in range(2):
            if tt:
                q.append(f"v_add_f32 v{vidx}, 4.0, v{vidx}")
            q += [f"v_mul_f32 v{va}, {fbits(1/32)}, v{vidx}", f"v_mul_f32 v{vb}, v{vq}, v{va}"]
            q += coef() + run(c0, s0, 8)
            q += pack(pk, c0) + pack(vS32 + 4 * tt, s0) + acc(aC32 + 4 * tt, pk)
            q += [f"v_mul_f32 v{va}, {fbits(1/64)}, v{va}", f"v_mul_f32 v{vb}, v{vk}, v{va}"]
            q += coef() + run(vT2c + 4 * tt, vT2s + 4 * tt, 4, True)
        return q

    def fft_setup_regs(self):
        t0, t1 = vT + 14, vT + 15
        return [f"v_and_b32 v{t1}, 3, v0", f"v_mul_u32_u24 v{fa0}, 528, v{t1}",
                f"v_lshrrev_b32 v{t0}, 4, v0", f"v_lshl_add_u32 v{fa0}, v{t0}, 7, v{fa0}",
                f"v_bfe_u32 v{t0}, v0, 2, 1", f"v_lshl_add_u32 v{fa0}, v{t0}, 6, v{fa0}",
                f"v_and_b32 v{t0}, 8, v0", f"v_add_u32 v{fa0}, v{t0}, v{fa0}", f"v_add_u32 v{fa0}, {IMG}, v{fa0}",
                f"v_xor_b32 v{fa0+1}, 16, v{fa0}", f"v_xor_b32 v{fa0+2}, 32, v{fa0}", f"v_xor_b32 v{fa0+3}, 48, v{fa0}",
                f"v_lshrrev_b32 v{t0}, 5, v0", f"v_xor_b32 v{t0}, v{t0}, v0", f"v_bfe_i32 v{fx}, v{t0}, 0, 1"]

    def fft_scalars(self):
        return [[f"s_lshl_b32 s{sT1}, s{sKd}, 13"], [f"s_lshl_b32 s{sT0}, s{sWv}, 10"],
                [f"s_add_u32 s{sT2}, s{sT1}, s{sT0}"],
                [f"s_cmp_eq_u32 s{sKd}, 224", f"s_cselect_b32 s{sZs}, 4096, s{sT1}", f"s_cselect_b32 s{sT1}, 0, s{sT1}",
                 f"s_cselect_b32 s{sSw}, 16, 0"],
                [f"s_cmp_eq_u32 s{sT1}, 0", f"s_cselect_b32 s{sT3}, {OOB}, 0"],
                [f"s_add_u32 s{sZs}, s{sZs}, s{sT0}"], [f"s_lshl_b32 s{sT0}, s{sT0}, 1"], [f"s_add_u32 s{sT1}, s{sT1}, s{sT0}"],
                [f"s_add_u32 s{sT1}, s{sT1}, {X1T}"], [f"s_add_u32 s{sT2}, s{sT2}, {WT}"], [f"s_add_u32 s{sZs}, s{sZs}, {ZT}"]]

    def fft_addr2(self):
        return [f"v_xor_b32 v{fim}, s{sSw}, v{vL16}", f"v_and_or_b32 v{fx}, v{fx}, s{sT3}, v{fim}",
                f"v_or_b32 v{fim}, s{sT3}, v{vL16}", f"v_add_u32 v{fim}, 0x1000, v{fim}"]

    def poll1_addr(self, t0, t1, sa, sb, extra=None):
        sc = [[f"s_lshr_b32 s{sa}, s{sKd}, 4", f"s_cmp_eq_u32 s{sa}, 14", f"s_cselect_b32 s{sa}, 0, s{sa}"],
              [f"s_lshl2_add_u32 s{sa}, s{sa}, s{sWv}"], [f"s_lshl_b32 s{sa}, s{sa}, 4"],
              [f"s_lshl_b32 s{sb}, s{sWv}, 1"]]
        v = [f"v_add_u32 v{vPa}, s{sa}, v0",
             f"v_bfe_u32 v{t0}, v0, 1, 2", f"v_and_b32 v{t1}, 1, v0", f"v_lshl_add_u32 v{t0}, v{t0}, 3, v{t1}",
             f"v_add_u32 v{t0}, s{sb}, v{t0}",
             f"v_add_u32 v{t0}, {FAUX//128}, v{t0}"]
        if extra is not None:
            v += [f"v_lshlrev_b32 v{vPw}, 7, v{t0}", f"v_mov_b32 v{t0}, s{extra}"]
        v += [
             f"v_subrev_u32 v{t1}, 16, v0", f"v_ashrrev_i32 v{t1}, 31, v{t1}",
             f"v_bfi_b32 v{vPa}, v{t1}, v{vPa}, v{t0}", f"v_lshlrev_b32 v{vPa}, 7, v{vPa}"]
        return sc, v

    def fft_loads(self):
        return [f"s_add_u32 m0, s{sT0}, {IMG}",
                I(f"buffer_load_dwordx4 v{fx}, {srd(sWS)}, s{sT1} offen sc1 lds", tag="x1"),
                I(f"buffer_load_dwordx4 v{fx}, {srd(sWS)}, s{sT1} offen offset:1024 sc1 lds", tag="x1"),
                I(f"buffer_load_dwordx4 {vr(fWraw,4)}, v{vL16}, {srd(sWS)}, s{sT2} offen sc1", tag="wtre"),
                f"s_add_u32 s{sT2}, s{sT2}, 4096",
                I(f"buffer_load_dwordx4 {vr(fWraw+4,4)}, v{vL16}, {srd(sWS)}, s{sT2} offen sc1", tag="wtim")]

    def fft_body(self, hook):
        p = self.p
        Dr, Di, tm, Br, Bi, Bn = fDr, fDi, fTm, fBr, fBi, fBn

        def af(part, t, ks, pre="b"):
            if pre == "a" and self.headB:
                return (vAX if ks == 0 else vAB + 48) + 4 * (2 * part + t)
            return fA + 4 * (4 * part + 2 * t + ks)

        def mf(d, a, b, first):
            return f"v_mfma_f32_16x16x32_bf16 {vr(d,4)}, {a}, {b}, {'0' if first else vr(d,4)}"

        def cmul(c, s, sign, neg=None):
            q = []
            n1 = " neg_lo:[0,0,1] neg_hi:[0,0,1]"
            for j in range(0, 8, 2):
                q += [f"v_pk_mul_f32 {vr(tm+8+j,2)}, {vr(Dr+j,2)}, {vr(s+j,2)}",
                      f"v_pk_mul_f32 {vr(tm+j,2)}, {vr(Di+j,2)}, {vr(s+j,2)}"]
            for j in range(0, 8, 2):
                q += [f"v_pk_fma_f32 {vr(tm+j,2)}, {vr(Dr+j,2)}, {vr(c+j,2)}, {vr(tm+j,2)}" + (n1 if sign > 0 else ""),
                      f"v_pk_fma_f32 {vr(tm+8+j,2)}, {vr(Di+j,2)}, {vr(c+j,2)}, {vr(tm+8+j,2)}" + ("" if sign > 0 else n1)]
            for j in range(4):
                q += [f"v_cvt_pk_bf16_f32 v{Br+j}, v{tm+2*j}, v{tm+2*j+1}"]
            for j in range(4):
                q += [f"v_cvt_pk_bf16_f32 v{Bi+j}, v{tm+8+2*j}, v{tm+8+2*j+1}"]
            return q

        def negs(src):
            return [f"v_xor_b32 v{Bn+j}, 0x80008000, v{src+j}" for j in range(4)]

        def big(sgn, pre):
            Sre, Sim = (aS64, aN64) if sgn < 0 else (aN64, aS64)
            n = 0
            for ks in range(2):
                for part in range(2):
                    for t in range(2):
                        a = vr(af(part, t, ks, pre), 4)
                        first = ks == 0 and part == 0
                        bre = (aC64 if part == 0 else Sre) + 4 * ks
                        bim = (Sim if part == 0 else aC64) + 4 * ks
                        p.e(I(mf(Dr + 4 * t, a, vr(bre, 4, "a"), first), ds=f"{pre}{part}{t}{ks}"))
                        p.e(mf(Di + 4 * t, a, vr(bim, 4, "a"), first))
                        n += 1
                        if n in (2, 4, 6):
                            hook(f"{pre}m{n}", 64)

        hook("h0", 0)
        p.e(W(vm="x1"))
        p.e("s_barrier")
        for ks in range(2):
            for part in range(2):
                for t in range(2):
                    for h in range(2):
                        p.e(I(f"ds_read_b64_tr_b16 {vr(af(part,t,ks,'a')+2*h,2)}, v{fa0+2*t+part} "
                              f"offset:{2048*(2*ks+h)}", tag=f"a{part}{t}{ks}"))
        hook("s1", 100)
        big(-1, "a")
        hook("s1e", 0)
        unp = [W(vm=["wtre", "wtim"])]
        for j in range(4):
            unp += [f"v_lshlrev_b32 v{fWr+2*j}, 16, v{fWraw+j}", f"v_and_b32 v{fWr+2*j+1}, 0xffff0000, v{fWraw+j}"]
        if not self.o["fmix"]:
            p.e(unp)
        p.e(cmul(vT1c, vT1s, -1))
        hook("tw1", 200)
        ng = negs(Br)
        for t in range(2):
            p.e(mf(Dr + 4 * t, vr(aC32 + 4 * t, 4, "a"), vr(Br, 4), True))
            p.e(ng[2 * t:2 * t + 2])
        for t in range(2):
            p.e(mf(Di + 4 * t, vr(aC32 + 4 * t, 4, "a"), vr(Bi, 4), True))
        for t in range(2):
            p.e(mf(Dr + 4 * t, vr(vS32 + 4 * t, 4), vr(Bi, 4), False))
        for t in range(2):
            p.e(mf(Di + 4 * t, vr(vS32 + 4 * t, 4), vr(Bn, 4), False))
        hook("s3", 128)
        if self.o["fmix"]:
            p.e(unp)
        for j in range(4):
            p.e([f"v_lshlrev_b32 v{fWi+2*j}, 16, v{fWraw+4+j}", f"v_and_b32 v{fWi+2*j+1}, 0xffff0000, v{fWraw+4+j}"])
        p.e(cmul(fWr, fWi, +1))
        hook("wm", 140)
        ng = negs(Bi)
        for t in range(2):
            p.e(mf(Dr + 4 * t, vr(Br, 4), vr(aC32 + 4 * t, 4, "a"), True))
            p.e(ng[2 * t:2 * t + 2])
        for t in range(2):
            p.e(mf(Di + 4 * t, vr(Br, 4), vr(vS32 + 4 * t, 4), True))
        for t in range(2):
            p.e(mf(Dr + 4 * t, vr(Bn, 4), vr(vS32 + 4 * t, 4), False))
        for t in range(2):
            p.e(mf(Di + 4 * t, vr(Bi, 4), vr(aC32 + 4 * t, 4, "a"), False))
        hook("s3i", 128)
        p.e([f"s_lshr_b32 s{sT0}, s{sWv}, 1", f"s_lshl_b32 s{sT0}, s{sT0}, 10", f"s_and_b32 s{sT2}, s{sWv}, 1",
             f"s_lshl3_add_u32 s{sT0}, s{sT2}, s{sT0}", f"v_add_u32 v{fa0}, s{sT0}, v{vL16}"])
        p.e(cmul(vT2c, vT2s, +1))
        for part in range(2):
            for t in range(2):
                p.e(I(f"ds_write_b64 v{fa0}, {vr((Br if part == 0 else Bi)+2*t,2)} offset:{EXC + (4*part+2*t)*1024}", tag="exw"))
        hook("h2", 0)
        p.e(W(ds="exw"))
        p.e("s_barrier")
        for ks in range(2):
            for part in range(2):
                for t in range(2):
                    p.e(I(f"ds_read_b128 {vr(af(part,t,ks),4)}, v{vL16} offset:{EXC + (4*part+2*t+ks)*1024}", tag=f"b{part}{t}{ks}"))
        hook("tw2", 300)
        big(+1, "b")
        hook("s1i", 64)
        for j in range(4):
            p.e(f"v_cvt_pk_bf16_f32 v{Br+j}, v{Dr+2*j}, v{Dr+2*j+1}")
        p.e(I(f"buffer_store_dwordx4 {vr(Br,4)}, v{vL16}, {srd(sWS)}, s{sZs} offen sc1", tag="zre"))
        for j in range(4):
            p.e(f"v_cvt_pk_bf16_f32 v{Bi+j}, v{Di+2*j}, v{Di+2*j+1}")
        p.e(I(f"buffer_store_dwordx4 {vr(Bi,4)}, v{fim}, {srd(sWS)}, s{sZs} offen sc1", tag="zim"))

    def epi(self, acc, tmp):
        q = []
        for k in range(4):
            g0, g1, u0, u1 = acc + 2 * k, acc + 2 * k + 1, acc + 8 + 2 * k, acc + 9 + 2 * k
            t0, t1 = tmp + 2 * (k & 1), tmp + 2 * (k & 1) + 1
            q += [f"v_mul_f32 v{t0}, s{sK}, v{g0}", f"v_mul_f32 v{t1}, s{sK}, v{g1}",
                  f"v_exp_f32 v{t0}, v{t0}", f"v_exp_f32 v{t1}, v{t1}",
                  f"v_mul_f32 v{u0}, v{g0}, v{u0}", f"v_mul_f32 v{u1}, v{g1}, v{u1}",
                  f"v_add_f32 v{t0}, 1.0, v{t0}", f"v_add_f32 v{t1}, 1.0, v{t1}",
                  f"v_rcp_f32 v{t0}, v{t0}", f"v_rcp_f32 v{t1}, v{t1}",
                  f"v_mul_f32 v{u0}, v{u0}, v{t0}", f"v_mul_f32 v{u1}, v{u1}, v{t1}",
                  f"v_cvt_pk_bf16_f32 v{acc+k}, v{u0}, v{u1}"]
        return q

    def epi_pk(self, acc, tmp):
        q = []
        for k in range(4):
            q.append(f"v_pk_mul_f32 {vr(tmp+2*k,2)}, {vr(acc+2*k,2)}, s[{sK}:{sK+1}]")
        for j in range(8):
            q.append(f"v_exp_f32 v{tmp+j}, v{tmp+j}")
        for k in range(4):
            q.append(f"v_pk_mul_f32 {vr(acc+8+2*k,2)}, {vr(acc+2*k,2)}, {vr(acc+8+2*k,2)}")
        for k in range(4):
            q.append(f"v_pk_add_f32 {vr(tmp+2*k,2)}, {vr(tmp+2*k,2)}, 1.0 op_sel_hi:[1,0]")
        for j in range(8):
            q.append(f"v_rcp_f32 v{tmp+j}, v{tmp+j}")
        for k in range(4):
            q.append(f"v_pk_mul_f32 {vr(acc+8+2*k,2)}, {vr(acc+8+2*k,2)}, {vr(tmp+2*k,2)}")
        for k in range(4):
            q.append(f"v_cvt_pk_bf16_f32 v{acc+k}, v{acc+8+2*k}, v{acc+9+2*k}")
        return q

    def hstore(self, base, n, tag):
        i, tl = n >> 1, n & 1
        return I(f"buffer_store_dwordx4 {vr(base+16*n,4)}, v{vL16}, {srd(sWS)}, s{sHst1 if i else sHst} offen offset:{tl*1024} sc1", tag=tag)

    def rec_step(self, st, ks, dst):
        P = st + 8 * (ks & 1)
        Q = st + 8 * ((ks + 1) & 1)
        c = st + 16 + (0 if ks & 1 else 1)
        q = [f"v_fmac_f32 v{P+j}, v{c}, v{Q+j}" for j in range(8)]
        return q + self.rec_pack(st, ks, dst)

    def rec_pack(self, st, ks, dst):
        P = st + 8 * (ks & 1)
        n = "-" if ks & 2 else ""
        return [f"v_cvt_pk_bf16_f32 v{dst+j}, {n}v{P+2*j}, {n}v{P+2*j+1}" for j in range(4)]

    def put_scalars(self, G, groups, g0, g1):
        g = g0
        for x in groups:
            while G.s[g] or g in G.light:
                g += 1
            G.s[g] += x if isinstance(x, list) else [x]
        assert g < g1, (g, g1)
        return g

    def build(self):
        o, p = self.o, self.p
        e = p.e
        VM2[0] = o["vm2"]
        e(self.stamp("start"))
        e([x.replace("s_memtime", "s_memrealtime") for x in self.stamp("rt0")])
        e([f"s_load_dwordx2 s[{sX}:{sX+1}], s[0:1], 0", f"s_load_dwordx2 s[{sG}:{sG+1}], s[0:1], 32",
           f"s_load_dwordx2 s[{sU}:{sU+1}], s[0:1], 40"])
        e([f"v_lshrrev_b32 v2, 6, v0", f"v_mul_u32_u24 v3, 40, v0", f"v_and_b32 v0, 63, v0"])
        sj, sidx, sr = sT0, sT1, sT2
        e([f"s_lshr_b32 s{sidx}, s2, 3", f"v_readfirstlane_b32 s{sWv}, v2", f"s_and_b32 s{sj}, s2, 7",
           f"s_cmp_lt_u32 s{sidx}, 28", "s_cbranch_scc1 L_main"])
        if o["pf"]:
            p.raw(f"s_getpc_b64 s[{sT2}:{sT3}]")
            p.raw("L_pc:")
            p.raw(f"s_and_b32 s{sCnt}, s{sidx}, 3")
            p.raw(f"s_mul_i32 s{sCnt}, s{sCnt}, 10240")
            p.raw(f"v_add_u32 v3, s{sCnt}, v3")
            p.raw(f"v_min_u32 v3, L_codeend-L_pc-4, v3")
            p.raw(f"global_load_dword v255, v3, s[{sT2}:{sT3}]")
        p.raw("L_main:")
        e([f"s_load_dwordx4 s[{sWr}:{sWr+3}], s[0:1], 8", f"s_load_dwordx4 s[{sD}:{sD+3}], s[0:1], 48",
           f"s_load_dwordx4 s[{sDBG}:{sDBG+3}], s[0:1], 72", f"s_load_dwordx2 s[{sO}:{sO+1}], s[0:1], 64"])
        sRot1 = sHst
        norot = False
        val = sum(int(c_) << (4 * k) for k, c_ in enumerate(o["rot1"][1:]))
        t0, t1, t2, t3, t4, t5, t6 = range(vAB + 8, vAB + 15)
        e([f"s_and_b32 s{sr}, s{sidx}, 3", f"s_lshr_b32 s{sCt}, s{sidx}, 2", f"s_lshr_b32 s{sT3}, s{sj}, 1",
           f"s_xor_b32 s{sRot1}, s{sr}, s{sCt}", f"s_xor_b32 s{sCnt}, s{sj}, s{sT3}", f"s_and_b32 s{sRot1}, s{sRot1}, 1",
           f"s_and_b32 s{sCnt}, s{sCnt}, 1", f"s_lshl1_add_u32 s{sRot1}, s{sCnt}, s{sRot1}", f"s_lshl_b32 s{sRot1}, s{sRot1}, 2",
           f"s_lshr_b32 s{sRot1}, {val:#x}, s{sRot1}", f"s_and_b32 s{sRot1}, s{sRot1}, 7", f"s_lshl_b32 s{sXo}, s{sRot1}, 7",
           f"s_lshl2_add_u32 s{sCnt}, s{sT3}, s{sWv}", f"s_lshl4_add_u32 s{sCnt}, s{sCnt}, s{sr}", f"s_mulk_i32 s{sCnt}, {8*896}",
           f"v_lshrrev_b32 v{t0}, 3, v0", f"v_mul_u32_u24 v{t0}, 896, v{t0}", f"v_add_u32 v{t0}, s{sCnt}, v{t0}",
           f"v_and_b32 v{t1}, 7, v0", f"v_lshrrev_b32 v{t2}, 4, v0", f"v_xor_b32 v{t1}, v{t1}, v{t2}",
           f"v_lshl_add_u32 v{vXd}, v{t1}, 4, v{t0}", f"v_xor_b32 v{vXd+1}, 64, v{vXd}",
           f"v_add_u32 v{vXd+2}, {2*(28672-1024)}, v{vXd}", f"v_add_u32 v{vXd+3}, {3*(28672-1024)}, v{vXd+1}",
           f"v_add_u32 v{vXd+1}, {28672-1024}, v{vXd+1}",
           f"s_lshl_b32 s{sXm}, s{sWv}, 14", f"s_add_u32 s{sXm}, s{sXm}, {XS}",
           f"s_mov_b32 s{sX+2}, {2048*896}", f"s_mov_b32 s{sX+3}, 0x20000", f"s_mov_b32 m0, s{sXm}"])

        e([f"s_and_b32 s{sC}, s{sj}, 1", f"s_mulk_i32 s{sC}, 7", f"s_add_u32 s{sC}, s{sC}, s{sCt}",
           f"v_lshrrev_b32 v{t4}, 5, v0", f"v_and_b32 v{t6}, 3, v0", f"v_lshl_add_u32 v{t2}, v{t4}, 2, v{t6}",
           f"v_lshlrev_b32 v{t2}, 4, v{t2}", f"v_bfe_u32 v{t3}, v0, 2, 3",
           f"v_lshl_add_u32 v{t0}, s{sWv}, 3, v{t3}", f"v_mul_u32_u24 v{t0}, 3584, v{t0}",
           f"s_lshl_b32 s{sCnt}, s{sC}, 8", f"v_add3_u32 v{vWd}, v{t0}, v{t2}, s{sCnt}",
           f"v_add_u32 v{vWd+1}, {32*3584}, v{vWd}",
           f"s_and_b32 s{sCnt}, s{sWv}, 2", f"s_mul_i32 s{sWm}, s{sWv}, 1056", f"s_lshl_b32 s{sCnt}, s{sCnt}, 10", f"s_add_u32 s{sWm}, s{sWm}, s{sCnt}",
           f"s_mul_i32 s{sWo}, s{sRot1}, {64*3584}",
           f"s_mov_b32 s{sG+2}, {448*3584}", f"s_mov_b32 s{sG+3}, 0x20000", f"s_mov_b32 s{sU+2}, {448*3584+2080}", f"s_mov_b32 s{sU+3}, 0x20000"])

        def chunk_tab(i):
            return [f"s_add_u32 s{sRot2}, s{sRot2 if i > 1 else sRot1}, 1", [f"s_cmp_eq_u32 s{sRot2}, 7", f"s_cselect_b32 s{sRot2}, 0, s{sRot2}"],
                    f"s_lshl_b32 s{sXo+i}, s{sRot2}, 7", f"s_mul_i32 s{sWo+i}, s{sRot2}, {64*3584}"]
        e([f"s_cmp_ge_u32 s{sidx}, 28", "s_cbranch_scc1 L_auxh"])
        snap_aux0 = p.snapshot()
        p.raw("s_waitcnt lgkmcnt(0)")
        e(self.stamp("kargs"))
        if o["tlb"]:
            e([f"s_load_dword s{sHc}, s[{sG}:{sG+1}], 0", f"s_load_dword s{sFs}, s[{sU}:{sU+1}], 0"])

        self.m0 = (sXm, 0)

        def xdma(j):
            r = [dict(t=f"buffer_load_dwordx4 v{vXd+i}, {srd(sX)}, s{sXo+j} offen offset:{1024*i} lds", tag=f"x{j}",
                      m0=(sXm, 4096 * (j % 4)), ds=None) for i in range(4)]
            if norot:
                r[0]["pre"] = [f"s_movk_i32 s{sXo+j}, {128*j}"]
            return r

        def wdma(i):
            r = []
            for kk in range(2):
                for mat in range(2):
                    r.append(dict(t=f"buffer_load_dwordx4 v{vWd+kk}, {srd(sG if mat == 0 else sU)}, s{sWo+i%7} offen offset:{2080*mat} lds",
                                  tag="w0a" if (i, kk) == (0, 0) else f"w{i}", m0=(sWm, WSLOT * (i % NWS) + 8320 * kk), ds=None))
            if i >= 7:
                r[0]["pre"] = [f"s_addk_i32 s{sWo+i%7}, 128"]
            elif norot:
                r[0]["pre"] = [f"s_mov_b32 s{sWo+i}, {i*64*3584}"]
            return r

        def ddma(sg):
            return [dict(t=f"buffer_load_dwordx4 v{vDd+i}, {srd(sD)}, s{sDo+sg} offen offset:{1024*i} lds", tag=f"d{sg}",
                         m0=(sXm, 4096 * ((sg + 3) % 4)), ds=None) for i in range(4)]

        def dma_items(d):
            s = []
            if d["m0"] and self.m0 != d["m0"]:
                self.m0 = d["m0"]
                s.append(f"s_add_u32 m0, s{d['m0'][0]}, {d['m0'][1]}")
            return s + list(d.get("pre", [])), [I(d["t"], tag=d["tag"], ds=d["ds"])]

        L, NB = 3, 4
        n1 = o["n1"]
        dks = [d if d < n1 else n1 + (d - n1) // 2 for d in range(14)]
        if o["fgap"]:
            dks[0] = 1
        K0 = [16 * ks + 4 * sum(1 for x in dks if x < ks) for ks in range(15)]
        Dg = [K0[dks[d]] + 16 + 4 * (d - dks.index(dks[d])) for d in range(14)]
        NA, NBg = 280, 224
        U = [K0[f // 4] + 4 * (f % 4) for f in range(56)] + [NA + 4 * f for f in range(56)]
        bar_gap = {j: U[8 * j - L] - 1 for j in range(1, 14)}
        TE = 16 * NA
        TB = TE + 860
        TF = TB + 16 * NBg
        TG = TF + 2400

        def tg(g):
            return 16 * g if g < NA else TB + 16 * (g - NA)

        def T(spec):
            n = int(spec[1:])
            return {"A": 16 * n, "E": TE + n, "B": TB + 16 * n, "F": TF + n, "G": TG + 16 * n}[spec[0]]
        q1 = []
        for i in range(14):
            ear = -1 if i <= o["LA"] - 1 else (0 if i == o["LA"] else tg(bar_gap[i - o["LA"]] + 1))
            for d in (xdma(i) if i < 7 else []) + wdma(i):
                d["ear"] = ear
                d["dl"] = tg(bar_gap[i]) if i else 0
                if d["tag"][0] == "x" and dks[2 * i] < 2 * i:
                    d["dl"] = 16 * (K0[dks[2 * i] - 1] + 12)
                q1.append(d)

        def issue_pro(n):
            for _ in range(n):
                assert q1[0]["ear"] < 0
                s, m = dma_items(q1.pop(0))
                e(s)
                e(m)
        issue_pro(4)
        e([f"s_sub_u32 s{sU}, s{sU}, 2080", f"s_subb_u32 s{sU+1}, s{sU+1}, 0"])
        e(self.stamp("i4"))
        issue_pro(4)
        e(self.stamp("i8"))
        if "w4" in o["only"]:
            e([W(vm="x0")] + self.stamp("w4") + [W(vm="w0a")] + self.stamp("w6") + [W(vm="w0")] + self.stamp("w8"))
        e(chunk_tab(1))
        issue_pro(o["npre"] - 8)
        e(f"s_mov_b64 s[{sWS}:{sWS+1}], s[{sDBG+2}:{sDBG+3}]")
        p.raw("s_branch L_main2")
        snap_main = p.snapshot()
        p.restore(snap_aux0)
        self.aux1(sj, sidx)
        p.raw("s_branch L_aux")
        snap_aux = p.snapshot()
        p.restore(snap_main)
        p.raw("L_main2:")
        e(f"s_lshl2_add_u32 s{sRg}, s{sT3}, s{sr}")
        fg = o["fgap"]
        e(chunk_tab(2))
        tabq = [x for i in range(3, 7) for x in chunk_tab(i)]
        if not fg:
            e(tabq)
        e([f"s_and_b32 s{sRt}, s{sj}, 1", f"s_lshl1_add_u32 s{sRt}, s{sRg}, s{sRt}", f"s_mul_i32 s{sKd}, s{sj}, 28", f"s_add_u32 s{sKd}, s{sKd}, s{sidx}",
           f"s_movk_i32 s{s7f}, 0x7f", f"v_lshlrev_b32 v{vL16}, 4, v0"])
        sq = sr
        tq_, tn = vAB + 15, t0
        e([f"v_and_b32 v{tn}, 15, v0", f"v_lshrrev_b32 v{tq_}, 4, v0", f"v_bfe_u32 v{t1}, v0, 1, 3",
           f"v_xor_b32 v{t1}, v{t1}, v{tq_}", f"v_lshlrev_b32 v{t1}, 4, v{t1}",
           f"v_lshl_add_u32 v{t1}, v{tn}, 7, v{t1}", f"v_xor_b32 v{t5}, 64, v{t1}",
           f"s_xor_b32 s{sT0}, s{sWv}, 1", f"s_lshl_b32 s{sT0}, s{sT0}, 14", f"s_add_u32 s{sT0}, s{sT0}, {XS}",
           f"v_add_u32 v{vXr}, s{sXm}, v{t1}", f"v_add_u32 v{vXr+1}, s{sXm}, v{t5}",
           f"v_add_u32 v{vXr+2}, s{sT0}, v{t1}", f"v_add_u32 v{vXr+3}, s{sT0}, v{t5}"])
        e([f"v_bfe_u32 v{t1}, v0, 4, 1", f"v_bfe_u32 v{t5}, v0, 2, 2",
           f"s_and_b32 s{sT0}, s{sWv}, 1", f"s_lshl_b32 s{sT1}, s{sT0}, 9",
           f"v_mul_u32_u24 v{vTr}, 1056, v{t1}", f"v_mul_u32_u24 v{vTr+1}, 4160, v{t4}", f"v_add3_u32 v{vTr}, v{vTr}, v{vTr+1}, s{sT1}",
           f"v_lshl_add_u32 v{vTr}, v{t5}, 6, v{vTr}", f"v_lshl_add_u32 v{vTr}, v{t6}, 3, v{vTr}",
           f"v_add_u32 v{vTr+1}, {4*WSLOT}, v{vTr}"])
        st, fbuf = vAB + 32, [vAB, vAB + 4, vE, vE + 4]
        vA2 = vAB + 16
        ph, stp, tq, y0, y1, y2, cj = range(vAB + 52, vAB + 59)
        pk = vT1c
        fq = [f"s_lshl1_add_u32 s{sCnt}, s{sC}, s{sT0}", f"v_lshl_add_u32 v{y0}, s{sCnt}, 4, v{tn}",
              f"v_lshrrev_b32 v{y1}, 1, v{y0}", f"v_and_b32 v{y2}, 1, v{y0}",
              f"v_cmp_eq_u32 vcc, 1, v{y0}", f"v_mov_b32 v{tq}, 224", f"s_mov_b32 s{sCnt}, {STEP448}",
              f"v_cndmask_b32 v{y1}, v{y1}, v{tq}, vcc", f"v_cndmask_b32 v{y2}, v{y2}, 0, vcc",
              f"v_mul_lo_u32 v{stp}, v{y1}, s{sCnt}", f"s_and_b32 s{sCnt}, s{sWv}, 2", f"s_lshl2_add_u32 s{sT0}, s{sCnt}, s{sT0}",
              f"s_add_u32 s{sCnt}, s{sCnt}, s{sRot1}", f"s_lshl_b32 s{sCnt}, s{sCnt}, 6",
              f"v_lshl_add_u32 v{y1}, v{tq_}, 3, s{sCnt}",
              f"v_mul_lo_u32 v{ph}, v{y1}, v{stp}", f"v_lshl_add_u32 v{ph}, v{y2}, 30, v{ph}",
              f"v_lshlrev_b32 v{y1}, 5, v{stp}", f"v_add_u32 v{vFr}, {FS}, v{vL16}", f"v_lshl_add_u32 v{y2}, s{sT0}, 10, v{vFr}"]
        fq += self.trig(st + 16, y1, tq) + self.trig(cj, stp, y0)
        for ks in range(2):
            fq += self.trig(st + 8 * ks, ph, tq) + [f"v_add_u32 v{y0}, v{ph}, v{stp}"] + self.trig(st + 8 * ks + 1, y0, y0)
            if ks == 0:
                fq += [f"v_add_u32 v{ph}, v{ph}, v{y1}", f"v_add_f32 v{cj}, v{cj}, v{cj}",
                       f"v_mul_f32 v{st+17}, -2.0, v{st+16}", f"v_add_f32 v{st+16}, v{st+16}, v{st+16}"]
        fq += [f"v_fma_f32 v{st+8*ks+j}, v{cj}, v{st+8*ks+j-1}, -v{st+8*ks+j-2}" for j in range(2, 8) for ks in range(2)]
        fq += self.rec_pack(st, 0, pk) + self.rec_pack(st, 1, pk + 4) + self.rec_step(st, 2, pk + 8) + self.rec_step(st, 3, pk + 12)

        def fwrite(p):
            p.e(f"s_cmp_ge_u32 s{sWv}, 2")
            for k in range(4):
                if k == 3:
                    p.e("s_cbranch_scc1 L_f2")
                p.e(I(f"ds_write_b128 v{y2}, {vr(pk+4*k,4)} offset:{2048*k}", tag="fw"))
            p.raw("L_f2:")
            p.raw("s_waitcnt lgkmcnt(0)")
            p.ds_done = p.ds_n
        e(fq[:o["fpro"]] if fg else fq)
        fq = fq[o["fpro"]:]
        L0 = [f"s_mov_b32 s{sSc}, {fbits(2.0/(2048*448))}",
              [f"s_cmp_eq_u32 s{sKd}, 0", f"s_cselect_b32 s{sSc}, {fbits(1.0/(2048*448))}, s{sSc}"],
              f"s_lshl_b32 s{sPl}, s{sKd}, 31", f"s_or_b32 s{sSc}, s{sSc}, s{sPl}",
              f"s_mov_b32 s{sWS+2}, {WSEND}", f"s_mov_b32 s{sWS+3}, 0x20000",
              f"s_lshl3_add_u32 s{sPl}, s{sRt}, s{sCt}", f"s_lshl2_add_u32 s{sPl}, s{sPl}, s{sWv}", f"s_lshl_b32 s{sPl}, s{sPl}, 11",
              f"s_xor_b32 s{sPs}, s{sPl}, 0x10000", f"s_add_u32 s{sPl}, s{sPl}, {PP}", f"s_add_u32 s{sPs}, s{sPs}, {PP}"]
        L0 += [f"v_mov_b32 v{vT+j}, -1" for j in range(4)]
        vTd, vTv, sTd = vT + 4, vT + 5, 78
        if o["tD0"] or o["tD1"] or o["tV"]:
            L0 += [f"v_min_u32 v{vTv}, 6, v0", f"v_lshlrev_b32 v{vTd}, 7, v{vTv}",
                   f"s_mul_i32 s{sTd}, s{sRg}, 7", f"s_add_u32 s{sHc}, s{sTd}, s{sCt}", f"s_lshl2_add_u32 s{sHc}, s{sHc}, s{sWv}",
                   f"s_and_b32 s{sFs}, s{sHc}, 0x1c0", f"s_add_u32 s{sHc}, s{sHc}, s{sFs}",
                   f"s_sub_u32 s{sFs}, s{sC}, s{sCt}", f"s_lshl_b32 s{sFs}, s{sFs}, 7", f"s_add_u32 s{sHc}, s{sHc}, s{sFs}",
                   f"s_mulk_i32 s{sHc}, 896", f"v_add_u32 v{vTd}, s{sHc}, v{vTd}",
                   f"s_mul_i32 s{sFs}, s{sWv}, 7", f"s_lshl2_add_u32 s{sTd}, s{sTd}, s{sFs}", f"v_add_u32 v{vTv}, s{sTd}, v{vTv}",
                   f"v_mul_u32_u24 v{vTv}, 3584, v{vTv}", f"v_lshl_add_u32 v{vTv}, s{sC}, 8, v{vTv}",
                   f"s_mov_b32 s{sTd}, 57344", f"s_mov_b32 s{sD+2}, {1792*896}", f"s_mov_b32 s{sD+3}, 0x20000"]
        lq = []
        for s, n in ((sD, 1792 * 896), (sDBG, 256)):
            lq += [f"s_mov_b32 s{s+2}, {n}", f"s_mov_b32 s{s+3}, 0x20000"]
        lq += [f"v_lshlrev_b32 v{vY}, 5, v{t1}", f"v_xor_b32 v{vY+1}, v{vY}, v{t2}",
               f"v_mul_u32_u24 v{vDd}, 896, v{t3}", f"s_lshl_b32 s{sCnt}, s{sCt}, 7", f"v_add3_u32 v{vDd}, v{vDd}, v{vY+1}, s{sCnt}"]
        for i in range(1, 4):
            lq += [f"v_add_u32 v{vDd+i}, {i*(8*896-1024)}, v{vDd}"]
        lq += [f"v_lshl_add_u32 v{vY}, v{t3}, 6, v{vY}", f"v_lshl_add_u32 v{vY}, v{t6}, 3, v{vY}",
               f"v_lshl_add_u32 v{vY+1}, v{t3}, 12, v{vY+1}",
               f"s_lshr_b32 s{sT1}, s{sWv}, 1", f"s_and_b32 s{sT0}, s{sWv}, 1", f"s_lshl4_add_u32 s{sT0}, s{sT1}, s{sT0}",
               f"s_lshl_b32 s{sT0}, s{sT0}, 5", f"v_lshl_add_u32 v{vDr}, v{t4}, 10, v{vY}", f"v_xor_b32 v{vDr}, s{sT0}, v{vDr}",
               f"v_xor_b32 v{vDr+1}, 32, v{vDr}", f"v_xor_b32 v{vDr+2}, 0x200, v{vDr}", f"v_xor_b32 v{vDr+3}, 0x220, v{vDr}",
               f"s_lshl_b32 s{sCnt}, s{sT1}, 15", f"s_add_u32 s{sCnt}, s{sCnt}, {XS}"]
        lq += [f"v_add_u32 v{vDr+k}, s{sCnt}, v{vDr+k}" for k in range(4)]
        lq += [f"v_bfe_u32 v{t5}, v0, 1, 1", f"v_lshlrev_b32 v{vSg}, 31, v{t5}", f"v_or_b32 v{vSg}, 1.0, v{vSg}",
               f"v_and_b32 v{vPg}, 31, v0", f"v_lshlrev_b32 v{vPg}, 3, v{vPg}"]
        lq += [f"s_lshl_b32 s{sCnt}, s{sq}, 4",
               f"v_xor_b32 v{t5}, s{sCnt}, v{t2}", f"v_lshl_add_u32 v{vX1g}, v{t3}, 14, v{t5}",
               f"s_lshl_b32 s{sCnt}, s{sC}, 8", f"s_add_u32 s{sCnt}, s{sCnt}, s{sRg}", f"s_lshl2_add_u32 s{sCnt}, s{sCnt}, s{sWv}",
               f"s_lshl_b32 s{sCnt}, s{sCnt}, 7", f"s_add_u32 s{sCnt}, s{sCnt}, {X1T}", f"v_add_u32 v{vX1g}, s{sCnt}, v{vX1g}"]
        lq += [f"s_and_b32 s{sT0}, s{sRt}, 1", f"s_lshl1_add_u32 s{sT0}, s{sT0}, s{sT1}", f"s_mul_i32 s{sPe}, s{sT0}, 7",
               f"s_and_b32 s{sT2}, s{sWv}, 1", f"s_add_u32 s{sT0}, s{sPe}, s{sT2}"]
        lq += [f"s_and_b32 s{sCnt}, s{sT0}, 30", f"s_add_u32 s{sCnt}, s{sCnt}, s{sT0}", f"s_mul_i32 s{sDo}, s{sCnt}, 28672",
               f"s_add_u32 s{sDo+1}, s{sDo}, 114688", f"s_add_u32 s{sDo+2}, s{sDo}, {2*114688}", f"s_add_u32 s{sDo+3}, s{sDo}, {3*114688}",
               f"s_add_u32 s{sT0}, s{sT0}, 1", f"s_and_b32 s{sCnt}, s{sT0}, 30", f"s_add_u32 s{sCnt}, s{sCnt}, s{sT0}",
               f"s_mul_i32 s{sCnt}, s{sCnt}, 28672", f"s_add_u32 s{sDo+4}, s{sCnt}, 57344", f"s_add_u32 s{sDo+5}, s{sCnt}, {57344+114688}",
               f"s_add_u32 s{sDo+6}, s{sCnt}, {57344+2*114688}", f"s_sub_u32 s{sCnt}, s{sCnt}, 57344",
               [f"s_cmp_eq_u32 s{sT2}, 1", f"s_cselect_b32 s{sDo+3}, s{sCnt}, s{sDo+3}"], f"s_movk_i32 s{s8k}, 8192"]
        sRa, sRb = sX, sX + 1
        if o["rotB"]:
            lq += [f"s_xor_b32 s{sHc}, s{sRg}, s{sCt}", f"s_and_b32 s{sHc}, s{sHc}, 1",
                   f"s_and_b32 s{sT0}, s{sT0}, 1", f"s_lshl1_add_u32 s{sT0}, s{sT0}, 5", f"s_mul_i32 s{sT0}, s{sT0}, s{sHc}",
                   f"s_mul_i32 s{sT0}, s{sT0}, 28672", f"s_mul_i32 s{sCnt}, s{sHc}, {-2*114688}",
                   f"s_add_u32 s{sDo+4}, s{sDo+4}, s{sT0}", f"s_add_u32 s{sDo+6}, s{sDo+6}, s{sCnt}",
                   [f"s_cmp_eq_u32 s{sT2}, 1", f"s_cselect_b32 s{sCnt}, s{sCnt}, s{sT0}", f"s_cselect_b32 s{sT0}, s{sT0}, 0"],
                   f"s_add_u32 s{sDo+5}, s{sDo+5}, s{sCnt}", f"s_add_u32 s{sDo+3}, s{sDo+3}, s{sT0}"]
        L1, lq = lq, []
        assert HH % 2048 == 0
        lq += [f"s_lshr_b32 s{sT0}, s{sWv}, 1", f"s_lshl1_add_u32 s{sT0}, s{sRg}, s{sT0}", f"s_mul_i32 s{sHst}, s{sT0}, 229376",
               f"s_and_b32 s{sT1}, s{sWv}, 1", f"s_lshl1_add_u32 s{sT2}, s{sC}, s{sT1}", f"s_lshl_b32 s{sCnt}, s{sT2}, 11",
               f"s_add_u32 s{sHst}, s{sHst}, s{sCnt}", f"s_mul_i32 s{sT1}, s{sT1}, 57344",
               f"s_sub_u32 s{sHst1}, s{sHst}, s{sT1}", f"s_add_u32 s{sHst}, s{sHst}, s{sT1}",
               f"s_add_u32 s{sHst}, s{sHst}, {HH}", f"s_add_u32 s{sHst1}, s{sHst1}, {HH+57344}",
               f"s_mul_i32 s{sT1}, s{sT2}, 37", f"s_lshr_b32 s{sT1}, s{sT1}, 8", f"s_mul_i32 s{sT1}, s{sT1}, 25",
               f"s_add_u32 s{sT1}, s{sT1}, s{sT2}", f"s_lshl_b32 s{sT0}, s{sT0}, 9", f"s_lshl2_add_u32 s{sT0}, s{sT1}, s{sT0}",
               f"s_add_u32 s{sFh}, s{sT0}, {FH}",

               f"s_mov_b32 s{sK}, 0xbfb8aa3b", f"s_mov_b32 s{sK+1}, 0xbfb8aa3b",
               f"s_lshl4_add_u32 s{sFx}, s{sC}, s{sRg}", f"s_lshl2_add_u32 s{sFx}, s{sFx}, s{sWv}", f"s_lshl_b32 s{sFx}, s{sFx}, 7"]
        L2, lq = lq, [f"s_mov_b32 s{sO+2}, {2048*896}", f"s_mov_b32 s{sO+3}, 0x20000"]
        lq += [f"s_and_b32 s{sT0}, s{sRt}, 1", f"s_xor_b32 s{sT0}, s{sT0}, 1", f"s_mul_i32 s{sT0}, s{sT0}, 7", f"s_add_u32 s{sT0}, s{sT0}, s{sCt}",
               f"s_lshl4_add_u32 s{sT0}, s{sT0}, s{sRg}", f"s_lshl2_add_u32 s{sT0}, s{sT0}, s{sWv}"]
        sc, vv = self.poll1_addr(vT + 14, vT + 15, sT1, sT2, sT0)
        L3 = lq + sc + vv + self.fft_setup_regs()
        cq = self.fft_consts(vAB + 32)
        lq2 = self.fft_scalars() + self.fft_addr2()
        if o["rotB"]:
            lq2 += [f"s_mul_i32 s{sRa}, s{sHc}, {3*2048}", f"s_mul_i32 s{sRb}, s{sHc}, {-4*2048}"]
        vH, vPh, sFp = vXd, vXd + 2, sXo + 2
        lq2 += [f"s_and_b32 s{sCnt}, s{sWv}, 1", f"s_mul_i32 s{sCnt}, s{sCnt}, 28", f"s_add_u32 s{sCnt}, s{sCnt}, s{sPe}",
                f"s_lshl_b32 s{sCnt}, s{sCnt}, 11",
                f"s_add_u32 s{sCnt}, s{sCnt}, {HH}", f"v_add_u32 v{vH}, s{sCnt}, v{vL16}",
                f"s_mul_i32 s{sFp}, s{sRt}, 229376", f"v_add_u32 v{vH+1}, s{sFp}, v{vH}",
                f"s_xor_b32 s{sCnt}, s{sRt}, 1", f"s_mul_i32 s{sFp}, s{sCnt}, 229376", f"v_add_u32 v{vH}, s{sFp}, v{vH}",
                f"v_and_b32 v{vPh}, 7, v0", f"v_min_u32 v{vPh}, 6, v{vPh}", f"v_bfe_u32 v{vPh+1}, v0, 3, 1",
                f"v_lshl_add_u32 v{vPh}, v{vPh+1}, 7, v{vPh}", f"v_lshlrev_b32 v{vPh}, 2, v{vPh}",
                f"s_mul_i32 s{sCnt}, s{sPe}, 37", f"s_lshr_b32 s{sCnt}, s{sCnt}, 8", f"s_lshl3_add_u32 s{sFp}, s{sRg}, s{sCnt}",
                f"s_lshl_b32 s{sFp}, s{sFp}, 7", f"s_add_u32 s{sFp}, s{sFp}, {FH}"]
        ncp = o["cpro"]
        for L_ in (L0, L1, L2):
            assert not (fg and ncp and L_ is not L0)
            k = min(ncp, len(L_))
            e(L_[:k])
            del L_[:k]
            ncp -= k
        if o["pads"]:
            p.raw("s_mov_b64 exec, 0")
            for w_ in range(3):
                p.raw(f"s_cmp_eq_u32 s{sWv}, {w_}")
                p.raw(f"s_cbranch_scc1 L_pad{w_}")
            p.raw("s_branch L_pad3")
            p.raw("L_padret:")
            p.raw("s_mov_b64 exec, -1")
        if o["align"]:
            p.raw("s_branch L_body")
            if not o["slowend"]:
                p.raw("@SLOW@")
            p.raw(".p2align 12")
            if o["bodyoff"]:
                p.raw(f".fill {o['bodyoff']//4}, 4, 0xbf800000")
            p.raw("L_body:")
        if not fg:
            e(fwrite)
        issue_pro(o["npro"] - o["npre"])
        for d in q1:
            d["ear"] = max(d["ear"], 0)
        e(self.stamp("pro"))

        def m16(d, a, b, first):
            return f"v_mfma_f32_16x16x32_bf16 {vr(d,4)}, {a}, {b}, {'0' if first else vr(d,4)}"

        def wread(f):
            i, kk, mat, tl = f // 8, (f // 4) % 2, (f // 2) % 2, f % 2
            slot = i % NWS
            base, off = (vTr, slot * WSLOT) if slot < 4 else (vTr + 1, 0)
            off += kk * 8320 + mat * 2080 + tl * 32
            b = vWF + 4 * (f % NB)
            return [I(f"ds_read_b64_tr_b16 {vr(b+2*h,2)}, v{base} offset:{off+256*h}", tag=f"wf{f}") for h in range(2)]

        def xread(ks, j):
            return I(f"ds_read_b128 {vr(aX+16*ks+4*j,4,'a')}, v{vXr+(j&2)+ks%2} offset:{4096*((ks//2)%4)+2048*(j&1)}", tag=f"xr{ks}_{j>>1}",
                     vm=(f"x{ks//2}" if j == 0 and ks % 2 == 0 else None))

        def fread(d, s_):
            return I(f"ds_read_b128 {vr(fbuf[2*(d&1)+s_],4)}, v{vFr} offset:{2048*(d%7)+1024*s_}", tag=f"fr{d}")
        mf = []
        for ph_ in range(2):
            for ks in range(14):
                for ff in range(4):
                    for j in (range(3, -1, -1) if o["snake"] and ff & 1 else range(4)):
                        mf.append(m16(vAA + 16 * j + 4 * ff, vr(vWF + 4 * ff, 4), vr(aX + 16 * ks + 4 * j, 4, "a"), ks == 0))
                for dd in range(14):
                    if ph_ == 0 and dks[dd] == ks:
                        for s_ in range(2):
                            for jj in range(2):
                                mf.append(m16((vAX if dd < 7 else vA2) + 8 * s_ + 4 * jj, vr(aX + 16 * dd + 4 * jj, 4, "a"),
                                              vr(fbuf[2 * (dd & 1) + s_], 4), dd % 7 == 0))
        G = Gaps(mf, 2)
        G.light = set(bar_gap.values())
        hs = o["hstart"]
        if hs:
            G.light.add(hs)
            G.s[hs] += [W(vm="w0"), "s_barrier"]
        G.quiet = {g + k for g in G.light for k in (-1, 1) if g > 150}
        barW = {}
        for f in range(L, 112):
            G.m[hs + f - 3 if hs and 4 <= f <= 6 else U[f - L]] += wread(f)

        def pair(lo, its):
            while lo in G.light or G.m[lo]:
                lo += 1
            G.m[lo] += its
            return lo + 1
        for ks in range(1, 14):
            lo = K0[ks - 1] + (4 if ks % 2 == 0 else 0)
            if dks[ks] == ks:
                lo = pair(lo, [xread(ks, 0), xread(ks, 1)]) + 3
            pair(lo, [xread(ks, 2), xread(ks, 3)])
        for d in range(0 if fg else 1, 14):
            k_ = dks[d]
            if k_ < d:
                pair(K0[k_ - 1] + 12 + 5 * (d - dks.index(k_)), [xread(d, 0), xread(d, 1)])
            pair(K0[k_] + 4 * (d - dks.index(k_)) + (4 if fg and k_ == 1 else 0), [fread(d, 0), fread(d, 1)])
        for f in range(1, 112):
            tags = [f"wf{f}"]
            if f < 56 and f % 4 == 0:
                tags += [f"xr{f//4}_1", f"xr{f//4}_0"]
            g = U[f] - 1
            if g in bar_gap.values():
                j = [k for k, v in bar_gap.items() if v == g][0]
                barW[j] = W(vm=[f"w{j}"] + ([f"x{j}"] if j < 7 else []), ds=tags)
                G.s[g] += [barW[j], "s_barrier"]
            else:
                G.s[g].append(W(ds=tags))
        for ks in set(dks):
            G.s[K0[ks] + 15].append(W(ds=[t_ for d in range(14) if dks[d] == ks for t_ in (f"fr{d}", f"xr{d}_0")]))

        hring = 16
        hreg = [vAB + 4 * n for n in range(hring)]
        xs = o["xsp"]
        sq2 = [(0, s_) for s_ in range(7)] + [(1, s_) for s_ in range(xs)] + [(0, s_) for s_ in range(7, 14)] + \
              [(1, s_) for s_ in range(xs, 14)]
        seq = [(ph_, step, jj) for ph_, step in sq2 for jj in range(2)]
        npre_h = min(hring, 14 + 2 * xs)
        lset = [n for n in range(npre_h, 56) if seq[n][1] < 7][:o["nlds"]]
        dset = [n for n in range(56) if n not in lset]
        hr = {n: hreg[m % hring] for m, n in enumerate(dset)}
        hr.update({n: vWF + 4 * (m % 4) for m, n in enumerate(lset)})
        extra = {}
        if o["hpre"]:
            assert xs >= 1 and not lset
            for k, n in enumerate(n_ for n_ in range(16, 56) if seq[n_][1] < 7):
                extra[n] = ("tw1", "h2", "h2")[k // 4]
                hr[n] = (vT1c, vT2c, vWF)[k // 4] + 4 * (k % 4)
            if xs == 7:
                for k in range(4, 12):
                    extra[16 + k] = ("", "wm", "h2")[k // 4]
                    hr[16 + k] = (0, vWF, vT2c)[k // 4] + 4 * (k % 4)
            dset = [n for n in range(56) if n not in extra]
            hr.update({n: hreg[m % hring] for m, n in enumerate(dset)})
        accp, acco, acca = vAA, vAA + 32, vAB + 48
        zreg = [vWF, vWF + 4, vWF + 8, vWF + 12, vAX, vAX + 4]
        own_fi = [vAX + 4 * a for a in range(4)] + [vS32 + 24, vS32 + 28, vDd] + [vT1c + 4 * a for a in range(7)]
        vZr, vZd, vZr1, vGa, vG, vOG = vY, vY + 1, vXr, vXr + 1, vXr + 2, vWd
        vOo, vRw, vRr, vHl, vR3, vPz, vOw, vOr, vW1, vR1 = vFr, vSg, vX1g, vDr + 2, vXd + 3, vPa, vPw, vTr, vDr, vDr + 1
        mf, hu, hl_ = [], {}, {}
        split = {0: o["splp"], 1: o["splo"]}
        gU = {}

        def g2m(n, ks_):
            ph_, step, jj = seq[n]
            hu.setdefault(n, len(mf))
            for k in ks_:
                mf.append(m16((acco if ph_ else accp) + 16 * (k >> 1) + 8 * jj + 4 * (k & 1), vr(16 * step + 4 * k, 4, "a"), vr(hr[n], 4), step == 0))
            hl_[n] = len(mf) - 1
        for n, (ph_, step, jj) in enumerate(seq):
            if step < 14 - split[ph_]:
                g2m(n, (1, 0, 3, 2) if o["snake"] and jj == 0 else (2, 3, 0, 1))
                gU[ph_] = len(mf) - 2
                continue
            g2m(n, (2, 3))
            if step == 13 and jj == 1:
                gU[ph_] = len(mf)
                for n2 in range(n + 1 - 2 * split[ph_], n + 1):
                    g2m(n2, (0, 1))
        hfree = {n: (hl_[dset[m - hring]] if m >= hring else -1) for m, n in enumerate(dset)}
        hfree.update({n: -1 for n in extra})
        NH = 224
        for ks in range(14):
            for jj in range(2):
                for tt in range(2):
                    a_ = vr(224 + 4 * (ks % 8), 4, "a") if tt else vr(own_fi[ks], 4)
                    mf.append(m16(acca + 8 * jj + 4 * tt, a_, vr(8 * ks + 4 * jj, 4, "a"), ks == 0))
        H = Gaps(mf, o["budG"])
        LZ = 10
        gP = 8 * (14 + xs)
        gbp, gbo = gU[0] + o["rbp"], o["gbo"]
        zbar = {}
        acc_ = 0
        for n_ in [int(x) for x in o["zst"].split(",")]:
            zbar[NH + 4 * acc_ - LZ - 1] = acc_ + n_ - 1
            acc_ += n_
        assert acc_ == 14
        gb = NH - LZ - 1
        H.light = {gbp, gbo} | set(zbar)
        H.quiet = {g + k for g in H.light for k in (-1, 1)}

        evs = {"E": [], "F": []}
        busy = {"G1": set(G.light), "G": set(H.light)}

        def at(spec, items, post=False):
            ph_, n = spec[0], int(spec[1:])
            if ph_ in "EF":
                evs[ph_].append((n, items, post))
                return
            S_, key = (H, "G") if ph_ == "G" else (G, "G1")
            g = n + (NA if ph_ == "B" else 0)
            while g in S_.light or S_.used(g) > 1 - o["vm2"]:
                g += 1
            for x in items:
                if isinstance(x, I) and x.t and x.vm:
                    S_.s[g].append(W(vm=x.vm))
                    x.vm = None
                (S_.s if kind(txt(x)) == "S" else S_.m)[g].append(x)
            busy[key].add(g)

        def chk(spec, name, tag, load, reg, after=()):
            f_ = self.poll_check(name, tag, load, reg)
            ph_, n = spec[0], int(spec[1:])
            if ph_ in "EF":
                evs[ph_].append((n, [f_] + list(after), True))
                return
            S_, key = (H, "G") if ph_ == "G" else (G, "G1")
            g = n + (NA if ph_ == "B" else 0)
            assert g not in S_.light and g - 2 not in S_.light, spec
            S_.s[g - 2].append(W(vm=tag))
            S_.v[g - 2].append(f"v_cmp_ne_u32 vcc, 1, v{reg}")
            S_.s[g].append(Lab(f"s_cbranch_vccnz L_slow_{name}", f"L_back_{name}:"))
            S_.m[g] += list(after)
        for a_, b_ in (("go_ld", "go_chk"), ("go_chk", "x1flag"), ("pclr", "x1flag"), ("poll1", "chk1"), ("chk1", "pollA"), ("pollA", "chkA"),
                       ("chkA", "pollW"), ("pollW", "chkW"), ("hAflag", "hBflag"), ("chkA", "pollB"), ("pollB", "chkB"), ("chkB", "pollZ"),
                       ("pollZ", "chkZ")):
            assert T(o[a_]) < T(o[b_]), (a_, b_)
        stop1 = o["stop"] == "gemm1"
        gol = f"buffer_load_dword v{vP}, v{vPg}, {srd(sDBG)}, 0 offen sc1"
        at(o["go_ld"], [I(gol, tag="go")])
        chk(o["go_chk"], "go", "go", gol, vP)
        for hf in range(2):
            at(o["pclr"][0] + str(int(o["pclr"][1:]) + (64 if o["pclr"][0] == "E" else 4) * hf),
               [I(f"buffer_store_dwordx4 {vr(vT,4)}, v{vL16}, {srd(sWS)}, s{sPs} offen offset:{1024*hf} sc1", tag="pcl")])
        if o["tV"]:
            at(o["tV"], [f"buffer_load_dword v{vT+6}, v{vTv}, {srd(sG)}, 0 offen offset:128"])
            at(o["tV"], [f"buffer_load_dword v{vT+6}, v{vTv}, {srd(sU)}, 0 offen offset:{128+2080}"])
        if o["tD0"]:
            at(o["tD0"], [f"buffer_load_dword v{vT+6}, v{vTd}, {srd(sD)}, 0 offen"])
        if o["tD1"]:
            at(o["tD1"], [f"buffer_load_dword v{vT+6}, v{vTd}, {srd(sD)}, s{sTd} offen"])
            assert T(o["tD1"]) < TB
        x1st = [I(f"buffer_store_dwordx4 {vr(vAX+8,4)}, v{vX1g}, {srd(sWS)}, 0 offen sc1", tag="x1s"),
                I(f"buffer_store_dwordx4 {vr(vAX+12,4)}, v{vX1g}, {srd(sWS)}, s{s8k} offen sc1", tag="x1s")]
        if o["x1st"]:
            assert o["x1st"][0] in "AE" and T(o["x1st"]) + 64 < T(o["x1flag"])
            for hf in range(2):
                at(o["x1st"][0] + str(int(o["x1st"][1:]) + (4 if o["x1st"][0] == "A" else 64) * hf), [x1st[hf]])
        at(o["x1flag"], [self.flag1(sFx, ["x1s", "pcl"])])
        pl = f"buffer_load_dword v{vPr}, v{vPa}, {srd(sWS)}, 0 offen sc1"
        pw = f"buffer_load_dword v{vPr}, v{vPw}, {srd(sWS)}, 0 offen sc1"
        pollH = f"buffer_load_dword v{vPr}, v{vPh}, {srd(sWS)}, s{sFp} offen sc1"
        pollZ = f"buffer_load_dword v{vPr}, v{vPz}, {srd(sWS)}, 0 offen sc1"
        at(o["poll1"], [I(pl, tag="p1")])
        at(o["pollW"], [I(pw, tag="pW")])
        at(o["pollA"], [I(pollH, tag="pA")])
        at(o["hAflag"], [self.flag1(sFh, "hA")])
        if not stop1:
            chk(o["chk1"], "p1", "p1", pl, vPr)
            chk(o["chkW"], "pW", "pW", pw, vPr)
            chk(o["chkA"], "pA", "pA", pollH, vPr)
        at(o["hBflag"], [f"s_add_u32 s{sFh}, s{sFh}, {128*128}", self.flag1(sFh, "hB")])
        at(o["pollB"], [f"s_add_u32 s{sFp}, s{sFp}, {128*128}"] + self.spoll_load(sFp))
        if o["chkB"][0] == "G":
            self.poll_check("pB", None, pollH, vPr)
            g = int(o["chkB"][1:])
            red = [f"s_and_b64 s[56:57], s[56:57], s[{k}:{k+1}]" for k in (58, 60, 64, 66, 68)] + [f"s_and_b32 s56, s56, s{k}" for k in (62, 70)]
            H.s[g - 3] += [Lgkm0()] + red[:2]
            H.s[g - 2] += red[2:5]
            H.post[g - 1] += red[5:7]
            H.s[g] += ["s_and_b32 s56, s56, s57", Lab("s_cbranch_scc0 L_slow_pB", "L_back_pB:")]
            busy["G"] |= {g - 3, g - 2, g - 1}
        else:
            at(o["chkB"], [self.spoll_check("pB", pollH, vPr)], True)
        sFz, sZo, sZm, sZp, sU_, sI_, sGo = sXo + 3, sXo + 4, sXo + 5, sXo + 6, sSw, s8k, 78
        at(o["zflag"], [self.flag1(sFz, ["zre", "zim"])])
        at(o["pollZ"], [I(pollZ, tag="pZ")])
        chk(o["chkZ"], "pZ", "pZ", pollZ, vPr)
        gld = [f"buffer_load_dword v{vG+jj}, v{vGa}, {srd(sWS)}, s{sGo} offen offset:{64*jj} sc1" for jj in range(2)]
        for jj in range(2):
            at(f"G{gb-3+jj}", [I(gld[jj], tag="g")])
        pld = [f"buffer_load_dwordx4 {vr(accp+4*hf,4)}, v{vL16}, {srd(sWS)}, s{sPl} offen offset:{1024*hf} sc1" for hf in range(2)]
        for hf in range(2):
            at("G" + str(int(o["pld"][1:]) + 2 * hf), [I(pld[hf], tag="pl")])

        busy["G"] |= {gU[0] + 2 + 2 * j for j in range(4)} | {gbo - o["rwo"] + 2 * j for j in range(4)}
        class BG:
            pass
        bg = BG()
        bg.q2 = [d for sg in range(7) for d in ddma(sg)]
        bg.nd = bg.ntr = bg.nz = 0
        bg.t_issue, bg.t_read = {}, {}
        bg.vis, bg.free = set(), set()
        bg.nxt = 0
        bg.lds_ok = False
        bg.s1e = o["fft_head"] != "B"
        bg.marks = {""}
        bg.hp = list(range(56))
        bg.log = []
        self.hc = self.hseg = None
        wd_at = [T(x) for x in o["wd_at"].split(",")]
        fl = self.fft_loads()
        q3 = [dict(t=fl[1].t, tag="x1", m0=(sT0, IMG), ds=None), dict(t=fl[2].t, tag="x1", m0=(sT0, IMG), ds=None),
              dict(t=fl[3].t, tag="wtre", m0=None, ds=None), dict(t=fl[5].t, tag="wtim", m0=None, ds=None, pre=[fl[4]])]
        for d in q3:
            d["ear"] = T(o["chk1"] if d["tag"] == "x1" else o["chkW"]) + 1
        for d in q3:
            d["dl"] = tg(bar_gap[13]) - (1 if d["tag"] == "x1" and o["fft_head"] == "B" else -1)
        q1 += q3
        q1.sort(key=lambda d: d["dl"])

        def dtr(n):
            step, k, t_ = n // 8, (n // 2) % 4, n % 2
            off = 16384 * (step & 1) + 4096 * ((step // 2 + 3) % 4) + 2048 * t_
            return I(f"ds_read_b64_tr_b16 {vr(16*step+4*k+2*t_,2,'a')}, v{vDr+k} offset:{off}", tag=f"dr{step//2}")

        def bg_barrier(j):
            t = tg(bar_gap[j])
            for sg, ti in bg.t_issue.items():
                if sg not in bg.vis and (t >= ti + o["wd_delay"] or j == 13):
                    bg.vis.add(sg)
                    barW[j].vm.append(f"d{sg}")
            for sg, tr in bg.t_read.items():
                if sg not in bg.free and t >= tr + 48:
                    bg.free.add(sg)
                    barW[j].ds.append(f"dr{sg}")

        def bg_tr(t):
            n = bg.ntr
            if n >= 112 or n // 16 not in bg.vis or t < TB + 256 * (n // 8 + 1) - 16:
                return []
            bg.ntr += 1
            if n % 16 == 15:
                bg.t_read[n // 16] = t
            return [dtr(n)]

        def hload(n):
            ph_, step, jj = seq[n]
            c = (step // 7) * 114688 + (2 * (step % 7) + jj) * 1024
            pre = []
            seg = (1 if step < 11 else 2) if o["rotB"] and step >= 7 else 0
            if self.hc is None or not 0 <= c - self.hc <= 3072 or (n in lset and 1024 * lset.index(n) < c - self.hc) or seg != self.hseg:
                self.hc, self.hseg = c, seg
                pre.append(f"s_add_u32 s{sHc}, s{sRa+seg-1}, {c}" if seg else f"s_mov_b32 s{sHc}, {c}")
            imm = c - self.hc
            if n in lset:
                return dict(t=f"buffer_load_dwordx4 v{vH+ph_}, {srd(sWS)}, s{sHc} offen offset:{imm} sc1 lds", tag=f"h{n}",
                            m0=(sZm, 1024 * lset.index(n) - imm), ds=None, pre=pre)
            return dict(t=f"buffer_load_dwordx4 {vr(hr[n],4)}, v{vH+ph_}, {srd(sWS)}, s{sHc} offen offset:{imm} sc1", tag=f"h{n}",
                        m0=None, ds=None, pre=pre)

        def bg_dma(t, per, g2=None):
            if t < bg.nxt:
                return [], []
            d = None
            sg = bg.nd // 4
            wd_ok = bg.q2 and t >= wd_at[sg] and (t > tg(bar_gap[sg + 4]) if sg < 4 else sg - 4 in bg.free)
            if wd_ok and sg >= 4:
                pass
            elif any(t >= x["ear"] for x in q1):
                d = [x for x in q1 if t >= x["ear"]][0]
                q1.remove(d)
                wd_ok = False
            if wd_ok:
                d = bg.q2.pop(0)
                bg.nd += 1
                if bg.nd % 4 == 0:
                    bg.t_issue[sg] = t
            if d is None:
                for n in bg.hp:
                    if t > T(o["chkA"] if seq[n][1] < 7 else o["chkB"]) and \
                            (bg.lds_ok and t >= T(o["lds_at"]) if n in lset else ((hfree[n] < 0 and (n < 12 or bg.s1e) and extra.get(n, "") in bg.marks) or (g2 is not None and g2 >= hfree[n]))):
                        assert g2 is None or g2 < hu[n] - (16 if n in lset else 2), ("h late", n, g2)
                        d = hload(n)
                        bg.hp.remove(n)
                        break
            if d is None and bg.nz < 14 and t > T(o["chkZ"]):
                i = bg.nz
                if i >= len(lset) or g2 >= hu[lset[i]]:
                    d = dict(t=f"buffer_load_dwordx4 v{vZd}, {srd(sWS)}, s{sZo} offen sc1 lds", tag=f"z{i}",
                             m0=(sZm, 1024 * i), ds=None, pre=[f"s_mov_b32 s{sZo}, {131072*i}"])
                    assert all(g2 < zb for zb, last in zbar.items() if last >= i), (i, g2)
                    bg.nz += 1
            if d is None:
                return [], []
            bg.log.append((d["tag"], t))
            bg.nxt = max(bg.nxt + per, t + (per // 2 if t < TE else per - o["catch"]))
            return dma_items(d)

        def run_gaps(S_, key, g0, g1, tf, per):
            lastd = g0 - 1
            for g in range(g0, g1):
                if S_ is G and g in bar_gap.values():
                    bg_barrier([k for k, v in bar_gap.items() if v == g][0])
                if g in busy[key]:
                    continue
                if S_.used(g) < 2 - o["vm2"]:
                    s_, m_ = bg_dma(tf(g), per, g if S_ is H else None)
                    if m_:
                        for x in s_:
                            cand = [k for k in range(g - (1 if "m0" in x else 0), lastd, -1) if not S_.s[k]]
                            S_.s[cand[0] if cand else (g - 1 if g - 1 > lastd and g - 1 not in S_.light and S_.used(g - 1) < 2 else g)].append(x)
                        lastd = g
                    S_.m[g] += m_
                while S_ is G and S_.used(g) < 2 and (S_.m[g] or g % 4 == 2 or (g % 4 == 3 and kind(txt((S_.m[g - 1] or ["s_nop"])[0])) == "G")):
                    m_ = bg_tr(tf(g))
                    if not m_:
                        break
                    S_.m[g] += m_

        def merge(items, ph_, T0, per):
            out, t, prevk = [], 0, "M"
            ev = sorted(evs[ph_], key=lambda x: x[0])
            for x in items:
                if isinstance(x, Mark):
                    self.log(f"  est {ph_}{t} {x.name}")
                    if x.name in o["only"].split(",") or x.name in ("epiA", "epi"):
                        out += self.stamp(x.name)
                    bg.marks.add(x.name)
                    if x.name == "s1e":
                        bg.s1e = True
                    if x.name in ("bE", "tw2"):
                        bg.lds_ok = True
                    if x.name == "epi" and stop1:
                        out.append("s_branch L_fin")
                    continue
                out.append(x)
                tx = txt(x)
                k = kind(tx)
                if k == "M":
                    t += 16 if prevk == "M" or not (ph_ == "F" and o["fmix"]) else 8
                elif not tx:
                    t += 4 if x.ds == "all" or x.vm else 50
                elif tx == "s_barrier":
                    t += 30
                else:
                    t += 4 * cost(tx) + (28 if prevk == "M" and tx.startswith("v_pk") else 0)
                if k == "G":
                    bg.nxt = max(bg.nxt, T0 + t) + o["perS"]
                prevk = k
                if tx.startswith("s_cmp") or k == "D" or (not tx) or tx == "s_barrier":
                    continue
                while ev and ev[0][0] <= t:
                    its = ev.pop(0)[1]
                    out += its
                    t += 16
                    if isinstance(its[0], I) and "x4" in its[0].t:
                        bg.nxt = max(bg.nxt, T0 + t) + o["perS"]
                s_, m_ = bg_dma(T0 + t + (24 if k == "M" else 0), per) if k == "M" or not (ph_ == "F" and o["fonm"]) else ([], [])
                out += s_ + m_
                t += 0 if k == "M" or not m_ else 4 * (len(s_) + len(m_)) + 8
            for x in ev:
                out += x[1]
            self.log(f"  est {ph_}{t} end")
            return out
        run_gaps(G, "G1", 0, o["gap0"], tg, o["perA0"])
        run_gaps(G, "G1", o["gap0"], NA, tg, o["perA"])
        rec = Rec()
        for n in range(4):
            rec.e(self.epi_pk(vAA + 16 * n, vE))
            rec.e(self.hstore(vAA, n, "hA"))
        rec.mark("epiA")
        codeE = merge(rec.items, "E", TE, o["perE"])
        bg.nxt = min(bg.nxt, TB + 64)
        run_gaps(G, "G1", NA, NA + NBg, tg, o["perB"])
        assert not q1 and len(bg.vis) == 7, (bg.vis, bg.nd, bg.ntr)
        if o["fft_head"] == "B":
            barW[13].vm.append("x1")
        rec = Rec()
        while bg.ntr < 112:
            rec.e(bg_tr(TF))
        for n in range(4):
            rec.e(self.epi_pk(vAA + 16 * n, vE))
            if n == 0 and (o["nlds"] or o["fft_head"] != "B"):
                rec.e([W(vm="x1", ds="all"), "s_barrier"])
                rec.mark("bE")
            rec.e(self.hstore(vAA, n, "hB"))
            rec.mark(f"e{n}")
        rec.mark("epi")
        self.p = rec
        self.headB = o["fft_head"] == "B"
        self.fft_body(lambda name, dt: rec.mark(name))
        self.headB = False
        self.p = p
        names = [x.name if isinstance(x, Mark) else None for x in rec.items]
        i0, i1 = names.index("h0"), names.index("s1")
        rds = [x for x in rec.items[i0:i1] if isinstance(x, I) and x.t.startswith("ds_read")]
        if o["fft_head"] == "B":
            rec.items = rec.items[:i0] + rec.items[i1:]
            g = bar_gap[13] + 2
            for x in rds:
                while G.used(g) >= 2:
                    g += 1
                G.m[g].append(x)
        else:
            i2 = names.index(o["fft_head"])
            rec.items = rec.items[:i2 + 1] + rds + rec.items[i2 + 1:i0] + rec.items[i1:]
        if o["fmix"]:
            assert o["fft_head"] == "B"
            it_ = rec.items
            names = [x.name if isinstance(x, Mark) else None for x in it_]
            ix = {n_: names.index(n_) for n_ in ("e0", "e1", "e2", "e3", "epi", "s1", "s1e", "tw1", "s3", "wm", "s3i")}

            def weave(tile, stage):
                ms = [x for x in stage if not isinstance(x, Mark) and kind(txt(x)) == "M"]
                pre_ = [x for x in stage if not isinstance(x, Mark) and kind(txt(x)) != "M"]
                out_ = list(pre_)
                nt = 0
                for x in tile:
                    if isinstance(x, str) and x.split()[0] in TRANS:
                        if ms and (len(stage) > 14 or nt % 8 < 4):
                            out_.append(ms.pop(0))
                        nt += 1
                    out_.append(x)
                assert not ms
                return out_
            rec.items = it_[:ix["e0"] + 1] + weave(it_[ix["e0"] + 1:ix["e1"] + 1], it_[ix["s1"] + 1:ix["s1e"]]) + it_[ix["s1e"]:ix["tw1"] + 1] + \
                weave(it_[ix["e1"] + 1:ix["e2"] + 1], it_[ix["tw1"] + 1:ix["s3"]]) + it_[ix["s3"]:ix["wm"] + 1] + \
                weave(it_[ix["e2"] + 1:ix["epi"] + 1], it_[ix["wm"] + 1:ix["s3i"]]) + it_[ix["s3i"]:]
        codeF = merge(rec.items, "F", TF, o["perF"])
        bg.nxt = min(bg.nxt, TG + 64)
        run_gaps(H, "G", 0, H.n, lambda g: TG + 16 * g, o["perG"])
        assert not bg.hp and bg.nz == 14

        def nm(t):
            return f"A{t//16}" if t < TE else f"E{t-TE}" if t < TB else f"B{(t-TB)//16}" if t < TF else f"F{t-TF}" if t < TG else f"G{(t-TG)//16}"
        self.log("dma: " + " ".join(f"{a_}@{nm(t)}" for a_, t in bg.log))
        self.log(f"wd read done {[nm(v) for v in bg.t_read.values()]}")

        G.s[NA - 1] += self.stamp("A")
        ge = 0
        if fg:
            g, left = G.pour(tabq, 0, min(t for a_, t in bg.log if a_ == "x3") // 16 - 1, budget=o["budE"])
            assert len(left) <= 12
            tabq = left
            ge, left = G.pour(fq, 0, bar_gap[1], budget=o["budF"])
            assert not left, len(left)
            G.post[ge].append(fwrite)
            ge, left = G.pour(tabq, ge + 1, min(t for a_, t in bg.log if a_ == "x4") // 16 - 1, budget=o["budE"])
            assert not left
        kw_ = dict(sonly=True) if o["sonly"] else dict(budget=o["budL"])
        g0_, left = G.pour(L0, ge, min([T(o[k]) // 16 - 1 for k in ("pclr", "tV", "tD0", "tD1") if o[k]] + [ge + 60]), **kw_)
        assert not left
        g, left = G.pour(L1, g0_, min(T(o["go_ld"]), wd_at[0], 16 * Dg[13]) // 16 - 4, **kw_)
        assert not left
        gl_, left = G.pour(L2 + ([] if o["sonly"] else L3), g, NA - 1, **kw_)
        self.log(f"setup lists end at {g0_} {g} {gl_}")
        assert not left
        ge = max(ge, o["gapS"])
        ge, cleft = G.pour(cq[:100], ge, max(ge, o["gapE"]), budget=o["budE"], window=40)
        if not cleft:
            ge, cleft = G.pour(cq[100:], max(ge, g0_ + 1), max(ge, o["gapE"]), budget=o["budE"], window=40)
        else:
            cleft += cq[100:]
        dpp = "quad_perm:[2,3,0,1] row_mask:0xf bank_mask:0xf"
        xq = ["s_mov_b32 vcc_lo, 0x33333333", "s_mov_b32 vcc_hi, 0x33333333"]
        xq += [f"v_fmac_f32 v{vA2+j}, v{vSg}, v{vAX+j}" for j in range(16)]
        xq += [f"v_cvt_pk_bf16_f32 v{vAX+j}, v{vA2+2*j}, v{vA2+2*j+1}" for j in range(8)]
        xq += [f"v_permlane16_swap_b32 v{vAX+j}, v{vAX+4+j}" for j in range(4)]
        xq += [f"v_cndmask_b32_dpp v{vAX+8+j}, v{vAX+4+j}, v{vAX+j}, vcc {dpp}" for j in range(4)]
        xq += [] if o["x1st"] else [x1st[0]]
        xq += ["s_not_b64 vcc, vcc"]
        xq += [f"v_cndmask_b32_dpp v{vAX+12+j}, v{vAX+j}, v{vAX+4+j}, vcc {dpp}" for j in range(4)]
        xq += [] if o["x1st"] else [x1st[1]]
        g, left = G.pour(xq, Dg[13] + 6, NA - 1, window=2)
        self.log(f"dft ends at gap {Dg[13]+3}, x1 stored at gap {g}, mid setup done at {ge}")
        g_, left2 = G.pour([f"v_min_u32 v{vFm}, 1, v0", f"v_lshlrev_b32 v{vFm}, 30, v{vFm}"], T(o["go_chk"]) // 16 + 1, min(NA, T(o["x1flag"]) // 16))
        assert not left2
        assert not left and not (Dg[13] + 6 <= T(o["go_chk"]) / 16 <= g + 2) and 16 * g < T(o["x1st"] or o["x1flag"])
        g, left = G.pour(L3 if o["sonly"] else [], max(gl_, o["gapL"]), NA + (T(o["poll1"]) - TB) // 16 - 1, sonly=True)
        assert not left
        lim = NA + (min(T(o["chk1"]), T(o["pollA"])) - TB) // 16 - 4
        g2_, left = G.pour(lq2, max(g, 150), lim, sonly=True)
        assert not left
        th8 = min(dict(bg.log)[f"h{dset[8]}"], tg(bar_gap[13]) if o["fft_head"] == "B" else TF)
        g, left = G.pour(cleft, max(ge, o["gapC"]), NA + (th8 - TB) // 16 - 1, window=40)
        self.log(f"{len(cleft)} constant ops left after the early gaps")
        self.log(f"fft constants end at gap {g}, left {len(left)}")
        assert not left
        x0, x1 = vT + 14, vT + 15
        bq = [f"s_add_u32 s{sHst}, s{sHst}, 114688", f"s_add_u32 s{sHst1}, s{sHst1}, 114688",
              f"s_and_b32 s{sI_}, s{sWv}, 1", f"s_lshr_b32 s{sU_}, s{sWv}, 1",
              f"s_mul_i32 s{sZm}, s{sWv}, 14336", f"s_add_u32 s{sZm}, s{sZm}, {ZS}",
              f"v_add_u32 v{vRw}, s{sXm}, v{vL16}",
              f"s_xor_b32 s{sFs}, s{sWv}, 2", f"s_lshl_b32 s{sFs}, s{sFs}, 14", f"s_add_u32 s{sFs}, s{sFs}, {XS}", f"v_add_u32 v{vRr}, s{sFs}, v{vL16}",
              f"s_xor_b32 s{sFs}, s{sWv}, 1", f"s_lshl_b32 s{sFs}, s{sFs}, 14", f"s_add_u32 s{sFs}, s{sFs}, {XS}", f"v_add_u32 v{vR3}, s{sFs}, v{vL16}",
              f"s_lshl_b32 s{sFz}, s{sWv}, 8", f"s_add_u32 s{sFs}, s{sFz}, s{sRt}", f"s_add_u32 s{sFz}, s{sFz}, s{sKd}",
              f"s_lshl_b32 s{sFz}, s{sFz}, 5", f"s_add_u32 s{sFz}, s{sFz}, {FZ}",
              f"s_lshl_b32 s{sFs}, s{sFs}, 7", f"s_add_u32 s{sFs}, s{sFs}, {ZT}", f"v_add_u32 v{vZd}, s{sFs}, v{vZd}",
              f"s_lshl_b32 s{sFs}, s{sI_}, 9", f"s_add_u32 s{sFs}, s{sFs}, {ZS}", f"v_lshrrev_b32 v{x0}, 5, v0",
              f"v_mul_u32_u24 v{x1}, 14336, v{x0}", f"v_add3_u32 v{vZr}, v{vZr}, v{x1}, s{sFs}", f"v_xor_b32 v{vZr1}, 32, v{vZr}",
              f"s_lshr_b32 s{sFs}, s{sRt}, 3", f"s_and_b32 s{sCnt}, s{sRt}, 1",
              f"s_lshl1_add_u32 s{sFs}, s{sFs}, s{sCnt}", f"s_lshl1_add_u32 s{sFs}, s{sFs}, s{sI_}",
              f"s_bfe_u32 s{sCnt}, s{sRt}, 0x20001", f"s_lshl4_add_u32 s{sFs}, s{sFs}, s{sCnt}", f"s_mul_i32 s{sFs}, s{sFs}, {8*896}",
              f"s_lshl1_add_u32 s{sU_}, s{sCt}, s{sU_}", f"s_lshl_b32 s{sCnt}, s{sU_}, 6", f"s_add_u32 s{sFs}, s{sFs}, s{sCnt}",
              f"v_bfe_u32 v{x1}, v0, 2, 3", f"v_lshl_add_u32 v{x1}, v{x0}, 5, v{x1}", f"v_mul_u32_u24 v{x1}, 896, v{x1}",
              f"v_and_b32 v{x0}, 48, v{vL16}", f"v_add3_u32 v{vOo}, v{x0}, v{x1}, s{sFs}",
              f"s_lshl1_add_u32 s{sGo}, s{sRt}, s{sI_}", f"s_lshl_b32 s{sGo}, s{sGo}, 7", f"s_add_u32 s{sGo}, s{sGo}, {GOFF}",
              f"v_and_b32 v{vGa}, 15, v0", f"v_lshlrev_b32 v{vGa}, 2, v{vGa}"]
        assert ZS % 64 == 0
        g, left = G.pour(bq, max(NA, g2_ + 1), NA + NBg)
        assert not left
        bq = [f"s_lshr_b32 s{sZp}, s{sRt}, 3", f"s_lshl_b32 s{sZp}, s{sZp}, 8", f"s_add_u32 s{sZp}, s{sZp}, {FZ//32}",
              f"s_lshl2_add_u32 s{sCnt}, s{sWv}, s{sZp}", f"s_addk_i32 s{sZp}, 224",
              f"v_and_b32 v{x0}, 60, v0", f"v_mul_u32_u24 v{x0}, 3, v{x0}", f"v_add3_u32 v{vPz}, v{x0}, v0, s{sCnt}",
              f"v_subrev_u32 v{x0}, 56, v0", f"v_ashrrev_i32 v{x0}, 31, v{x0}",
              f"v_bfi_b32 v{vPz}, v{x0}, v{vPz}, s{sZp}", f"v_lshlrev_b32 v{vPz}, 5, v{vPz}"]
        g, left = G.pour(bq, max(g + 1, NA + (T(o["chk1"]) - TB) // 16 + 1), NA + NBg)
        self.log(f"g2 address setup ends at gap B{g-NA}")
        assert not left

        for n in range(1, 56):
            if n in lset:
                g = hu[n] - 11
                H.m[g - (g in H.light)].append(I(f"ds_read_b128 {vr(hr[n],4)}, v{vHl} offset:{1024*lset.index(n)}", tag=f"hr{n}", vm=f"h{n}"))
                H.s[hu[n] - 1].insert(0, W(ds=f"hr{n}"))
            else:
                H.s[hu[n] - 1].insert(0, W(vm=f"h{n}"))

        def fi_loc(a, rd):
            if a < 12:
                return (vR3 if rd else vRw), 1024 * a
            return (vR1 if rd else vW1), 4096 * (a - 12)
        for zb, last in zbar.items():
            H.s[zb] += [W(vm=f"z{last}", ds="fw13" if zb == gb else None)] + ([] if zb == gbo else ["s_barrier"])
        g = gb + 1
        for ks in range(14):
            g = max(g, max(zb for zb, last in zbar.items() if zb < NH + 4 * ks - LZ) + 1, NH + 4 * (ks - 8) + 4,
                    NH + 4 * ks - LZ - ks // 2 if gbo >= H.n else 0)
            r_, off = fi_loc(ks, True)
            rr = [I(f"ds_read_b128 {vr(224+4*(ks%8),4,'a')}, v{r_} offset:{off}")]
            rr += [I(f"ds_read_b64_tr_b16 {vr(8*ks+4*jj+2*t_,2,'a')}, v{vZr1 if jj else vZr} offset:{t_*28672+ks*1024}", tag=f"zf{ks}")
                   for jj in range(2) for t_ in range(2)]
            for k_, x in enumerate(rr):
                while H.used(g) >= (1 if gbo >= H.n and k_ not in (1, 3) else 2) or g in H.light or gbo - o["rwo"] <= g < gbo:
                    g += 1
                H.m[g].append(x)
            assert g < NH + 4 * ks - 4, (ks, g)
            H.s[NH + 4 * ks - 1].insert(0, W(ds=f"zf{ks}"))
        gzr = g
        for j in range(4):
            H.m[gU[0] + 2 + 2 * j].append(I(f"ds_write_b128 v{vRw}, {vr(accp+16+4*j,4)} offset:{12288+1024*j}", tag="rwp"))
            H.m[gbp + 1 + j].append(I(f"ds_read_b128 {vr(accp+16+4*j,4)}, v{vRr} offset:{12288+1024*j}", tag=f"rrp{j//2}"))
        H.s[gbp] += [W(ds="rwp"), "s_barrier"]
        assert gbp + 12 < gb
        g = max(gbp + 7, gP + 3)
        for hf in range(2):
            H.s[g].append(W(ds=f"rrp{hf}"))
            pq = [f"v_add_f32 v{accp+8*hf+j}, v{accp+8*hf+j}, v{accp+16+8*hf+j}" for j in range(8)]
            pq += [f"v_cvt_pk_bf16_f32 v{accp+8*hf+j}, v{accp+8*hf+2*j}, v{accp+8*hf+2*j+1}" for j in range(4)]
            pq += [f"v_min_u32 v{accp+8*hf}, -2, v{accp+8*hf}"]
            pq += [I(f"buffer_store_dwordx4 {vr(accp+8*hf,4)}, v{vL16}, {srd(sWS)}, s{sPs} offen offset:{1024*hf} sc1", tag="ps")]
            g, left = H.pour(pq, g, budget=o["budP"])
        self.log(f"partial stored at gap G{g}")
        assert int(o["pld"][1:]) > g + 2
        gchk = [f"v_min_u32 v{vPr}, v{vG}, v{vG+1}", f"v_add_u32 v{vPr}, -1, v{vPr}"] + \
            [f"v_sub_f32 v{vOG+jj}, 1.0, v{vG+jj}" for jj in range(2)]
        pchk = [f"v_max3_u32 v{vPr}, v{accp}, v{accp+4}, v{vPr}", f"v_cmp_eq_u32 vcc, -1, v{vPr}"]
        self.slow += ["L_slow_pP:", f"s_mov_b32 s{sSp}, 0", "L_spin_pP:"] + pld + gld + ["s_waitcnt vmcnt(0)"] + gchk + pchk + \
            ["s_cbranch_vccz L_back_pP", f"s_sleep {o['sleepP']}", f"s_add_u32 s{sSp}, s{sSp}, 1", f"s_cmp_lt_u32 s{sSp}, {o['spin']}",
             "s_cbranch_scc1 L_spin_pP", "s_endpgm"]
        rdo, vRo, rro = acco + 16, vDr + 3, []
        for j in range(4):
            H.m[gbo - o["rwo"] + 2 * j].append(I(f"ds_write_b128 v{vW1}, {vr(acco+16+4*j,4)} offset:{8192+4096*j}", tag="rwo"))
            rro.append(I(f"ds_read_b128 {vr(rdo+4*j,4)}, v{vRo} offset:{8192+4096*j}", tag="rro" if gbo < H.n else f"rro{j//2}"))
            if gbo < H.n:
                H.m[max(gzr, gbo) + 1 + j // 2].append(rro[j])
        assert gbo - o["rwo"] >= gU[1] + 2
        if gbo < H.n:
            H.s[gbo] += [W(ds="rwo"), "s_barrier"]
        st = vS32
        x0, x1, x2, x3, ph, stp = range(vS32 + 18, vS32 + 24)
        vq = [f"v_add_u32 v{vHl}, s{sZm}, v{vL16}", f"s_lshl1_add_u32 s{sT0}, s{sU_}, s{sI_}", f"s_mov_b32 s{sT2}, {STEP448}",
              f"v_and_b32 v{x0}, 15, v0", f"v_mul_u32_u24 v{vOw}, 80, v{x0}",
              f"v_lshl_add_u32 v{x0}, s{sT0}, 4, v{x0}", f"v_mul_lo_u32 v{stp}, v{x0}, s{sT2}",
              f"v_lshrrev_b32 v{x1}, 4, v0", f"v_lshlrev_b32 v{x2}, 1, v{x1}",
              f"v_mul_lo_u32 v{ph}, v{x2}, v{stp}", f"v_lshlrev_b32 v{x2}, 4, v{stp}"]
        vq += self.trig(st + 16, x2, x3)
        vq += [f"v_mul_lo_u32 v{x2}, v{stp}, 7"]
        for ks in range(2):
            for jj in range(4):
                vq += [f"v_alignbit_b32 v{x3}, s{s7f}, v{ph}, 9", f"v_cos_f32 v{st+8*ks+2*jj}, v{x3}",
                       f"v_sin_f32 v{st+8*ks+2*jj+1}, -v{x3}"]
                if not (jj == 3 and ks == 1):
                    vq += [f"v_add_u32 v{ph}, v{ph}, v{x2 if jj & 1 else stp}"]
        vq += [f"v_mul_f32 v{st+17}, -2.0, v{st+16}", f"v_add_f32 v{st+16}, v{st+16}, v{st+16}"]
        vq += self.rec_pack(st, 0, own_fi[0]) + self.rec_pack(st, 1, own_fi[1])
        vq += [f"v_lshlrev_b32 v{x2}, 31, v{x0}", f"v_or_b32 v{x2}, 0x3f803f80, v{x2}", f"v_add_u32 v{x3}, -1, v{x1}",
               f"v_ashrrev_i32 v{x3}, 31, v{x3}", f"v_bfi_b32 v{own_fi[0]}, v{x3}, v{x2}, v{own_fi[0]}",
               f"v_lshl_add_u32 v{vW1}, s{sWv}, 10, v{vL16}", f"v_xor_b32 v{vR1}, 0x400, v{vW1}", f"v_xor_b32 v{vRo}, 0x800, v{vW1}",
               f"s_mul_i32 s{sT2}, s{sWv}, 2560", f"s_add_u32 s{sT2}, s{sT2}, {FS}", f"s_lshl_b32 s{sT0}, s{sI_}, 5",
               f"v_lshl_add_u32 v{vOw}, v{x1}, 3, v{vOw}", f"v_add_u32 v{vOw}, s{sT2}, v{vOw}",
               f"v_subrev_u32 v{vOr+1}, s{sT0}, v{vOw}", f"v_add_u32 v{vOw}, s{sT0}, v{vOw}",
               f"v_lshrrev_b32 v{x2}, 2, v0", f"v_mul_u32_u24 v{x2}, 80, v{x2}", f"v_and_b32 v{x3}, 48, v{vL16}",
               f"v_add3_u32 v{vOr}, v{x2}, v{x3}, s{sT2}", f"s_mov_b32 s{sT3}, {64*896}"]

        def fwr(a):
            r_, off = fi_loc(a, False)
            return I(f"ds_write_b128 v{r_}, {vr(own_fi[a],4)} offset:{off}", tag=f"fw{a}")
        g, left = H.pour(vq, 0)
        qq = [fwr(0), fwr(1)]
        g += 1
        for a in range(2, 14):
            held = [hl_[n] + 1 for n in extra if hr[n] == own_fi[a]]
            if held:
                g, left = H.pour(qq, g, gb - 6)
                assert not left
                qq, g = [], max(g, held[0])
            qq += self.rec_step(st, a, own_fi[a]) + [fwr(a)]
        g, left = H.pour(qq, g, gb - 6)
        self.log(f"finv done at gap G{g}")
        assert not left
        g = max(gzr, gbo) + 7 if gbo < H.n else 258
        H.s[g - 3].append(W(vm="g"))
        g_, left = H.pour(gchk, g - 3, o["pchk"] - 2)
        assert not left
        H.quiet.add(o["pchk"] - 2)
        oleft = []
        if gbo < H.n:
            H.s[g].append(W(ds="rro"))
            g, oleft = H.pour([f"v_add_f32 v{acco+j}, v{acco+j}, v{rdo+j}" for j in range(16)], g)
            self.log(f"own reduction done at G{g}, left {len(oleft)}")
        gc_ = o["pchk"]
        H.s[gc_ - 2].append(W(vm="pl"))
        H.v[gc_ - 2] += pchk
        H.s[gc_].append(Lab("s_cbranch_vccnz L_slow_pP", "L_back_pP:"))

        for key, S_, off in (("st1", G, 0), ("st2", G, NA), ("st3", H, 0)):
            for x in filter(None, o[key].split(",")):
                S_.s[int(x) + off] += self.stamp("@" + x)
        p.raw("s_waitcnt lgkmcnt(0)")
        e(W(vm="w0a" if hs else "w0"))
        e("s_barrier")
        e([xread(0, 0)] + wread(0) + [xread(0, 1), xread(0, 2), xread(0, 3)] + wread(1) + wread(2) + ([] if fg else [fread(0, 0), fread(0, 1)]))
        e(self.stamp("data0"))
        e(W(ds=["wf0", "xr0_1"]))
        G.emit(p, 0, NA, o['fix'])
        e(codeE)
        G.emit(p, NA, None, o['fix'])
        e(self.stamp("B"))
        e(codeF)
        e(self.stamp("fft"))
        if o["stop"] == "fft":
            e("s_branch L_fin")
        H.s[NH - 1] += self.stamp("g2h")
        e(W(vm="h0"))
        H.emit(p, 0, None, o['fix'])
        e(self.stamp("g2"))
        pu = accp + 16
        e(oleft)
        for k in range(8):
            e([f"v_lshlrev_b32 v{pu+2*k}, 16, v{accp+k}", f"v_and_b32 v{pu+2*k+1}, 0xffff0000, v{accp+k}"])
            if k == 3 and gbo >= H.n:
                e([W(ds="rwo"), "s_barrier", rro])
        sel = ["op_sel_hi:[1,0]", "op_sel:[0,1] op_sel_hi:[1,1]"]
        sel3 = ["op_sel_hi:[1,0,1]", "op_sel:[0,1,0] op_sel_hi:[1,1,1]"]
        for k in range(8):
            e(f"v_pk_add_f32 {vr(acco+2*k,2)}, {vr(acco+2*k,2)}, {vr(pu+2*k,2)}")
        for jj in range(2):
            ks_ = range(4 * jj, 4 * jj + 4)
            for k in ks_:
                e(f"v_pk_mul_f32 {vr(acca+2*k,2)}, {vr(acca+2*k,2)}, {vr(vG,2)} {sel[jj]}")
            if gbo >= H.n:
                e(W(ds=f"rro{jj}"))
                for k in ks_:
                    e(f"v_pk_add_f32 {vr(acco+2*k,2)}, {vr(acco+2*k,2)}, {vr(rdo+2*k,2)}")
            for k in ks_:
                e(f"v_pk_fma_f32 {vr(acca+2*k,2)}, {vr(acco+2*k,2)}, {vr(vOG,2)}, {vr(acca+2*k,2)} {sel3[jj]}")
            for k in ks_:
                e(f"v_cvt_pk_bf16_f32 v{accp+8+k}, v{acca+2*k}, v{acca+2*k+1}")
            e([f"ds_write_b64 v{vOw}, {vr(accp+8+4*jj,2)} offset:{1280*jj}",
               f"ds_write_b64 v{vOr+1}, {vr(accp+10+4*jj,2)} offset:{1280*jj+32}",
               I(f"ds_read_b128 {vr(vAB+4*jj,4)}, v{vOr} offset:{1280*jj}", tag=f"or{jj}")])
        for jj in range(2):
            e(I(f"buffer_store_dwordx4 {vr(vAB+4*jj,4)}, v{vOo}, {srd(sO)}, {'s%d' % sT3 if jj else 0} offen {o['outfl'].replace('+',' ')}".strip(),
                ds=f"or{jj}"))
        p.raw("L_fin:")
        self.dump_stamps()
        p.raw("L_end:")
        p.raw("s_endpgm")

        p.restore(snap_aux)
        self.aux(sj, sidx)
        if o["align"] and not o["slowend"]:
            i = p.out.index("@SLOW@")
            p.out[i:i + 1] = self.slow
        else:
            for l in self.slow:
                p.raw(l)
        p.raw("L_codeend:")
        return self.finish()

    def dump_stamps(self):
        if not self.o["stamps"]:
            return
        p = self.p
        p.raw("s_waitcnt vmcnt(0)")
        p.e(self.stamp("end"))
        p.raw("s_waitcnt lgkmcnt(0)")
        p.e([f"s_lshl_b32 s{sT0}, s2, 2", f"s_add_u32 s{sT0}, s{sT0}, s{sWv}", f"s_lshl_b32 s{sT0}, s{sT0}, 6",
             f"s_add_u32 s{sT0}, s{sT0}, {STAMP}", "s_mov_b64 exec, 1"])
        p.e([f"s_memrealtime s[{sT2}:{sT3}]"])
        for k in range(self.nst):
            p.e([f"v_mov_b32 v2, s{sX if k == self.nst-1 else sST+2*k}", f"buffer_store_dword v2, off, {srd(sWS)}, s{sT0} offset:{4*k}"])
        p.raw("s_waitcnt lgkmcnt(0)")
        p.e([f"v_mov_b32 v2, s{sT2}", f"buffer_store_dword v2, off, {srd(sWS)}, s{sT0} offset:60"])

    def aux_tok(self, tok):
        p = self.p
        e = p.e
        sA, vt16 = sRt, 2
        vx, vw, vd = 12, 13, 14

        def masked(lo, hi, ops):
            m = ((1 << hi) - 1) ^ ((1 << lo) - 1)
            e([f"s_mov_b32 exec_lo, {m & 0xffffffff:#x}", f"s_mov_b32 exec_hi, {m >> 32:#x}"] + ops + ["s_mov_b64 exec, -1"])
        if tok[0] == "x":
            a, b = int(tok[1]), int(tok[2])
            masked(0, 16 * (b - a + 1), [f"buffer_load_dword v15, v{vx}, {srd(sX)}, 0 offen offset:{128*a}"])
        elif tok[0] in "wv":
            a, b = int(tok[1]), int(tok[2])
            off = 128 if tok[0] == "v" else 0
            masked(8 * a, 8 * (b + 1), [f"buffer_load_dword v15, v{vw}, {srd(q)}, 0 offen offset:{off}" for q in (sG, sU)])
        elif tok[0] == "d":
            e(f"s_mov_b32 s{sT1}, {57344*int(tok[1])}")
            masked(0, 49, [f"buffer_load_dword v15, v{vd}, {srd(sD)}, s{sT1} offen"])
        elif tok == "clr":
            e([f"v_mov_b32 v{4+k}, 0" for k in range(4)] + [f"s_mul_i32 s{sT1}, s{sA}, {FEND//32}"])
            for k in range(2):
                e([I(f"buffer_store_dwordx4 v[4:7], v{vt16}, {srd(sWS)}, s{sT1} offen sc1", tag="clr"), f"s_addk_i32 s{sT1}, 4096"])
        elif tok == "go":
            e([f"s_lshl_b32 s{sT1}, s{sA}, 3", f"v_mov_b32 v8, 1", f"v_mov_b32 v9, s{sT0}", W(vm="clr"), "s_barrier",
               "s_mov_b64 exec, 1", f"buffer_store_dword v8, v9, {srd(sDBG)}, s{sT1} offen sc1", "s_mov_b64 exec, -1"])
        elif tok == "WT":
            sq, skg = sRg, sC
            e([f"s_lshr_b32 s{sq}, s{sA}, 3", f"s_and_b32 s{skg}, s{sA}, 7",
               f"s_lshl_b32 s{sT1}, s{sq}, 6", f"s_add_u32 s{sT1}, s{sT1}, s{skg}", f"s_mul_i32 s{sT1}, s{sT1}, 3600"])
            e([f"v_lshrrev_b32 v16, 5, v0", f"v_lshl_add_u32 v17, s{sWv}, 1, v16", f"v_mul_u32_u24 v17, 28, v17",
               f"v_and_b32 v18, 31, v0", f"v_add3_u32 v17, v17, v18, v16", f"v_add_u32 v17, -1, v17", f"v_max_i32 v17, 0, v17",
               f"v_lshlrev_b32 v17, 4, v17", f"s_mul_i32 s{sT2}, s{sWv}, 1120"])
            for j in range(8):
                for part in range(2):
                    e([f"s_add_u32 m0, s{sT2}, {(8*part+j)*RS}", "s_nop 0",
                       I(f"buffer_load_dwordx4 v17, {srd(sWr if part == 0 else sWi)}, s{sT1} offen lds", tag="wl")])
                e(f"s_add_u32 s{sT1}, s{sT1}, {64*450}")
        else:
            raise SystemExit(tok)

    def aux1(self, sj, sidx):
        p, o = self.p, self.o
        e = p.e
        sA, vt16 = sRt, 2
        vx, vw, vd = 12, 13, 14
        p.raw("L_auxh:")
        e(["s_cmp_ge_u32 s2, 256", "s_cbranch_scc1 L_end"])
        e([f"s_lshl2_add_u32 s{sA}, s{sj}, s{sidx}", f"s_sub_u32 s{sA}, s{sA}, 28", f"s_mov_b32 s{sCt}, s{sj}",
           f"v_lshlrev_b32 v{vL16}, 4, v0", f"s_lshl_b32 s{sT0}, s{sWv}, 10", f"v_add_u32 v{vt16}, s{sT0}, v{vL16}"])
        p.raw("s_waitcnt lgkmcnt(0)")
        for d_, s_ in ((sWi, sWr), (sGw, sD), (sWS, sDBG)):
            e(f"s_mov_b64 s[{d_}:{d_+1}], s[{s_+2}:{s_+3}]")
        for s, n in ((sWS, WSEND), (sWr, 2048 * 450), (sWi, 2048 * 450)):
            e([f"s_mov_b32 s{s+2}, {n}", f"s_mov_b32 s{s+3}, 0x20000"])
        e(self.astamp("head"))
        toks = o["apf"].split(",")
        self.late = toks[toks.index("G") + 1:]
        toks = toks[:toks.index("G")]
        rest = [f"s_lshl2_add_u32 s{sCnt}, s{sA}, s{sWv}"]
        if any(t[0] == "x" for t in toks):
            rest += [f"v_and_b32 v4, 15, v0", f"v_lshl_add_u32 v4, s{sCnt}, 4, v4", f"v_mul_u32_u24 v4, 896, v4",
                     f"v_lshrrev_b32 v5, 4, v0", f"v_lshl_add_u32 v{vx}, v5, 7, v4"]
        rest += [f"s_lshr_b32 s{sT2}, s{sCt}, 1", f"s_and_b32 s{sCnt}, s{sCnt}, 15", f"s_lshl4_add_u32 s{sCnt}, s{sT2}, s{sCnt}",
                 f"s_mul_i32 s{sT2}, s{sCnt}, 3584", f"s_and_b32 s{sT3}, s{sCt}, 1", f"s_mul_i32 s{sT1}, s{sT3}, {7*256}",
                 f"s_add_u32 s{sT2}, s{sT2}, s{sT1}",
                 f"v_lshrrev_b32 v4, 3, v0", f"v_mul_u32_u24 v4, {64*3584}, v4", f"v_and_b32 v5, 7, v0", f"v_min_u32 v5, 6, v5",
                 f"v_lshl_add_u32 v4, v5, 8, v4", f"v_add_u32 v{vw}, s{sT2}, v4",
                 f"s_lshl_b32 s{sT3}, s{sT3}, 6", f"s_add_u32 s{sCnt}, s{sCnt}, s{sT3}",
                 f"s_mul_i32 s{sCnt}, s{sCnt}, 49", f"v_add_u32 v4, s{sCnt}, v0", f"v_mul_u32_u24 v5, 9363, v4", f"v_lshrrev_b32 v5, 22, v5",
                 f"v_mul_u32_u24 v5, 57344, v5", f"v_lshl_add_u32 v{vd}, v4, 7, v5", f"s_mov_b32 s{sU+2}, {448*3584}"]
        for s, n in ((sD, 1792 * 896), (sGw, 896), (sDBG, 256)):
            rest += [f"s_mov_b32 s{s+2}, {n}", f"s_mov_b32 s{s+3}, 0x20000"]
        for t in toks:
            if t not in ("clr", "WT"):
                e(rest)
                rest = []
            self.aux_tok(t)
            if t in ("clr", "go", "WT"):
                e(self.astamp(t))
        e(rest)

    def aux(self, sj, sidx):
        p, o = self.p, self.o
        e = p.e
        p.raw("L_aux:")
        sA, vt16 = sRt, 2
        sq, skg = sRg, sC
        late = self.late
        e([f"s_mov_b32 s{sK}, 0xbfb8aa3b", f"s_movk_i32 s{s7f}, 0x7f"])
        vo, vg = 3, 8
        xb, gb = 32, 96
        e([f"s_lshr_b32 s{sT1}, s{sA}, 3", f"s_lshl_b32 s{sT1}, s{sT1}, 1", f"s_and_b32 s{sT2}, s{sA}, 1",
           f"s_add_u32 s{sT1}, s{sT1}, s{sT2}", f"s_lshl_b32 s{sT1}, s{sT1}, 2", f"s_add_u32 s{sT1}, s{sT1}, s{sWv}",
           f"s_lshl_b32 s{sT1}, s{sT1}, 3", f"s_bfe_u32 s{sT2}, s{sA}, 0x20001", f"s_add_u32 s{sT1}, s{sT1}, s{sT2}",
           f"s_lshl_b32 s{sT1}, s{sT1}, 3",
           f"v_lshrrev_b32 v4, 5, v0", f"v_bfe_u32 v5, v0, 2, 3", f"v_lshl_add_u32 v4, v4, 5, v5", f"v_add_u32 v4, s{sT1}, v4",
           f"v_and_b32 v{vg}, 48, v{vL16}", f"v_mul_u32_u24 v4, 896, v4", f"v_add_u32 v{vo}, v4, v{vg}"])
        e([f"v_and_b32 v{vPg}, 31, v0", f"v_lshlrev_b32 v{vPg}, 3, v{vPg}"])
        gol = f"buffer_load_dword v{vP}, v{vPg}, {srd(sDBG)}, 0 offen sc1"
        vra, vwa = 9, 10
        e([f"v_and_b32 v4, 7, v0", f"v_lshrrev_b32 v5, 7, v{vt16}", f"v_lshrrev_b32 v6, 1, v4", f"v_mul_u32_u24 v{vra}, 1120, v6",
           f"v_and_b32 v6, 1, v0", f"v_mul_u32_u24 v6, 496, v6", f"v_add3_u32 v{vra}, v{vra}, v6, 16",
           f"v_add_u32 v6, v4, v5", f"v_lshl_add_u32 v{vra}, v6, 1, v{vra}", f"v_add_u32 v17, {8*RS}, v{vra}",
           f"v_lshlrev_b32 v{vwa}, 13, v5", f"v_lshl_add_u32 v{vwa}, v4, 4, v{vwa}",
           f"s_lshr_b32 s{sT1}, s{skg}, 1", f"s_lshl_b32 s{sT1}, s{sT1}, 2", f"s_add_u32 s{sT1}, s{sT1}, s{sq}",
           f"s_lshl_b32 s{sT1}, s{sT1}, 1", f"s_and_b32 s{sT2}, s{skg}, 1", f"s_add_u32 s{sT1}, s{sT1}, s{sT2}",
           f"s_lshl_b32 s{sT1}, s{sT1}, 7", f"s_add_u32 s{sT1}, s{sT1}, {WT}", f"s_add_u32 s{sT2}, s{sT1}, 4096"])
        sc, vv = self.poll1_addr(vT + 14, vT + 15, sHc, sFs)
        e([f"s_movk_i32 s{sKd}, 224", f"s_mov_b32 s{sSc}, {fbits(1.0/(2048*448))}", sc, vv, self.fft_setup_regs()])
        e([f"s_cmp_lg_u32 s{sA}, 4", "s_cbranch_scc1 L_aux1", self.fft_consts(vAB + 32)])
        p.raw("L_aux1:")
        e(W(vm="wl"))
        e("s_barrier")
        e(self.astamp("wl"))
        def rd(n):
            return [I(f"ds_read_u16 v{160+8*(n&1)+j}, v{17 if n & 1 else vra} offset:{j*RS+64*(n>>1)}", tag=f"g{n}") for j in range(8)]
        e(rd(0))
        for n in range(16):
            part = n & 1
            nx = rd(n + 1) if n < 15 else []
            e(nx[:6])
            if n == 14:
                e([f"v_cmp_gt_u32 vcc, 8192, v{vwa}", "s_nop 1", f"v_cndmask_b32 v{vwa}, 2.0, v{vwa}, vcc"])
            e(W(ds=f"g{n}"))
            e(nx[6:])
            for j in range(4):
                e(f"v_lshl_or_b32 v{176+4*part+j}, v{160+8*part+2*j+1}, 16, v{160+8*part+2*j}")
            e([f"buffer_store_dwordx4 {vr(176+4*part,4)}, v{vwa}, {srd(sWS)}, s{sT1+part} offen sc1",
               f"s_add_u32 s{sT1+part}, s{sT1+part}, {32*8192}"])
        p.reset()
        e(self.astamp("gath"))
        e(I(gol, tag="go"))
        for t in late:
            if t != "F":
                self.aux_tok(t)
                continue
            e(self.poll_check("goa", "go", gol, vP))
            e(["s_barrier", f"s_lshl_b32 s{sFh}, s{sA}, 7", f"s_add_u32 s{sFh}, s{sFh}, {FAUX}",
               f"s_cmp_lg_u32 s{sWv}, 0", f"s_cselect_b32 s{sT2}, {OOB}, 0", f"v_mov_b32 v16, s{sT2}",
               "s_mov_b64 exec, 1", f"buffer_store_dword v{vP}, v16, {srd(sWS)}, s{sFh} offen sc1", "s_mov_b64 exec, -1"])
            e(self.astamp("faux"))
        e([f"s_cmp_lg_u32 s{sA}, 4", "s_cbranch_scc1 L_aux2"])
        if o["stop"] == "gemm1":
            e("s_branch L_aux2")
        pl = f"buffer_load_dword v{vPr}, v{vPa}, {srd(sWS)}, 0 offen sc1"
        e([I(pl, tag="p1"), self.fft_scalars(), self.fft_addr2(), self.poll_check("p1a", "p1", pl, vPr), self.fft_loads()])
        self.fft_body(lambda n, dt: None)
        p.raw("L_aux2:")
        p.reset()
        for k in range(14):
            e(I(f"buffer_load_dwordx4 {vr(xb+4*k,4)}, v{vo}, {srd(sX)}, 0 offen offset:{64*k}", tag=f"gx{k}"))
            e(I(f"buffer_load_dwordx4 {vr(gb+4*k,4)}, v{vg}, {srd(sGw)}, 0 offen offset:{64*k}", tag="gx"))
            if k == 3:
                e([f"s_cmp_lg_u32 s{sA}, 4", "s_cbranch_scc1 L_aux3",
                   f"s_lshl_b32 s{sT0}, s{sWv}, 13", f"s_add_u32 s{sT0}, s{sT0}, {FZ+224*32}"])
                if o["stop"] != "gemm1":
                    e(self.flag_store(sT0, "gx0"))
                p.raw("L_aux3:")
        e(W(vm="gx"))
        for k in range(4):
            e(f"v_mov_b32 v{4+k}, 0")
        for k in range(56):
            e(f"v_dot2_f32_bf16 v{4+k%4}, v{xb+k}, v{gb+k}, v{4+k%4}")
        e([f"v_add_f32 v4, v4, v5", f"v_add_f32 v6, v6, v7", f"v_add_f32 v4, v4, v6",
           f"v_add_f32_dpp v4, v4, v4 quad_perm:[1,0,3,2] row_mask:0xf bank_mask:0xf",
           f"v_add_f32_dpp v4, v4, v4 quad_perm:[2,3,0,1] row_mask:0xf bank_mask:0xf",
           f"v_mul_f32 v4, s{sK}, v4", f"v_exp_f32 v4, v4", f"v_add_f32 v4, 1.0, v4", f"v_rcp_f32 v4, v4",
           f"v_and_b32 v5, 60, v0", f"v_max_u32 v4, 1, v4",
           f"s_lshl_b32 s{sT1}, s{sA}, 2", f"s_add_u32 s{sT1}, s{sT1}, s{sWv}", f"s_lshl_b32 s{sT1}, s{sT1}, 6",
           f"s_add_u32 s{sT1}, s{sT1}, {GOFF}",
           f"buffer_store_dword v4, v5, {srd(sWS)}, s{sT1} offen sc1"])
        if o["stamps"]:
            e(self.astamp("fg"))
            p.raw("s_waitcnt lgkmcnt(0)")
            e([f"s_lshl_b32 s{sT1}, s2, 2", f"s_add_u32 s{sT1}, s{sT1}, s{sWv}", f"s_lshl_b32 s{sT1}, s{sT1}, 6",
               f"s_add_u32 s{sT1}, s{sT1}, {STAMP}", "s_mov_b64 exec, 1"])
            for k in range(len(self.anames)):
                e([f"v_mov_b32 v2, s{sST+2*k}", f"buffer_store_dword v2, off, {srd(sWS)}, s{sT1} offset:{4*k}"])
            e("s_mov_b64 exec, -1")
        p.raw("s_endpgm")

    def pages(self, lines):
        import subprocess
        i0, i1 = lines.index("L_body:"), lines.index("L_fin:")
        body = [l for l in lines[i0:i1]]
        src = '.amdgcn_target "amdgcn-amd-amdhsa--gfx950"\n.text\nL_x:\n' + "\n".join(re.sub(r"L_slow_\w+|L_fin", "L_x", l) for l in body) + "\n"
        r = subprocess.run(["llvm-mc", "-triple", "amdgcn-amd-amdhsa", "-mcpu=gfx950", "-show-encoding"],
                           input=src, capture_output=True, text=True)
        sizes = [l.count(",", l.index("encoding:")) + 1 for l in r.stdout.split("\n") if "encoding:" in l]
        out, a, k, nm, npad, rep_ = [], self.o["bodyoff"], 0, 0, 0, []
        total = a + sum(sizes)
        npg = (total + 24) // 4096
        first = self.o["pads"]
        page, pend = 0, False
        for l in body:
            out.append(l)
            if l.endswith(":"):
                continue
            a += sizes[k]
            k += 1
            nm += l.startswith("v_mfma")
            if a // 4096 > page:
                page = a // 4096
                rep_.append(nm)
                pend = self.o["pads"] and page >= first
            if pend and (l.startswith("v_mfma") or a % 4096 >= 40) and "exec" not in l:
                out += [f"L_pad{npad}:", f"s_cbranch_execz {'L_padret' if page + 4 > npg else 'L_pad%d' % (npad + 4)}"]
                a += 4
                npad += 1
                pend = False
        assert k == len(sizes) and (not self.o["pads"] or npad == npg - first + 1 >= 4), (k, len(sizes), npad)
        self.log(f"body bytes {a - self.o['bodyoff']}, page starts after mfma # {rep_}")
        return lines[:i0] + out + lines[i1:]

    def finish(self):
        out = self.p.out
        d = self.o["diag"].split(",")
        if "plainst" in d:
            out = [l.replace(" sc1", "") if l.startswith("buffer_store_dwordx4") else l for l in out]
        if "plainld" in d:
            out = [l.replace(" sc1", "") if l.startswith("buffer_load_dwordx4") else l for l in out]
        if "nopoll" in d:
            out = ["s_nop 0" if l.startswith("s_cbranch_vccnz L_slow") or l.startswith("s_cbranch_scc0 L_slow") else l for l in out]
        if "nowd" in d:
            out = [f"v_mov_b32 v{vDd}, 2.0" if l.startswith(f"v_add3_u32 v{vDd}, v{vDd},") else l for l in out]
        if "nohl" in d:
            out = [f"v_mov_b32 v{vXd}, 2.0" if l == f"v_add_u32 v{vXd}, s{sCnt}, v{vL16}" else l for l in out]
        if "noz" in d:
            out = [f"v_mov_b32 v{vY+1}, 2.0" if l == f"v_add_u32 v{vY+1}, s{sFs}, v{vY+1}" else l for l in out]
        for x in d:
            if x.startswith("pre"):
                it_, np_ = x[3:].split("_")
                pr = ["s_mov_b32 s4, 0x9e3779b1", "v_add_u32 v10, s2, v0"]
                for j in range(32):
                    pr += [f"v_add_u32 v10, {0x6a09e667+j*77777}, v10", "v_mul_lo_u32 v10, v10, s4", "v_lshrrev_b32 v11, 15, v10", "v_xor_b32 v10, v10, v11",
                           f"v_and_b32 v{32+j}, 0x81ff81ff, v10", f"v_or_b32 v{32+j}, 0x3c003c00, v{32+j}"]
                pr += [f"v_mov_b32 v{96+j}, 0" for j in range(64)] + ["s_mov_b32 s4, 0", "L_pre:"]
                for m_ in range(16):
                    pr += [f"v_mfma_f32_16x16x32_bf16 v[{96+4*m_}:{99+4*m_}], v[{32+4*(m_>>2)}:{35+4*(m_>>2)}], v[{48+4*(m_&3)}:{51+4*(m_&3)}], v[{96+4*m_}:{99+4*m_}]", f"s_nop {np_}"]
                pr += ["s_add_u32 s4, s4, 1", f"s_cmp_lt_u32 s4, {it_}", "s_cbranch_scc1 L_pre"]
                out = pr + out
        if "cnt" in d:
            nm_ = ["go", "p1", "pW", "pA", "pB", "pZ", "pP"]
            o2 = ["s_mov_b32 s101, 0"]
            for l in out:
                o2.append(l)
                if l.startswith("L_slow_") and l[7:-1] in nm_:
                    o2.append(f"s_bitset1_b32 s101, {nm_.index(l[7:-1])}")
                if l.endswith("offset:60") and l.startswith("buffer_store_dword v2, off"):
                    o2 += ["v_mov_b32 v2, s101", l.replace("offset:60", "offset:56")]
            out = o2
        if "halfm" in d:
            k_, o2 = 0, []
            for l in out:
                if l.startswith("v_mfma") and not l.endswith(", 0"):
                    k_ += 1
                    if k_ % 4 == 0:
                        continue
                o2.append(l)
            out = o2
        if "nomfma" in d:
            out = ["s_nop 7" if l.startswith("v_mfma_f32_32x32") else l for l in out]
        if "m16" in d:
            o2, cnt, i = [], {}, 0
            while i < len(out):
                l = out[i]
                m = re.match(r"v_mfma_f32_32x32x16_bf16 v\[(\d+):\d+\], (\S+), (\S+), (\S+)", l)
                if not m:
                    o2.append(l); i += 1
                    continue
                b = int(m.group(1))
                if m.group(4) == "0":
                    cnt[b] = 0
                k = cnt[b]; cnt[b] += 1
                j = i + 1
                while j < len(out) and not out[j].startswith("v_mfma") and j - i < 12:
                    j += 1
                gap = out[i + 1:j]
                if j - i >= 12:
                    gap, j = [], i + 1
                tot = sum(cost(x) for x in gap); acc = 0; cutp = 0
                for q, x in enumerate(gap):
                    if acc >= (tot + 1) // 2 and not x.startswith("s_cselect") and not x.startswith("s_cbranch") and "exec" not in x and "exec, 1" not in gap[q-1]:
                        break
                    acc += cost(x); cutp = q + 1
                def mm(blk, A, B):
                    dd = f"v[{b+4*blk}:{b+4*blk+3}]"
                    return f"v_mfma_f32_16x16x32_bf16 {dd}, {A}, {B}, {'0' if k < 2 else dd}"
                A, B = m.group(2), m.group(3)
                A0, B0 = A, B
                pa, pb = cnt.get("p", (A, B))
                if "m16b" in d:
                    mb = re.match(r"a\[(\d+):", B); ma = re.match(r"a\[(\d+):", A)
                    if mb:
                        q_ = max(int(mb.group(1)) - 8, int(mb.group(1)) & 4); B0 = f"a[{q_}:{q_+3}]"
                        if "100" and b >= vAB and b != vAB + 16 and int(mb.group(1)) < 216:
                            q_ = int(mb.group(1)) + 8; B0 = f"a[{q_}:{q_+3}]"
                    elif ma:
                        q_ = max(int(ma.group(1)) - 8, 0); A0 = f"a[{q_}:{q_+3}]"
                    else:
                        A0 = pa
                cnt["p"] = (A, B)
                o2 += [mm(k & 1, A0, B0)] + gap[:cutp] + [mm(2 + (k & 1), A, B)] + gap[cutp:]
                i = j
            out = o2
        if "nobar" in d:
            out = ["s_nop 0" if l.startswith("s_barrier") else l for l in out]
        if "novm" in d:
            out = [(re.sub(r" vmcnt\(\d+\)", " vmcnt(63)", l) if l.startswith("s_waitcnt") and "vmcnt(0)" not in l else l) for l in out]
        lines, nfix = check_hazards(out)
        lines = self.pages(lines)
        self.log(f"{len(lines)} lines, {nfix} hazard nops inserted, {getattr(self.p,'n_sat',0)} lgkm saturation waits")
        ref = open("gated_mix__spectral_gfnet__swiglu_ffn__prompt.s.ref").read().split("\n")
        head = [l for l in ref if l.startswith(";") and "@launch" not in l and "Override" not in l and "grid=ceil" not in l]
        s = "\n".join(head) + "\n"
        s += f"; @launch grid=(256,1,1) block=(256,1,1) lds={LDS_BYTES}\n"
        s += '.amdgcn_target "amdgcn-amd-amdhsa--gfx950"\n.text\n'
        if self.o["align"]:
            s += ".p2align 12\n"
        s += f".globl {NAME}\n.p2align 8\n.type {NAME},@function\n{NAME}:\n"
        s += "\n".join(lines) + "\n"
        s += f"""s_endpgm
.section .rodata,"a"
.p2align 6
.amdhsa_kernel {NAME}
  .amdhsa_next_free_vgpr 512
  .amdhsa_next_free_sgpr 102
  .amdhsa_accum_offset 256
  .amdhsa_group_segment_fixed_size 0
  .amdhsa_kernarg_size 88
  .amdhsa_user_sgpr_count 2
  .amdhsa_user_sgpr_kernarg_segment_ptr 1
  .amdhsa_system_sgpr_workgroup_id_x 1
  .amdhsa_float_denorm_mode_32 3
.end_amdhsa_kernel
"""
        return s


def parse_opts(args):
    kw = {}
    for a in args:
        k, v = a.split("=")
        assert k in DEF, k
        if isinstance(DEF[k], bool):
            v = v not in ("0", "False")
        elif isinstance(DEF[k], int):
            v = int(v)
        kw[k] = v
    return kw


if __name__ == "__main__":
    out = sys.argv[1]
    g = Gen(**parse_opts(sys.argv[2:]))
    s = g.build()
    open(out, "w").write(s)
    print("; stamps:", g.stamp_names, file=sys.stderr)
```

```python
import re


class I:
    __slots__ = ("t", "tag", "vm", "ds")

    def __init__(self, t, tag=None, vm=None, ds=None):
        self.t = t
        self.tag = tag
        self.vm = vm
        self.ds = ds


def W(vm=None, ds=None):
    return I("", vm=vm, ds=ds)


def kind(t):
    op = t.split()[0] if t else "s_waitcnt"
    if op.startswith("v_mfma"):
        return "M"
    if op.startswith("ds_"):
        return "D"
    if op.startswith("buffer_") or op.startswith("global_"):
        return "G"
    if op.startswith("v_"):
        return "V"
    return "S"


TRANS = ("v_exp_f32", "v_rcp_f32", "v_cos_f32", "v_sin_f32", "v_log_f32", "v_rsq_f32", "v_sqrt_f32")


VM2 = [0]


def cost(t):
    op = t.split()[0] if t else ""
    return 2 if op in TRANS or op == "ds_write_b128" or (VM2[0] and op.startswith("buffer_")) else 1


class Prog:
    def __init__(self):
        self.out = []
        self.reset()

    def reset(self):
        self.vm_n = 0
        self.vm_done = 0
        self.vm_tag = {}
        self.ds_n = 0
        self.ds_done = 0
        self.ds_tag = {}

    def snapshot(self):
        return (self.vm_n, self.vm_done, dict(self.vm_tag), self.ds_n, self.ds_done, dict(self.ds_tag))

    def restore(self, s):
        self.vm_n, self.vm_done, vt, self.ds_n, self.ds_done, dt = s
        self.vm_tag = dict(vt)
        self.ds_tag = dict(dt)

    def raw(self, t):
        self.out.append(t)

    def _idx(self, tags, table, n):
        if tags is None:
            return 0
        if tags == "all":
            return n
        if not isinstance(tags, (list, tuple)):
            tags = [tags]
        return max([table[t] for t in tags], default=0)

    def wait(self, vm=None, ds=None):
        a = self._idx(vm, self.vm_tag, self.vm_n)
        b = self._idx(ds, self.ds_tag, self.ds_n)
        s = ""
        if a > self.vm_done:
            n = min(self.vm_n - a, 63)
            s += f" vmcnt({n})"
            self.vm_done = self.vm_n - n
        if b > self.ds_done:
            n = min(self.ds_n - b, 15)
            s += f" lgkmcnt({n})"
            self.ds_done = self.ds_n - n
        if s:
            self.out.append("s_waitcnt" + s)
        return bool(s)

    def e(self, it, tag=None, vm=None, ds=None):
        if isinstance(it, (list, tuple)):
            for x in it:
                self.e(x)
            return
        if callable(it):
            it(self)
            return
        if isinstance(it, str):
            if "\n" in it:
                for l in it.split("\n"):
                    if l.strip():
                        self.e(l.strip())
                return
            it = I(it, tag, vm, ds)
        self.wait(it.vm, it.ds)
        if not it.t:
            return
        k = kind(it.t)
        if k == "G":
            self.vm_n += 1
            assert self.vm_n - self.vm_done <= 63, "too many vmem outstanding"
            if it.tag:
                self.vm_tag[it.tag] = self.vm_n
        elif k == "D":
            if self.ds_n - self.ds_done >= 15:
                self.out.append("s_waitcnt lgkmcnt(10)")
                self.ds_done = self.ds_n - 10
                self.n_sat = getattr(self, "n_sat", 0) + 1
            self.ds_n += 1
            if it.tag:
                self.ds_tag[it.tag] = self.ds_n
        self.out.append(it.t)


class Lab:
    def __init__(self, br, lab):
        self.br, self.lab = br, lab

    def __call__(self, p):
        p.e(self.br)
        p.raw(self.lab)


class Lgkm0:
    def __call__(self, p):
        p.raw("s_waitcnt lgkmcnt(0)")
        p.ds_done = p.ds_n


class Mark:
    def __init__(self, name):
        self.name = name


class Rec:
    def __init__(self):
        self.items = []

    def e(self, it):
        if isinstance(it, (list, tuple)):
            for x in it:
                self.e(x)
        else:
            self.items.append(it)

    def mark(self, name):
        self.items.append(Mark(name))


class Gaps:
    def __init__(self, mf, budget=6):
        self.mf = mf
        self.n = len(mf)
        self.s = [[] for _ in mf]
        self.m = [[] for _ in mf]
        self.v = [[] for _ in mf]
        self.post = [[] for _ in mf]
        self.budget = budget
        self.light = set()
        self.quiet = set()
        self._wrote, self._read = set(), set()

    def used(self, g):
        def c(x):
            if isinstance(x, I):
                return cost(x.t) + (1 if (x.t and (x.vm or x.ds)) else 0)
            if isinstance(x, str):
                return cost(x)
            if isinstance(x, list):
                return sum(map(c, x))
            if isinstance(x, (Lab, Lgkm0)):
                return 1
            return 4
        return (max(0, sum(map(c, self.s[g])) - 1) + sum(map(c, self.m[g])) + sum(map(c, self.v[g]))
                + sum(map(c, self.post[g])))

    def pour(self, seq, g0, g1=None, budget=None, window=14, sonly=False):
        budget = budget or self.budget
        g1 = self.n if g1 is None else g1
        g = g0
        items = []
        for x in seq:
            if isinstance(x, list):
                ps = [parse(y) for y in x]
                items.append((x, len(x), "grp", "S", set().union(*[q[2] for q in ps]), set().union(*[q[3] for q in ps])))
                continue
            t = x.t if isinstance(x, I) else x
            op, k, w, r, _ = parse(t)
            items.append((x, cost(t), op, k, w, r))
        last = g0
        wrote, read = self._wrote, self._read
        while items and g < g1:
            if g in self.light or g in self.quiet:
                g += 1
                continue
            placed = False
            lastv = self.v[g][-1] if self.v[g] else None
            lw = set()
            if lastv is not None and not isinstance(lastv, list):
                lt = lastv.t if isinstance(lastv, I) else lastv
                lop, _, lw_, _, _ = parse(lt)
                if lop in TRANS:
                    lw = lw_
            want2 = False
            if budget - self.used(g) == 2:
                sw, sr = set(), set()
                for (x, t, op, k, w, r) in items[:window]:
                    if op in TRANS and not ((w & sw) or (w & sr) or (r & sw)):
                        want2 = True
                        break
                    sw |= w
                    sr |= r
            sw, sr = set(), set()
            for j, (x, t, op, k, w, r) in enumerate(items[:window]):
                dep = (w & sw) or (w & sr) or (r & sw) or (want2 and op not in TRANS)
                if not dep:
                    early = not any((z, g) in wrote for z in (r | w)) and not any((z, g) in read for z in w)
                    if k in "DG":
                        if early and self.used(g) + t <= budget + (budget > 3) \
                                and not any(kk in "DG" for (_, _, _, kk, _, _) in items[:j]):
                            self.m[g].append(x)
                            for z in r:
                                read.add((z, g))
                            placed = True
                    elif k == "S" and early and not self.s[g] and self.used(g) + t - 1 <= max(budget, t - 1):
                        self.s[g].append(x)
                        placed = True
                    elif self.used(g) + t <= budget and not (lw & r and op not in TRANS) and not (sonly and k == "S"):
                        self.v[g].append(x)
                        for z in w:
                            wrote.add((z, g))
                        for z in r:
                            read.add((z, g))
                        placed = True
                if placed:
                    items.pop(j)
                    last = g
                    break
                sw |= w
                sr |= r
            if not placed:
                g += 1
        return last, [it[0] for it in items]

    def emit(self, p, g0=0, g1=None, fix=0):
        g1 = self.n if g1 is None else g1

        def isd(x):
            return isinstance(x, I) and x.t.startswith("ds_read")

        def needs(x, tag):
            if not isinstance(x, I):
                return callable(x)
            return x.ds == "all" or tag == x.ds or (isinstance(x.ds, (list, tuple)) and tag in x.ds)
        for g in range(g0, g1):
            p.e(self.mf[g])
            n0 = len(p.out)
            p.e(self.s[g])
            m = self.m[g]
            if fix and len(p.out) == n0 and len(m) >= 2 and isd(m[0]) and isd(m[1]) and not self.v[g]:
                h = g + 1
                if len(m) == 2 and h < g1 - 1 and h not in self.light and h + 1 not in self.light and self.used(h) < 2 \
                        and not any(isd(x) for x in self.m[h]) and not self.post[g] \
                        and not any(needs(x, m[1].tag) for k in (h, h + 1, h + 2) if k < g1 for x in self.s[k]):
                    self.m[h].insert(0, m.pop())
                elif not (m[0].vm or m[0].ds):
                    if p.ds_n - p.ds_done > 10:
                        p.raw("s_waitcnt lgkmcnt(10)")
                        p.ds_done = p.ds_n - 10
                    else:
                        p.e("s_nop 0")
            p.e(m)
            p.e(self.v[g])
            p.e(self.post[g])


_REG = re.compile(r"(?<![\w.])([vas])(\d+)(?!\w)|(?<![\w.])([vas])\[(\d+):(\d+)\]")


def regs(op):
    r = set()
    for m in _REG.finditer(op):
        if m.group(1):
            r.add((m.group(1), int(m.group(2))))
        else:
            for i in range(int(m.group(4)), int(m.group(5)) + 1):
                r.add((m.group(3), i))
    if re.search(r"\bvcc(_lo|_hi)?\b", op):
        r.add(("s", "vcc"))
    if re.search(r"\bm0\b", op):
        r.add(("s", "m0"))
    if re.search(r"\bexec(_lo|_hi)?\b", op):
        r.add(("s", "exec"))
    return r


def parse(t):
    t = t.split(";")[0].strip()
    sp = t.split(None, 1)
    op = sp[0]
    ops = [o.strip() for o in sp[1].split(",")] if len(sp) > 1 else []
    k = kind(t)
    w, r = set(), set()
    allr = [regs(o) for o in ops]
    U = lambda l: set().union(*l) if l else set()
    if k == "M":
        w = allr[0]
        r = U(allr[1:])
    elif k == "D":
        if op.startswith("ds_read") or op.startswith("ds_bpermute"):
            w = allr[0]
            r = U(allr[1:])
        else:
            r = U(allr)
    elif k == "G":
        if " lds" in t:
            r = U(allr) | {("s", "m0")}
        elif "_load" in op:
            w = allr[0]
            r = U(allr[1:])
        else:
            r = U(allr)
    elif k == "V":
        w = allr[0]
        r = U(allr[1:])
        if op.startswith("v_fmac") or op.startswith("v_dot2c") or "permlane" in op or op.startswith("v_writelane"):
            r |= w
        if "permlane" in op and "swap" in op:
            w = w | allr[1]
        if op.startswith("v_cmpx"):
            w = w | {("s", "exec")}
    else:
        if op.startswith("s_cmp") or op.startswith("s_cbranch") or op.startswith("s_bitcmp") or op in (
                "s_waitcnt", "s_nop", "s_barrier", "s_branch", "s_sleep", "s_endpgm", "s_setprio"):
            r = U(allr)
        elif allr:
            w = allr[0]
            r = U(allr[1:])
            if "saveexec" in op:
                w = w | {("s", "exec")}
            if op in ("s_addk_i32", "s_mulk_i32", "s_bitset1_b32", "s_bitset0_b32"):
                r = r | w
    return op, k, w, r, allr


def check_hazards(lines, fix=True):
    out = []
    hist = []
    nfix = 0
    for t in lines:
        s = t.strip()
        if not s or s.startswith(";") or s.startswith(".") or s.endswith(":"):
            out.append(t)
            continue
        op, k, w, r, allr = parse(s)
        need = 0
        dist = 0
        for (pop, pk, pw, pr, pall, pst) in reversed(hist):
            req = 0
            vw = {x for x in pw if x[0] in "va"}
            sw = {x for x in pw if x[0] == "s"}
            if pk == "M":
                passes = 8 if "32x32x16" in pop else 4
                big = 12 if passes == 8 else 8
                if k == "M":
                    if pw & (allr[1] | allr[2]):
                        req = big
                    elif pw & allr[3] and not (pw == allr[3] and pop == op):
                        req = 10 if passes == 8 else 6
                    elif pw & w and not (pw == allr[3]):
                        req = big
                elif pw & (r | w):
                    req = big
                if k == "V" and (pall[3] & w):
                    req = max(req, 7 if passes == 8 else 3)
            elif pk == "V":
                if k == "M" and vw & r:
                    req = 2
                if k == "M" and ("s", "exec") in pw:
                    req = 4
                if pop in TRANS and k != "S" and op not in TRANS and vw & r:
                    req = max(req, 1)
                if pop.startswith("v_dot") and vw & (r | w) and not (op == pop and not (vw & (allr[1] | allr[2]))):
                    req = max(req, 3)
                if (op.startswith("v_readlane") or op.startswith("v_readfirstlane")) and vw & r:
                    req = max(req, 1)
                if ("permlane" in op or "dpp" in s) and vw & r:
                    req = max(req, 2)
                if k == "G" and sw & r:
                    req = max(req, 5)
                if k == "V" and sw & r:
                    req = max(req, 2)
                if k == "S" and sw & r and not op.startswith("s_cbranch"):
                    req = max(req, 1)
            elif pk == "G":
                if "store" in pop and ("x4" in pop or "x3" in pop) and (pall[0] & w):
                    req = 2
            elif pk == "S":
                if ("s", "m0") in pw and k == "G" and " lds" in s:
                    req = 1
                if ("s", "exec") in pw and "dpp" in s:
                    req = 5
            if req > dist:
                need = max(need, req - dist)
            dist += pst
            if dist > 20:
                break
        if need:
            nfix += 1
            if not fix:
                raise SystemExit(f"hazard before: {s} need {need}")
            out.append(f"s_nop {need-1}")
            hist.append(("s_nop", "S", set(), set(), [], need))
        st = 1
        if op == "s_nop":
            st = int(s.split()[1]) + 1
        hist.append((op, k, w, r, allr, st))
        hist = hist[-24:]
        out.append(t)
    return out, nfix
```

```python
import sys, struct, re
from asmlib import *

NAME = "gated_mix__spectral_gfnet__swiglu_ffn__prompt_kernel"

FX1 = 0
FAUX = FX1 + 896 * 128
FG = FAUX + 32 * 128
FH = 1024 * 128
FZ = 1280 * 128
FEND = 2048 * 128
GOFF = FEND - 8192
FH2 = FEND
FZ2 = FH2 + 1024 * 128
STAMP = 2 * FEND + 65536
X1T = 1 << 20
ZT = X1T + 448 * 4096
WT = ZT + 448 * 4096
HH = WT + 225 * 8192
PP = HH + 64 * 114688
WSEND = PP + 1024 * 2048
OOB = 0x40000000

WSLOT = 16640
NWS = 5
XS = NWS * WSLOT
FS = XS + 65536
IMG = FS
EXC = 8192
ZS = XS - 57344
RED = XS
LDS_BYTES = 163840

sFx, s8k, sHst1 = 0, 1, 3
sX, sG, sU, sD, sWS, sO, sDBG = 4, 8, 12, 16, 20, 24, 28
sWv, sRg, sC, sRt, sCt, sKd = 32, 33, 34, 35, 36, 37
sWm, sXm = 38, 39
sT0, sT1, sT2, sT3 = 40, 41, 42, 43
sK = 44
s7f = 46
sCnt = 47
sXo, sWo, sDo = 48, 55, 62
sPe, sHc, sPs, sPl, sFs, sSp = 72, 73, 74, 75, 76, 77
sHst, sRot2 = 69, 70
sSc = 71
sFh = 79
sWr, sWi, sGw = 60, 64, 56
RS = 4480
sZs, sSw = 48, 49
sST = 80

vL16 = 1
vXd, vXr, vDr, vWd, vTr, vDd, vY = 2, 6, 10, 14, 16, 18, 22
vFr, vSg, vX1g, vPa, vP, vPr, vPg, vPw = 24, 25, 26, 27, 28, 29, 30, 31
vFm = vPg
vWF = 32
vT1c, vT1s, vT2c, vT2s = 48, 56, 64, 72
vAX, vAA, vAB, vS32, vT = 80, 96, 160, 224, 232
aX, aC64, aS64, aN64, aC32 = 0, 224, 232, 240, 248
STEP448 = 9586981
fA = vAA + 32
fDr, fDi, fTm = vAA, vAA + 8, vAA + 16
fBr, fBi, fBn = vAX, vAX + 4, vAX + 8
fWraw = vT
fWr, fWi = vWF, vWF + 8
fa0, fim, fx = vT + 8, vT + 12, vT + 13
vE = vT + 16


def srd(s):
    return f"s[{s}:{s+3}]"


def vr(b, n, c="v"):
    return f"{c}[{b}:{b+n-1}]"


def fbits(x):
    return "0x%08x" % struct.unpack("<I", struct.pack("<f", x))[0]


def txt(x):
    return x.t if isinstance(x, I) else (x if isinstance(x, str) else "s_nop 0")


DEF = dict(rot1="q0325", LA=3, npre=12, npro=16, slowend=0, cpro=0, n1=4, align=1, pf=1,
           perA=88, perA0=48, gap0=100, hstart=14, fgap=0, tlb=0, tV='', tD0='', tD1='', vm2=0, fpro=0, budF=8, perE=64, perB=64, perF=64, perG=48, perS=64,
           wd_at='A180,A254,B0,B34,B0,B0,B0', wd_delay=1000,
           go_ld='A190', go_chk='A250', pclr='A100', x1st='', x1flag='B8', poll1='B76', chk1='B118', pollW='B168', chkW='B210',
           hAflag='B56', pollA='B126', chkA='B166', hBflag='F1750', pollB='G28', chkB='G68',
           zflag='G48', pollZ='G122', chkZ='G160', zst='7,7', xsp=6, nlds=0, nlast=6, perZ=48, pld='G235', splp=4, splo=0, gbo=241, rwo=13, rws=3, zfast=5, catch=32, fmix=0, own=0, hAst='-,-,-,-', budB=2, gapM=150, budM=2, ownA='B136', rbp=12, budP=2, sleepP=1, warm='', gfirst=1, sleepW=4, hpre=1, pchk=271, pads=1, padat=-1, bodyoff=0, lds_at='F0', fonm=1,
           fft_head='B', budE=4, gapE=165, gapC=280, gapL=0, gapS=90, sonly=0, fix=1, budL=8, snake=1, budG=2,
           apf='clr,WT,go,v06,d0,d1,G,F', spin=200000, sleep=8, outfl="",
           stop=None, stamps=False, rt=False, st1='', st2='', st3='', only='', diag='')


class Gen:
    def __init__(self, **kw):
        self.o = dict(DEF)
        self.o.update(kw)
        self.p = Prog()
        self.slow = []
        self.nst = 0
        self.stamp_names = []
        self.anames = ['start', 'rt0']
        self.headB = False

    def log(self, s):
        print("; " + s, file=sys.stderr)

    def stamp(self, name):
        if not self.o["stamps"]:
            return []
        if self.o["only"] and name not in ("start", "rt0", "end") and name not in self.o["only"].split(",") and name[0] != "@":
            return []
        i = self.nst
        self.nst += 1
        r = sX if name == "end" else sST + 2 * i
        assert r + 1 <= 101
        self.stamp_names.append(name)
        return [f"{'s_memrealtime' if self.o['rt'] else 's_memtime'} s[{r}:{r+1}]"]

    def astamp(self, name):
        if not self.o["stamps"]:
            return []
        self.anames.append(name)
        r = sST + 2 * (len(self.anames) - 1)
        assert r <= 100
        return [f"{'s_memrealtime' if self.o['rt'] else 's_memtime'} s[{r}:{r+1}]"]

    def poll_check(self, name, tags, load, reg):
        def f(p):
            p.wait(vm=tags)
            p.e(f"v_cmp_ne_u32 vcc, 1, v{reg}")
            p.e(f"s_cbranch_vccnz L_slow_{name}")
            p.raw(f"L_back_{name}:")
        s = [f"L_slow_{name}:", f"s_mov_b32 s{sSp}, 0", f"L_spin_{name}:", load, "s_waitcnt vmcnt(0)",
             f"v_cmp_ne_u32 vcc, 1, v{reg}", f"s_cbranch_vccz L_back_{name}", f"s_sleep {12 if name == 'p1a' else self.o['sleepW'] if name[0] == 'w' else self.o['sleep']}",
             f"s_add_u32 s{sSp}, s{sSp}, 1", f"s_cmp_lt_u32 s{sSp}, {self.o['spin']}",
             f"s_cbranch_scc1 L_spin_{name}", "s_endpgm"]
        self.slow += s
        return f

    def spoll_load(self, soff):
        return [f"s_load_dwordx8 s[56:63], s[{sWS}:{sWS+1}], s{soff} glc", f"s_load_dwordx8 s[64:71], s[{sWS}:{sWS+1}], s{soff} offset:512 glc"]

    def spoll_check(self, name, load, reg):
        self.poll_check(name, None, load, reg)

        def f(p):
            p.raw("s_waitcnt lgkmcnt(0)")
            p.ds_done = p.ds_n
            p.e([f"s_and_b64 s[56:57], s[56:57], s[{k}:{k+1}]" for k in (58, 60, 64, 66, 68)])
            p.e([f"s_and_b32 s56, s56, s{k}" for k in (62, 70, 57)])
            p.e(f"s_cbranch_scc0 L_slow_{name}")
            p.raw(f"L_back_{name}:")
        return f

    def flag1(self, soff, tags):
        return I(f"buffer_store_dword v{vP}, v{vFm}, {srd(sWS)}, s{soff} offen sc1", vm=tags)

    def flag_store(self, soff, tags):
        def f(p):
            p.wait(vm=tags)
            p.e("s_mov_b64 exec, 1")
            p.e(f"buffer_store_dword v{vP}, off, {srd(sWS)}, s{soff} sc1")
            p.e("s_mov_b64 exec, -1")
        return f

    def trig(self, dst, phase, tmp, fn="cos"):
        return [f"v_alignbit_b32 v{tmp}, s{s7f}, v{phase}, 9", f"v_{fn}_f32 v{dst}, v{tmp}"]

    def fft_consts(self, t):
        vn, vq, vcol, vidx, va, vb, vk, vsg = range(t, t + 8)
        c0, s0 = t + 8, t + 16
        pk = t + 24
        q = [f"v_lshrrev_b32 v{vq}, 4, v0", f"v_and_b32 v{vn}, 15, v0",
             f"v_lshl_add_u32 v{vcol}, s{sWv}, 4, v{vn}",
             f"v_lshrrev_b32 v{va}, 2, v{vn}", f"v_and_b32 v{vb}, 3, v{vn}", f"v_lshl_add_u32 v{vidx}, v{va}, 3, v{vb}",
             f"v_bfe_i32 v{vsg}, v0, 0, 1", f"v_and_b32 v{vsg}, 0x80008000, v{vsg}",
             f"v_cvt_f32_u32 v{vcol}, v{vcol}", f"v_cvt_f32_u32 v{vidx}, v{vidx}", f"v_cvt_f32_u32 v{vq}, v{vq}"]

        def coef():
            return [f"v_cos_f32 v{vn}, v{va}", f"v_add_f32 v{vn}, v{vn}, v{vn}"]

        def run(c, s, n, scale=False):
            r = [f"v_add_f32 v{s+1}, v{vb}, v{va}", f"v_cos_f32 v{c}, v{vb}", f"v_sin_f32 v{s}, v{vb}",
                 f"v_cos_f32 v{c+1}, v{s+1}", f"v_sin_f32 v{s+1}, v{s+1}"]
            if scale:
                r += [f"v_mul_f32 v{x}, s{sSc}, v{x}" for x in (c, s, c + 1, s + 1)]
            for j in range(2, n):
                r += [f"v_fma_f32 v{x+j}, v{vn}, v{x+j-1}, -v{x+j-2}" for x in (c, s)]
            return r

        def pack(dst, src):
            return [f"v_cvt_pk_bf16_f32 v{dst+j}, v{src+2*j}, v{src+2*j+1}" for j in range(4)]

        def acc(dst, src):
            return [f"v_accvgpr_write_b32 a{dst+j}, v{src+j}" for j in range(4)]

        def xr(dst, m):
            return [f"v_xor_b32 v{dst+j}, {m}, v{dst+j}" for j in range(4)]
        q += [f"v_mul_f32 v{va}, {fbits(1/64)}, v{vcol}", f"v_mul_f32 v{vb}, 4.0, v{vq}", f"v_mul_f32 v{vb}, v{vb}, v{va}"]
        q += coef() + run(c0, s0, 4) + [f"v_mul_f32 v{vk}, {fbits(1/16)}, v{vb}", f"v_fmamk_f32 v{vb}, v{va}, {fbits(16.0)}, v{vb}"]
        q += run(c0 + 4, s0 + 4, 4)
        q += pack(pk, c0) + pack(pk + 4, s0)
        q += acc(aC64, pk) + acc(aS64, pk + 4) + xr(pk, f"v{vsg}") + xr(pk + 4, f"v{vsg}")
        q += acc(aC64 + 4, pk) + acc(aS64 + 4, pk + 4) + xr(pk + 4, "0x80008000") + acc(aN64 + 4, pk + 4)
        q += xr(pk + 4, f"v{vsg}") + acc(aN64, pk + 4)
        q += [f"v_mul_f32 v{va}, {fbits(1/32)}, v{va}", f"v_mov_b32 v{vb}, v{vk}"]
        q += coef() + run(vT1c, vT1s, 8)
        q += [f"v_cvt_f32_u32 v{vk}, s{sWv}", f"v_fma_f32 v{vk}, v{vk}, 4.0, v{vq}", f"v_mul_f32 v{vk}, 4.0, v{vk}",
              f"v_mul_f32 v{vq}, {fbits(8.0)}, v{vq}"]
        for tt in range(2):
            if tt:
                q.append(f"v_add_f32 v{vidx}, 4.0, v{vidx}")
            q += [f"v_mul_f32 v{va}, {fbits(1/32)}, v{vidx}", f"v_mul_f32 v{vb}, v{vq}, v{va}"]
            q += coef() + run(c0, s0, 8)
            q += pack(pk, c0) + pack(vS32 + 4 * tt, s0) + acc(aC32 + 4 * tt, pk)
            q += [f"v_mul_f32 v{va}, {fbits(1/64)}, v{va}", f"v_mul_f32 v{vb}, v{vk}, v{va}"]
            q += coef() + run(vT2c + 4 * tt, vT2s + 4 * tt, 4, True)
        return q

    def fft_setup_regs(self):
        t0, t1 = vT + 14, vT + 15
        return [f"v_and_b32 v{t1}, 3, v0", f"v_mul_u32_u24 v{fa0}, 528, v{t1}",
                f"v_lshrrev_b32 v{t0}, 4, v0", f"v_lshl_add_u32 v{fa0}, v{t0}, 7, v{fa0}",
                f"v_bfe_u32 v{t0}, v0, 2, 1", f"v_lshl_add_u32 v{fa0}, v{t0}, 6, v{fa0}",
                f"v_and_b32 v{t0}, 8, v0", f"v_add_u32 v{fa0}, v{t0}, v{fa0}", f"v_add_u32 v{fa0}, {IMG}, v{fa0}",
                f"v_xor_b32 v{fa0+1}, 16, v{fa0}", f"v_xor_b32 v{fa0+2}, 32, v{fa0}", f"v_xor_b32 v{fa0+3}, 48, v{fa0}",
                f"v_lshrrev_b32 v{t0}, 5, v0", f"v_xor_b32 v{t0}, v{t0}, v0", f"v_bfe_i32 v{fx}, v{t0}, 0, 1"]

    def fft_scalars(self):
        return [[f"s_lshl_b32 s{sT1}, s{sKd}, 13"], [f"s_lshl_b32 s{sT0}, s{sWv}, 10"],
                [f"s_add_u32 s{sT2}, s{sT1}, s{sT0}"],
                [f"s_cmp_eq_u32 s{sKd}, 224", f"s_cselect_b32 s{sZs}, 4096, s{sT1}", f"s_cselect_b32 s{sT1}, 0, s{sT1}",
                 f"s_cselect_b32 s{sSw}, 16, 0"],
                [f"s_cmp_eq_u32 s{sT1}, 0", f"s_cselect_b32 s{sT3}, {OOB}, 0"],
                [f"s_add_u32 s{sZs}, s{sZs}, s{sT0}"], [f"s_lshl_b32 s{sT0}, s{sT0}, 1"], [f"s_add_u32 s{sT1}, s{sT1}, s{sT0}"],
                [f"s_add_u32 s{sT1}, s{sT1}, {X1T}"], [f"s_add_u32 s{sT2}, s{sT2}, {WT}"], [f"s_add_u32 s{sZs}, s{sZs}, {ZT}"]]

    def fft_addr2(self):
        return [f"v_xor_b32 v{fim}, s{sSw}, v{vL16}", f"v_and_or_b32 v{fx}, v{fx}, s{sT3}, v{fim}",
                f"v_or_b32 v{fim}, s{sT3}, v{vL16}", f"v_add_u32 v{fim}, 0x1000, v{fim}"]

    def poll1_addr(self, t0, t1, sa, sb, extra=None):
        sc = [[f"s_lshr_b32 s{sa}, s{sKd}, 4", f"s_cmp_eq_u32 s{sa}, 14", f"s_cselect_b32 s{sa}, 0, s{sa}"],
              [f"s_lshl2_add_u32 s{sa}, s{sa}, s{sWv}"], [f"s_lshl_b32 s{sa}, s{sa}, 4"],
              [f"s_lshl_b32 s{sb}, s{sWv}, 1"]]
        v = [f"v_add_u32 v{vPa}, s{sa}, v0",
             f"v_bfe_u32 v{t0}, v0, 1, 2", f"v_and_b32 v{t1}, 1, v0", f"v_lshl_add_u32 v{t0}, v{t0}, 3, v{t1}",
             f"v_add_u32 v{t0}, s{sb}, v{t0}",
             f"v_add_u32 v{t0}, {FAUX//128}, v{t0}"]
        if extra is not None:
            v += [f"v_lshlrev_b32 v{vPw}, 7, v{t0}", f"v_mov_b32 v{t0}, s{extra}"]
        v += [
             f"v_subrev_u32 v{t1}, 16, v0", f"v_ashrrev_i32 v{t1}, 31, v{t1}",
             f"v_bfi_b32 v{vPa}, v{t1}, v{vPa}, v{t0}", f"v_lshlrev_b32 v{vPa}, 7, v{vPa}"]
        return sc, v

    def fft_loads(self):
        return [f"s_add_u32 m0, s{sT0}, {IMG}",
                I(f"buffer_load_dwordx4 v{fx}, {srd(sWS)}, s{sT1} offen sc1 lds", tag="x1"),
                I(f"buffer_load_dwordx4 v{fx}, {srd(sWS)}, s{sT1} offen offset:1024 sc1 lds", tag="x1"),
                I(f"buffer_load_dwordx4 {vr(fWraw,4)}, v{vL16}, {srd(sWS)}, s{sT2} offen sc1", tag="wtre"),
                f"s_add_u32 s{sT2}, s{sT2}, 4096",
                I(f"buffer_load_dwordx4 {vr(fWraw+4,4)}, v{vL16}, {srd(sWS)}, s{sT2} offen sc1", tag="wtim")]

    def fft_body(self, hook):
        p = self.p
        Dr, Di, tm, Br, Bi, Bn = fDr, fDi, fTm, fBr, fBi, fBn

        def af(part, t, ks, pre="b"):
            if pre == "a" and self.headB:
                return (vAX if ks == 0 else vAB + 48) + 4 * (2 * part + t)
            return fA + 4 * (4 * part + 2 * t + ks)

        def mf(d, a, b, first):
            return f"v_mfma_f32_16x16x32_bf16 {vr(d,4)}, {a}, {b}, {'0' if first else vr(d,4)}"

        def cmul(c, s, sign, neg=None):
            q = []
            n1 = " neg_lo:[0,0,1] neg_hi:[0,0,1]"
            for j in range(0, 8, 2):
                q += [f"v_pk_mul_f32 {vr(tm+8+j,2)}, {vr(Dr+j,2)}, {vr(s+j,2)}",
                      f"v_pk_mul_f32 {vr(tm+j,2)}, {vr(Di+j,2)}, {vr(s+j,2)}"]
            for j in range(0, 8, 2):
                q += [f"v_pk_fma_f32 {vr(tm+j,2)}, {vr(Dr+j,2)}, {vr(c+j,2)}, {vr(tm+j,2)}" + (n1 if sign > 0 else ""),
                      f"v_pk_fma_f32 {vr(tm+8+j,2)}, {vr(Di+j,2)}, {vr(c+j,2)}, {vr(tm+8+j,2)}" + ("" if sign > 0 else n1)]
            for j in range(4):
                q += [f"v_cvt_pk_bf16_f32 v{Br+j}, v{tm+2*j}, v{tm+2*j+1}"]
            for j in range(4):
                q += [f"v_cvt_pk_bf16_f32 v{Bi+j}, v{tm+8+2*j}, v{tm+8+2*j+1}"]
            return q

        def negs(src):
            return [f"v_xor_b32 v{Bn+j}, 0x80008000, v{src+j}" for j in range(4)]

        def big(sgn, pre):
            Sre, Sim = (aS64, aN64) if sgn < 0 else (aN64, aS64)
            n = 0
            for ks in range(2):
                for part in range(2):
                    for t in range(2):
                        a = vr(af(part, t, ks, pre), 4)
                        first = ks == 0 and part == 0
                        bre = (aC64 if part == 0 else Sre) + 4 * ks
                        bim = (Sim if part == 0 else aC64) + 4 * ks
                        p.e(I(mf(Dr + 4 * t, a, vr(bre, 4, "a"), first), ds=f"{pre}{part}{t}{ks}"))
                        p.e(mf(Di + 4 * t, a, vr(bim, 4, "a"), first))
                        n += 1
                        if n in (2, 4, 6):
                            hook(f"{pre}m{n}", 64)

        hook("h0", 0)
        p.e(W(vm="x1"))
        p.e("s_barrier")
        for ks in range(2):
            for part in range(2):
                for t in range(2):
                    for h in range(2):
                        p.e(I(f"ds_read_b64_tr_b16 {vr(af(part,t,ks,'a')+2*h,2)}, v{fa0+2*t+part} "
                              f"offset:{2048*(2*ks+h)}", tag=f"a{part}{t}{ks}"))
        hook("s1", 100)
        big(-1, "a")
        hook("s1e", 0)
        unp = [W(vm=["wtre", "wtim"])]
        for j in range(4):
            unp += [f"v_lshlrev_b32 v{fWr+2*j}, 16, v{fWraw+j}", f"v_and_b32 v{fWr+2*j+1}, 0xffff0000, v{fWraw+j}"]
        if self.o["fmix"] != 1:
            p.e(unp)
        p.e(cmul(vT1c, vT1s, -1))
        hook("tw1", 200)
        ng = negs(Br)
        for t in range(2):
            p.e(mf(Dr + 4 * t, vr(aC32 + 4 * t, 4, "a"), vr(Br, 4), True))
            p.e(ng[2 * t:2 * t + 2])
        for t in range(2):
            p.e(mf(Di + 4 * t, vr(aC32 + 4 * t, 4, "a"), vr(Bi, 4), True))
        for t in range(2):
            p.e(mf(Dr + 4 * t, vr(vS32 + 4 * t, 4), vr(Bi, 4), False))
        for t in range(2):
            p.e(mf(Di + 4 * t, vr(vS32 + 4 * t, 4), vr(Bn, 4), False))
        hook("s3", 128)
        if self.o["fmix"] == 1:
            p.e(unp)
        for j in range(4):
            p.e([f"v_lshlrev_b32 v{fWi+2*j}, 16, v{fWraw+4+j}", f"v_and_b32 v{fWi+2*j+1}, 0xffff0000, v{fWraw+4+j}"])
        p.e(cmul(fWr, fWi, +1))
        hook("wm", 140)
        ng = negs(Bi)
        for t in range(2):
            p.e(mf(Dr + 4 * t, vr(Br, 4), vr(aC32 + 4 * t, 4, "a"), True))
            p.e(ng[2 * t:2 * t + 2])
        for t in range(2):
            p.e(mf(Di + 4 * t, vr(Br, 4), vr(vS32 + 4 * t, 4), True))
        for t in range(2):
            p.e(mf(Dr + 4 * t, vr(Bn, 4), vr(vS32 + 4 * t, 4), False))
        for t in range(2):
            p.e(mf(Di + 4 * t, vr(Bi, 4), vr(aC32 + 4 * t, 4, "a"), False))
        hook("s3i", 128)
        p.e([f"s_lshr_b32 s{sT0}, s{sWv}, 1", f"s_lshl_b32 s{sT0}, s{sT0}, 10", f"s_and_b32 s{sT2}, s{sWv}, 1",
             f"s_lshl3_add_u32 s{sT0}, s{sT2}, s{sT0}", f"v_add_u32 v{fa0}, s{sT0}, v{vL16}"])
        p.e(cmul(vT2c, vT2s, +1))
        for part in range(2):
            for t in range(2):
                p.e(I(f"ds_write_b64 v{fa0}, {vr((Br if part == 0 else Bi)+2*t,2)} offset:{EXC + (4*part+2*t)*1024}", tag="exw"))
        hook("h2", 0)
        p.e(W(ds="exw"))
        p.e("s_barrier")
        for ks in range(2):
            for part in range(2):
                for t in range(2):
                    p.e(I(f"ds_read_b128 {vr(af(part,t,ks),4)}, v{vL16} offset:{EXC + (4*part+2*t+ks)*1024}", tag=f"b{part}{t}{ks}"))
        hook("tw2", 300)
        big(+1, "b")
        hook("s1i", 64)
        for j in range(4):
            p.e(f"v_cvt_pk_bf16_f32 v{Br+j}, v{Dr+2*j}, v{Dr+2*j+1}")
        p.e(I(f"buffer_store_dwordx4 {vr(Br,4)}, v{vL16}, {srd(sWS)}, s{sZs} offen sc1", tag="zre"))
        for j in range(4):
            p.e(f"v_cvt_pk_bf16_f32 v{Bi+j}, v{Di+2*j}, v{Di+2*j+1}")
        p.e(I(f"buffer_store_dwordx4 {vr(Bi,4)}, v{fim}, {srd(sWS)}, s{sZs} offen sc1", tag="zim"))

    def epi(self, acc, tmp):
        q = []
        for k in range(4):
            g0, g1, u0, u1 = acc + 2 * k, acc + 2 * k + 1, acc + 8 + 2 * k, acc + 9 + 2 * k
            t0, t1 = tmp + 2 * (k & 1), tmp + 2 * (k & 1) + 1
            q += [f"v_mul_f32 v{t0}, s{sK}, v{g0}", f"v_mul_f32 v{t1}, s{sK}, v{g1}",
                  f"v_exp_f32 v{t0}, v{t0}", f"v_exp_f32 v{t1}, v{t1}",
                  f"v_mul_f32 v{u0}, v{g0}, v{u0}", f"v_mul_f32 v{u1}, v{g1}, v{u1}",
                  f"v_add_f32 v{t0}, 1.0, v{t0}", f"v_add_f32 v{t1}, 1.0, v{t1}",
                  f"v_rcp_f32 v{t0}, v{t0}", f"v_rcp_f32 v{t1}, v{t1}",
                  f"v_mul_f32 v{u0}, v{u0}, v{t0}", f"v_mul_f32 v{u1}, v{u1}, v{t1}",
                  f"v_cvt_pk_bf16_f32 v{acc+k}, v{u0}, v{u1}"]
        return q

    def epi_pk(self, acc, tmp, dst=None):
        q = []
        for k in range(4):
            q.append(f"v_pk_mul_f32 {vr(tmp+2*k,2)}, {vr(acc+2*k,2)}, s[{sK}:{sK+1}]")
        for j in range(8):
            q.append(f"v_exp_f32 v{tmp+j}, v{tmp+j}")
        for k in range(4):
            q.append(f"v_pk_mul_f32 {vr(acc+8+2*k,2)}, {vr(acc+2*k,2)}, {vr(acc+8+2*k,2)}")
        for k in range(4):
            q.append(f"v_pk_add_f32 {vr(tmp+2*k,2)}, {vr(tmp+2*k,2)}, 1.0 op_sel_hi:[1,0]")
        for j in range(8):
            q.append(f"v_rcp_f32 v{tmp+j}, v{tmp+j}")
        for k in range(4):
            q.append(f"v_pk_mul_f32 {vr(acc+8+2*k,2)}, {vr(acc+8+2*k,2)}, {vr(tmp+2*k,2)}")
        for k in range(4):
            q.append(f"v_cvt_pk_bf16_f32 v{(dst or acc)+k}, v{acc+8+2*k}, v{acc+9+2*k}")
        return q

    def hstore(self, base, n, tag, src=None):
        i, tl = n >> 1, n & 1
        return I(f"buffer_store_dwordx4 {vr(src or base+16*n,4)}, v{vL16}, {srd(sWS)}, s{sHst1 if i else sHst} offen offset:{tl*1024} sc1", tag=tag)

    def rec_step(self, st, ks, dst):
        P = st + 8 * (ks & 1)
        Q = st + 8 * ((ks + 1) & 1)
        c = st + 16 + (0 if ks & 1 else 1)
        q = [f"v_fmac_f32 v{P+j}, v{c}, v{Q+j}" for j in range(8)]
        return q + self.rec_pack(st, ks, dst)

    def rec_pack(self, st, ks, dst):
        P = st + 8 * (ks & 1)
        n = "-" if ks & 2 else ""
        return [f"v_cvt_pk_bf16_f32 v{dst+j}, {n}v{P+2*j}, {n}v{P+2*j+1}" for j in range(4)]

    def put_scalars(self, G, groups, g0, g1):
        g = g0
        for x in groups:
            while G.s[g] or g in G.light:
                g += 1
            G.s[g] += x if isinstance(x, list) else [x]
        assert g < g1, (g, g1)
        return g

    def build(self):
        o, p = self.o, self.p
        e = p.e
        VM2[0] = o["vm2"]
        e(self.stamp("start"))
        e([x.replace("s_memtime", "s_memrealtime") for x in self.stamp("rt0")])
        e([f"s_load_dwordx2 s[{sX}:{sX+1}], s[0:1], 0", f"s_load_dwordx2 s[{sG}:{sG+1}], s[0:1], 32",
           f"s_load_dwordx2 s[{sU}:{sU+1}], s[0:1], 40"])
        e([f"v_lshrrev_b32 v2, 6, v0", f"v_mul_u32_u24 v3, 40, v0", f"v_and_b32 v0, 63, v0"])
        sj, sidx, sr = sT0, sT1, sT2
        e([f"s_lshr_b32 s{sidx}, s2, 3", f"v_readfirstlane_b32 s{sWv}, v2", f"s_and_b32 s{sj}, s2, 7",
           f"s_cmp_lt_u32 s{sidx}, 28", "s_cbranch_scc1 L_main"])
        if o["pf"]:
            p.raw(f"s_getpc_b64 s[{sT2}:{sT3}]")
            p.raw("L_pc:")
            p.raw(f"s_and_b32 s{sCnt}, s{sidx}, 3")
            p.raw(f"s_mul_i32 s{sCnt}, s{sCnt}, 10240")
            p.raw(f"v_add_u32 v3, s{sCnt}, v3")
            p.raw(f"v_min_u32 v3, L_codeend-L_pc-4, v3")
            p.raw(f"global_load_dword v255, v3, s[{sT2}:{sT3}]")
        p.raw("L_main:")
        e([f"s_load_dwordx4 s[{sWr}:{sWr+3}], s[0:1], 8", f"s_load_dwordx4 s[{sD}:{sD+3}], s[0:1], 48",
           f"s_load_dwordx4 s[{sDBG}:{sDBG+3}], s[0:1], 72", f"s_load_dwordx2 s[{sO}:{sO+1}], s[0:1], 64"])
        sRot1 = sHst
        norot = False
        val = sum(int(c_) << (4 * k) for k, c_ in enumerate(o["rot1"][1:]))
        t0, t1, t2, t3, t4, t5, t6 = range(vAB + 8, vAB + 15)
        e([f"s_and_b32 s{sr}, s{sidx}, 3", f"s_lshr_b32 s{sCt}, s{sidx}, 2", f"s_lshr_b32 s{sT3}, s{sj}, 1",
           f"s_xor_b32 s{sRot1}, s{sr}, s{sCt}", f"s_and_b32 s{sRot1}, s{sRot1}, 1"])
        if o["rot1"][0] == "q":
            e([f"s_xor_b32 s{sCnt}, s{sj}, s{sT3}",
               f"s_and_b32 s{sCnt}, s{sCnt}, 1", f"s_lshl1_add_u32 s{sRot1}, s{sCnt}, s{sRot1}", f"s_lshl_b32 s{sRot1}, s{sRot1}, 2",
               f"s_lshr_b32 s{sRot1}, {val:#x}, s{sRot1}", f"s_and_b32 s{sRot1}, s{sRot1}, 7"])
        else:
            e([f"s_and_b32 s{sCnt}, s{sj}, 1", f"s_lshl1_add_u32 s{sRot1}, s{sRot1}, s{sCnt}", f"s_lshl1_add_u32 s{sRot1}, s{sRot1}, s{sT3}",
               f"s_cmp_ge_u32 s{sRot1}, 7", f"s_cselect_b32 s{sCnt}, 7, 0", f"s_sub_u32 s{sRot1}, s{sRot1}, s{sCnt}"])
        e([f"s_lshl_b32 s{sXo}, s{sRot1}, 7",
           f"s_lshl2_add_u32 s{sCnt}, s{sT3}, s{sWv}", f"s_lshl4_add_u32 s{sCnt}, s{sCnt}, s{sr}", f"s_mulk_i32 s{sCnt}, {8*896}",
           f"v_lshrrev_b32 v{t0}, 3, v0", f"v_mul_u32_u24 v{t0}, 896, v{t0}", f"v_add_u32 v{t0}, s{sCnt}, v{t0}",
           f"v_and_b32 v{t1}, 7, v0", f"v_lshrrev_b32 v{t2}, 4, v0", f"v_xor_b32 v{t1}, v{t1}, v{t2}",
           f"v_lshl_add_u32 v{vXd}, v{t1}, 4, v{t0}", f"v_xor_b32 v{vXd+1}, 64, v{vXd}",
           f"v_add_u32 v{vXd+2}, {2*(28672-1024)}, v{vXd}", f"v_add_u32 v{vXd+3}, {3*(28672-1024)}, v{vXd+1}",
           f"v_add_u32 v{vXd+1}, {28672-1024}, v{vXd+1}",
           f"s_lshl_b32 s{sXm}, s{sWv}, 14", f"s_add_u32 s{sXm}, s{sXm}, {XS}",
           f"s_mov_b32 s{sX+2}, {2048*896}", f"s_mov_b32 s{sX+3}, 0x20000", f"s_mov_b32 m0, s{sXm}"])

        e([f"s_and_b32 s{sC}, s{sj}, 1", f"s_mulk_i32 s{sC}, 7", f"s_add_u32 s{sC}, s{sC}, s{sCt}",
           f"v_lshrrev_b32 v{t4}, 5, v0", f"v_and_b32 v{t6}, 3, v0", f"v_lshl_add_u32 v{t2}, v{t4}, 2, v{t6}",
           f"v_lshlrev_b32 v{t2}, 4, v{t2}", f"v_bfe_u32 v{t3}, v0, 2, 3",
           f"v_lshl_add_u32 v{t0}, s{sWv}, 3, v{t3}", f"v_mul_u32_u24 v{t0}, 3584, v{t0}",
           f"s_lshl_b32 s{sCnt}, s{sC}, 8", f"v_add3_u32 v{vWd}, v{t0}, v{t2}, s{sCnt}",
           f"v_add_u32 v{vWd+1}, {32*3584}, v{vWd}",
           f"s_and_b32 s{sCnt}, s{sWv}, 2", f"s_mul_i32 s{sWm}, s{sWv}, 1056", f"s_lshl_b32 s{sCnt}, s{sCnt}, 10", f"s_add_u32 s{sWm}, s{sWm}, s{sCnt}",
           f"s_mul_i32 s{sWo}, s{sRot1}, {64*3584}",
           f"s_mov_b32 s{sG+2}, {448*3584}", f"s_mov_b32 s{sG+3}, 0x20000", f"s_mov_b32 s{sU+2}, {448*3584+2080}", f"s_mov_b32 s{sU+3}, 0x20000"])

        def chunk_tab(i):
            return [f"s_add_u32 s{sRot2}, s{sRot2 if i > 1 else sRot1}, 1", [f"s_cmp_eq_u32 s{sRot2}, 7", f"s_cselect_b32 s{sRot2}, 0, s{sRot2}"],
                    f"s_lshl_b32 s{sXo+i}, s{sRot2}, 7", f"s_mul_i32 s{sWo+i}, s{sRot2}, {64*3584}"]
        e([f"s_cmp_ge_u32 s{sidx}, 28", "s_cbranch_scc1 L_auxh"])
        snap_aux0 = p.snapshot()
        p.raw("s_waitcnt lgkmcnt(0)")
        e(self.stamp("kargs"))
        if o["tlb"]:
            e([f"s_load_dword s{sHc}, s[{sG}:{sG+1}], 0", f"s_load_dword s{sFs}, s[{sU}:{sU+1}], 0"])

        self.m0 = (sXm, 0)

        def xdma(j):
            r = [dict(t=f"buffer_load_dwordx4 v{vXd+i}, {srd(sX)}, s{sXo+j} offen offset:{1024*i} lds", tag=f"x{j}",
                      m0=(sXm, 4096 * (j % 4)), ds=None) for i in range(4)]
            if norot:
                r[0]["pre"] = [f"s_movk_i32 s{sXo+j}, {128*j}"]
            return r

        def wdma(i):
            r = []
            for kk in range(2):
                for mat in range(2):
                    r.append(dict(t=f"buffer_load_dwordx4 v{vWd+kk}, {srd(sG if mat == 0 else sU)}, s{sWo+i%7} offen offset:{2080*mat} lds",
                                  tag="w0a" if (i, kk) == (0, 0) else f"w{i}", m0=(sWm, WSLOT * (i % NWS) + 8320 * kk), ds=None))
            if i >= 7:
                r[0]["pre"] = [f"s_addk_i32 s{sWo+i%7}, 128"]
            elif norot:
                r[0]["pre"] = [f"s_mov_b32 s{sWo+i}, {i*64*3584}"]
            return r

        def ddma(sg):
            return [dict(t=f"buffer_load_dwordx4 v{vDd+i}, {srd(sD)}, s{sDo+sg} offen offset:{1024*i} lds", tag=f"d{sg}",
                         m0=(sXm, 4096 * ((sg + 3) % 4)), ds=None) for i in range(4)]

        def dma_items(d):
            s = []
            if d["m0"] and self.m0 != d["m0"]:
                self.m0 = d["m0"]
                s.append(f"s_add_u32 m0, s{d['m0'][0]}, {d['m0'][1]}")
            return s + list(d.get("pre", [])), [I(d["t"], tag=d["tag"], ds=d["ds"])]

        L, NB = 3, 4
        n1 = o["n1"]
        dks = [d if d < n1 else n1 + (d - n1) // 2 for d in range(14)]
        if o["fgap"]:
            dks[0] = 1
        K0 = [16 * ks + 4 * sum(1 for x in dks if x < ks) for ks in range(15)]
        Dg = [K0[dks[d]] + 16 + 4 * (d - dks.index(dks[d])) for d in range(14)]
        NA, NBg = 280, 224
        U = [K0[f // 4] + 4 * (f % 4) for f in range(56)] + [NA + 4 * f for f in range(56)]
        bar_gap = {j: U[8 * j - L] - 1 for j in range(1, 14)}
        TE = 16 * NA
        TB = TE + 860
        TF = TB + 16 * NBg
        TG = TF + 2400

        def tg(g):
            return 16 * g if g < NA else TB + 16 * (g - NA)

        def T(spec):
            n = int(spec[1:])
            return {"A": 16 * n, "E": TE + n, "B": TB + 16 * n, "F": TF + n, "G": TG + 16 * n}[spec[0]]
        q1 = []
        for i in range(14):
            ear = -1 if i <= o["LA"] - 1 else (0 if i == o["LA"] else tg(bar_gap[i - o["LA"]] + 1))
            for d in (xdma(i) if i < 7 else []) + wdma(i):
                d["ear"] = ear
                d["dl"] = tg(bar_gap[i]) if i else 0
                if d["tag"][0] == "x" and dks[2 * i] < 2 * i:
                    d["dl"] = 16 * (K0[dks[2 * i] - 1] + 12)
                q1.append(d)

        def issue_pro(n):
            for _ in range(n):
                assert q1[0]["ear"] < 0
                s, m = dma_items(q1.pop(0))
                e(s)
                e(m)
        issue_pro(4)
        e([f"s_sub_u32 s{sU}, s{sU}, 2080", f"s_subb_u32 s{sU+1}, s{sU+1}, 0"])
        e(self.stamp("i4"))
        issue_pro(4)
        e(self.stamp("i8"))
        if "w4" in o["only"]:
            e([W(vm="x0")] + self.stamp("w4") + [W(vm="w0a")] + self.stamp("w6") + [W(vm="w0")] + self.stamp("w8"))
        e(chunk_tab(1))
        issue_pro(o["npre"] - 8)
        e(f"s_mov_b64 s[{sWS}:{sWS+1}], s[{sDBG+2}:{sDBG+3}]")
        p.raw("s_branch L_main2")
        snap_main = p.snapshot()
        p.restore(snap_aux0)
        self.aux1(sj, sidx)
        p.raw("s_branch L_aux")
        snap_aux = p.snapshot()
        p.restore(snap_main)
        p.raw("L_main2:")
        e(f"s_lshl2_add_u32 s{sRg}, s{sT3}, s{sr}")
        fg = o["fgap"]
        e(chunk_tab(2))
        tabq = [x for i in range(3, 7) for x in chunk_tab(i)]
        if not fg:
            e(tabq)
        e([f"s_and_b32 s{sRt}, s{sj}, 1", f"s_lshl1_add_u32 s{sRt}, s{sRg}, s{sRt}", f"s_mul_i32 s{sKd}, s{sj}, 28", f"s_add_u32 s{sKd}, s{sKd}, s{sidx}",
           f"s_movk_i32 s{s7f}, 0x7f", f"v_lshlrev_b32 v{vL16}, 4, v0"])
        sq = sr
        tq_, tn = vAB + 15, t0
        e([f"v_and_b32 v{tn}, 15, v0", f"v_lshrrev_b32 v{tq_}, 4, v0", f"v_bfe_u32 v{t1}, v0, 1, 3",
           f"v_xor_b32 v{t1}, v{t1}, v{tq_}", f"v_lshlrev_b32 v{t1}, 4, v{t1}",
           f"v_lshl_add_u32 v{t1}, v{tn}, 7, v{t1}", f"v_xor_b32 v{t5}, 64, v{t1}",
           f"s_xor_b32 s{sT0}, s{sWv}, 1", f"s_lshl_b32 s{sT0}, s{sT0}, 14", f"s_add_u32 s{sT0}, s{sT0}, {XS}",
           f"v_add_u32 v{vXr}, s{sXm}, v{t1}", f"v_add_u32 v{vXr+1}, s{sXm}, v{t5}",
           f"v_add_u32 v{vXr+2}, s{sT0}, v{t1}", f"v_add_u32 v{vXr+3}, s{sT0}, v{t5}"])
        e([f"v_bfe_u32 v{t1}, v0, 4, 1", f"v_bfe_u32 v{t5}, v0, 2, 2",
           f"s_and_b32 s{sT0}, s{sWv}, 1", f"s_lshl_b32 s{sT1}, s{sT0}, 9",
           f"v_mul_u32_u24 v{vTr}, 1056, v{t1}", f"v_mul_u32_u24 v{vTr+1}, 4160, v{t4}", f"v_add3_u32 v{vTr}, v{vTr}, v{vTr+1}, s{sT1}",
           f"v_lshl_add_u32 v{vTr}, v{t5}, 6, v{vTr}", f"v_lshl_add_u32 v{vTr}, v{t6}, 3, v{vTr}",
           f"v_add_u32 v{vTr+1}, {4*WSLOT}, v{vTr}"])
        st, fbuf = vAB + 32, [vAB, vAB + 4, vE, vE + 4]
        vA2 = vAB + 16
        ph, stp, tq, y0, y1, y2, cj = range(vAB + 52, vAB + 59)
        pk = vT1c
        fq = [f"s_lshl1_add_u32 s{sCnt}, s{sC}, s{sT0}", f"v_lshl_add_u32 v{y0}, s{sCnt}, 4, v{tn}",
              f"v_lshrrev_b32 v{y1}, 1, v{y0}", f"v_and_b32 v{y2}, 1, v{y0}",
              f"v_cmp_eq_u32 vcc, 1, v{y0}", f"v_mov_b32 v{tq}, 224", f"s_mov_b32 s{sCnt}, {STEP448}",
              f"v_cndmask_b32 v{y1}, v{y1}, v{tq}, vcc", f"v_cndmask_b32 v{y2}, v{y2}, 0, vcc",
              f"v_mul_lo_u32 v{stp}, v{y1}, s{sCnt}", f"s_and_b32 s{sCnt}, s{sWv}, 2", f"s_lshl2_add_u32 s{sT0}, s{sCnt}, s{sT0}",
              f"s_add_u32 s{sCnt}, s{sCnt}, s{sRot1}", f"s_lshl_b32 s{sCnt}, s{sCnt}, 6",
              f"v_lshl_add_u32 v{y1}, v{tq_}, 3, s{sCnt}",
              f"v_mul_lo_u32 v{ph}, v{y1}, v{stp}", f"v_lshl_add_u32 v{ph}, v{y2}, 30, v{ph}",
              f"v_lshlrev_b32 v{y1}, 5, v{stp}", f"v_add_u32 v{vFr}, {FS}, v{vL16}", f"v_lshl_add_u32 v{y2}, s{sT0}, 10, v{vFr}"]
        fq += self.trig(st + 16, y1, tq) + self.trig(cj, stp, y0)
        for ks in range(2):
            fq += self.trig(st + 8 * ks, ph, tq) + [f"v_add_u32 v{y0}, v{ph}, v{stp}"] + self.trig(st + 8 * ks + 1, y0, y0)
            if ks == 0:
                fq += [f"v_add_u32 v{ph}, v{ph}, v{y1}", f"v_add_f32 v{cj}, v{cj}, v{cj}",
                       f"v_mul_f32 v{st+17}, -2.0, v{st+16}", f"v_add_f32 v{st+16}, v{st+16}, v{st+16}"]
        fq += [f"v_fma_f32 v{st+8*ks+j}, v{cj}, v{st+8*ks+j-1}, -v{st+8*ks+j-2}" for j in range(2, 8) for ks in range(2)]
        fq += self.rec_pack(st, 0, pk) + self.rec_pack(st, 1, pk + 4) + self.rec_step(st, 2, pk + 8) + self.rec_step(st, 3, pk + 12)

        def fwrite(p):
            p.e(f"s_cmp_ge_u32 s{sWv}, 2")
            for k in range(4):
                if k == 3:
                    p.e("s_cbranch_scc1 L_f2")
                p.e(I(f"ds_write_b128 v{y2}, {vr(pk+4*k,4)} offset:{2048*k}", tag="fw"))
            p.raw("L_f2:")
            p.raw("s_waitcnt lgkmcnt(0)")
            p.ds_done = p.ds_n
        e(fq[:o["fpro"]] if fg else fq)
        fq = fq[o["fpro"]:]
        L0 = [f"s_mov_b32 s{sSc}, {fbits(2.0/(2048*448))}",
              [f"s_cmp_eq_u32 s{sKd}, 0", f"s_cselect_b32 s{sSc}, {fbits(1.0/(2048*448))}, s{sSc}"],
              f"s_lshl_b32 s{sPl}, s{sKd}, 31", f"s_or_b32 s{sSc}, s{sSc}, s{sPl}",
              f"s_mov_b32 s{sWS+2}, {WSEND}", f"s_mov_b32 s{sWS+3}, 0x20000",
              f"s_lshl3_add_u32 s{sPl}, s{sRt}, s{sCt}", f"s_lshl2_add_u32 s{sPl}, s{sPl}, s{sWv}", f"s_lshl_b32 s{sPl}, s{sPl}, 11",
              f"s_xor_b32 s{sPs}, s{sPl}, 0x10000", f"s_add_u32 s{sPl}, s{sPl}, {PP}", f"s_add_u32 s{sPs}, s{sPs}, {PP}"]
        L0 += [f"v_mov_b32 v{vT+j}, -1" for j in range(4)]
        vTd, vTv, sTd = vT + 4, vT + 5, 78
        if o["tD0"] or o["tD1"] or o["tV"]:
            L0 += [f"v_min_u32 v{vTv}, 6, v0", f"v_lshlrev_b32 v{vTd}, 7, v{vTv}",
                   f"s_mul_i32 s{sTd}, s{sRg}, 7", f"s_add_u32 s{sHc}, s{sTd}, s{sCt}", f"s_lshl2_add_u32 s{sHc}, s{sHc}, s{sWv}",
                   f"s_and_b32 s{sFs}, s{sHc}, 0x1c0", f"s_add_u32 s{sHc}, s{sHc}, s{sFs}",
                   f"s_sub_u32 s{sFs}, s{sC}, s{sCt}", f"s_lshl_b32 s{sFs}, s{sFs}, 7", f"s_add_u32 s{sHc}, s{sHc}, s{sFs}",
                   f"s_mulk_i32 s{sHc}, 896", f"v_add_u32 v{vTd}, s{sHc}, v{vTd}",
                   f"s_mul_i32 s{sFs}, s{sWv}, 7", f"s_lshl2_add_u32 s{sTd}, s{sTd}, s{sFs}", f"v_add_u32 v{vTv}, s{sTd}, v{vTv}",
                   f"v_mul_u32_u24 v{vTv}, 3584, v{vTv}", f"v_lshl_add_u32 v{vTv}, s{sC}, 8, v{vTv}",
                   f"s_mov_b32 s{sTd}, 57344", f"s_mov_b32 s{sD+2}, {1792*896}", f"s_mov_b32 s{sD+3}, 0x20000"]
        lq = []
        for s, n in ((sD, 1792 * 896), (sDBG, 256)):
            lq += [f"s_mov_b32 s{s+2}, {n}", f"s_mov_b32 s{s+3}, 0x20000"]
        lq += [f"v_lshlrev_b32 v{vY}, 5, v{t1}", f"v_xor_b32 v{vY+1}, v{vY}, v{t2}",
               f"v_mul_u32_u24 v{vDd}, 896, v{t3}", f"s_lshl_b32 s{sCnt}, s{sCt}, 7", f"v_add3_u32 v{vDd}, v{vDd}, v{vY+1}, s{sCnt}"]
        for i in range(1, 4):
            lq += [f"v_add_u32 v{vDd+i}, {i*(8*896-1024)}, v{vDd}"]
        lq += [f"v_lshl_add_u32 v{vY}, v{t3}, 6, v{vY}", f"v_lshl_add_u32 v{vY}, v{t6}, 3, v{vY}",
               f"v_lshl_add_u32 v{vY+1}, v{t3}, 12, v{vY+1}",
               f"s_lshr_b32 s{sT1}, s{sWv}, 1", f"s_and_b32 s{sT0}, s{sWv}, 1", f"s_lshl4_add_u32 s{sT0}, s{sT1}, s{sT0}",
               f"s_lshl_b32 s{sT0}, s{sT0}, 5", f"v_lshl_add_u32 v{vDr}, v{t4}, 10, v{vY}", f"v_xor_b32 v{vDr}, s{sT0}, v{vDr}",
               f"v_xor_b32 v{vDr+1}, 32, v{vDr}", f"v_xor_b32 v{vDr+2}, 0x200, v{vDr}", f"v_xor_b32 v{vDr+3}, 0x220, v{vDr}",
               f"s_lshl_b32 s{sCnt}, s{sT1}, 15", f"s_add_u32 s{sCnt}, s{sCnt}, {XS}"]
        lq += [f"v_add_u32 v{vDr+k}, s{sCnt}, v{vDr+k}" for k in range(4)]
        lq += [f"v_bfe_u32 v{t5}, v0, 1, 1", f"v_lshlrev_b32 v{vSg}, 31, v{t5}", f"v_or_b32 v{vSg}, 1.0, v{vSg}",
               f"v_and_b32 v{vPg}, 31, v0", f"v_lshlrev_b32 v{vPg}, 3, v{vPg}"]
        lq += [f"s_lshl_b32 s{sCnt}, s{sq}, 4",
               f"v_xor_b32 v{t5}, s{sCnt}, v{t2}", f"v_lshl_add_u32 v{vX1g}, v{t3}, 14, v{t5}",
               f"s_lshl_b32 s{sCnt}, s{sC}, 8", f"s_add_u32 s{sCnt}, s{sCnt}, s{sRg}", f"s_lshl2_add_u32 s{sCnt}, s{sCnt}, s{sWv}",
               f"s_lshl_b32 s{sCnt}, s{sCnt}, 7", f"s_add_u32 s{sCnt}, s{sCnt}, {X1T}", f"v_add_u32 v{vX1g}, s{sCnt}, v{vX1g}"]
        lq += [f"s_and_b32 s{sT0}, s{sRt}, 1", f"s_lshl1_add_u32 s{sPe}, s{sT0}, s{sT1}",
               f"s_mul_i32 s{sT0}, s{sT0}, 28", f"s_add_u32 s{sT1}, s{sT1}, s{sT0}", f"s_mul_i32 s{sT1}, s{sT1}, 28672",
               f"s_and_b32 s{sT2}, s{sWv}, 1", f"s_add_u32 s{sT0}, s{sCt}, s{sT2}" if o["own"] else f"s_mov_b32 s{sT0}, s{sT2}"]
        for sg in range(7):
            if sg:
                lq += [f"s_add_u32 s{sT0}, s{sT0}, 2"]
            lq += [f"s_sub_u32 s{sCnt}, s{sT0}, 7", f"s_min_u32 s{sT0}, s{sT0}, s{sCnt}", f"s_mul_i32 s{sCnt}, s{sT0}, 114688"]
            if sg == 4:
                lq += [f"s_add_u32 s{sT1}, s{sT1}, 57344"]
            lq += [f"s_add_u32 s{sDo+sg}, s{sCnt}, s{sT1}"]
        lq += [f"s_mul_i32 s{sCnt}, s{sT2}, 57344", f"s_add_u32 s{sDo+3}, s{sDo+3}, s{sCnt}", f"s_movk_i32 s{s8k}, 8192"]
        L1, lq = lq, []
        assert HH % 2048 == 0
        lq += [f"s_lshr_b32 s{sT0}, s{sWv}, 1", f"s_lshl1_add_u32 s{sT0}, s{sRg}, s{sT0}", f"s_mul_i32 s{sHst}, s{sT0}, 229376",
               f"s_and_b32 s{sT1}, s{sWv}, 1", f"s_lshl1_add_u32 s{sT2}, s{sC}, s{sT1}", f"s_lshl_b32 s{sCnt}, s{sT2}, 11",
               f"s_add_u32 s{sHst}, s{sHst}, s{sCnt}", f"s_mul_i32 s{sT1}, s{sT1}, 57344",
               f"s_sub_u32 s{sHst1}, s{sHst}, s{sT1}", f"s_add_u32 s{sHst}, s{sHst}, s{sT1}",
               f"s_add_u32 s{sHst}, s{sHst}, {HH}", f"s_add_u32 s{sHst1}, s{sHst1}, {HH+57344}",
               f"s_and_b32 s{sT1}, s{sRt}, 1", f"s_lshl1_add_u32 s{sT0}, s{sT0}, s{sT1}", f"s_and_b32 s{sT1}, s{sWv}, 1",
               f"s_lshl1_add_u32 s{sT0}, s{sT0}, s{sT1}", f"s_lshl_b32 s{sT0}, s{sT0}, 7", f"s_lshl2_add_u32 s{sT0}, s{sCt}, s{sT0}",
               f"s_add_u32 s{sFh}, s{sT0}, {FH}",

               f"s_mov_b32 s{sK}, 0xbfb8aa3b", f"s_mov_b32 s{sK+1}, 0xbfb8aa3b",
               f"s_lshl4_add_u32 s{sFx}, s{sC}, s{sRg}", f"s_lshl2_add_u32 s{sFx}, s{sFx}, s{sWv}", f"s_lshl_b32 s{sFx}, s{sFx}, 7"]
        sD2h, sD2z = sX + 2, sX + 3
        L2, lq = lq, [f"s_mov_b32 s{sO+2}, {2048*896}", f"s_mov_b32 s{sO+3}, 0x20000"]
        lq += [f"s_and_b32 s{sT0}, s{sRt}, 1", f"s_xor_b32 s{sT0}, s{sT0}, 1", f"s_mul_i32 s{sT0}, s{sT0}, 7", f"s_add_u32 s{sT0}, s{sT0}, s{sCt}",
               f"s_lshl4_add_u32 s{sT0}, s{sT0}, s{sRg}", f"s_lshl2_add_u32 s{sT0}, s{sT0}, s{sWv}"]
        sc, vv = self.poll1_addr(vT + 14, vT + 15, sT1, sT2, sT0)
        L3 = lq + sc + vv + self.fft_setup_regs()
        cq = self.fft_consts(vAB + 32)
        lq2 = self.fft_scalars() + self.fft_addr2()
        vH, vPh, sFp = vXd, vXd + 2, sXo + 2
        lq2 += [f"s_and_b32 s{sCnt}, s{sWv}, 1", f"s_mul_i32 s{sCnt}, s{sCnt}, 28", f"s_add_u32 s{sCnt}, s{sCnt}, s{sPe}",
                f"s_and_b32 s{sFp}, s{sPe}, 2", f"s_mul_i32 s{sFp}, s{sFp}, 6", f"s_add_u32 s{sCnt}, s{sCnt}, s{sFp}",
                f"s_lshl_b32 s{sCnt}, s{sCnt}, 11",
                f"s_add_u32 s{sCnt}, s{sCnt}, {HH}", f"v_add_u32 v{vH}, s{sCnt}, v{vL16}",
                f"s_mul_i32 s{sFp}, s{sRt}, 229376", f"v_add_u32 v{vH+1}, s{sFp}, v{vH}",
                f"s_xor_b32 s{sCnt}, s{sRt}, 1", f"s_mul_i32 s{sFp}, s{sCnt}, 229376", f"v_add_u32 v{vH}, s{sFp}, v{vH}",
                f"v_and_b32 v{vPh}, 7, v0", f"v_min_u32 v{vPh}, 6, v{vPh}", f"v_bfe_u32 v{vPh+1}, v0, 3, 1",
                f"v_lshl_add_u32 v{vPh}, v{vPh+1}, 7, v{vPh}", f"v_lshlrev_b32 v{vPh}, 2, v{vPh}",
                f"s_lshl3_add_u32 s{sFp}, s{sRg}, s{sPe}",
                f"s_lshl_b32 s{sFp}, s{sFp}, 7", f"s_add_u32 s{sFp}, s{sFp}, {FH}"]
        def padwalk(p):
            p.raw("s_mov_b64 exec, 0")
            for w_ in range(3):
                p.raw(f"s_cmp_eq_u32 s{sWv}, {w_}")
                p.raw(f"s_cbranch_scc1 L_pad{w_}")
            p.raw("s_branch L_pad3")
            p.raw("L_padret:")
            p.raw("s_mov_b64 exec, -1")
        if o["pads"] and o["padat"] < 0:
            padwalk(p)
        if o["align"]:
            p.raw("s_branch L_body")
            if not o["slowend"]:
                p.raw("@SLOW@")
            p.raw(".p2align 12")
            if o["bodyoff"]:
                p.raw(f".fill {o['bodyoff']//4}, 4, 0xbf800000")
            p.raw("L_body:")
        if not fg:
            e(fwrite)
        issue_pro(o["npro"] - o["npre"])
        ncp = o["cpro"]
        for L_ in (L0, L1, L2):
            assert not (fg and ncp and L_ is not L0)
            k = min(ncp, len(L_))
            e(L_[:k])
            del L_[:k]
            ncp -= k
        for d in q1:
            d["ear"] = max(d["ear"], 0)
        e(self.stamp("pro"))

        def m16(d, a, b, first):
            return f"v_mfma_f32_16x16x32_bf16 {vr(d,4)}, {a}, {b}, {'0' if first else vr(d,4)}"

        def wread(f):
            i, kk, mat, tl = f // 8, (f // 4) % 2, (f // 2) % 2, f % 2
            slot = i % NWS
            base, off = (vTr, slot * WSLOT) if slot < 4 else (vTr + 1, 0)
            off += kk * 8320 + mat * 2080 + tl * 32
            b = vWF + 4 * (f % NB)
            return [I(f"ds_read_b64_tr_b16 {vr(b+2*h,2)}, v{base} offset:{off+256*h}", tag=f"wf{f}") for h in range(2)]

        def xread(ks, j):
            return I(f"ds_read_b128 {vr(aX+16*ks+4*j,4,'a')}, v{vXr+(j&2)+ks%2} offset:{4096*((ks//2)%4)+2048*(j&1)}", tag=f"xr{ks}_{j>>1}",
                     vm=(f"x{ks//2}" if j == 0 and ks % 2 == 0 else None))

        def fread(d, s_):
            return I(f"ds_read_b128 {vr(fbuf[2*(d&1)+s_],4)}, v{vFr} offset:{2048*(d%7)+1024*s_}", tag=f"fr{d}")
        mf = []
        for ph_ in range(2):
            for ks in range(14):
                for ff in range(4):
                    for j in (range(3, -1, -1) if o["snake"] and ff & 1 else range(4)):
                        mf.append(m16(vAA + 16 * j + 4 * ff, vr(vWF + 4 * ff, 4), vr(aX + 16 * ks + 4 * j, 4, "a"), ks == 0))
                for dd in range(14):
                    if ph_ == 0 and dks[dd] == ks:
                        for s_ in range(2):
                            for jj in range(2):
                                mf.append(m16((vAX if dd < 7 else vA2) + 8 * s_ + 4 * jj, vr(aX + 16 * dd + 4 * jj, 4, "a"),
                                              vr(fbuf[2 * (dd & 1) + s_], 4), dd % 7 == 0))
        G = Gaps(mf, 2)
        G.light = set(bar_gap.values())
        hs = o["hstart"]
        if hs:
            G.light.add(hs)
            G.s[hs] += [W(vm="w0"), "s_barrier"]
        G.quiet = {g + k for g in G.light for k in (-1, 1) if g > 150}
        barW = {}
        for f in range(L, 112):
            G.m[hs + f - 3 if hs and 4 <= f <= 6 else U[f - L]] += wread(f)

        def pair(lo, its):
            while lo in G.light or G.m[lo]:
                lo += 1
            G.m[lo] += its
            return lo + 1
        for ks in range(1, 14):
            lo = K0[ks - 1] + (4 if ks % 2 == 0 else 0)
            if dks[ks] == ks:
                lo = pair(lo, [xread(ks, 0), xread(ks, 1)]) + 3
            pair(lo, [xread(ks, 2), xread(ks, 3)])
        for d in range(0 if fg else 1, 14):
            k_ = dks[d]
            if k_ < d:
                pair(K0[k_ - 1] + 12 + 5 * (d - dks.index(k_)), [xread(d, 0), xread(d, 1)])
            pair(K0[k_] + 4 * (d - dks.index(k_)) + (4 if fg and k_ == 1 else 0), [fread(d, 0), fread(d, 1)])
        for f in range(1, 112):
            tags = [f"wf{f}"]
            if f < 56 and f % 4 == 0:
                tags += [f"xr{f//4}_1", f"xr{f//4}_0"]
            g = U[f] - 1
            if g in bar_gap.values():
                j = [k for k, v in bar_gap.items() if v == g][0]
                barW[j] = W(vm=[f"w{j}"] + ([f"x{j}"] if j < 7 else []), ds=tags)
                G.s[g] += [barW[j], "s_barrier"]
            else:
                G.s[g].append(W(ds=tags))
        for ks in set(dks):
            G.s[K0[ks] + 15].append(W(ds=[t_ for d in range(14) if dks[d] == ks for t_ in (f"fr{d}", f"xr{d}_0")]))

        hring = 16
        hreg = [vAB + 4 * n for n in (0, 1, 2, 3, 4, 5, 6, 7, 8, 9, 12, 13, 14, 15, 10, 11)]
        sHt = [sX, sX + 1, sX + 2, sX + 3, sDBG, sDBG + 1, sDBG + 2]
        assert not o["nlds"] and not o["warm"]
        xs = o["xsp"]
        sq2 = [(0, s_) for s_ in range(7)] + [(1, s_) for s_ in range(xs)] + [(0, s_) for s_ in range(7, 14)] + \
              [(1, s_) for s_ in range(xs, 14)]
        seq = [(ph_, step, jj) for ph_, step in sq2 for jj in range(2)]
        npre_h = min(hring, 14 + 2 * xs)
        lset = [n for n in range(npre_h, 56) if seq[n][1] < 7][:o["nlds"]]
        dset = [n for n in range(56) if n not in lset]
        hr = {n: hreg[m % hring] for m, n in enumerate(dset)}
        hr.update({n: vWF + 4 * (m % 4) for m, n in enumerate(lset)})
        extra = {}
        if o["hpre"]:
            assert xs >= 1 and not lset
            for k, n in enumerate(n_ for n_ in range(16, 56) if seq[n_][1] < 7):
                extra[n] = ("tw1", "h2", "h2")[k // 4]
                hr[n] = (vT1c, vT2c, vWF)[k // 4] + 4 * (k % 4)
            if xs == 7:
                for k in range(4, 12):
                    extra[16 + k] = ("", "wm", "h2")[k // 4]
                    hr[16 + k] = (0, vWF, vT2c)[k // 4] + 4 * (k % 4)
            if o["own"]:
                for n in range(56):
                    if seq[n][:2] == (1, 7):
                        extra[n] = "s3i"
                        hr[n] = -(248 + 4 * seq[n][2])
            dset = [n for n in range(56) if n not in extra]
            hr.update({n: hreg[m % hring] for m, n in enumerate(dset)})
        tailb = list(range(56 - o["nlast"], 56))
        for k, n in enumerate(tailb):
            hr[n] = -(64 + 4 * k)

        def hv(n):
            return vr(abs(hr[n]), 4, "a" if hr[n] < 0 else "v")
        accp, acco, acca = vAA, vAA + 32, vAB + 48
        zreg = [vWF, vWF + 4, vWF + 8, vWF + 12, vAX, vAX + 4]
        own_fi = [vAX + 4 * a for a in range(4)] + [vS32 + 24, vS32 + 28, vDd] + [vT1c + 4 * a for a in range(7)]
        par_fi = [224 + 4 * a for a in range(8)] + [112 + 4 * a for a in range(6)]
        vZr, vZd, vZr1, vGa, vG, vOG = vY, vY + 1, vXr, vXr + 1, vXr + 2, vWd
        vOo, vRw, vRr, vHl, vR3, vPz, vOw, vOr, vW1, vR1 = vFr, vSg, vX1g, vDr + 2, vXd + 3, vPa, vPw, vTr, vDr, vDr + 1
        mf, hu, hl_ = [], {}, {}
        split = {0: o["splp"], 1: o["splo"]}
        gU = {}

        def g2m(n, ks_):
            ph_, step, jj = seq[n]
            hu.setdefault(n, len(mf))
            for k in ks_:
                mf.append(m16((acco if ph_ else accp) + 16 * (k >> 1) + 8 * jj + 4 * (k & 1), vr(16 * step + 4 * k, 4, "a"), hv(n), step == 0))
            hl_[n] = len(mf) - 1
        for n, (ph_, step, jj) in enumerate(seq):
            if step < 14 - split[ph_]:
                g2m(n, (1, 0, 3, 2) if o["snake"] and jj == 0 else (2, 3, 0, 1))
                gU[ph_] = len(mf) - 2
                continue
            g2m(n, (2, 3))
            if step == 13 and jj == 1:
                gU[ph_] = len(mf)
                for n2 in range(n + 1 - 2 * split[ph_], n + 1):
                    g2m(n2, (0, 1))
        hfree = {n: (hl_[dset[m - hring]] if m >= hring else -1) for m, n in enumerate(dset)}
        hfree.update({n: -1 for n in extra})
        hfree.update({n: max(hl_[m] for m in range(56) if seq[m][1] == -hr[n] // 16) for n in tailb})
        NH = 224
        for ks in range(14):
            for jj in range(2):
                for tt in range(2):
                    a_ = vr(par_fi[ks], 4, "a") if tt else vr(own_fi[ks], 4)
                    mf.append(m16(acca + 8 * jj + 4 * tt, a_, vr(8 * ks + 4 * jj, 4, "a"), ks == 0))
        H = Gaps(mf, o["budG"])
        LZ = 10
        gP = 8 * (14 + xs)
        gbp, gbo = gU[0] + o["rbp"], o["gbo"]
        zbar = {}
        acc_ = 0
        for n_ in [int(x) for x in o["zst"].split(",")]:
            zbar[NH + 4 * acc_ - LZ - 1] = acc_ + n_ - 1
            acc_ += n_
        assert acc_ == 14
        gb = NH - LZ - 1
        H.light = {gbp, gbo} | set(zbar)
        H.quiet = {g + k for g in H.light for k in (-1, 1)}

        evs = {"E": [], "F": []}
        busy = {"G1": set(G.light), "G": set(H.light)}

        def at(spec, items, post=False):
            ph_, n = spec[0], int(spec[1:])
            if ph_ in "EF":
                evs[ph_].append((n, items, post))
                return
            S_, key = (H, "G") if ph_ == "G" else (G, "G1")
            g = n + (NA if ph_ == "B" else 0)
            while g in S_.light or S_.used(g) > 1 - o["vm2"]:
                g += 1
            for x in items:
                if isinstance(x, I) and x.t and x.vm:
                    S_.s[g].append(W(vm=x.vm))
                    x.vm = None
                (S_.s if kind(txt(x)) == "S" else S_.m)[g].append(x)
            busy[key].add(g)

        def chk(spec, name, tag, load, reg, after=()):
            f_ = self.poll_check(name, tag, load, reg)
            ph_, n = spec[0], int(spec[1:])
            if ph_ in "EF":
                evs[ph_].append((n, [f_] + list(after), True))
                return
            S_, key = (H, "G") if ph_ == "G" else (G, "G1")
            g = n + (NA if ph_ == "B" else 0)
            assert g not in S_.light and g - 2 not in S_.light, spec
            S_.s[g - 2].append(W(vm=tag))
            S_.v[g - 2].append(f"v_cmp_ne_u32 vcc, 1, v{reg}")
            S_.s[g].append(Lab(f"s_cbranch_vccnz L_slow_{name}", f"L_back_{name}:"))
            S_.m[g] += list(after)
        for a_, b_ in (("go_ld", "go_chk"), ("go_chk", "x1flag"), ("pclr", "x1flag"), ("poll1", "chk1"), ("chk1", "pollA"), ("pollA", "chkA"),
                       ("chkA", "pollW"), ("pollW", "chkW"), ("hAflag", "hBflag"), ("chkA", "pollB"), ("pollB", "chkB"), ("chkB", "pollZ"),
                       ("pollZ", "chkZ")):
            assert T(o[a_]) < T(o[b_]), (a_, b_)
        stop1 = o["stop"] == "gemm1"
        gol = f"buffer_load_dword v{vP}, v{vPg}, {srd(sDBG)}, 0 offen sc1"
        at(o["go_ld"], [I(gol, tag="go")])
        chk(o["go_chk"], "go", "go", gol, vP)
        for hf in range(2):
            at(o["pclr"][0] + str(int(o["pclr"][1:]) + (64 if o["pclr"][0] == "E" else 4) * hf),
               [I(f"buffer_store_dwordx4 {vr(vT,4)}, v{vL16}, {srd(sWS)}, s{sPs} offen offset:{1024*hf} sc1", tag="pcl")])
        if o["tV"]:
            at(o["tV"], [f"buffer_load_dword v{vT+6}, v{vTv}, {srd(sG)}, 0 offen offset:128"])
            at(o["tV"], [f"buffer_load_dword v{vT+6}, v{vTv}, {srd(sU)}, 0 offen offset:{128+2080}"])
        if o["tD0"]:
            at(o["tD0"], [f"buffer_load_dword v{vT+6}, v{vTd}, {srd(sD)}, 0 offen"])
        if o["tD1"]:
            at(o["tD1"], [f"buffer_load_dword v{vT+6}, v{vTd}, {srd(sD)}, s{sTd} offen"])
            assert T(o["tD1"]) < TB
        x1st = [I(f"buffer_store_dwordx4 {vr(vAX+8,4)}, v{vX1g}, {srd(sWS)}, 0 offen sc1", tag="x1s"),
                I(f"buffer_store_dwordx4 {vr(vAX+12,4)}, v{vX1g}, {srd(sWS)}, s{s8k} offen sc1", tag="x1s")]
        if o["x1st"]:
            assert o["x1st"][0] in "AE" and T(o["x1st"]) + 64 < T(o["x1flag"])
            for hf in range(2):
                at(o["x1st"][0] + str(int(o["x1st"][1:]) + (4 if o["x1st"][0] == "A" else 64) * hf), [x1st[hf]])
        at(o["x1flag"], [self.flag1(sFx, ["x1s", "pcl"])])
        pl = f"buffer_load_dword v{vPr}, v{vPa}, {srd(sWS)}, 0 offen sc1"
        pw = f"buffer_load_dword v{vPr}, v{vPw}, {srd(sWS)}, 0 offen sc1"
        pollH = f"buffer_load_dword v{vPr}, v{vPh}, {srd(sWS)}, s{sFp} offen sc1"
        pollZ = f"buffer_load_dword v{vPr}, v{vPz}, {srd(sWS)}, 0 offen sc1"
        at(o["poll1"], [I(pl, tag="p1")])
        at(o["pollW"], [I(pw, tag="pW")])
        at(o["pollA"], [I(pollH, tag="pA")])
        at(o["hAflag"], [self.flag1(sFh, "hA")])
        if not stop1:
            chk(o["chk1"], "p1", "p1", pl, vPr)
            chk(o["chkW"], "pW", "pW", pw, vPr)
            chk(o["chkA"], "pA", "pA", pollH, vPr)
        wl = [[f"v_writelane_b32 v{vFm}, s{x}, 1"] if o["warm"] else [] for x in (sD2h, sD2z)]
        assert o["hBflag"][0] == "F" or not o["warm"]
        at(o["hBflag"], wl[0] + [f"s_add_u32 s{sFh}, s{sFh}, {128*128}", self.flag1(sFh, "hB")] + wl[1])
        at(o["pollB"], [f"s_add_u32 s{sFp}, s{sFp}, {128*128}"] + self.spoll_load(sFp))
        if o["chkB"][0] == "G":
            self.poll_check("pB", None, pollH, vPr)
            g = int(o["chkB"][1:])
            red = [f"s_and_b64 s[56:57], s[56:57], s[{k}:{k+1}]" for k in (58, 60, 64, 66, 68)] + [f"s_and_b32 s56, s56, s{k}" for k in (62, 70)]
            H.s[g - 3] += [Lgkm0()] + red[:2]
            H.s[g - 2] += red[2:5]
            H.post[g - 1] += red[5:7]
            H.s[g] += ["s_and_b32 s56, s56, s57", Lab("s_cbranch_scc0 L_slow_pB", "L_back_pB:")]
            busy["G"] |= {g - 3, g - 2, g - 1}
        else:
            at(o["chkB"], [self.spoll_check("pB", pollH, vPr)], True)
        sFz, sZo, sZm, sZp, sU_, sI_, sGo = sXo + 3, sXo + 4, sXo + 5, sXo + 6, sSw, s8k, 78
        at(o["zflag"], [self.flag1(sFz, ["zre", "zim"])])
        at(o["pollZ"], [I(pollZ, tag="pZ")])
        chk(o["chkZ"], "pZ", "pZ", pollZ, vPr)
        gld = [f"buffer_load_dword v{vG+jj}, v{vGa}, {srd(sWS)}, s{sGo} offen offset:{64*jj} sc1" for jj in range(2)]
        for jj in range(2):
            at(f"G{gb-3+jj}", [I(gld[jj], tag="g")])
        pld = [f"buffer_load_dwordx4 {vr(accp+4*hf,4)}, v{vL16}, {srd(sWS)}, s{sPl} offen offset:{1024*hf} sc1" for hf in range(2)]
        for hf in range(2):
            at("G" + str(int(o["pld"][1:]) + 2 * hf), [I(pld[hf], tag="pl")])

        busy["G"] |= {gU[0] + 2 + 2 * j for j in range(4)} | {gbo - o["rwo"] + o["rws"] * j for j in range(4)}
        class BG:
            pass
        bg = BG()
        bg.q2 = [d for sg in range(7) for d in ddma(sg)]
        bg.nd = bg.ntr = bg.nz = 0
        bg.t_issue, bg.t_read = {}, {}
        bg.vis, bg.free = set(), set()
        bg.nxt = 0
        bg.lds_ok = False
        bg.s1e = o["fft_head"] != "B"
        t_ownA = min(tg(g) for g in bar_gap.values() if tg(g) > T(o["hAflag"]) + 64)
        bg.marks = {""}
        bg.hp = list(range(56))
        bg.log = []
        self.hc = self.hseg = None
        wd_at = [T(x) for x in o["wd_at"].split(",")]
        fl = self.fft_loads()
        q3 = [dict(t=fl[1].t, tag="x1", m0=(sT0, IMG), ds=None), dict(t=fl[2].t, tag="x1", m0=(sT0, IMG), ds=None),
              dict(t=fl[3].t, tag="wtre", m0=None, ds=None), dict(t=fl[5].t, tag="wtim", m0=None, ds=None, pre=[fl[4]])]
        for d in q3:
            d["ear"] = T(o["chk1"] if d["tag"] == "x1" else o["chkW"]) + 1
        for d in q3:
            d["dl"] = tg(bar_gap[13]) - (1 if d["tag"] == "x1" and o["fft_head"] == "B" else -1)
        q1 += q3
        q1.sort(key=lambda d: d["dl"])

        def dtr(n):
            step, k, t_ = n // 8, (n // 2) % 4, n % 2
            off = 16384 * (step & 1) + 4096 * ((step // 2 + 3) % 4) + 2048 * t_
            return I(f"ds_read_b64_tr_b16 {vr(16*step+4*k+2*t_,2,'a')}, v{vDr+k} offset:{off}", tag=f"dr{step//2}")

        def bg_barrier(j):
            t = tg(bar_gap[j])
            for sg, ti in bg.t_issue.items():
                if sg not in bg.vis and (t >= ti + o["wd_delay"] or j == 13):
                    bg.vis.add(sg)
                    barW[j].vm.append(f"d{sg}")
            for sg, tr in bg.t_read.items():
                if sg not in bg.free and t >= tr + 48:
                    bg.free.add(sg)
                    barW[j].ds.append(f"dr{sg}")

        def bg_tr(t):
            n = bg.ntr
            if n >= 112 or n // 16 not in bg.vis or t < TB + 256 * (n // 8 + 1) - 16:
                return []
            bg.ntr += 1
            if n % 16 == 15:
                bg.t_read[n // 16] = t
            return [dtr(n)]

        def hload(n):
            ph_, step, jj = seq[n]
            pre, so = [], sHt[step % 7]
            if step >= 7:
                if self.hc != step:
                    self.hc = step
                    pre.append(f"s_add_u32 s{sHc}, s{so}, 114688")
                so = sHc
            return dict(t=f"buffer_load_dwordx4 {hv(n)}, v{vH+ph_}, {srd(sWS)}, s{so} offen offset:{1024*jj} sc1", tag=f"h{n}",
                        m0=None, ds=None, pre=pre)

        def bg_dma(t, per, g2=None):
            if t < bg.nxt:
                return [], []
            d = None
            sg = bg.nd // 4
            wd_ok = bg.q2 and t >= wd_at[sg] and (t > tg(bar_gap[sg + 4]) if sg < 4 else sg - 4 in bg.free)
            if wd_ok and sg >= 4:
                pass
            elif any(t >= x["ear"] for x in q1):
                d = [x for x in q1 if t >= x["ear"]][0]
                q1.remove(d)
                wd_ok = False
            if wd_ok:
                d = bg.q2.pop(0)
                bg.nd += 1
                if bg.nd % 4 == 0:
                    bg.t_issue[sg] = t
            if d is None:
                for n in bg.hp:
                    stp_ = seq[n][1]
                    ok_ = t > T(o["chkA"] if stp_ < 7 else o["chkB"])
                    if o["own"] and stp_ == 0:
                        ok_ = t > max(t_ownA, T(o["ownA"]))
                    if o["own"] and stp_ == 7:
                        ok_ = "tw2" in bg.marks
                    if ok_ and ((hfree[n] < 0 and (not vAB + 48 <= hr[n] < vAB + 64 or bg.s1e) and extra.get(n, "") in bg.marks)
                                or (g2 is not None and g2 >= hfree[n])):
                        assert g2 is None or g2 < hu[n] - (16 if n in lset else 2), ("h late", n, g2)
                        d = hload(n)
                        bg.hp.remove(n)
                        break
            if d is None and bg.nz < 14 and t > T(o["chkZ"]):
                i = bg.nz
                if i >= len(lset) or g2 >= hu[lset[i]]:
                    d = dict(t=f"buffer_load_dwordx4 v{vZd}, {srd(sWS)}, s{sZo} offen sc1 lds", tag=f"z{i}",
                             m0=(sZm, 1024 * i), ds=None, pre=[f"s_mov_b32 s{sZo}, {131072*i}"])
                    assert all(g2 < zb for zb, last in zbar.items() if last >= i), (i, g2)
                    bg.nz += 1
                    per = o["perZ"]
            if d is None:
                return [], []
            bg.log.append((d["tag"], t))
            bg.nxt = max(bg.nxt + per, t + (per // 2 if t < TE else per - o["catch"]))
            return dma_items(d)

        def run_gaps(S_, key, g0, g1, tf, per):
            lastd = g0 - 1
            for g in range(g0, g1):
                if S_ is G and g in bar_gap.values():
                    bg_barrier([k for k, v in bar_gap.items() if v == g][0])
                if g in busy[key]:
                    continue
                if S_.used(g) < 2 - o["vm2"]:
                    s_, m_ = bg_dma(tf(g), per, g if S_ is H else None)
                    if m_:
                        for x in s_:
                            cand = [k for k in range(g - (1 if "m0" in x else 0), lastd, -1) if not S_.s[k]]
                            S_.s[cand[0] if cand else (g - 1 if g - 1 > lastd and g - 1 not in S_.light and S_.used(g - 1) < 2 else g)].append(x)
                        lastd = g
                    S_.m[g] += m_
                while S_ is G and S_.used(g) < 2 and (S_.m[g] or g % 4 == 2 or (g % 4 == 3 and kind(txt((S_.m[g - 1] or ["s_nop"])[0])) == "G")):
                    m_ = bg_tr(tf(g))
                    if not m_:
                        break
                    S_.m[g] += m_

        def merge(items, ph_, T0, per):
            out, t, prevk = [], 0, "M"
            ev = sorted(evs[ph_], key=lambda x: x[0])
            for x in items:
                if isinstance(x, Mark):
                    self.log(f"  est {ph_}{t} {x.name}")
                    if x.name in o["only"].split(",") or x.name in ("epiA", "epi"):
                        out += self.stamp(x.name)
                    bg.marks.add(x.name)
                    if x.name == "h2" and o["own"]:
                        out.append(W(vm="hB"))
                    if x.name == "s1e":
                        bg.s1e = True
                    if x.name in ("bE", "tw2"):
                        bg.lds_ok = True
                    if x.name == "epi" and stop1:
                        out.append("s_branch L_fin")
                    continue
                out.append(x)
                tx = txt(x)
                k = kind(tx)
                if k == "M":
                    t += 16 if prevk == "M" or not (ph_ == "F" and o["fmix"]) else 8
                elif not tx:
                    t += 4 if x.ds == "all" or x.vm else 50
                elif tx == "s_barrier":
                    t += 30
                else:
                    t += 4 * cost(tx) + (28 if prevk == "M" and tx.startswith("v_pk") else 0)
                if k == "G":
                    bg.nxt = max(bg.nxt, T0 + t) + o["perS"]
                prevk = k
                if tx.startswith("s_cmp") or k == "D" or (not tx) or tx == "s_barrier":
                    continue
                while ev and ev[0][0] <= t:
                    its = ev.pop(0)[1]
                    out += its
                    t += 16
                    if isinstance(its[0], I) and "x4" in its[0].t:
                        bg.nxt = max(bg.nxt, T0 + t) + o["perS"]
                s_, m_ = bg_dma(T0 + t + (24 if k == "M" else 0), per) if k == "M" or not (ph_ == "F" and o["fonm"]) else ([], [])
                out += s_ + m_
                t += 0 if k == "M" or not m_ else 4 * (len(s_) + len(m_)) + 8
            for x in ev:
                out += x[1]
            self.log(f"  est {ph_}{t} end")
            return out
        run_gaps(G, "G1", 0, o["gap0"], tg, o["perA0"])
        run_gaps(G, "G1", o["gap0"], NA, tg, o["perA"])
        rec = Rec()
        for n in range(4):
            sp = o["hAst"].split(",")[n]
            if sp == "-":
                rec.e(self.epi_pk(vAA + 16 * n, vE))
                rec.e(self.hstore(vAA, n, "hA"))
            else:
                rec.e(self.epi_pk(vAA + 16 * n, vE, vAB + 48 + 4 * n))
                at(sp, [self.hstore(vAA, n, "hA", vAB + 48 + 4 * n)])
                assert T(sp) + 64 < T(o["hAflag"])
        rec.mark("epiA")
        codeE = merge(rec.items, "E", TE, o["perE"])
        bg.nxt = min(bg.nxt, TB + 64)
        run_gaps(G, "G1", NA, NA + NBg, tg, o["perB"])
        assert not q1 and len(bg.vis) == 7, (bg.vis, bg.nd, bg.ntr)
        if o["fft_head"] == "B":
            barW[13].vm.append("x1")
        rec = Rec()
        while bg.ntr < 112:
            rec.e(bg_tr(TF))
        for n in range(4):
            rec.e(self.epi_pk(vAA + 16 * n, vE))
            if n == 0 and (o["nlds"] or o["fft_head"] != "B"):
                rec.e([W(vm="x1", ds="all"), "s_barrier"])
                rec.mark("bE")
            rec.e(self.hstore(vAA, n, "hB"))
            rec.mark(f"e{n}")
        rec.mark("epi")
        self.p = rec
        self.headB = o["fft_head"] == "B"
        self.fft_body(lambda name, dt: rec.mark(name))
        self.headB = False
        self.p = p
        names = [x.name if isinstance(x, Mark) else None for x in rec.items]
        i0, i1 = names.index("h0"), names.index("s1")
        rds = [x for x in rec.items[i0:i1] if isinstance(x, I) and x.t.startswith("ds_read")]
        if o["fft_head"] == "B":
            rec.items = rec.items[:i0] + rec.items[i1:]
            g = bar_gap[13] + 2
            for x in rds:
                while G.used(g) >= 2:
                    g += 1
                G.m[g].append(x)
        else:
            i2 = names.index(o["fft_head"])
            rec.items = rec.items[:i2 + 1] + rds + rec.items[i2 + 1:i0] + rec.items[i1:]
        if o["fmix"]:
            assert o["fft_head"] == "B"
            it_ = rec.items
            names = [x.name if isinstance(x, Mark) else None for x in it_]
            ix = {n_: names.index(n_) for n_ in ("e0", "e1", "e2", "e3", "epi", "s1", "s1e", "tw1", "s3", "wm", "s3i")}

            def weave(tile, stage):
                ms = [x for x in stage if not isinstance(x, Mark) and kind(txt(x)) == "M"]
                pre_ = [x for x in stage if not isinstance(x, Mark) and kind(txt(x)) != "M"]
                out_ = list(pre_)
                nt = 0
                for x in tile:
                    if isinstance(x, str) and x.split()[0] in TRANS:
                        if ms and (len(stage) > 14 or nt % 8 < 4):
                            out_.append(ms.pop(0))
                        nt += 1
                    out_.append(x)
                assert not ms
                return out_
            if o["fmix"] == 2:
                st1 = [x for x in it_[ix["s1"] + 1:ix["s1e"]] if not isinstance(x, Mark)]
                rec.items = it_[:ix["e1"] + 1] + weave(it_[ix["e1"] + 1:ix["e2"] + 1], st1[:8]) + \
                    weave(it_[ix["e2"] + 1:ix["epi"] + 1], st1[8:]) + it_[ix["s1e"]:]
            else:
              rec.items = it_[:ix["e0"] + 1] + weave(it_[ix["e0"] + 1:ix["e1"] + 1], it_[ix["s1"] + 1:ix["s1e"]]) + it_[ix["s1e"]:ix["tw1"] + 1] + \
                weave(it_[ix["e1"] + 1:ix["e2"] + 1], it_[ix["tw1"] + 1:ix["s3"]]) + it_[ix["s3"]:ix["wm"] + 1] + \
                weave(it_[ix["e2"] + 1:ix["epi"] + 1], it_[ix["wm"] + 1:ix["s3i"]]) + it_[ix["s3i"]:]
        codeF = merge(rec.items, "F", TF, o["perF"])
        bg.nxt = min(bg.nxt, TG + 64)
        run_gaps(H, "G", 0, H.n, lambda g: TG + 16 * g, o["perG"])
        assert not bg.hp and bg.nz == 14

        def nm(t):
            return f"A{t//16}" if t < TE else f"E{t-TE}" if t < TB else f"B{(t-TB)//16}" if t < TF else f"F{t-TF}" if t < TG else f"G{(t-TG)//16}"
        self.log("dma: " + " ".join(f"{a_}@{nm(t)}" for a_, t in bg.log))
        self.log(f"wd read done {[nm(v) for v in bg.t_read.values()]}")

        G.s[NA - 1] += self.stamp("A")
        ge = 0
        if fg:
            g, left = G.pour(tabq, 0, min(t for a_, t in bg.log if a_ == "x3") // 16 - 1, budget=o["budE"])
            assert len(left) <= 12
            tabq = left
            ge, left = G.pour(fq, 0, bar_gap[1], budget=o["budF"])
            assert not left, len(left)
            G.post[ge].append(fwrite)
            ge, left = G.pour(tabq, ge + 1, min(t for a_, t in bg.log if a_ == "x4") // 16 - 1, budget=o["budE"])
            assert not left
        kw_ = dict(sonly=True) if o["sonly"] else dict(budget=o["budL"])
        g0_, left = G.pour(L0, ge, min([T(o[k]) // 16 - 1 for k in ("pclr", "tV", "tD0", "tD1") if o[k]] + [ge + 60]), **kw_)
        assert not left
        g, left = G.pour(L1, g0_, min(T(o["go_ld"]), wd_at[0], 16 * Dg[13]) // 16 - 4, **kw_)
        assert not left
        gl_, left = G.pour(L2 + ([] if o["sonly"] else L3), g, NA - 1, **kw_)
        self.log(f"setup lists end at {g0_} {g} {gl_}")
        assert not left
        ge = max(ge, o["gapS"])
        ge, cleft = G.pour(cq[:100], ge, max(ge, o["gapE"]), budget=o["budE"], window=40)
        if not cleft:
            ge, cleft = G.pour(cq[100:], max(ge, g0_ + 1), max(ge, o["gapE"]), budget=o["budE"], window=40)
        else:
            cleft += cq[100:]
        dpp = "quad_perm:[2,3,0,1] row_mask:0xf bank_mask:0xf"
        xq = ["s_mov_b32 vcc_lo, 0x33333333", "s_mov_b32 vcc_hi, 0x33333333"]
        xq += [f"v_fmac_f32 v{vA2+j}, v{vSg}, v{vAX+j}" for j in range(16)]
        xq += [f"v_cvt_pk_bf16_f32 v{vAX+j}, v{vA2+2*j}, v{vA2+2*j+1}" for j in range(8)]
        xq += [f"v_permlane16_swap_b32 v{vAX+j}, v{vAX+4+j}" for j in range(4)]
        xq += [f"v_cndmask_b32_dpp v{vAX+8+j}, v{vAX+4+j}, v{vAX+j}, vcc {dpp}" for j in range(4)]
        xq += [] if o["x1st"] else [x1st[0]]
        xq += ["s_not_b64 vcc, vcc"]
        xq += [f"v_cndmask_b32_dpp v{vAX+12+j}, v{vAX+j}, v{vAX+4+j}, vcc {dpp}" for j in range(4)]
        xq += [] if o["x1st"] else [x1st[1]]
        g, left = G.pour(xq, Dg[13] + 6, NA - 1, window=2)
        self.log(f"dft ends at gap {Dg[13]+3}, x1 stored at gap {g}, mid setup done at {ge}")
        g_, left2 = G.pour([f"v_min_u32 v{vFm}, 1, v0", f"v_lshlrev_b32 v{vFm}, 30, v{vFm}"], T(o["go_chk"]) // 16 + 1, min(NA, T(o["x1flag"]) // 16))
        assert not left2
        assert not left and not (Dg[13] + 6 <= T(o["go_chk"]) / 16 <= g + 2) and 16 * g < T(o["x1st"] or o["x1flag"])
        g, left = G.pour(L3 if o["sonly"] else [], max(gl_, o["gapL"]), NA + (T(o["poll1"]) - TB) // 16 - 1, sonly=True)
        assert not left
        lim = NA + (min(T(o["chk1"]), T(o["pollA"])) - TB) // 16 - 4
        g2_, left = G.pour(lq2, max(g, o["gapM"]), lim, **(dict(sonly=True) if o["budM"] == 2 else dict(budget=o["budM"])))
        assert not left
        th8 = min(min(t for a_, t in bg.log if a_[0] == "h" and hr[int(a_[1:])] >= vAB + 32), tg(bar_gap[13]) if o["fft_head"] == "B" else TF)
        g, left = G.pour(cleft, max(ge, o["gapC"]), NA + (th8 - TB) // 16 - 1, window=40)
        self.log(f"{len(cleft)} constant ops left after the early gaps")
        self.log(f"fft constants end at gap {g}, left {len(left)}")
        assert not left
        x0, x1 = vT + 14, vT + 15
        tq_ = [f"s_lshl_b32 s{sHt[0]}, s{sCt}, 12" if o["own"] else f"s_mov_b32 s{sHt[0]}, 0"]
        for k in range(1, 7):
            tq_ += [f"s_add_u32 s{sHt[k]}, s{sHt[k-1]}, 4096", f"s_sub_u32 s{sHc}, s{sHt[k]}, {7*4096}", f"s_min_u32 s{sHt[k]}, s{sHt[k]}, s{sHc}"]
        g, left = G.pour(tq_, NA, NA + (min(t for a_, t in bg.log if a_[0] == "h") - TB) // 16 - 4, sonly=True)
        assert not left and tg(g2_) < min(t for a_, t in bg.log if a_[0] == "h")
        g, left = G.pour([f"s_add_u32 s{sHst}, s{sHst}, 114688", f"s_add_u32 s{sHst1}, s{sHst1}, 114688"], NA + 200, NA + NBg, sonly=True)
        assert not left
        bq = [
              f"s_and_b32 s{sI_}, s{sWv}, 1", f"s_lshr_b32 s{sU_}, s{sWv}, 1",
              f"s_mul_i32 s{sZm}, s{sWv}, 14336", f"s_add_u32 s{sZm}, s{sZm}, {ZS}",
              f"v_add_u32 v{vRw}, s{sXm}, v{vL16}",
              f"s_xor_b32 s{sFs}, s{sWv}, 2", f"s_lshl_b32 s{sFs}, s{sFs}, 14", f"s_add_u32 s{sFs}, s{sFs}, {XS}", f"v_add_u32 v{vRr}, s{sFs}, v{vL16}",
              f"s_xor_b32 s{sFs}, s{sWv}, 1", f"s_lshl_b32 s{sFs}, s{sFs}, 14", f"s_add_u32 s{sFs}, s{sFs}, {XS}", f"v_add_u32 v{vR3}, s{sFs}, v{vL16}",
              f"s_lshl_b32 s{sFz}, s{sWv}, 8", f"s_add_u32 s{sFs}, s{sFz}, s{sRt}", f"s_add_u32 s{sFz}, s{sFz}, s{sKd}",
              f"s_lshl_b32 s{sFz}, s{sFz}, 5", f"s_add_u32 s{sFz}, s{sFz}, {FZ}",
              f"s_lshl_b32 s{sFs}, s{sFs}, 7", f"s_add_u32 s{sFs}, s{sFs}, {ZT}", f"v_add_u32 v{vZd}, s{sFs}, v{vZd}",
              f"s_lshl_b32 s{sFs}, s{sI_}, 9", f"s_add_u32 s{sFs}, s{sFs}, {ZS}", f"v_lshrrev_b32 v{x0}, 5, v0",
              f"v_mul_u32_u24 v{x1}, 14336, v{x0}", f"v_add3_u32 v{vZr}, v{vZr}, v{x1}, s{sFs}", f"v_xor_b32 v{vZr1}, 32, v{vZr}",
              f"s_lshr_b32 s{sFs}, s{sRt}, 3", f"s_and_b32 s{sCnt}, s{sRt}, 1",
              f"s_lshl1_add_u32 s{sFs}, s{sFs}, s{sCnt}", f"s_lshl1_add_u32 s{sFs}, s{sFs}, s{sI_}",
              f"s_bfe_u32 s{sCnt}, s{sRt}, 0x20001", f"s_lshl4_add_u32 s{sFs}, s{sFs}, s{sCnt}", f"s_mul_i32 s{sFs}, s{sFs}, {8*896}",
              f"s_lshl1_add_u32 s{sU_}, s{sCt}, s{sU_}", f"s_lshl_b32 s{sCnt}, s{sU_}, 6", f"s_add_u32 s{sFs}, s{sFs}, s{sCnt}",
              f"v_bfe_u32 v{x1}, v0, 2, 3", f"v_lshl_add_u32 v{x1}, v{x0}, 5, v{x1}", f"v_mul_u32_u24 v{x1}, 896, v{x1}",
              f"v_and_b32 v{x0}, 48, v{vL16}", f"v_add3_u32 v{vOo}, v{x0}, v{x1}, s{sFs}",
              f"s_lshl1_add_u32 s{sGo}, s{sRt}, s{sI_}", f"s_lshl_b32 s{sGo}, s{sGo}, 7", f"s_add_u32 s{sGo}, s{sGo}, {GOFF}",
              f"v_and_b32 v{vGa}, 15, v0", f"v_lshlrev_b32 v{vGa}, 2, v{vGa}"]
        if o["warm"]:
            bq += [f"s_lshr_b32 s{sFs}, s{sWv}, 1", f"s_lshl1_add_u32 s{sFs}, s{sRg}, s{sFs}", f"s_lshl4_add_u32 s{sFs}, s{sFs}, s{sC}",
                   f"s_lshl1_add_u32 s{sFs}, s{sFs}, s{sI_}", f"s_lshl_b32 s{sFs}, s{sFs}, 7", f"s_add_u32 s{sFs}, s{sFs}, {FH2-128*128}",
                   f"s_sub_u32 s{sD2h}, s{sFs}, s{sFh}",
                   f"s_mul_i32 s{sD2z}, s{sFz}, 3", f"s_add_u32 s{sD2z}, s{sD2z}, {(FZ2-4*FZ) & 0xffffffff}"]
        assert ZS % 64 == 0
        g, left = G.pour(bq, max(NA, g2_ + 1), NA + NBg, budget=o["budB"])
        assert not left
        bq = [f"s_lshr_b32 s{sZp}, s{sRt}, 3", f"s_lshl_b32 s{sZp}, s{sZp}, 8", f"s_add_u32 s{sZp}, s{sZp}, {FZ//32}",
              f"s_lshl2_add_u32 s{sCnt}, s{sWv}, s{sZp}", f"s_addk_i32 s{sZp}, 224",
              f"v_and_b32 v{x0}, 60, v0", f"v_mul_u32_u24 v{x0}, 3, v{x0}", f"v_add3_u32 v{vPz}, v{x0}, v0, s{sCnt}",
              f"v_subrev_u32 v{x0}, 56, v0", f"v_ashrrev_i32 v{x0}, 31, v{x0}",
              f"v_bfi_b32 v{vPz}, v{x0}, v{vPz}, s{sZp}", f"v_lshlrev_b32 v{vPz}, 5, v{vPz}"]
        g, left = G.pour(bq, max(g + 1, NA + (T(o["chk1"]) - TB) // 16 + 1), NA + NBg)
        self.log(f"g2 address setup ends at gap B{g-NA}")
        assert not left

        for n in range(1, 56):
            if n in lset:
                g = hu[n] - 11
                H.m[g - (g in H.light)].append(I(f"ds_read_b128 {vr(hr[n],4)}, v{vHl} offset:{1024*lset.index(n)}", tag=f"hr{n}", vm=f"h{n}"))
                H.s[hu[n] - 1].insert(0, W(ds=f"hr{n}"))
            else:
                H.s[hu[n] - 1].insert(0, W(vm=f"h{n}"))

        def fi_loc(a, rd):
            if a < 12:
                return (vR3 if rd else vRw), 1024 * a
            return (vR1 if rd else vW1), 4096 * (a - 12)
        assert gbo < H.n
        for zb, last in zbar.items():
            H.s[zb] += [W(vm=f"z{last}", ds="rwo" if zb == gbo else None)] + ([] if zb == gbo else ["s_barrier"])
        rdo, vRo = acco + 16, vDr + 3
        wr0 = gbo - o["rwo"]
        for j in range(4):
            H.m[wr0 + o["rws"] * j].append(I(f"ds_write_b128 v{vW1}, {vr(acco+16+4*j,4)} offset:{8192+4096*j}", tag="rwo"))
            H.m[gbo + 6 + j].append(I(f"ds_read_b128 {vr(rdo+4*j,4)}, v{vRo} offset:{8192+4096*j}", tag=f"rro{j//2}"))
        assert wr0 >= gU[1] + 2
        H.s[gbo] += [W(ds="rwo"), "s_barrier"]
        g = gb + 1
        for ks in range(14):
            g = max(g, max(zb for zb, last in zbar.items() if zb < NH + 4 * ks - LZ) + 1, NH if ks >= 8 else 0)
            for jj in range(2):
                for t_ in range(2):
                    while H.used(g) >= 2 or g in H.light or wr0 <= g < gbo or \
                            (g > gbo + o["zfast"] and any(isinstance(x, I) and "_tr_" in x.t for x in H.m[g])):
                        g += 1
                    H.m[g].append(I(f"ds_read_b64_tr_b16 {vr(8*ks+4*jj+2*t_,2,'a')}, v{vZr1 if jj else vZr} offset:{t_*28672+ks*1024}", tag=f"zf{ks}"))
            assert g < NH + 4 * ks - 4, (ks, g)
            H.s[NH + 4 * ks - 1].insert(0, W(ds=f"zf{ks}"))
        for j in range(4):
            H.m[gU[0] + 2 + 2 * j].append(I(f"ds_write_b128 v{vRw}, {vr(accp+16+4*j,4)} offset:{12288+1024*j}", tag="rwp"))
            H.m[gbp + 1 + j].append(I(f"ds_read_b128 {vr(accp+16+4*j,4)}, v{vRr} offset:{12288+1024*j}", tag=f"rrp{j//2}"))
        H.s[gbp] += [W(ds=["rwp", "fw13"]), "s_barrier"]
        assert gbp + 12 < gb
        g = max(gbp + 7, gP + 3)
        for hf in range(2):
            H.s[g].append(W(ds=f"rrp{hf}"))
            pq = [f"v_add_f32 v{accp+8*hf+j}, v{accp+8*hf+j}, v{accp+16+8*hf+j}" for j in range(8)]
            pq += [f"v_cvt_pk_bf16_f32 v{accp+8*hf+j}, v{accp+8*hf+2*j}, v{accp+8*hf+2*j+1}" for j in range(4)]
            pq += [f"v_min_u32 v{accp+8*hf}, -2, v{accp+8*hf}"]
            pq += [I(f"buffer_store_dwordx4 {vr(accp+8*hf,4)}, v{vL16}, {srd(sWS)}, s{sPs} offen offset:{1024*hf} sc1", tag="ps")]
            g, left = H.pour(pq, g, budget=o["budP"])
        self.log(f"partial stored at gap G{g}")
        assert int(o["pld"][1:]) > g + 2
        gchk = [f"v_min_u32 v{vPr}, v{vG}, v{vG+1}", f"v_add_u32 v{vPr}, -1, v{vPr}"] + \
            [f"v_sub_f32 v{vOG+jj}, 1.0, v{vG+jj}" for jj in range(2)] + [f"v_cvt_pk_bf16_f32 v{vOG+jj}, 0, v{vOG+jj}" for jj in range(2)]
        pchk = [f"v_max3_u32 v{vPr}, v{accp}, v{accp+4}, v{vPr}", f"v_cmp_eq_u32 vcc, -1, v{vPr}"]
        self.slow += ["L_slow_pP:", f"s_mov_b32 s{sSp}, 0", "L_spin_pP:"] + pld + gld + ["s_waitcnt vmcnt(0)"] + gchk + pchk + \
            ["s_cbranch_vccz L_back_pP", f"s_sleep {o['sleepP']}", f"s_add_u32 s{sSp}, s{sSp}, 1", f"s_cmp_lt_u32 s{sSp}, {o['spin']}",
             "s_cbranch_scc1 L_spin_pP", "s_endpgm"]
        st = vS32
        x0, x1, x2, x3, ph, stp = range(vS32 + 18, vS32 + 24)
        vq = [f"v_add_u32 v{vHl}, s{sZm}, v{vL16}", f"s_lshl1_add_u32 s{sT0}, s{sU_}, s{sI_}", f"s_mov_b32 s{sT2}, {STEP448}",
              f"v_and_b32 v{x0}, 15, v0",
              f"v_lshl_add_u32 v{x0}, s{sT0}, 4, v{x0}", f"v_mul_lo_u32 v{stp}, v{x0}, s{sT2}",
              f"v_lshrrev_b32 v{x1}, 4, v0", f"v_lshlrev_b32 v{x2}, 1, v{x1}",
              f"v_mul_lo_u32 v{ph}, v{x2}, v{stp}", f"v_lshlrev_b32 v{x2}, 3, v{stp}"]
        vq += self.trig(st + 17, x2, x3)
        vq += [f"v_sub_u32 v{x2}, v{x2}, v{stp}"]
        for jj in range(4):
            vq += [f"v_alignbit_b32 v{x3}, s{s7f}, v{ph}, 9", f"v_cos_f32 v{st+2*jj}, v{x3}", f"v_sin_f32 v{st+2*jj+1}, -v{x3}"]
            if jj < 3:
                vq += [f"v_add_u32 v{ph}, v{ph}, v{x2 if jj & 1 else stp}"]
        vq += [f"v_add_f32 v{st+17}, v{st+17}, v{st+17}"]
        vq += [f"v_fma_f32 v{st+8+j}, v{st+17}, v{st+4+j}, -v{st+j}" for j in range(8)]
        vq += [f"v_fma_f32 v{st+16}, v{st+17}, v{st+17}, -2.0", f"v_sub_f32 v{st+17}, 0, v{st+16}"]
        vq += self.rec_pack(st, 0, own_fi[0]) + self.rec_pack(st, 1, own_fi[1])
        vq += [f"v_lshlrev_b32 v{x2}, 31, v{x0}", f"v_or_b32 v{x2}, 0x3f803f80, v{x2}", f"v_add_u32 v{x3}, -1, v{x1}",
               f"v_ashrrev_i32 v{x3}, 31, v{x3}", f"v_bfi_b32 v{own_fi[0]}, v{x3}, v{x2}, v{own_fi[0]}",
               f"v_lshl_add_u32 v{vW1}, s{sWv}, 10, v{vL16}"]
        vq2 = [f"v_xor_b32 v{vR1}, 0x400, v{vW1}", f"v_xor_b32 v{vRo}, 0x800, v{vW1}",
               f"v_and_b32 v{x0}, 15, v0", f"v_mul_u32_u24 v{vOw}, 80, v{x0}",
               f"s_mul_i32 s{sT2}, s{sWv}, 2560", f"s_add_u32 s{sT2}, s{sT2}, {FS}", f"s_lshl_b32 s{sT0}, s{sI_}, 5",
               f"v_lshl_add_u32 v{vOw}, v{x1}, 3, v{vOw}", f"v_add_u32 v{vOw}, s{sT2}, v{vOw}",
               f"v_subrev_u32 v{vOr+1}, s{sT0}, v{vOw}", f"v_add_u32 v{vOw}, s{sT0}, v{vOw}",
               f"v_lshrrev_b32 v{x2}, 2, v0", f"v_mul_u32_u24 v{x2}, 80, v{x2}", f"v_and_b32 v{x3}, 48, v{vL16}",
               f"v_add3_u32 v{vOr}, v{x2}, v{x3}, s{sT2}", f"s_mov_b32 s{sT3}, {64*896}"]

        def fwr(a):
            r_, off = fi_loc(a, False)
            return I(f"ds_write_b128 v{r_}, {vr(own_fi[a],4)} offset:{off}", tag=f"fw{a}")
        g, left = H.pour(vq, 0)
        qq = [fwr(0), fwr(1)]
        g += 1
        for a in range(2, 14):
            held = [hl_[n] + 1 for n in extra if hr[n] == own_fi[a]]
            if held:
                g, left = H.pour(qq, g, gbp - 3)
                assert not left
                qq, g = [], max(g, held[0])
            qq += self.rec_step(st, a, own_fi[a]) + [fwr(a)]
        g, left = H.pour(qq, g, gbp - 3)
        self.log(f"finv done at gap G{g}")
        assert not left
        g, left = H.pour(vq2, g, gb - 20)
        assert not left
        g = max(g + 1, gbp + 6)
        for a in range(14):
            g = max([g] + [hl_[n] + 1 for n in extra if hr[n] == -par_fi[a]])
            if a >= 8:
                g = max(g, max(hl_[n] for n in range(56) if seq[n][1] == par_fi[a] // 16) + 1)
            while H.used(g) >= 2 or g in H.light or any(kind(txt(x)) == "D" for x in H.m[g]):
                g += 1
            r_, off = fi_loc(a, True)
            H.m[g].append(I(f"ds_read_b128 {vr(par_fi[a],4,'a')}, v{r_} offset:{off}"))
        assert g < gb
        gc_ = o["pchk"]
        H.s[gc_ - 2].append(W(vm="pl"))
        H.v[gc_ - 2] += pchk
        H.s[gc_].append(Lab("s_cbranch_vccnz L_slow_pP", "L_back_pP:"))
        H.s[gbo + 10].append(W(vm="g"))
        g, left = H.pour(gchk, gbo + 10, gc_ - 2)
        assert not left
        oleft = []
        for hf in range(2):
            g = max(g, gbo + 12 + 2 * hf)
            H.s[g].append(W(ds=f"rro{hf}"))
            g, left = H.pour([f"v_add_f32 v{acco+j}, v{acco+j}, v{rdo+j}" for j in range(8 * hf, 8 * hf + 8)], g)
            oleft += left
        pu = accp + 16
        g_, left = H.pour([x for k in range(8) for x in (f"v_lshlrev_b32 v{pu+2*k}, 16, v{accp+k}", f"v_and_b32 v{pu+2*k+1}, 0xffff0000, v{accp+k}")], gc_)
        oleft += left
        self.log(f"own reduction done at G{g}, left for the tail {len(oleft)}")

        if o["pads"] and o["padat"] >= 0:
            G.post[o["padat"]].append(padwalk)
        for key, S_, off in (("st1", G, 0), ("st2", G, NA), ("st3", H, 0)):
            for x in filter(None, o[key].split(",")):
                S_.s[int(x) + off] += self.stamp("@" + x)
        p.raw("s_waitcnt lgkmcnt(0)")
        e(W(vm="w0a" if hs else "w0"))
        e("s_barrier")
        e([xread(0, 0)] + wread(0) + [xread(0, 1), xread(0, 2), xread(0, 3)] + wread(1) + wread(2) + ([] if fg else [fread(0, 0), fread(0, 1)]))
        e(self.stamp("data0"))
        e(W(ds=["wf0", "xr0_1"]))
        G.emit(p, 0, NA, o['fix'])
        e(codeE)
        G.emit(p, NA, None, o['fix'])
        e(self.stamp("B"))
        e(codeF)
        e(self.stamp("fft"))
        if o["stop"] == "fft":
            e("s_branch L_fin")
        H.s[NH - 1] += self.stamp("g2h")
        e(W(vm="h0"))
        H.emit(p, 0, None, o['fix'])
        e(self.stamp("g2"))
        e(oleft)
        sel = ["op_sel_hi:[1,0]", "op_sel:[0,1] op_sel_hi:[1,1]"]
        sel3 = ["op_sel_hi:[1,0,1]", "op_sel:[0,1,0] op_sel_hi:[1,1,1]"]
        for k in range(8):
            e(f"v_pk_add_f32 {vr(acco+2*k,2)}, {vr(acco+2*k,2)}, {vr(pu+2*k,2)}")
        for jj in range(2):
            ks_ = range(4 * jj, 4 * jj + 4)
            for k in ks_:
                e(f"v_pk_mul_f32 {vr(acca+2*k,2)}, {vr(acca+2*k,2)}, {vr(vG,2)} {sel[jj]}")
            for k in ks_:
                e(f"v_pk_fma_f32 {vr(acca+2*k,2)}, {vr(acco+2*k,2)}, {vr(vOG,2)}, {vr(acca+2*k,2)} {sel3[jj]}")
            for k in ks_:
                e(f"v_cvt_pk_bf16_f32 v{accp+8+k}, v{acca+2*k}, v{acca+2*k+1}")
            e([f"ds_write_b64 v{vOw}, {vr(accp+8+4*jj,2)} offset:{1280*jj}",
               f"ds_write_b64 v{vOr+1}, {vr(accp+10+4*jj,2)} offset:{1280*jj+32}",
               I(f"ds_read_b128 {vr(vAB+4*jj,4)}, v{vOr} offset:{1280*jj}", tag=f"or{jj}")])
        for jj in range(2):
            e(I(f"buffer_store_dwordx4 {vr(vAB+4*jj,4)}, v{vOo}, {srd(sO)}, {'s%d' % sT3 if jj else 0} offen {o['outfl'].replace('+',' ')}".strip(),
                ds=f"or{jj}"))
        p.raw("L_fin:")
        self.dump_stamps()
        p.raw("L_end:")
        p.raw("s_endpgm")

        p.restore(snap_aux)
        self.aux(sj, sidx)
        if o["align"] and not o["slowend"]:
            i = p.out.index("@SLOW@")
            p.out[i:i + 1] = self.slow
        else:
            for l in self.slow:
                p.raw(l)
        p.raw("L_codeend:")
        return self.finish()

    def dump_stamps(self):
        if not self.o["stamps"]:
            return
        p = self.p
        p.raw("s_waitcnt vmcnt(0)")
        p.e(self.stamp("end"))
        p.raw("s_waitcnt lgkmcnt(0)")
        p.e([f"s_lshl_b32 s{sT0}, s2, 2", f"s_add_u32 s{sT0}, s{sT0}, s{sWv}", f"s_lshl_b32 s{sT0}, s{sT0}, 6",
             f"s_add_u32 s{sT0}, s{sT0}, {STAMP}", "s_mov_b64 exec, 1"])
        p.e([f"s_memrealtime s[{sT2}:{sT3}]"])
        for k in range(self.nst):
            p.e([f"v_mov_b32 v2, s{sX if k == self.nst-1 else sST+2*k}", f"buffer_store_dword v2, off, {srd(sWS)}, s{sT0} offset:{4*k}"])
        p.raw("s_waitcnt lgkmcnt(0)")
        p.e([f"v_mov_b32 v2, s{sT2}", f"buffer_store_dword v2, off, {srd(sWS)}, s{sT0} offset:60"])

    def aux_tok(self, tok):
        p = self.p
        e = p.e
        sA, vt16 = sRt, 2
        vx, vw, vd = 12, 13, 14

        def masked(lo, hi, ops):
            m = ((1 << hi) - 1) ^ ((1 << lo) - 1)
            e([f"s_mov_b32 exec_lo, {m & 0xffffffff:#x}", f"s_mov_b32 exec_hi, {m >> 32:#x}"] + ops + ["s_mov_b64 exec, -1"])
        if tok == "xq":
            masked(0, 48, [f"buffer_load_dword v15, v{vx}, {srd(sX)}, 0 offen"])
        elif tok[0] == "x":
            a, b = int(tok[1]), int(tok[2])
            masked(0, 16 * (b - a + 1), [f"buffer_load_dword v15, v{vx}, {srd(sX)}, 0 offen offset:{128*a}"])
        elif tok[0] in "wv":
            a, b = int(tok[1]), int(tok[2])
            off = 128 if tok[0] == "v" else 0
            masked(8 * a, 8 * (b + 1), [f"buffer_load_dword v15, v{vw}, {srd(q)}, 0 offen offset:{off}" for q in (sG, sU)])
        elif tok[0] == "d":
            e(f"s_mov_b32 s{sT1}, {57344*int(tok[1])}")
            masked(0, 49, [f"buffer_load_dword v15, v{vd}, {srd(sD)}, s{sT1} offen"])
        elif tok == "clr":
            e([f"v_mov_b32 v{4+k}, 0" for k in range(4)] + [f"s_mul_i32 s{sT1}, s{sA}, {FEND//32*(2 if self.o['warm'] else 1)}"])
            for k in range(4 if self.o["warm"] else 2):
                e([I(f"buffer_store_dwordx4 v[4:7], v{vt16}, {srd(sWS)}, s{sT1} offen sc1", tag="clr"), f"s_addk_i32 s{sT1}, 4096"])
        elif tok == "go":
            e([f"s_lshl_b32 s{sT1}, s{sA}, 3", f"v_mov_b32 v8, 1", f"v_mov_b32 v9, s{sT0}", W(vm="clr"), "s_barrier",
               "s_mov_b64 exec, 1", f"buffer_store_dword v8, v9, {srd(sDBG)}, s{sT1} offen sc1", "s_mov_b64 exec, -1"])
        elif tok == "WT":
            sq, skg = sRg, sC
            e([f"s_lshr_b32 s{sq}, s{sA}, 3", f"s_and_b32 s{skg}, s{sA}, 7",
               f"s_lshl_b32 s{sT1}, s{sq}, 6", f"s_add_u32 s{sT1}, s{sT1}, s{skg}", f"s_mul_i32 s{sT1}, s{sT1}, 3600"])
            e([f"v_lshrrev_b32 v16, 5, v0", f"v_lshl_add_u32 v17, s{sWv}, 1, v16", f"v_mul_u32_u24 v17, 28, v17",
               f"v_and_b32 v18, 31, v0", f"v_add3_u32 v17, v17, v18, v16", f"v_add_u32 v17, -1, v17", f"v_max_i32 v17, 0, v17",
               f"v_lshlrev_b32 v17, 4, v17", f"s_mul_i32 s{sT2}, s{sWv}, 1120"])
            for j in range(8):
                for part in range(2):
                    e([f"s_add_u32 m0, s{sT2}, {(8*part+j)*RS}", "s_nop 0",
                       I(f"buffer_load_dwordx4 v17, {srd(sWr if part == 0 else sWi)}, s{sT1} offen lds", tag="wl")])
                e(f"s_add_u32 s{sT1}, s{sT1}, {64*450}")
        else:
            raise SystemExit(tok)

    def aux1(self, sj, sidx):
        p, o = self.p, self.o
        e = p.e
        sA, vt16 = sRt, 2
        vx, vw, vd = 12, 13, 14
        p.raw("L_auxh:")
        e(["s_cmp_ge_u32 s2, 256", "s_cbranch_scc1 L_end"])
        e([f"s_lshl2_add_u32 s{sA}, s{sj}, s{sidx}", f"s_sub_u32 s{sA}, s{sA}, 28", f"s_mov_b32 s{sCt}, s{sj}",
           f"v_lshlrev_b32 v{vL16}, 4, v0", f"s_lshl_b32 s{sT0}, s{sWv}, 10", f"v_add_u32 v{vt16}, s{sT0}, v{vL16}"])
        p.raw("s_waitcnt lgkmcnt(0)")
        for d_, s_ in ((sWi, sWr), (sGw, sD), (sWS, sDBG)):
            e(f"s_mov_b64 s[{d_}:{d_+1}], s[{s_+2}:{s_+3}]")
        for s, n in ((sWS, WSEND), (sWr, 2048 * 450), (sWi, 2048 * 450)):
            e([f"s_mov_b32 s{s+2}, {n}", f"s_mov_b32 s{s+3}, 0x20000"])
        e(self.astamp("head"))
        toks = o["apf"].split(",")
        self.late = toks[toks.index("G") + 1:]
        toks = toks[:toks.index("G")]
        rest = [f"s_lshl2_add_u32 s{sCnt}, s{sA}, s{sWv}"]
        if any(t[0] == "x" for t in toks):
            rest += [f"v_and_b32 v4, 15, v0", f"v_lshl_add_u32 v4, s{sCnt}, 4, v4", f"v_mul_u32_u24 v4, 896, v4",
                     f"v_lshrrev_b32 v5, 4, v0"]
            if "xq" in toks:
                rest += [f"s_lshr_b32 s{sT2}, s{sCt}, 1", f"s_add_u32 s{sT2}, s{sT2}, 1", f"v_lshl_add_u32 v5, v5, 1, s{sT2}",
                         f"v_subrev_u32 v6, 7, v5", f"v_min_u32 v5, v5, v6"]
            rest += [f"v_lshl_add_u32 v{vx}, v5, 7, v4"]
            if toks[0][0] == "x":
                e(rest)
                rest = []
                self.aux_tok(toks.pop(0))
        rest += [f"s_lshr_b32 s{sT2}, s{sCt}, 1", f"s_and_b32 s{sCnt}, s{sCnt}, 15", f"s_lshl4_add_u32 s{sCnt}, s{sT2}, s{sCnt}",
                 f"s_mul_i32 s{sT2}, s{sCnt}, 3584", f"s_and_b32 s{sT3}, s{sCt}, 1", f"s_mul_i32 s{sT1}, s{sT3}, {7*256}",
                 f"s_add_u32 s{sT2}, s{sT2}, s{sT1}",
                 f"v_lshrrev_b32 v4, 3, v0", f"v_mul_u32_u24 v4, {64*3584}, v4", f"v_and_b32 v5, 7, v0", f"v_min_u32 v5, 6, v5",
                 f"v_lshl_add_u32 v4, v5, 8, v4", f"v_add_u32 v{vw}, s{sT2}, v4",
                 f"s_lshl_b32 s{sT3}, s{sT3}, 6", f"s_add_u32 s{sCnt}, s{sCnt}, s{sT3}",
                 f"s_mul_i32 s{sCnt}, s{sCnt}, 49", f"v_add_u32 v4, s{sCnt}, v0", f"v_mul_u32_u24 v5, 9363, v4", f"v_lshrrev_b32 v5, 22, v5",
                 f"v_mul_u32_u24 v5, 57344, v5", f"v_lshl_add_u32 v{vd}, v4, 7, v5", f"s_mov_b32 s{sU+2}, {448*3584}"]
        for s, n in ((sD, 1792 * 896), (sGw, 896), (sDBG, 256)):
            rest += [f"s_mov_b32 s{s+2}, {n}", f"s_mov_b32 s{s+3}, 0x20000"]
        for t in toks:
            if t not in ("clr", "WT"):
                e(rest)
                rest = []
            self.aux_tok(t)
            if t in ("clr", "go", "WT"):
                e(self.astamp(t))
        e(rest)

    def aux(self, sj, sidx):
        p, o = self.p, self.o
        e = p.e
        p.raw("L_aux:")
        sA, vt16 = sRt, 2
        sq, skg = sRg, sC
        late = self.late
        e([f"s_mov_b32 s{sK}, 0xbfb8aa3b", f"s_movk_i32 s{s7f}, 0x7f"])
        vo, vg = 3, 8
        xb, gb = 160, 96
        e([f"s_lshr_b32 s{sT1}, s{sA}, 3", f"s_lshl_b32 s{sT1}, s{sT1}, 1", f"s_and_b32 s{sT2}, s{sA}, 1",
           f"s_add_u32 s{sT1}, s{sT1}, s{sT2}", f"s_lshl_b32 s{sT1}, s{sT1}, 2", f"s_add_u32 s{sT1}, s{sT1}, s{sWv}",
           f"s_lshl_b32 s{sT1}, s{sT1}, 3", f"s_bfe_u32 s{sT2}, s{sA}, 0x20001", f"s_add_u32 s{sT1}, s{sT1}, s{sT2}",
           f"s_lshl_b32 s{sT1}, s{sT1}, 3",
           f"v_lshrrev_b32 v4, 5, v0", f"v_bfe_u32 v5, v0, 2, 3", f"v_lshl_add_u32 v4, v4, 5, v5", f"v_add_u32 v4, s{sT1}, v4",
           f"v_and_b32 v{vg}, 48, v{vL16}", f"v_mul_u32_u24 v4, 896, v4", f"v_add_u32 v{vo}, v4, v{vg}"])
        e([f"v_and_b32 v{vPg}, 31, v0", f"v_lshlrev_b32 v{vPg}, 3, v{vPg}"])
        gol = f"buffer_load_dword v{vP}, v{vPg}, {srd(sDBG)}, 0 offen sc1"
        vra, vwa = 9, 10
        e([f"v_and_b32 v4, 7, v0", f"v_lshrrev_b32 v5, 7, v{vt16}", f"v_lshrrev_b32 v6, 1, v4", f"v_mul_u32_u24 v{vra}, 1120, v6",
           f"v_and_b32 v6, 1, v0", f"v_mul_u32_u24 v6, 496, v6", f"v_add3_u32 v{vra}, v{vra}, v6, 16",
           f"v_add_u32 v6, v4, v5", f"v_lshl_add_u32 v{vra}, v6, 1, v{vra}", f"v_add_u32 v17, {8*RS}, v{vra}",
           f"v_lshlrev_b32 v{vwa}, 13, v5", f"v_lshl_add_u32 v{vwa}, v4, 4, v{vwa}",
           f"s_lshr_b32 s{sT1}, s{skg}, 1", f"s_lshl_b32 s{sT1}, s{sT1}, 2", f"s_add_u32 s{sT1}, s{sT1}, s{sq}",
           f"s_lshl_b32 s{sT1}, s{sT1}, 1", f"s_and_b32 s{sT2}, s{skg}, 1", f"s_add_u32 s{sT1}, s{sT1}, s{sT2}",
           f"s_lshl_b32 s{sT1}, s{sT1}, 7", f"s_add_u32 s{sT1}, s{sT1}, {WT}", f"s_add_u32 s{sT2}, s{sT1}, 4096"])
        sc, vv = self.poll1_addr(vT + 14, vT + 15, sHc, sFs)
        e([f"s_movk_i32 s{sKd}, 224", f"s_mov_b32 s{sSc}, {fbits(1.0/(2048*448))}", sc, vv, self.fft_setup_regs()])
        e([f"s_cmp_lg_u32 s{sA}, 4", "s_cbranch_scc1 L_aux1", self.fft_consts(vAB + 32)])
        p.raw("L_aux1:")
        e(W(vm="wl"))
        e("s_barrier")
        e(self.astamp("wl"))
        def rd(n):
            return [I(f"ds_read_u16 v{160+8*(n&1)+j}, v{17 if n & 1 else vra} offset:{j*RS+64*(n>>1)}", tag=f"g{n}") for j in range(8)]
        e(rd(0))
        for n in range(16):
            part = n & 1
            nx = rd(n + 1) if n < 15 else []
            e(nx[:6])
            if n == 14:
                e([f"v_cmp_gt_u32 vcc, 8192, v{vwa}", "s_nop 1", f"v_cndmask_b32 v{vwa}, 2.0, v{vwa}, vcc"])
            e(W(ds=f"g{n}"))
            e(nx[6:])
            for j in range(4):
                e(f"v_lshl_or_b32 v{176+4*part+j}, v{160+8*part+2*j+1}, 16, v{160+8*part+2*j}")
            e([f"buffer_store_dwordx4 {vr(176+4*part,4)}, v{vwa}, {srd(sWS)}, s{sT1+part} offen sc1",
               f"s_add_u32 s{sT1+part}, s{sT1+part}, {32*8192}"])
        p.reset()
        e(self.astamp("gath"))
        e(I(gol, tag="go"))
        for t in late:
            if t != "F":
                self.aux_tok(t)
                continue
            e(self.poll_check("goa", "go", gol, vP))
            e(["s_barrier", f"s_lshl_b32 s{sFh}, s{sA}, 7", f"s_add_u32 s{sFh}, s{sFh}, {FAUX}",
               f"s_cmp_lg_u32 s{sWv}, 0", f"s_cselect_b32 s{sT2}, {OOB}, 0", f"v_mov_b32 v16, s{sT2}",
               "s_mov_b64 exec, 1", f"buffer_store_dword v{vP}, v16, {srd(sWS)}, s{sFh} offen sc1", "s_mov_b64 exec, -1"])
            e(self.astamp("faux"))
        def column224():
            e([f"s_cmp_lg_u32 s{sA}, 4", "s_cbranch_scc1 L_aux2"])
            if o["stop"] == "gemm1":
                e("s_branch L_aux2")
            pl = f"buffer_load_dword v{vPr}, v{vPa}, {srd(sWS)}, 0 offen sc1"
            e([I(pl, tag="p1"), self.fft_scalars(), self.fft_addr2(), self.poll_check("p1a", "p1", pl, vPr), self.fft_loads()])
            self.fft_body(lambda n, dt: None)
            if o["gfirst"]:
                e([f"s_lshl_b32 s{sT0}, s{sWv}, 13", f"s_add_u32 s{sT0}, s{sT0}, {FZ+224*32}", self.flag_store(sT0, ["zre", "zim"])])
            p.raw("L_aux2:")
        if not o["gfirst"]:
            column224()
        p.reset()
        for k in range(14):
            e(I(f"buffer_load_dwordx4 {vr(xb+4*k,4)}, v{vo}, {srd(sX)}, 0 offen offset:{64*k}", tag=f"gx{k}"))
            e(I(f"buffer_load_dwordx4 {vr(gb+4*k,4)}, v{vg}, {srd(sGw)}, 0 offen offset:{64*k}", tag=f"gw{k}"))
            if k == 3 and not o["gfirst"]:
                e([f"s_cmp_lg_u32 s{sA}, 4", "s_cbranch_scc1 L_aux3",
                   f"s_lshl_b32 s{sT0}, s{sWv}, 13", f"s_add_u32 s{sT0}, s{sT0}, {FZ+224*32}"])
                if o["stop"] != "gemm1":
                    e(self.flag_store(sT0, "gx0"))
                    if o["warm"]:
                        e([f"s_lshl_b32 s{sT0}, s{sWv}, 15", f"s_add_u32 s{sT0}, s{sT0}, {FZ2+224*128}", self.flag_store(sT0, None)])
                p.raw("L_aux3:")
        for k in range(4):
            e(f"v_mov_b32 v{4+k}, 0")
        e(f"s_mov_b32 s{sT2}, 0x3f803f80")
        for k in range(14):
            e(W(vm=f"gw{k}"))
            t = 32
            for j in range(4):
                e([f"v_lshlrev_b32 v{t+4*j}, 16, v{xb+4*k+j}", f"v_and_b32 v{t+4*j+1}, 0xffff0000, v{xb+4*k+j}",
                   f"v_lshlrev_b32 v{t+4*j+2}, 16, v{gb+4*k+j}", f"v_and_b32 v{t+4*j+3}, 0xffff0000, v{gb+4*k+j}"])
            e([f"v_pk_mul_f32 {vr(t+4*j,2)}, {vr(t+4*j,2)}, {vr(t+4*j+2,2)}" for j in range(4)])
            e([f"v_cvt_pk_bf16_f32 v{t+4*j}, v{t+4*j}, v{t+4*j+1}" for j in range(4)])
            e([f"v_dot2_f32_bf16 v{4+j}, v{t+4*j}, s{sT2}, v{4+j}" for j in range(4)])
        e([f"v_add_f32 v4, v4, v5", f"v_add_f32 v6, v6, v7", f"v_add_f32 v4, v4, v6",
           f"v_add_f32_dpp v4, v4, v4 quad_perm:[1,0,3,2] row_mask:0xf bank_mask:0xf",
           f"v_add_f32_dpp v4, v4, v4 quad_perm:[2,3,0,1] row_mask:0xf bank_mask:0xf",
           f"v_cvt_pk_bf16_f32 v4, 0, v4",
           f"v_mul_f32 v4, s{sK}, v4", f"v_exp_f32 v4, v4", f"v_add_f32 v4, 1.0, v4", f"v_rcp_f32 v4, v4",
           f"v_and_b32 v5, 60, v0", f"v_cvt_pk_bf16_f32 v4, 0, v4", f"v_max_u32 v4, 1, v4",
           f"s_lshl_b32 s{sT1}, s{sA}, 2", f"s_add_u32 s{sT1}, s{sT1}, s{sWv}", f"s_lshl_b32 s{sT1}, s{sT1}, 6",
           f"s_add_u32 s{sT1}, s{sT1}, {GOFF}",
           f"buffer_store_dword v4, v5, {srd(sWS)}, s{sT1} offen sc1"])
        if o["gfirst"]:
            column224()
            p.reset()
        if o["stamps"]:
            e(self.astamp("fg"))
            p.raw("s_waitcnt lgkmcnt(0)")
            e([f"s_lshl_b32 s{sT1}, s2, 2", f"s_add_u32 s{sT1}, s{sT1}, s{sWv}", f"s_lshl_b32 s{sT1}, s{sT1}, 6",
               f"s_add_u32 s{sT1}, s{sT1}, {STAMP}", "s_mov_b64 exec, 1"])
            for k in range(len(self.anames)):
                e([f"v_mov_b32 v2, s{sST+2*k}", f"buffer_store_dword v2, off, {srd(sWS)}, s{sT1} offset:{4*k}"])
            e("s_mov_b64 exec, -1")
        if o["warm"] and not o["stop"]:
            self.aux_warm()
        p.raw("s_endpgm")

    def aux_warm(self):
        p, o = self.p, self.o
        e = p.e
        sA, sj, rt, rg, qd = sRt, sCt, sRg, sC, sKd
        p.reset()
        e([f"s_lshr_b32 s{rg}, s{sj}, 1", f"s_and_b32 s{sT0}, s{sA}, 3", f"s_lshl2_add_u32 s{rg}, s{rg}, s{sT0}",
           f"s_and_b32 s{sT0}, s{sj}, 1", f"s_lshl1_add_u32 s{rt}, s{rg}, s{sT0}",
           f"s_lshr_b32 s{qd}, s{sWv}, 1", f"s_lshl1_add_u32 s{qd}, s{sT0}, s{qd}"])
        if "h" in o["warm"] or "p" in o["warm"]:
            e([f"s_mul_i32 s{sT1}, s{qd}, 7", f"s_lshl_b32 s{sT2}, s{rg}, 6", f"s_add_u32 s{sT1}, s{sT1}, s{sT2}",
               f"s_lshl_b32 s{sT1}, s{sT1}, 7", f"s_add_u32 s{sT1}, s{sT1}, {FH2}",
               f"v_and_b32 v4, 7, v0", f"v_min_u32 v4, 6, v4", f"v_bfe_u32 v5, v0, 3, 1", f"v_lshl_add_u32 v4, v5, 5, v4", f"v_lshlrev_b32 v4, 7, v4",
               f"s_and_b32 s{sT2}, s{sWv}, 1", f"s_lshl2_add_u32 s{sT2}, s{sT2}, s{qd}", f"s_mul_i32 s{sT2}, s{sT2}, 14336",
               f"s_add_u32 s{sT2}, s{sT2}, {HH+114688}", f"v_min_u32 v6, 55, v0", f"v_lshlrev_b32 v6, 7, v6", f"v_add_u32 v7, 7168, v6"])
            pl = f"buffer_load_dword v{vPr}, v4, {srd(sWS)}, s{sT1} offen sc1"
            e([I(pl, tag="p"), self.poll_check("wh", "p", pl, vPr)])
            for c_ in o["warm"]:
                if c_ in "hp":
                    e([f"s_xor_b32 s{sT3}, s{rt}, {int(c_ == 'p')}", f"s_mul_i32 s{sT3}, s{sT3}, 229376", f"s_add_u32 s{sT3}, s{sT3}, s{sT2}"])
                    e([f"buffer_load_dword v15, v{6+k}, {srd(sWS)}, s{sT3} offen sc1" for k in range(2)])
        if "z" in o["warm"]:
            e([f"s_lshr_b32 s{sT1}, s{rt}, 3", f"s_lshl_b32 s{sT1}, s{sT1}, 8", f"s_add_u32 s{sT1}, s{sT1}, {FZ2//128}",
               f"s_lshl2_add_u32 s{sT2}, s{sWv}, s{sT1}", f"s_addk_i32 s{sT1}, 224",
               f"v_and_b32 v5, 60, v0", f"v_mul_u32_u24 v5, 3, v5", f"v_add3_u32 v4, v5, v0, s{sT2}",
               f"v_subrev_u32 v5, 56, v0", f"v_ashrrev_i32 v5, 31, v5", f"v_bfi_b32 v4, v5, v4, s{sT1}", f"v_lshlrev_b32 v4, 7, v4",
               f"v_min_u32 v6, 55, v0", f"v_and_b32 v5, 56, v6", f"v_mul_u32_u24 v5, 3, v5", f"v_add_u32 v6, v5, v6", f"v_lshlrev_b32 v6, 12, v6",
               f"s_lshl_b32 s{sT2}, s{sWv}, 8", f"s_add_u32 s{sT2}, s{sT2}, s{rt}", f"s_lshl_b32 s{sT2}, s{sT2}, 7", f"s_add_u32 s{sT2}, s{sT2}, {ZT}",
               f"s_add_u32 s{sT3}, s{sT2}, {7*131072}"])
            pl = f"buffer_load_dword v{vPr}, v4, {srd(sWS)}, 0 offen sc1"
            e([I(pl, tag="p"), self.poll_check("wz", "p", pl, vPr)])
            e([f"buffer_load_dword v15, v6, {srd(sWS)}, s{x} offen sc1" for x in (sT2, sT3)])

    def pages(self, lines):
        import subprocess
        i0, i1 = lines.index("L_body:"), lines.index("L_fin:")
        body = [l for l in lines[i0:i1]]
        src = '.amdgcn_target "amdgcn-amd-amdhsa--gfx950"\n.text\nL_x:\n' + "\n".join(re.sub(r"L_slow_\w+|L_fin|L_pad\d", "L_x", l) for l in body) + "\n"
        r = subprocess.run(["llvm-mc", "-triple", "amdgcn-amd-amdhsa", "-mcpu=gfx950", "-show-encoding"],
                           input=src, capture_output=True, text=True)
        sizes = [l.count(",", l.index("encoding:")) + 1 for l in r.stdout.split("\n") if "encoding:" in l]
        out, a, k, nm, npad, rep_ = [], self.o["bodyoff"], 0, 0, 0, []
        total = a + sum(sizes)
        npg = (total + 24) // 4096
        first = self.o["pads"]
        page, pend = 0, False
        for l in body:
            out.append(l)
            if l.endswith(":"):
                continue
            a += sizes[k]
            k += 1
            nm += l.startswith("v_mfma")
            if a // 4096 > page:
                page = a // 4096
                rep_.append(nm)
                pend = self.o["pads"] and page >= first
            if pend and (l.startswith("v_mfma") or a % 4096 >= 40) and "exec" not in l:
                out += [f"L_pad{npad}:", f"s_cbranch_execz {'L_padret' if page + 4 > npg else 'L_pad%d' % (npad + 4)}"]
                a += 4
                npad += 1
                pend = False
        assert k == len(sizes) and (not self.o["pads"] or npad == npg - first + 1 >= 4), (k, len(sizes), npad)
        self.log(f"body bytes {a - self.o['bodyoff']}, page starts after mfma # {rep_}")
        return lines[:i0] + out + lines[i1:]

    def finish(self):
        out = self.p.out
        d = self.o["diag"].split(",")
        if "plainst" in d:
            out = [l.replace(" sc1", "") if l.startswith("buffer_store_dwordx4") else l for l in out]
        if "plainld" in d:
            out = [l.replace(" sc1", "") if l.startswith("buffer_load_dwordx4") else l for l in out]
        if "nopoll" in d:
            out = ["s_nop 0" if l.startswith("s_cbranch_vccnz L_slow") or l.startswith("s_cbranch_scc0 L_slow") else l for l in out]
        if "nowd" in d:
            out = [f"v_mov_b32 v{vDd}, 2.0" if l.startswith(f"v_add3_u32 v{vDd}, v{vDd},") else l for l in out]
        if "nohl" in d:
            out = [f"v_mov_b32 v{vXd}, 2.0" if l == f"v_add_u32 v{vXd}, s{sCnt}, v{vL16}" else l for l in out]
        if "noz" in d:
            out = [f"v_mov_b32 v{vY+1}, 2.0" if l == f"v_add_u32 v{vY+1}, s{sFs}, v{vY+1}" else l for l in out]
        for x in d:
            if x.startswith("pre"):
                it_, np_ = x[3:].split("_")
                pr = ["s_mov_b32 s4, 0x9e3779b1", "v_add_u32 v10, s2, v0"]
                for j in range(32):
                    pr += [f"v_add_u32 v10, {0x6a09e667+j*77777}, v10", "v_mul_lo_u32 v10, v10, s4", "v_lshrrev_b32 v11, 15, v10", "v_xor_b32 v10, v10, v11",
                           f"v_and_b32 v{32+j}, 0x81ff81ff, v10", f"v_or_b32 v{32+j}, 0x3c003c00, v{32+j}"]
                pr += [f"v_mov_b32 v{96+j}, 0" for j in range(64)] + ["s_mov_b32 s4, 0", "L_pre:"]
                for m_ in range(16):
                    pr += [f"v_mfma_f32_16x16x32_bf16 v[{96+4*m_}:{99+4*m_}], v[{32+4*(m_>>2)}:{35+4*(m_>>2)}], v[{48+4*(m_&3)}:{51+4*(m_&3)}], v[{96+4*m_}:{99+4*m_}]", f"s_nop {np_}"]
                pr += ["s_add_u32 s4, s4, 1", f"s_cmp_lt_u32 s4, {it_}", "s_cbranch_scc1 L_pre"]
                out = pr + out
        if "cnt" in d:
            nm_ = ["go", "p1", "pW", "pA", "pB", "pZ", "pP"]
            o2 = ["s_mov_b32 s101, 0"]
            for l in out:
                o2.append(l)
                if l.startswith("L_slow_") and l[7:-1] in nm_:
                    o2.append(f"s_bitset1_b32 s101, {nm_.index(l[7:-1])}")
                if l.endswith("offset:60") and l.startswith("buffer_store_dword v2, off"):
                    o2 += ["v_mov_b32 v2, s101", l.replace("offset:60", "offset:56")]
            out = o2
        if "halfm" in d:
            k_, o2 = 0, []
            for l in out:
                if l.startswith("v_mfma") and not l.endswith(", 0"):
                    k_ += 1
                    if k_ % 4 == 0:
                        continue
                o2.append(l)
            out = o2
        if "nomfma" in d:
            out = ["s_nop 7" if l.startswith("v_mfma_f32_32x32") else l for l in out]
        if "m16" in d:
            o2, cnt, i = [], {}, 0
            while i < len(out):
                l = out[i]
                m = re.match(r"v_mfma_f32_32x32x16_bf16 v\[(\d+):\d+\], (\S+), (\S+), (\S+)", l)
                if not m:
                    o2.append(l); i += 1
                    continue
                b = int(m.group(1))
                if m.group(4) == "0":
                    cnt[b] = 0
                k = cnt[b]; cnt[b] += 1
                j = i + 1
                while j < len(out) and not out[j].startswith("v_mfma") and j - i < 12:
                    j += 1
                gap = out[i + 1:j]
                if j - i >= 12:
                    gap, j = [], i + 1
                tot = sum(cost(x) for x in gap); acc = 0; cutp = 0
                for q, x in enumerate(gap):
                    if acc >= (tot + 1) // 2 and not x.startswith("s_cselect") and not x.startswith("s_cbranch") and "exec" not in x and "exec, 1" not in gap[q-1]:
                        break
                    acc += cost(x); cutp = q + 1
                def mm(blk, A, B):
                    dd = f"v[{b+4*blk}:{b+4*blk+3}]"
                    return f"v_mfma_f32_16x16x32_bf16 {dd}, {A}, {B}, {'0' if k < 2 else dd}"
                A, B = m.group(2), m.group(3)
                A0, B0 = A, B
                pa, pb = cnt.get("p", (A, B))
                if "m16b" in d:
                    mb = re.match(r"a\[(\d+):", B); ma = re.match(r"a\[(\d+):", A)
                    if mb:
                        q_ = max(int(mb.group(1)) - 8, int(mb.group(1)) & 4); B0 = f"a[{q_}:{q_+3}]"
                        if "100" and b >= vAB and b != vAB + 16 and int(mb.group(1)) < 216:
                            q_ = int(mb.group(1)) + 8; B0 = f"a[{q_}:{q_+3}]"
                    elif ma:
                        q_ = max(int(ma.group(1)) - 8, 0); A0 = f"a[{q_}:{q_+3}]"
                    else:
                        A0 = pa
                cnt["p"] = (A, B)
                o2 += [mm(k & 1, A0, B0)] + gap[:cutp] + [mm(2 + (k & 1), A, B)] + gap[cutp:]
                i = j
            out = o2
        if "nobar" in d:
            out = ["s_nop 0" if l.startswith("s_barrier") else l for l in out]
        if "novm" in d:
            out = [(re.sub(r" vmcnt\(\d+\)", " vmcnt(63)", l) if l.startswith("s_waitcnt") and "vmcnt(0)" not in l else l) for l in out]
        lines, nfix = check_hazards(out)
        lines = self.pages(lines)
        self.log(f"{len(lines)} lines, {nfix} hazard nops inserted, {getattr(self.p,'n_sat',0)} lgkm saturation waits")
        ref = open("gated_mix__spectral_gfnet__swiglu_ffn__prompt.s.ref").read().split("\n")
        head = [l for l in ref if l.startswith(";") and "@launch" not in l and "Override" not in l and "grid=ceil" not in l]
        s = "\n".join(head) + "\n"
        s += f"; @launch grid=(256,1,1) block=(256,1,1) lds={LDS_BYTES}\n"
        s += '.amdgcn_target "amdgcn-amd-amdhsa--gfx950"\n.text\n'
        if self.o["align"]:
            s += ".p2align 12\n"
        s += f".globl {NAME}\n.p2align 8\n.type {NAME},@function\n{NAME}:\n"
        s += "\n".join(lines) + "\n"
        s += f"""s_endpgm
.section .rodata,"a"
.p2align 6
.amdhsa_kernel {NAME}
  .amdhsa_next_free_vgpr 512
  .amdhsa_next_free_sgpr 102
  .amdhsa_accum_offset 256
  .amdhsa_group_segment_fixed_size 0
  .amdhsa_kernarg_size 88
  .amdhsa_user_sgpr_count 2
  .amdhsa_user_sgpr_kernarg_segment_ptr 1
  .amdhsa_system_sgpr_workgroup_id_x 1
  .amdhsa_float_denorm_mode_32 3
.end_amdhsa_kernel
"""
        return s


def parse_opts(args):
    kw = {}
    for a in args:
        k, v = a.split("=")
        assert k in DEF, k
        if isinstance(DEF[k], bool):
            v = v not in ("0", "False")
        elif isinstance(DEF[k], int):
            v = int(v)
        kw[k] = v
    return kw


if __name__ == "__main__":
    out = sys.argv[1]
    g = Gen(**parse_opts(sys.argv[2:]))
    s = g.build()
    open(out, "w").write(s)
    print("; stamps:", g.stamp_names, file=sys.stderr)
```
